```python
import torch

def _softmax(x, axis=-1):
    return torch.softmax(x, dim=axis)
def _gelu(x):
    return torch.nn.functional.gelu(x, approximate="tanh")
def _silu(x):
    return torch.nn.functional.silu(x)
def _sigmoid(x):
    return torch.sigmoid(x)
def _layernorm(x, axis=-1, eps=1e-5):
    m = x.mean(dim=axis, keepdim=True)
    v = x.var(dim=axis, keepdim=True, unbiased=False)
    return (x - m) / torch.sqrt(v + eps)
def _scatter_add(tgt, idx, src, axis=0):
    return tgt.clone().index_add_(axis, idx, src)
def _segment_sum(src, seg, n):
    out = torch.zeros((n,) + src.shape[1:], dtype=src.dtype)
    return out.index_add_(0, seg, src)
def _pad(x, pw):
    flat = tuple(v for pair in reversed(pw) for v in pair)
    return torch.nn.functional.pad(x, flat)

kernel_name = 'gated_mix__gqa_block_cached__gqa_block_cached__decode'

def setup_inputs():

    _w = (lambda a: (lambda t: t.to(torch.bfloat16) if t.is_floating_point() else t)(torch.as_tensor(a)))
    def _A_setup():
        B, Sq, D = 2, 1, 512
        Hq, Hkv, Sk, Dh = 32, 8, 32768, 128
        assert Hq % Hkv == 0, (Hq, Hkv)
        return {
            "x": _w((lambda *s: torch.randn(*s, dtype=torch.bfloat16) * 0.05)(B, Sq, D)),
            "k_cache": _w((lambda *s: torch.randn(*s, dtype=torch.bfloat16) * 6.4)(B, Hkv, Sk, Dh)),
            "v_cache": _w((lambda *s: torch.randn(*s, dtype=torch.bfloat16) * 0.05)(B, Hkv, Sk, Dh)),
            "wq": _w((lambda *s: torch.randn(*s, dtype=torch.bfloat16) * 6.4)(D, Hq * Dh) * (D ** -0.5)),
            "wo": _w((lambda *s: torch.randn(*s, dtype=torch.bfloat16) * 0.05)(Hq * Dh, D) * ((Hq * Dh) ** -0.5)),
        }
    _A_in = _A_setup()

    def _B_setup():
        B, Sq, D = 2, 1, 512
        Hq, Hkv, Sk, Dh = 32, 8, 32768, 128
        assert Hq % Hkv == 0, (Hq, Hkv)
        return {
            "x": _w((lambda *s: torch.randn(*s, dtype=torch.bfloat16) * 0.05)(B, Sq, D)),
            "k_cache": _w((lambda *s: torch.randn(*s, dtype=torch.bfloat16) * 6.4)(B, Hkv, Sk, Dh)),
            "v_cache": _w((lambda *s: torch.randn(*s, dtype=torch.bfloat16) * 0.05)(B, Hkv, Sk, Dh)),
            "wq": _w((lambda *s: torch.randn(*s, dtype=torch.bfloat16) * 6.4)(D, Hq * Dh) * (D ** -0.5)),
            "wo": _w((lambda *s: torch.randn(*s, dtype=torch.bfloat16) * 0.05)(Hq * Dh, D) * ((Hq * Dh) ** -0.5)),
        }
    _B_in = _B_setup()

    return {
        "A_x": _A_in["x"],
        "A_k_cache": _A_in["k_cache"],
        "A_v_cache": _A_in["v_cache"],
        "A_wq": _A_in["wq"],
        "A_wo": _A_in["wo"],
        "B_x": _B_in["x"],
        "B_k_cache": _B_in["k_cache"],
        "B_v_cache": _B_in["v_cache"],
        "B_wq": _B_in["wq"],
        "B_wo": _B_in["wo"],
        "gate_w": _w((lambda *s: torch.randn(*s, dtype=torch.bfloat16) * 0.1)(512) * 16.0),
    }

def reference(A_x, A_k_cache, A_v_cache, A_wq, A_wo, B_x, B_k_cache, B_v_cache, B_wq, B_wo, gate_w):
    def _A_ref(x, k_cache, v_cache, wq, wo):
        B, Sq, D = x.shape
        Hq, Dh = 32, 128
        Hkv = k_cache.shape[1]
        rep = Hq // Hkv
        q = (lambda x, *d: x.permute(*d))((x @ wq).reshape(B, Sq, Hq, Dh), 0, 2, 1, 3)
        k = (lambda x, n, axis: torch.repeat_interleave(x, n, dim=axis))(k_cache, rep, axis=1)
        v = (lambda x, n, axis: torch.repeat_interleave(x, n, dim=axis))(v_cache, rep, axis=1)
        scores = torch.einsum("bhqd,bhkd->bhqk", q, k) * (Dh ** -0.5)
        p = _softmax(scores, axis=-1)
        o = torch.einsum("bhqk,bhkd->bhqd", p, v)
        return (lambda x, *d: x.permute(*d))(o, 0, 2, 1, 3).reshape(B, Sq, Hq * Dh) @ wo

    def _B_ref(x, k_cache, v_cache, wq, wo):
        B, Sq, D = x.shape
        Hq, Dh = 32, 128
        Hkv = k_cache.shape[1]
        rep = Hq // Hkv
        q = (lambda x, *d: x.permute(*d))((x @ wq).reshape(B, Sq, Hq, Dh), 0, 2, 1, 3)
        k = (lambda x, n, axis: torch.repeat_interleave(x, n, dim=axis))(k_cache, rep, axis=1)
        v = (lambda x, n, axis: torch.repeat_interleave(x, n, dim=axis))(v_cache, rep, axis=1)
        scores = torch.einsum("bhqd,bhkd->bhqk", q, k) * (Dh ** -0.5)
        p = _softmax(scores, axis=-1)
        o = torch.einsum("bhqk,bhkd->bhqd", p, v)
        return (lambda x, *d: x.permute(*d))(o, 0, 2, 1, 3).reshape(B, Sq, Hq * Dh) @ wo

    x = A_x
    g = _sigmoid((x * gate_w).sum(-1, keepdims=True))
    a = _A_ref(x, A_k_cache, A_v_cache, A_wq, A_wo)
    b = _B_ref(x, B_k_cache, B_v_cache, B_wq, B_wo)
    return g * a + (1 - g) * b
```

```python
import sys, math, struct

KNAME = "gated_mix__gqa_block_cached__gqa_block_cached__decode_kernel"

WS_E = 0x0
WS_QB = 0x1000
WS_H1 = 0x20000
H1_ROW = 640
WS_H2 = 0x100000
WS_DIAG = 0x200000
WS_SIZE = 0x400000
EPOCH_INC = 0x9E3779B1

RING = 32768
STG = 131072
LDS_BYTES = 163840


def f2u(x):
    return struct.unpack("<I", struct.pack("<f", x))[0]


class Gen:
    def __init__(self):
        self.o = []
        self.vm = []
        self.nid = 0

    def A(self, s):
        self.o.append("  " + s)

    def L(self, s):
        self.o.append(s + ":")

    def C(self, s):
        self.o.append("  ; " + s)

    def vmem(self, s, optional=False):
        self.A(s)
        self.nid += 1
        if not optional:
            self.vm.append(self.nid)
        return self.nid

    def wait_vm(self, op, force=False):
        if op not in self.vm:
            if force:
                self.A("s_nop 0")
            return False
        k = len(self.vm) - 1 - self.vm.index(op)
        assert k <= 63
        self.A(f"s_waitcnt vmcnt({k})")
        self.vm = self.vm[len(self.vm) - k:] if k else []
        return True

    def wait_vm_all(self):
        self.A("s_waitcnt vmcnt(0)")
        self.vm = []


def gen(N=6, P0=16, PQ=36, THR=0.0, diag=False, CATCH=2, SPIN=1 << 18, dbgdiag=False, pad=None):
    diag = diag or dbgdiag
    g = Gen()
    A, L, C = g.A, g.L, g.C
    scale = (128 ** -0.5) * math.log2(math.e)

    sK, sV, sWQ, sWO, sWS, sX, sG, sO = 20, 24, 28, 32, 36, 40, 44, 48
    srd = lambda b: f"s[{b}:{b+3}]"
    s_w, s_s, s_grp, s_br, s_b, s_hkv, s_kvoff, s_wb, s_tag32, s_cnt, s_c = 52, 53, 54, 55, 56, 57, 58, 59, 60, 61, 62
    s_tag16, s_tag12, s_t0, s_t1, s_t2, s_t3 = 63, 66, 67, 68, 69, 70
    s_ret = 64
    s_wqoff, s_wooff, s_stg, s_qoff, s_perm, s_j, s_set, s_spin, s_colb, s_m12 = 71, 72, 73, 74, 75, 76, 77, 78, 79, 80
    s_st = 84

    v_lane = 1
    v_dk = 2
    v_dv = 6
    v_rk = 8
    v_rv = 12
    v_m, v_nmc, v_mthr, v_gf = 20, 21, 22, 23
    v_t = 24
    v_q = 32
    v_kf = 48
    v_vf = 64
    v_s = 80
    v_p = 84
    v_one = 86
    v_o = 88
    v_l = 120
    v_x = 124
    v_gw = 140
    v_big = 156
    v_a = 192
    NV = 224
    vr = lambda b, n: f"v[{b}:{b+n-1}]"

    def stamp(i):
        if diag or (pad and i == 0):
            A(f"s_memrealtime s[{s_st+2*i}:{s_st+2*i+1}]")
        if pad and pad[0] == i:
            L("L_pad")
            A("s_memrealtime s[82:83]")
            A("s_waitcnt lgkmcnt(0)")
            A(f"s_sub_u32 s82, s82, s{s_st}")
            A(f"s_cmp_lt_u32 s82, {int(pad[1]*100)}")
            A("s_cbranch_scc1 L_pad")

    hdr = open("gated_mix__gqa_block_cached__gqa_block_cached__decode.s.ref").read().split("\n")
    for line in hdr:
        if line.startswith(";") and "@launch" not in line:
            g.o.append(line)
        elif not line.startswith(";"):
            break
    g.o.append(f"; @launch grid=(256,1,1) block=(256,1,1) lds={LDS_BYTES}")
    g.o.append('.amdgcn_target "amdgcn-amd-amdhsa--gfx950"')
    g.o.append(".text")
    g.o.append(f".globl {KNAME}")
    g.o.append(".p2align 8")
    g.o.append(f".type {KNAME},@function")
    L(KNAME)
    A("s_cmp_ge_u32 s2, 256")
    A("s_cbranch_scc1 L_end")
    A("s_lshr_b32 s55, s2, 7")
    A("s_mul_i32 s3, s55, 40")
    A("s_add_u32 s16, s0, s3")
    A("s_addc_u32 s17, s1, 0")
    A("s_load_dwordx8 s[4:11], s[16:17], 8")
    A("s_load_dwordx2 s[12:13], s[0:1], 0")
    A("s_load_dwordx2 s[18:19], s[0:1], 104")
    A("s_load_dwordx4 s[96:99], s[0:1], 80")
    stamp(0)
    C("ids")
    A("v_lshrrev_b32 v24, 6, v0")
    A("v_and_b32 v1, 63, v0")
    A(f"v_readfirstlane_b32 s{s_w}, v24")
    A(f"s_and_b32 s{s_s}, s2, 7")
    A(f"s_lshr_b32 s{s_grp}, s2, 3")
    A(f"s_bfe_u32 s{s_b}, s2, 0x10006")
    A(f"s_and_b32 s{s_hkv}, s{s_grp}, 7")
    C("lane fields: v24 = l>>4 (r / g), v25 = l&15 (p / n / i), v26 = l&3, v27 = (l>>2)&3")
    A("v_lshrrev_b32 v24, 4, v1")
    A("v_and_b32 v25, 15, v1")
    A("v_and_b32 v26, 3, v1")
    A("v_bfe_u32 v27, v1, 2, 2")
    C("x / gate operand offsets, wq dma offset")
    A(f"s_lshl_b32 s{s_t0}, s{s_w}, 8")
    A(f"v_lshl_add_u32 v28, v24, 4, s{s_t0}")
    A("v_and_b32 v29, 1, v1")
    A("v_lshl_add_u32 v29, v29, 10, v28")
    A("v_lshrrev_b32 v30, 2, v1")
    A("v_lshlrev_b32 v30, 13, v30")
    A("v_lshl_add_u32 v30, v26, 4, v30")
    C("column base of this workgroup's q slice: hkv*512 + (s*2+b)*32")
    A(f"s_lshl_b32 s{s_t0}, s{s_s}, 1")
    A(f"s_add_u32 s{s_t0}, s{s_t0}, s{s_b}")
    A(f"s_lshl_b32 s{s_t0}, s{s_t0}, 5")
    A(f"s_lshl_b32 s{s_colb}, s{s_hkv}, 9")
    A(f"s_add_u32 s{s_colb}, s{s_colb}, s{s_t0}")
    A(f"s_lshl_b32 s{s_wqoff}, s{s_colb}, 1")
    A(f"s_lshl_b32 s{s_t0}, s{s_w}, 20")
    A(f"s_add_u32 s{s_wqoff}, s{s_wqoff}, s{s_t0}")
    A(f"s_lshl_b32 s{s_stg}, s{s_w}, 13")
    A(f"s_add_u32 s{s_stg}, s{s_stg}, {STG}")
    A(f"s_lshl_b32 s{s_wb}, s{s_w}, 15")
    C("KV offset: (group&15)<<23 | s<<20 | w<<12")
    A(f"s_and_b32 s{s_t0}, s2, 127")
    A(f"s_lshl_b32 s{s_kvoff}, s{s_t0}, 20")
    A(f"s_lshl_b32 s{s_t0}, s{s_w}, 12")
    A(f"s_add_u32 s{s_kvoff}, s{s_kvoff}, s{s_t0}")
    C("DMA voffsets for K (xor key&15) and V (xor 2*(key&7))")
    A("v_lshlrev_b32 v31, 8, v24")
    for j in range(4):
        A(f"v_add_u32 v{v_dk+j}, {4*j}, v24")
        A(f"v_xor_b32 v{v_dk+j}, v{v_dk+j}, v25")
        A(f"v_lshl_add_u32 v{v_dk+j}, v{v_dk+j}, 4, v31")
    for j in range(2):
        A(f"v_add_u32 v{v_dv+j}, {4*j}, v24")
        A(f"v_lshlrev_b32 v{v_dv+j}, 1, v{v_dv+j}")
        A(f"v_xor_b32 v{v_dv+j}, v{v_dv+j}, v25")
        A(f"v_lshl_add_u32 v{v_dv+j}, v{v_dv+j}, 4, v31")
    A("s_waitcnt lgkmcnt(0)")
    def mksrd(d, p, size):
        A(f"s_mov_b32 s{d}, s{p}")
        A(f"s_and_b32 s{d+1}, s{p+1}, 0xffff")
        A(f"s_mov_b32 s{d+2}, {size:#x}")
        A(f"s_mov_b32 s{d+3}, 0x20000")
    A(f"s_load_dword s{s_tag32}, s[18:19], {WS_E}")
    mksrd(sWQ, 8, 0x400000)
    mksrd(sX, 12, 2048)
    mksrd(sG, 96, 1024)

    NT = 64
    def pos_of(t, j):
        return (8 if t < 4 else 16) + t * 8 + j
    Z = [("wq", j) for j in range(8)] + [("kv", t, j) for t in range(4) for j in range(8)] + \
        [("wo", j) for j in range(8)] + [("kv", t, j) for t in range(4, NT) for j in range(8)]
    slot_of = lambda t: t if t < 4 else t % 2
    ids = {}

    def issue(p, throttle=True):
        z = Z[p]
        need_nop = False
        if z[0] == "wq":
            j = z[1]
            if j:
                A(f"s_add_u32 s{s_wqoff}, s{s_wqoff}, 0x20000")
            A(f"s_add_u32 m0, s{s_stg}, {j*1024}")
            need_nop = True
        elif z[0] == "wo":
            j = z[1]
            if j:
                A(f"s_add_u32 s{s_wooff}, s{s_wooff}, 4096")
            A(f"s_add_u32 m0, s{s_stg}, {j*1024}")
            need_nop = True
        else:
            _, t, j = z
            if j == 0 and t > 0:
                A(f"s_add_u32 s{s_kvoff}, s{s_kvoff}, 16384")
            if j % 4 == 0:
                A(f"s_add_u32 m0, s{s_wb}, {slot_of(t)*8192 + (j//4)*4096}")
                need_nop = True
        waited = False
        if throttle and p - N >= 0:
            waited = g.wait_vm(ids[p - N])
        if need_nop and not waited:
            A("s_nop 0")
        if z[0] == "wq":
            ids[p] = g.vmem(f"buffer_load_dwordx4 v30, {srd(sWQ)}, s{s_wqoff} offen nt lds")
        elif z[0] == "wo":
            ids[p] = g.vmem(f"buffer_load_dwordx4 v{v_x}, {srd(sWO)}, s{s_wooff} offen nt lds")
        else:
            _, t, j = z
            if j < 4:
                ids[p] = g.vmem(f"buffer_load_dwordx4 v{v_dk+j}, {srd(sK)}, s{s_kvoff} offen offset:{j*1024} nt lds")
            else:
                ids[p] = g.vmem(f"buffer_load_dwordx4 v{v_dv+(j&1)}, {srd(sV)}, s{s_kvoff} offen offset:{(j-4)*1024} nt lds")

    C("wq slice -> staging")
    for p in range(8):
        issue(p, throttle=False)
    C("x and gate operands")
    for j in range(4):
        g.vmem(f"buffer_load_dwordx4 {vr(v_x+4*j,4)}, v29, {srd(sX)}, 0 offen offset:{j*64}")
    for j in range(4):
        last_small = g.vmem(f"buffer_load_dwordx4 {vr(v_gw+4*j,4)}, v28, {srd(sG)}, 0 offen offset:{j*64}")
    mksrd(sK, 4, 0x8000000)
    mksrd(sV, 6, 0x8000000)
    for p in range(8, P0):
        issue(p, throttle=False)
    mksrd(sWO, 10, 0x400000)
    mksrd(sWS, 18, WS_SIZE)
    mksrd(sO, 98, 2048)
    C("LDS read addresses")
    A(f"v_lshl_add_u32 v31, v25, 8, s{s_wb}")
    for j in range(4):
        A(f"v_add_u32 v{v_rk+j}, {4*j}, v24")
        A(f"v_xor_b32 v{v_rk+j}, v{v_rk+j}, v25")
        A(f"v_lshl_add_u32 v{v_rk+j}, v{v_rk+j}, 4, v31")
    A("v_lshl_add_u32 v28, v24, 2, v27")
    A(f"v_lshl_add_u32 v31, v28, 8, s{s_wb}")
    A("v_and_b32 v29, 1, v26")
    A("v_lshl_add_u32 v31, v29, 3, v31")
    A("v_and_b32 v28, 7, v28")
    A("v_lshlrev_b32 v28, 1, v28")
    A("v_lshrrev_b32 v29, 1, v26")
    A("v_or_b32 v28, v28, v29")
    for cb in range(8):
        A(f"v_xor_b32 v{v_rv+cb}, {2*cb}, v28")
        A(f"v_lshl_add_u32 v{v_rv+cb}, v{v_rv+cb}, 4, v31")
    C("q-proj LDS read address: stg + (g*8+r)*64 + c*8")
    A("v_lshl_add_u32 v28, v24, 3, v27")
    A(f"v_lshl_add_u32 v28, v28, 6, s{s_stg}")
    A("v_lshl_add_u32 v28, v26, 3, v28")
    C("constants, accumulators")
    A(f"s_mov_b32 s{s_c}, {f2u(scale):#x}")
    A(f"s_mov_b32 s{s_perm}, 0x07060302")
    A(f"s_mov_b32 s{s_m12}, 0xfffff000")
    A(f"v_mov_b32 v{v_m}, 0xff800000")
    A(f"v_mov_b32 v{v_mthr}, 0xff800000")
    A(f"v_mov_b32 v{v_nmc}, 0")
    A(f"v_mov_b32 v{v_one}, 0x3f803f80")
    A(f"v_mov_b32 v{v_one+1}, 0x3f803f80")
    for r in range(36):
        A(f"v_mov_b32 v{v_o+r}, 0")
    A(f"s_lshl_b32 s{s_j}, s{s_b}, 3")
    A(f"s_add_u32 s{s_j}, s{s_j}, s{s_s}")
    A(f"s_lshl_b32 s{s_set}, s{s_br}, 3")
    A(f"s_add_u32 s{s_set}, s{s_set}, s{s_hkv}")
    A("s_waitcnt lgkmcnt(0)")
    A(f"s_add_u32 s{s_tag32}, s{s_tag32}, {EPOCH_INC:#x}")
    A(f"s_and_b32 s{s_tag16}, s{s_tag32}, 0xffff")
    A(f"s_and_b32 s{s_tag12}, s{s_tag32}, 0xfff")

    C("---- q projection of this workgroup's 32 columns ----")
    g.wait_vm(last_small)
    stamp(1)
    for j in range(4):
        for cb in range(2):
            for hf in range(2):
                r = v_big + (j * 2 + cb) * 4 + hf * 2
                A(f"ds_read_b64_tr_b16 {vr(r,2)}, v28 offset:{j*2048 + hf*256 + cb*32}")
    dq = [v_kf, v_kf + 4, v_kf + 8]
    for j in range(4):
        A(f"v_mfma_f32_16x16x32_bf16 {vr(dq[2],4)}, {vr(v_gw+4*j,4)}, {vr(v_x+4*j,4)}, " + ("0" if j == 0 else vr(dq[2], 4)))
    for j in range(4):
        A(f"s_waitcnt lgkmcnt({12-4*j})")
        for cb in range(2):
            A(f"v_mfma_f32_16x16x32_bf16 {vr(dq[cb],4)}, {vr(v_big+(j*2+cb)*4,4)}, {vr(v_x+4*j,4)}, " + ("0" if j == 0 else vr(dq[cb], 4)))
    C("partials -> own staging area: (n&1)*128 + g*16 (+64 for cb 1), gate at 256 + (n&1)*4")
    A("v_and_b32 v29, 1, v1")
    A(f"v_lshl_add_u32 v30, v29, 7, s{s_stg}")
    A("v_lshl_add_u32 v30, v24, 4, v30")
    A(f"v_lshl_add_u32 v31, v29, 2, s{s_stg}")
    A("s_nop 4")
    A(f"ds_write_b32 v31, v{dq[2]} offset:256")
    A(f"ds_write_b128 v30, {vr(dq[0],4)}")
    A(f"ds_write_b128 v30, {vr(dq[1],4)} offset:64")
    A(f"v_mov_b32 v30, {STG}")
    A("v_lshl_add_u32 v30, v25, 4, v30")
    A("v_bfe_u32 v31, v1, 3, 1")
    A("v_lshlrev_b32 v31, 2, v31")
    A(f"v_add_u32 v31, {STG}, v31")
    A("s_waitcnt lgkmcnt(0)")
    A("s_barrier")
    for w in range(4):
        A(f"ds_read_b128 {vr(v_big+4*w,4)}, v30 offset:{w*8192}")
    for w in range(4):
        A(f"ds_read_b32 v{v_big+16+w}, v31 offset:{w*8192+256}")
    C("store address: QB + ((br*2+n)*4096 + colbase + c8*4)*4 ; lane = n*8 + c8")
    A("v_bfe_u32 v30, v1, 3, 1")
    A("v_and_b32 v31, 7, v1")
    A("v_lshlrev_b32 v31, 4, v31")
    A("v_lshl_add_u32 v30, v30, 14, v31")
    A(f"s_lshl_b32 s{s_t0}, s{s_br}, 13")
    A(f"s_add_u32 s{s_t0}, s{s_t0}, s{s_colb}")
    A(f"s_lshl_b32 s{s_t0}, s{s_t0}, 2")
    A(f"s_add_u32 s{s_t0}, s{s_t0}, {WS_QB}")
    A("s_waitcnt lgkmcnt(4)")
    for e in range(4):
        A(f"v_add_f32 v{v_big+e}, v{v_big+e}, v{v_big+4+e}")
        A(f"v_add_f32 v{v_big+8+e}, v{v_big+8+e}, v{v_big+12+e}")
    for e in range(4):
        A(f"v_add_f32 v{v_big+e}, v{v_big+e}, v{v_big+8+e}")
    for e in range(4):
        A(f"v_cvt_pk_bf16_f32 v{v_big+e}, 0, v{v_big+e}")
    for e in range(4):
        A(f"v_or_b32 v{v_big+e}, s{s_tag16}, v{v_big+e}")
    A(f"s_cmp_eq_u32 s{s_w}, 0")
    A("s_cbranch_scc0 L_noqstore")
    A("s_mov_b64 exec, 0xffff")
    g.vmem(f"buffer_store_dwordx4 {vr(v_big,4)}, v30, {srd(sWS)}, s{s_t0} offen sc1", optional=True)
    A("s_mov_b64 exec, -1")
    L("L_noqstore")
    stamp(2)
    C("gate: gf = br ? 1-g : g for batch (l>>3)&1")
    A("s_waitcnt lgkmcnt(0)")
    A(f"v_add_f32 v{v_big+16}, v{v_big+16}, v{v_big+17}")
    A(f"v_add_f32 v{v_big+18}, v{v_big+18}, v{v_big+19}")
    A(f"v_add_f32 v{v_big+16}, v{v_big+16}, v{v_big+18}")
    C("sigmoid(z) = 1/(1+2^(-z*log2e)); 1-sigmoid(z) = sigmoid(-z)")
    A(f"s_cmp_eq_u32 s{s_br}, 0")
    A(f"s_cselect_b32 s{s_t1}, {f2u(-math.log2(math.e)):#x}, s{s_t1}")
    A(f"s_cselect_b32 s{s_t1}, s{s_t1}, {f2u(math.log2(math.e)):#x}")
    A(f"v_mul_f32 v{v_big+16}, s{s_t1}, v{v_big+16}")
    A(f"v_exp_f32 v{v_big+16}, v{v_big+16}")
    A("s_nop 0")
    A(f"v_add_f32 v{v_big+16}, 1.0, v{v_big+16}")
    A(f"v_rcp_f32 v{v_gf}, v{v_big+16}")
    C("wo dma offsets: rows hq*128 + 32w + 4j + r, columns cq*128")
    A(f"v_lshlrev_b32 v{v_x}, 10, v24")
    A(f"v_lshl_add_u32 v{v_x}, v25, 4, v{v_x}")
    A(f"s_lshl_b32 s{s_t0}, s{s_hkv}, 2")
    A(f"s_lshr_b32 s{s_t1}, s{s_j}, 2")
    A(f"s_add_u32 s{s_t0}, s{s_t0}, s{s_t1}")
    A(f"s_lshl_b32 s{s_wooff}, s{s_t0}, 17")
    A(f"s_lshl_b32 s{s_t1}, s{s_w}, 15")
    A(f"s_add_u32 s{s_wooff}, s{s_wooff}, s{s_t1}")
    A(f"s_and_b32 s{s_t1}, s{s_j}, 3")
    A(f"s_lshl_b32 s{s_t1}, s{s_t1}, 8")
    A(f"s_add_u32 s{s_wooff}, s{s_wooff}, s{s_t1}")
    C("q gather offsets")
    A(f"v_lshlrev_b32 v{v_x+1}, 9, v26")
    A(f"v_lshl_add_u32 v{v_x+1}, v24, 5, v{v_x+1}")
    A(f"s_lshr_b32 s{s_t0}, s{s_grp}, 3")
    A(f"s_lshl_b32 s{s_qoff}, s{s_t0}, 14")
    A(f"s_lshl_b32 s{s_t0}, s{s_hkv}, 11")
    A(f"s_add_u32 s{s_qoff}, s{s_qoff}, s{s_t0}")
    A(f"s_add_u32 s{s_qoff}, s{s_qoff}, {WS_QB}")

    nsm = [0]
    def KR(t):
        for j in range(4):
            A(f"ds_read_b128 {vr(v_kf+4*j,4)}, v{v_rk+j} offset:{slot_of(t)*8192}")
    def QK(t):
        A("s_waitcnt lgkmcnt(0)")
        for j in range(4):
            A(f"v_mfma_f32_16x16x32_bf16 {vr(v_s,4)}, {vr(v_kf+4*j,4)}, {vr(v_q+4*j,4)}, " + ("0" if j == 0 else vr(v_s, 4)))
    def SM(t):
        nsm[0] += 1
        A("s_nop 7")
        A(f"v_max3_f32 v{v_t}, v{v_s}, v{v_s+1}, v{v_s+2}")
        A(f"v_max_f32 v{v_t}, v{v_t}, v{v_s+3}")
        A(f"v_cmp_gt_f32 vcc, v{v_t}, v{v_mthr}")
        A(f"s_cbranch_vccz L_sm{nsm[0]}")
        A(f"s_call_b64 s[{s_ret}:{s_ret+1}], L_rescale")
        L(f"L_sm{nsm[0]}")
        for r in range(4):
            A(f"v_fma_f32 v{v_s+r}, v{v_s+r}, s{s_c}, v{v_nmc}")
        for r in range(4):
            A(f"v_exp_f32 v{v_s+r}, v{v_s+r}")
        A("s_nop 0")
        A(f"v_cvt_pk_bf16_f32 v{v_p}, v{v_s}, v{v_s+1}")
        A(f"v_cvt_pk_bf16_f32 v{v_p+1}, v{v_s+2}, v{v_s+3}")
    def VR(t):
        for cb in range(8):
            A(f"ds_read_b64_tr_b16 {vr(v_vf+2*cb,2)}, v{v_rv+cb} offset:{slot_of(t)*8192+4096}")
    def PV(t):
        A(f"v_mfma_f32_16x16x16_bf16 {vr(v_l,4)}, {vr(v_one,2)}, {vr(v_p,2)}, {vr(v_l,4)}")
        A("s_waitcnt lgkmcnt(0)")
        for cb in range(8):
            A(f"v_mfma_f32_16x16x16_bf16 {vr(v_o+4*cb,4)}, {vr(v_vf+2*cb,2)}, {vr(v_p,2)}, {vr(v_o+4*cb,4)}")
    phases = []
    for t in range(NT):
        pk = pos_of(t, 3) + N
        pv = pos_of(t, 7) + N
        phases += [(KR, t, pk, pos_of(t, 3)), (QK, t, pk + 1, None), (SM, t, pk + 2, None),
                   (VR, t, pv, pos_of(t, 7)), (PV, t, pv + 1, None)]
    done = set()

    def qloads(track):
        last = None
        for j in range(4):
            for hf in range(2):
                s = f"buffer_load_dwordx4 {vr(v_big+8*j+4*hf,4)}, v{v_x+1}, {srd(sWS)}, s{s_qoff} offen offset:{j*128+hf*16} sc1"
                if track:
                    last = g.vmem(s)
                else:
                    A(s)
        return last

    def tagcheck(regs, stag, mask, acc):
        A(f"v_xor_b32 v{acc}, s{stag}, v{regs[0]}")
        for r in regs[1:]:
            A(f"v_bitop3_b32 v{acc}, v{acc}, v{r}, s{stag} bitop3:0xf6")
        A(f"v_and_b32 v{acc}, {mask:#x}, v{acc}")

    PVAL = PQ + N + 1
    LOOP0 = pos_of(8, 0)
    nextph = 0
    q_last = None
    sched_log = []

    def run_phases(p, maxn):
        nonlocal nextph
        n = 0
        while nextph < len(phases) and n < maxn and phases[nextph][2] <= p:
            f, t, tp, ld = phases[nextph]
            if ld is not None:
                assert ids[ld] not in g.vm, (f.__name__, t, p)
            f(t)
            done.add((f.__name__, t))
            sched_log.append((p, f.__name__, t))
            nextph += 1
            n += 1

    def check_slot(p):
        z = Z[p]
        if z[0] == "kv" and z[1] >= 4:
            t, j = z[1], z[2]
            prev = t - 4 if t < 6 else t - 2
            need = ("QK", prev) if j < 4 else ("PV", prev)
            assert need in done, (p, z, need)

    for p in range(P0, LOOP0):
        check_slot(p)
        issue(p)
        if p == P0 + 4:
            C("every wave has read the q partials: staging may be refilled with wo")
            A("s_barrier")
        if p == PQ:
            q_last = qloads(True)
        if p == PVAL:
            C("---- validate the gathered q ----")
            g.wait_vm(q_last)
            A(f"s_mov_b32 s{s_spin}, {SPIN}")
            L("L_qcheck")
            tagcheck(list(range(v_big, v_big + 32)), s_tag16, 0xffff, v_t)
            A(f"v_cmp_ne_u32 vcc, 0, v{v_t}")
            A("s_cbranch_vccnz L_qretry")
            for r in range(16):
                A(f"v_perm_b32 v{v_q+r}, v{v_big+2*r+1}, v{v_big+2*r}, s{s_perm}")
            stamp(3)
        if p >= PVAL:
            run_phases(p, CATCH)
    assert phases[nextph][2] >= LOOP0, (phases[nextph], LOOP0)
    niter = (NT - 8) // 2
    A(f"s_mov_b32 s{s_cnt}, {niter}")
    g.o.append(".p2align 3")
    L("L_loop")
    assert len(g.vm) <= N, g.vm
    for p in range(LOOP0, LOOP0 + 16):
        check_slot(p)
        issue(p)
        run_phases(p, 1)
    A(f"s_sub_u32 s{s_cnt}, s{s_cnt}, 1")
    A(f"s_cmp_lg_u32 s{s_cnt}, 0")
    A("s_cbranch_scc1 L_loop")
    shift_t = NT - 10
    rem = [ph for ph in phases[nextph:] if ph[1] < 10]
    stamp(4)
    C("---- drain: remaining phases of the last tiles ----")
    for f, t, tp, ld in rem:
        if ld is not None:
            g.wait_vm(ids[ld])
        f(t)
    assert not g.vm
    stamp(5)

    SCR = 16384
    C("---- combine the four waves ----")
    C("O[h][128] fp32 at wb + 16384 ; {m,l}[h] at wb + 16384 + 2048 (slot 2 of the wave's own ring)")
    A("v_lshrrev_b32 v24, 4, v1")
    A("v_and_b32 v26, 3, v1")
    A(f"v_lshl_add_u32 v28, v26, 9, s{s_wb}")
    A("v_lshl_add_u32 v28, v24, 4, v28")
    A(f"v_lshl_add_u32 v29, v26, 3, s{s_wb}")
    A("s_mov_b32 exec_lo, 0x000f000f")
    A("s_mov_b32 exec_hi, 0x000f000f")
    A(f"ds_write_b32 v29, v{v_m} offset:{SCR+2048}")
    A(f"ds_write_b32 v29, v{v_l} offset:{SCR+2052}")
    for cb in range(8):
        A(f"ds_write_b128 v28, {vr(v_o+4*cb,4)} offset:{SCR+cb*64}")
    A("s_mov_b64 exec, -1")
    C("reader: h = 2*(w&1) + (l>>5), d4 = l&31")
    A(f"s_and_b32 s{s_t0}, s{s_w}, 1")
    A(f"s_lshl_b32 s{s_t1}, s{s_t0}, 10")
    A(f"v_lshl_add_u32 v28, v1, 4, s{s_t1}")
    A("v_add_u32 v30, 0x10000, v28")
    A("v_lshrrev_b32 v29, 5, v1")
    A(f"s_lshl_b32 s{s_t1}, s{s_t0}, 1")
    A(f"v_add_u32 v29, s{s_t1}, v29")
    A(f"v_mul_u32_u24 v31, {16*H1_ROW}, v29")
    A("v_lshlrev_b32 v29, 3, v29")
    A("v_add_u32 v26, 0x10000, v29")
    A("v_and_b32 v27, 31, v1")
    A("v_lshl_add_u32 v27, v27, 4, v31")
    A(f"s_lshl_b32 s{s_t1}, s{s_set}, 6")
    A(f"s_add_u32 s{s_t1}, s{s_t1}, s{s_j}")
    A(f"s_mul_i32 s{s_t1}, s{s_t1}, {H1_ROW}")
    A(f"s_add_u32 s{s_t1}, s{s_t1}, {WS_H1}")
    A("s_waitcnt lgkmcnt(0)")
    A("s_barrier")
    A(f"s_cmp_ge_u32 s{s_w}, 2")
    A("s_cbranch_scc1 L_nopub1")
    B = v_big
    A(f"ds_read_b64 {vr(B+16,2)}, v29 offset:{SCR+2048}")
    A(f"ds_read_b64 {vr(B+18,2)}, v29 offset:{SCR+2048+RING}")
    A(f"ds_read_b64 {vr(B+20,2)}, v26 offset:{SCR+2048}")
    A(f"ds_read_b64 {vr(B+22,2)}, v26 offset:{SCR+2048+RING}")
    A(f"ds_read_b128 {vr(B,4)}, v28 offset:{SCR}")
    A(f"ds_read_b128 {vr(B+4,4)}, v28 offset:{SCR+RING}")
    A(f"ds_read_b128 {vr(B+8,4)}, v30 offset:{SCR}")
    A(f"ds_read_b128 {vr(B+12,4)}, v30 offset:{SCR+RING}")
    A("s_waitcnt lgkmcnt(4)")
    A(f"v_max3_f32 v24, v{B+16}, v{B+18}, v{B+20}")
    A(f"v_max_f32 v24, v24, v{B+22}")
    A(f"v_mul_f32 v25, s{s_c}, v24")
    for w in range(4):
        A(f"v_fma_f32 v{B+16+2*w}, v{B+16+2*w}, s{s_c}, -v25")
    for w in range(4):
        A(f"v_exp_f32 v{B+16+2*w}, v{B+16+2*w}")
    A(f"v_mul_f32 v26, v{B+16}, v{B+17}")
    for w in range(1, 4):
        A(f"v_fmac_f32 v26, v{B+16+2*w}, v{B+17+2*w}")
    A("v_rcp_f32 v24, v26")
    A("v_log_f32 v26, v26")
    A("s_waitcnt lgkmcnt(0)")
    for e in range(4):
        A(f"v_mul_f32 v{B+e}, v{B+16}, v{B+e}")
    for w in range(1, 4):
        for e in range(4):
            A(f"v_fmac_f32 v{B+e}, v{B+16+2*w}, v{B+4*w+e}")
    for e in range(4):
        A(f"v_mul_f32 v{B+e}, v24, v{B+e}")
    for e in range(4):
        A(f"v_cvt_pk_bf16_f32 v{B+e}, 0, v{B+e}")
    for e in range(4):
        A(f"v_or_b32 v{B+e}, s{s_tag16}, v{B+e}")
    A(f"buffer_store_dwordx4 {vr(B,4)}, v27, {srd(sWS)}, s{s_t1} offen sc1")
    A("v_add_f32 v24, v25, v26")
    A(f"v_mov_b32 v25, s{s_tag32}")
    A("s_mov_b32 exec_lo, 1")
    A("s_mov_b32 exec_hi, 1")
    A(f"buffer_store_dwordx2 v[24:25], v27, {srd(sWS)}, s{s_t1} offen offset:512 sc1")
    A("s_mov_b64 exec, -1")
    L("L_nopub1")

    C("---- output projection of head hq, columns cq*128 + w*32 .. +32 ----")
    A("v_lshrrev_b32 v24, 4, v1")
    A("v_and_b32 v25, 15, v1")
    A(f"v_mul_u32_u24 v26, {H1_ROW}, v25")
    A("v_lshl_add_u32 v27, v24, 5, v26")
    A(f"s_lshr_b32 s{s_t0}, s{s_j}, 2")
    A(f"s_lshl_b32 s{s_t1}, s{s_set}, 2")
    A(f"s_add_u32 s{s_t2}, s{s_t1}, s{s_t0}")
    A(f"s_mul_i32 s{s_t1}, s{s_t2}, {16*H1_ROW}")
    A(f"s_add_u32 s{s_t1}, s{s_t1}, {WS_H1}")
    def h1loads():
        A(f"buffer_load_dwordx2 {vr(B+32,2)}, v26, {srd(sWS)}, s{s_t1} offen offset:512 sc1")
        for ks in range(4):
            for hf in range(2):
                A(f"buffer_load_dwordx4 {vr(B+8*ks+4*hf,4)}, v27, {srd(sWS)}, s{s_t1} offen offset:{ks*128+hf*16} sc1")
    A("s_nop 0")
    h1loads()
    C("wo operand from staging: stg + (g*8+r)*256 + c*8 + w*64")
    A("v_bfe_u32 v28, v1, 2, 2")
    A("v_lshl_add_u32 v28, v24, 3, v28")
    A(f"s_lshl_b32 s{s_t0}, s{s_w}, 6")
    A(f"s_add_u32 s{s_t0}, s{s_t0}, {STG}")
    A(f"v_lshl_add_u32 v28, v28, 8, s{s_t0}")
    A("v_and_b32 v29, 3, v1")
    A("v_lshl_add_u32 v28, v29, 3, v28")
    for ks in range(4):
        for e in range(2):
            for hf in range(2):
                A(f"ds_read_b64_tr_b16 {vr(v_a+(ks*2+e)*4+hf*2,2)}, v28 offset:{ks*8192+hf*1024+e*32}")
    C("hop-2 store offsets: H2 + ((b*32 + cg)*64 + p)*64 + g*16 ; cg = cq*8 + 2w + e ; b = n>>3")
    A("v_lshrrev_b32 v29, 3, v25")
    A("v_lshlrev_b32 v29, 17, v29")
    A("v_lshl_add_u32 v29, v24, 4, v29")
    A(f"s_and_b32 s{s_t0}, s{s_j}, 3")
    A(f"s_lshl_b32 s{s_t0}, s{s_t0}, 2")
    A(f"s_add_u32 s{s_t0}, s{s_t0}, s{s_w}")
    A(f"s_lshl_b32 s{s_t0}, s{s_t0}, 13")
    A(f"s_lshl_b32 s{s_t2}, s{s_t2}, 6")
    A(f"s_add_u32 s{s_t0}, s{s_t0}, s{s_t2}")
    A(f"s_add_u32 s{s_t0}, s{s_t0}, {WS_H2}")
    A(f"s_add_u32 s{s_t3}, s{s_t0}, 4096")
    A(f"s_mov_b32 s{s_spin}, {SPIN}")
    L("L_h1check")
    A("s_waitcnt vmcnt(0)")
    tagcheck(list(range(B, B + 32)), s_tag16, 0xffff, 30)
    A(f"v_bitop3_b32 v30, v30, v{B+33}, s{s_tag32} bitop3:0xf6")
    A("v_cmp_ne_u32 vcc, 0, v30")
    A("s_cbranch_vccnz L_h1retry")
    stamp(6)
    for r in range(16):
        A(f"v_perm_b32 v{v_q+r}, v{B+2*r+1}, v{B+2*r}, s{s_perm}")
    A("s_waitcnt lgkmcnt(0)")
    D = [v_kf, v_kf + 4]
    for ks in range(4):
        for e in range(2):
            A(f"v_mfma_f32_16x16x32_bf16 {vr(D[e],4)}, {vr(v_a+(ks*2+e)*4,4)}, {vr(v_q+4*ks,4)}, " + ("0" if ks == 0 else vr(D[e], 4)))
    C("weights: softmax of lambda over the 8 splits, times the gate factor")
    lam = B + 32
    dpps = ["quad_perm:[1,0,3,2]", "quad_perm:[2,3,0,1]", "row_half_mirror"]
    A(f"v_max_f32_dpp v30, v{lam}, v{lam} {dpps[0]} row_mask:0xf bank_mask:0xf")
    for d in dpps[1:]:
        A("s_nop 1")
        A(f"v_max_f32_dpp v30, v30, v30 {d} row_mask:0xf bank_mask:0xf")
    A(f"v_sub_f32 v30, v{lam}, v30")
    A("v_exp_f32 v30, v30")
    A("s_nop 1")
    A(f"v_add_f32_dpp v31, v30, v30 {dpps[0]} row_mask:0xf bank_mask:0xf")
    for d in dpps[1:]:
        A("s_nop 1")
        A(f"v_add_f32_dpp v31, v31, v31 {d} row_mask:0xf bank_mask:0xf")
    A("v_rcp_f32 v31, v31")
    A(f"v_mul_f32 v30, v30, v{v_gf}")
    A("v_mul_f32 v30, v30, v31")
    for r in range(8):
        A(f"v_mul_f32 v{v_kf+r}, v30, v{v_kf+r}")
    for d in dpps:
        for r in range(8):
            A(f"v_add_f32_dpp v{v_kf+r}, v{v_kf+r}, v{v_kf+r} {d} row_mask:0xf bank_mask:0xf")
    C("round to 20 bits, tag")
    A(f"v_mov_b32 v31, s{s_tag12}")
    for r in range(8):
        A(f"v_add_u32 v{v_kf+r}, 0x800, v{v_kf+r}")
    for r in range(8):
        A(f"v_and_or_b32 v{v_kf+r}, v{v_kf+r}, s{s_m12}, v31")
    A("s_mov_b32 exec_lo, 0x01010101")
    A("s_mov_b32 exec_hi, 0x01010101")
    A(f"buffer_store_dwordx4 {vr(D[0],4)}, v29, {srd(sWS)}, s{s_t0} offen sc1")
    A(f"buffer_store_dwordx4 {vr(D[1],4)}, v29, {srd(sWS)}, s{s_t3} offen sc1")
    A("s_mov_b64 exec, -1")

    C("---- final reduction: wave 0 of workgroups 0..63 ----")
    A("s_cmp_ge_u32 s2, 64")
    A("s_cbranch_scc1 L_fin")
    A(f"s_cmp_lg_u32 s{s_w}, 0")
    A("s_cbranch_scc1 L_fin")
    A("v_lshlrev_b32 v24, 4, v1")
    A(f"s_lshl_b32 s{s_t1}, s2, 12")
    A(f"s_add_u32 s{s_t1}, s{s_t1}, {WS_H2}")
    def h2loads():
        for j in range(4):
            A(f"buffer_load_dwordx4 {vr(B+4*j,4)}, v24, {srd(sWS)}, s{s_t1} offen offset:{j*1024} sc1")
    h2loads()
    C("output offset: f*32 + (c4*4 + e(row))*2, e = [0,2,1,3][row]")
    A("v_and_b32 v25, 3, v1")
    A("v_lshlrev_b32 v25, 3, v25")
    A("v_bfe_u32 v26, v1, 4, 1")
    A("v_lshl_add_u32 v25, v26, 2, v25")
    A("v_bfe_u32 v26, v1, 5, 1")
    A("v_lshl_add_u32 v25, v26, 1, v25")
    A(f"s_lshl_b32 s{s_t0}, s2, 5")
    A(f"s_mov_b32 s{s_spin}, {SPIN}")
    L("L_h2check")
    A("s_waitcnt vmcnt(0)")
    tagcheck(list(range(B, B + 16)), s_tag12, 0xfff, 30)
    A("v_cmp_ne_u32 vcc, 0, v30")
    A("s_cbranch_vccnz L_h2retry")
    for r in range(16):
        A(f"v_and_b32 v{B+r}, s{s_m12}, v{B+r}")
    for e in range(4):
        A(f"v_add_f32 v{B+e}, v{B+e}, v{B+4+e}")
        A(f"v_add_f32 v{B+8+e}, v{B+8+e}, v{B+12+e}")
    for e in range(4):
        A(f"v_add_f32 v{B+e}, v{B+e}, v{B+8+e}")
    A("s_nop 1")
    A(f"v_permlane32_swap_b32 v{B}, v{B+1}")
    A(f"v_permlane32_swap_b32 v{B+2}, v{B+3}")
    A("s_nop 1")
    A(f"v_add_f32 v{B}, v{B}, v{B+1}")
    A(f"v_add_f32 v{B+2}, v{B+2}, v{B+3}")
    A("s_nop 1")
    A(f"v_permlane16_swap_b32 v{B}, v{B+2}")
    A("s_nop 1")
    A(f"v_add_f32 v{B}, v{B}, v{B+2}")
    A("s_nop 1")
    A(f"v_add_f32_dpp v{B}, v{B}, v{B} row_ror:4 row_mask:0xf bank_mask:0xf")
    A("s_nop 1")
    A(f"v_add_f32_dpp v{B}, v{B}, v{B} row_ror:8 row_mask:0xf bank_mask:0xf")
    A(f"v_cvt_pk_bf16_f32 v{B}, v{B}, v{B}")
    A("s_mov_b32 exec_lo, 0x000f000f")
    A("s_mov_b32 exec_hi, 0x000f000f")
    A(f"buffer_store_short v{B}, v25, {srd(sO)}, s{s_t0} offen")
    A("s_cmp_lg_u32 s2, 0")
    A("s_cbranch_scc1 L_fin")
    C("every workgroup has published, hence read, the epoch word: advance it")
    A("s_mov_b64 exec, 1")
    A(f"v_mov_b32 v24, s{s_tag32}")
    A("v_mov_b32 v25, 0")
    A(f"buffer_store_dword v24, v25, {srd(sWS)}, 0 offen offset:{WS_E} sc1")
    L("L_fin")
    stamp(7)
    if diag:
        A("s_mov_b64 exec, 1")
        A("s_waitcnt lgkmcnt(0)")
        A(f"s_lshl_b32 s{s_t0}, s2, 2")
        A(f"s_add_u32 s{s_t0}, s{s_t0}, s{s_w}")
        A(f"s_lshl_b32 s{s_t0}, s{s_t0}, 5")
        A(f"s_add_u32 s{s_t0}, s{s_t0}, {WS_DIAG}")
        for i in range(8):
            A(f"v_mov_b32 v{B+i}, s{s_st+2*i}")
        A("v_mov_b32 v24, 0")
        A(f"buffer_store_dwordx4 {vr(B,4)}, v24, {srd(sWS)}, s{s_t0} offen")
        A(f"buffer_store_dwordx4 {vr(B+4,4)}, v24, {srd(sWS)}, s{s_t0} offen offset:16")
    if dbgdiag:
        A("s_load_dwordx2 s[4:5], s[0:1], 96")
        A("s_waitcnt lgkmcnt(0)")
        A(f"s_cmp_lg_u32 s{s_w}, 0")
        A("s_cbranch_scc1 L_end")
        A(f"v_not_b32 v{B+8}, v{B}")
        A(f"v_not_b32 v{B+9}, v{B+5}")
        for i in range(10):
            A(f"global_atomic_umax v24, v{B+i}, s[4:5] offset:{4*i}")
    L("L_end")
    A("s_endpgm")

    def retry(label, back, loads, wait):
        L(label)
        A(f"s_sub_u32 s{s_spin}, s{s_spin}, 1")
        A(f"s_cmp_eq_u32 s{s_spin}, 0")
        A("s_cbranch_scc1 L_end")
        loads()
        if wait:
            A("s_waitcnt vmcnt(0)")
        A(f"s_branch {back}")
    retry("L_h1retry", "L_h1check", h1loads, False)
    retry("L_h2retry", "L_h2check", h2loads, False)
    retry("L_qretry", "L_qcheck", lambda: qloads(False), True)

    L("L_rescale")
    C("new running max over the four lane groups; rescale O and l")
    A(f"v_max_f32 v{v_t}, v{v_t}, v{v_m}")
    A(f"v_mov_b32 v{v_t+1}, v{v_t}")
    A("s_nop 1")
    A(f"v_permlane32_swap_b32 v{v_t}, v{v_t+1}")
    A("s_nop 1")
    A(f"v_max_f32 v{v_t}, v{v_t}, v{v_t+1}")
    A(f"v_mov_b32 v{v_t+1}, v{v_t}")
    A("s_nop 1")
    A(f"v_permlane16_swap_b32 v{v_t}, v{v_t+1}")
    A("s_nop 1")
    A(f"v_max_f32 v{v_t}, v{v_t}, v{v_t+1}")
    A(f"v_mul_f32 v{v_nmc}, s{s_c}, v{v_t}")
    A(f"v_fma_f32 v{v_t+1}, v{v_m}, s{s_c}, -v{v_nmc}")
    A(f"v_exp_f32 v{v_t+1}, v{v_t+1}")
    A(f"v_sub_f32 v{v_nmc}, 0, v{v_nmc}")
    A(f"v_mov_b32 v{v_m}, v{v_t}")
    if THR:
        A(f"v_add_f32 v{v_mthr}, {f2u(THR/scale):#x}, v{v_t}")
    else:
        A(f"v_mov_b32 v{v_mthr}, v{v_t}")
    for r in range(33):
        A(f"v_mul_f32 v{v_o+r}, v{v_t+1}, v{v_o+r}")
    A(f"s_setpc_b64 s[{s_ret}:{s_ret+1}]")

    g.o.append('.section .rodata,"a"')
    g.o.append(".p2align 6")
    g.o.append(f".amdhsa_kernel {KNAME}")
    g.o.append(f"  .amdhsa_next_free_vgpr {NV}")
    g.o.append("  .amdhsa_next_free_sgpr 102")
    g.o.append(f"  .amdhsa_accum_offset {NV}")
    g.o.append("  .amdhsa_group_segment_fixed_size 0")
    g.o.append("  .amdhsa_kernarg_size 112")
    g.o.append("  .amdhsa_user_sgpr_count 2")
    g.o.append("  .amdhsa_user_sgpr_kernarg_segment_ptr 1")
    g.o.append("  .amdhsa_system_sgpr_workgroup_id_x 1")
    g.o.append("  .amdhsa_float_denorm_mode_32 3")
    g.o.append(".end_amdhsa_kernel")
    gen.sched_log = sched_log
    return "\n".join(g.o) + "\n"


if __name__ == "__main__":
    kw = {}
    for a in sys.argv[2:]:
        k, v = a.split("=")
        kw[k] = eval(v)
    src = gen(**kw)
    open(sys.argv[1], "w").write(src)
```

```python
import sys, math, struct

KNAME = "gated_mix__gqa_block_cached__gqa_block_cached__decode_kernel"

WS_E = 0x0
WS_QB = 0x1000
WS_H1 = 0x20000
H1_ROW = 640
WS_H2 = 0x100000
WS_DIAG = 0x200000
WS_SIZE = 0x400000
EPOCH_INC = 0x9E3779B1

RING = 32768
STG = 131072
LDS_BYTES = 163840


def f2u(x):
    return struct.unpack("<I", struct.pack("<f", x))[0]


class Gen:
    def __init__(self):
        self.o = []
        self.vm = []
        self.nid = 0

    def A(self, s):
        self.o.append("  " + s)

    def L(self, s):
        self.o.append(s + ":")

    def C(self, s):
        self.o.append("  ; " + s)

    def vmem(self, s, optional=False):
        self.A(s)
        self.nid += 1
        if not optional:
            self.vm.append(self.nid)
        return self.nid

    def wait_vm(self, op, force=False):
        if op not in self.vm:
            if force:
                self.A("s_nop 0")
            return False
        k = len(self.vm) - 1 - self.vm.index(op)
        assert k <= 63
        self.A(f"s_waitcnt vmcnt({k})")
        self.vm = self.vm[len(self.vm) - k:] if k else []
        return True

    def wait_vm_all(self):
        self.A("s_waitcnt vmcnt(0)")
        self.vm = []


def gen(N=6, P0=16, PQ=36, THR=0.0, diag=False, CATCH=2, SPIN=1 << 18, dbgdiag=False, pad=None, smap='head', perturb=None):
    diag = diag or dbgdiag
    g = Gen()
    A, L, C = g.A, g.L, g.C
    scale = (128 ** -0.5) * math.log2(math.e)

    sK, sV, sWQ, sWO, sWS, sX, sG, sO = 20, 24, 28, 32, 36, 40, 44, 48
    srd = lambda b: f"s[{b}:{b+3}]"
    s_w, s_s, s_grp, s_br, s_b, s_hkv, s_kvoff, s_wb, s_tag32, s_cnt, s_c = 52, 53, 54, 55, 56, 57, 58, 59, 60, 61, 62
    s_tag16, s_tag12, s_t0, s_t1, s_t2, s_t3 = 63, 66, 67, 68, 69, 70
    s_ret = 64
    s_wqoff, s_wooff, s_stg, s_qoff, s_perm, s_j, s_set, s_spin, s_colb, s_m12 = 71, 72, 73, 74, 75, 76, 77, 78, 79, 80
    s_st = 84

    v_lane = 1
    v_dk = 2
    v_dv = 6
    v_rk = 8
    v_rv = 12
    v_m, v_nmc, v_mthr, v_gf = 20, 21, 22, 23
    v_t = 24
    v_q = 32
    v_kf = 48
    v_vf = 64
    v_s = 80
    v_p = 84
    v_one = 86
    v_o = 88
    v_l = 120
    v_x = 124
    v_gw = 140
    v_big = 156
    v_a = 192
    NV = 224
    vr = lambda b, n: f"v[{b}:{b+n-1}]"

    SMAPS = {"head": ["start", "wq", "qpub", "qval", "issued", "drained", "h1ok", "end"],
             "tail": ["start", "drained", "bar", "pub1", "h1first", "h1ok", "pub2", "end"]}
    def stamp(name):
        if name not in SMAPS[smap]:
            return
        i = SMAPS[smap].index(name)
        if diag or (pad and i == 0):
            A(f"s_memrealtime s[{s_st+2*i}:{s_st+2*i+1}]")
        if pad and pad[0] == i:
            L("L_pad")
            A("s_memrealtime s[82:83]")
            A("s_waitcnt lgkmcnt(0)")
            A(f"s_sub_u32 s82, s82, s{s_st}")
            A(f"s_cmp_lt_u32 s82, {int(pad[1]*100)}")
            A("s_cbranch_scc1 L_pad")

    hdr = open("gated_mix__gqa_block_cached__gqa_block_cached__decode.s.ref").read().split("\n")
    for line in hdr:
        if line.startswith(";") and "@launch" not in line:
            g.o.append(line)
        elif not line.startswith(";"):
            break
    g.o.append(f"; @launch grid=(256,1,1) block=(256,1,1) lds={LDS_BYTES}")
    g.o.append('.amdgcn_target "amdgcn-amd-amdhsa--gfx950"')
    g.o.append(".text")
    g.o.append(f".globl {KNAME}")
    g.o.append(".p2align 8")
    g.o.append(f".type {KNAME},@function")
    L(KNAME)
    A("s_cmp_ge_u32 s2, 256")
    A("s_cbranch_scc1 L_end")
    A("s_lshr_b32 s55, s2, 7")
    A("s_mul_i32 s3, s55, 40")
    A("s_add_u32 s16, s0, s3")
    A("s_addc_u32 s17, s1, 0")
    A("s_load_dwordx8 s[4:11], s[16:17], 8")
    A("s_load_dwordx2 s[12:13], s[0:1], 0")
    A("s_load_dwordx2 s[18:19], s[0:1], 104")
    A("s_load_dwordx4 s[96:99], s[0:1], 80")
    stamp("start")
    C("ids")
    A("v_lshrrev_b32 v24, 6, v0")
    A("v_and_b32 v1, 63, v0")
    A(f"v_readfirstlane_b32 s{s_w}, v24")
    A(f"s_and_b32 s{s_s}, s2, 7")
    A(f"s_lshr_b32 s{s_grp}, s2, 3")
    A(f"s_bfe_u32 s{s_b}, s2, 0x10006")
    A(f"s_and_b32 s{s_hkv}, s{s_grp}, 7")
    C("lane fields: v24 = l>>4 (r / g), v25 = l&15 (p / n / i), v26 = l&3, v27 = (l>>2)&3")
    A("v_lshrrev_b32 v24, 4, v1")
    A("v_and_b32 v25, 15, v1")
    A("v_and_b32 v26, 3, v1")
    A("v_bfe_u32 v27, v1, 2, 2")
    C("x / gate operand offsets, wq dma offset")
    A(f"s_lshl_b32 s{s_t0}, s{s_w}, 8")
    A(f"v_lshl_add_u32 v28, v24, 4, s{s_t0}")
    A("v_and_b32 v29, 1, v1")
    A("v_lshl_add_u32 v29, v29, 10, v28")
    A("v_lshrrev_b32 v30, 2, v1")
    A("v_lshlrev_b32 v30, 13, v30")
    A("v_lshl_add_u32 v30, v26, 4, v30")
    C("column base of this workgroup's q slice: hkv*512 + (s*2+b)*32")
    A(f"s_lshl_b32 s{s_t0}, s{s_s}, 1")
    A(f"s_add_u32 s{s_t0}, s{s_t0}, s{s_b}")
    A(f"s_lshl_b32 s{s_t0}, s{s_t0}, 5")
    A(f"s_lshl_b32 s{s_colb}, s{s_hkv}, 9")
    A(f"s_add_u32 s{s_colb}, s{s_colb}, s{s_t0}")
    A(f"s_lshl_b32 s{s_wqoff}, s{s_colb}, 1")
    A(f"s_lshl_b32 s{s_t0}, s{s_w}, 20")
    A(f"s_add_u32 s{s_wqoff}, s{s_wqoff}, s{s_t0}")
    A(f"s_lshl_b32 s{s_stg}, s{s_w}, 13")
    A(f"s_add_u32 s{s_stg}, s{s_stg}, {STG}")
    A(f"s_lshl_b32 s{s_wb}, s{s_w}, 15")
    C("KV offset: (group&15)<<23 | s<<20 | w<<12")
    A(f"s_and_b32 s{s_t0}, s2, 127")
    A(f"s_lshl_b32 s{s_kvoff}, s{s_t0}, 20")
    A(f"s_lshl_b32 s{s_t0}, s{s_w}, 12")
    A(f"s_add_u32 s{s_kvoff}, s{s_kvoff}, s{s_t0}")
    C("DMA voffsets for K (xor key&15) and V (xor 2*(key&7))")
    A("v_lshlrev_b32 v31, 8, v24")
    for j in range(4):
        A(f"v_add_u32 v{v_dk+j}, {4*j}, v24")
        A(f"v_xor_b32 v{v_dk+j}, v{v_dk+j}, v25")
        A(f"v_lshl_add_u32 v{v_dk+j}, v{v_dk+j}, 4, v31")
    for j in range(2):
        A(f"v_add_u32 v{v_dv+j}, {4*j}, v24")
        A(f"v_lshlrev_b32 v{v_dv+j}, 1, v{v_dv+j}")
        A(f"v_xor_b32 v{v_dv+j}, v{v_dv+j}, v25")
        A(f"v_lshl_add_u32 v{v_dv+j}, v{v_dv+j}, 4, v31")
    A("s_waitcnt lgkmcnt(0)")
    def mksrd(d, p, size):
        A(f"s_mov_b32 s{d}, s{p}")
        A(f"s_and_b32 s{d+1}, s{p+1}, 0xffff")
        A(f"s_mov_b32 s{d+2}, {size:#x}")
        A(f"s_mov_b32 s{d+3}, 0x20000")
    A(f"s_load_dword s{s_tag32}, s[18:19], {WS_E}")
    mksrd(sWQ, 8, 0x400000)
    mksrd(sX, 12, 2048)
    mksrd(sG, 96, 1024)

    NT = 64
    def pos_of(t, j):
        return (8 if t < 4 else 16) + t * 8 + j
    Z = [("wq", j) for j in range(8)] + [("kv", t, j) for t in range(4) for j in range(8)] + \
        [("wo", j) for j in range(8)] + [("kv", t, j) for t in range(4, NT) for j in range(8)]
    slot_of = lambda t: t if t < 4 else t % 2
    ids = {}

    def issue(p, throttle=True):
        z = Z[p]
        need_nop = False
        if z[0] == "wq":
            j = z[1]
            if j:
                A(f"s_add_u32 s{s_wqoff}, s{s_wqoff}, 0x20000")
            A(f"s_add_u32 m0, s{s_stg}, {j*1024}")
            need_nop = True
        elif z[0] == "wo":
            j = z[1]
            if j:
                A(f"s_add_u32 s{s_wooff}, s{s_wooff}, 4096")
            A(f"s_add_u32 m0, s{s_stg}, {j*1024}")
            need_nop = True
        else:
            _, t, j = z
            if j == 0 and t > 0:
                A(f"s_add_u32 s{s_kvoff}, s{s_kvoff}, 16384")
            if j % 4 == 0:
                A(f"s_add_u32 m0, s{s_wb}, {slot_of(t)*8192 + (j//4)*4096}")
                need_nop = True
        waited = False
        if throttle and p - N >= 0:
            waited = g.wait_vm(ids[p - N])
        if need_nop and not waited:
            A("s_nop 0")
        if z[0] == "wq":
            ids[p] = g.vmem(f"buffer_load_dwordx4 v30, {srd(sWQ)}, s{s_wqoff} offen nt lds")
        elif z[0] == "wo":
            ids[p] = g.vmem(f"buffer_load_dwordx4 v{v_x}, {srd(sWO)}, s{s_wooff} offen nt lds")
        else:
            _, t, j = z
            if j < 4:
                ids[p] = g.vmem(f"buffer_load_dwordx4 v{v_dk+j}, {srd(sK)}, s{s_kvoff} offen offset:{j*1024} nt lds")
            else:
                ids[p] = g.vmem(f"buffer_load_dwordx4 v{v_dv+(j&1)}, {srd(sV)}, s{s_kvoff} offen offset:{(j-4)*1024} nt lds")

    C("wq slice -> staging")
    for p in range(8):
        issue(p, throttle=False)
    C("x and gate operands")
    for j in range(4):
        g.vmem(f"buffer_load_dwordx4 {vr(v_x+4*j,4)}, v29, {srd(sX)}, 0 offen offset:{j*64}")
    for j in range(4):
        last_small = g.vmem(f"buffer_load_dwordx4 {vr(v_gw+4*j,4)}, v28, {srd(sG)}, 0 offen offset:{j*64}")
    mksrd(sK, 4, 0x8000000)
    mksrd(sV, 6, 0x8000000)
    for p in range(8, P0):
        issue(p, throttle=False)
    mksrd(sWO, 10, 0x400000)
    mksrd(sWS, 18, WS_SIZE)
    mksrd(sO, 98, 2048)
    C("LDS read addresses")
    A(f"v_lshl_add_u32 v31, v25, 8, s{s_wb}")
    for j in range(4):
        A(f"v_add_u32 v{v_rk+j}, {4*j}, v24")
        A(f"v_xor_b32 v{v_rk+j}, v{v_rk+j}, v25")
        A(f"v_lshl_add_u32 v{v_rk+j}, v{v_rk+j}, 4, v31")
    A("v_lshl_add_u32 v28, v24, 2, v27")
    A(f"v_lshl_add_u32 v31, v28, 8, s{s_wb}")
    A("v_and_b32 v29, 1, v26")
    A("v_lshl_add_u32 v31, v29, 3, v31")
    A("v_and_b32 v28, 7, v28")
    A("v_lshlrev_b32 v28, 1, v28")
    A("v_lshrrev_b32 v29, 1, v26")
    A("v_or_b32 v28, v28, v29")
    for cb in range(8):
        A(f"v_xor_b32 v{v_rv+cb}, {2*cb}, v28")
        A(f"v_lshl_add_u32 v{v_rv+cb}, v{v_rv+cb}, 4, v31")
    C("q-proj LDS read address: stg + (g*8+r)*64 + c*8")
    A("v_lshl_add_u32 v28, v24, 3, v27")
    A(f"v_lshl_add_u32 v28, v28, 6, s{s_stg}")
    A("v_lshl_add_u32 v28, v26, 3, v28")
    C("constants, accumulators")
    A(f"s_mov_b32 s{s_c}, {f2u(scale):#x}")
    A(f"s_mov_b32 s{s_perm}, 0x07060302")
    A(f"s_mov_b32 s{s_m12}, 0xfffff000")
    A(f"v_mov_b32 v{v_m}, 0xff800000")
    A(f"v_mov_b32 v{v_mthr}, 0xff800000")
    A(f"v_mov_b32 v{v_nmc}, 0")
    A(f"v_mov_b32 v{v_one}, 0x3f803f80")
    A(f"v_mov_b32 v{v_one+1}, 0x3f803f80")
    for r in range(36):
        A(f"v_mov_b32 v{v_o+r}, 0")
    A(f"s_lshl_b32 s{s_j}, s{s_b}, 3")
    A(f"s_add_u32 s{s_j}, s{s_j}, s{s_s}")
    A(f"s_lshl_b32 s{s_set}, s{s_br}, 3")
    A(f"s_add_u32 s{s_set}, s{s_set}, s{s_hkv}")
    A("s_waitcnt lgkmcnt(0)")
    A(f"s_add_u32 s{s_tag32}, s{s_tag32}, {EPOCH_INC:#x}")
    A(f"s_and_b32 s{s_tag16}, s{s_tag32}, 0xffff")
    A(f"s_and_b32 s{s_tag12}, s{s_tag32}, 0xfff")

    C("---- q projection of this workgroup's 32 columns ----")
    g.wait_vm(last_small)
    stamp("wq")
    for j in range(4):
        for cb in range(2):
            for hf in range(2):
                r = v_big + (j * 2 + cb) * 4 + hf * 2
                A(f"ds_read_b64_tr_b16 {vr(r,2)}, v28 offset:{j*2048 + hf*256 + cb*32}")
    dq = [v_kf, v_kf + 4, v_kf + 8]
    for j in range(4):
        A(f"v_mfma_f32_16x16x32_bf16 {vr(dq[2],4)}, {vr(v_gw+4*j,4)}, {vr(v_x+4*j,4)}, " + ("0" if j == 0 else vr(dq[2], 4)))
    for j in range(4):
        A(f"s_waitcnt lgkmcnt({12-4*j})")
        for cb in range(2):
            A(f"v_mfma_f32_16x16x32_bf16 {vr(dq[cb],4)}, {vr(v_big+(j*2+cb)*4,4)}, {vr(v_x+4*j,4)}, " + ("0" if j == 0 else vr(dq[cb], 4)))
    C("partials -> own staging area: (n&1)*128 + g*16 (+64 for cb 1), gate at 256 + (n&1)*4")
    A("v_and_b32 v29, 1, v1")
    A(f"v_lshl_add_u32 v30, v29, 7, s{s_stg}")
    A("v_lshl_add_u32 v30, v24, 4, v30")
    A(f"v_lshl_add_u32 v31, v29, 2, s{s_stg}")
    A("s_nop 4")
    A(f"ds_write_b32 v31, v{dq[2]} offset:256")
    A(f"ds_write_b128 v30, {vr(dq[0],4)}")
    A(f"ds_write_b128 v30, {vr(dq[1],4)} offset:64")
    A(f"v_mov_b32 v30, {STG}")
    A("v_lshl_add_u32 v30, v25, 4, v30")
    A("v_bfe_u32 v31, v1, 3, 1")
    A("v_lshlrev_b32 v31, 2, v31")
    A(f"v_add_u32 v31, {STG}, v31")
    A("s_waitcnt lgkmcnt(0)")
    A("s_barrier")
    for w in range(4):
        A(f"ds_read_b128 {vr(v_big+4*w,4)}, v30 offset:{w*8192}")
    for w in range(4):
        A(f"ds_read_b32 v{v_big+16+w}, v31 offset:{w*8192+256}")
    C("store address: QB + ((br*2+n)*4096 + colbase + c8*4)*4 ; lane = n*8 + c8")
    A("v_bfe_u32 v30, v1, 3, 1")
    A("v_and_b32 v31, 7, v1")
    A("v_lshlrev_b32 v31, 4, v31")
    A("v_lshl_add_u32 v30, v30, 14, v31")
    A(f"s_lshl_b32 s{s_t0}, s{s_br}, 13")
    A(f"s_add_u32 s{s_t0}, s{s_t0}, s{s_colb}")
    A(f"s_lshl_b32 s{s_t0}, s{s_t0}, 2")
    A(f"s_add_u32 s{s_t0}, s{s_t0}, {WS_QB}")
    A("s_waitcnt lgkmcnt(4)")
    for e in range(4):
        A(f"v_add_f32 v{v_big+e}, v{v_big+e}, v{v_big+4+e}")
        A(f"v_add_f32 v{v_big+8+e}, v{v_big+8+e}, v{v_big+12+e}")
    for e in range(4):
        A(f"v_add_f32 v{v_big+e}, v{v_big+e}, v{v_big+8+e}")
    for e in range(4):
        A(f"v_cvt_pk_bf16_f32 v{v_big+e}, 0, v{v_big+e}")
    for e in range(4):
        A(f"v_or_b32 v{v_big+e}, s{s_tag16}, v{v_big+e}")
    A(f"s_cmp_eq_u32 s{s_w}, 0")
    A("s_cbranch_scc0 L_noqstore")
    A("s_mov_b64 exec, 0xffff")
    g.vmem(f"buffer_store_dwordx4 {vr(v_big,4)}, v30, {srd(sWS)}, s{s_t0} offen sc1", optional=True)
    A("s_mov_b64 exec, -1")
    L("L_noqstore")
    stamp("qpub")
    C("gate: gf = br ? 1-g : g for batch (l>>3)&1")
    A("s_waitcnt lgkmcnt(0)")
    A(f"v_add_f32 v{v_big+16}, v{v_big+16}, v{v_big+17}")
    A(f"v_add_f32 v{v_big+18}, v{v_big+18}, v{v_big+19}")
    A(f"v_add_f32 v{v_big+16}, v{v_big+16}, v{v_big+18}")
    C("sigmoid(z) = 1/(1+2^(-z*log2e)); 1-sigmoid(z) = sigmoid(-z)")
    A(f"s_cmp_eq_u32 s{s_br}, 0")
    A(f"s_cselect_b32 s{s_t1}, {f2u(-math.log2(math.e)):#x}, s{s_t1}")
    A(f"s_cselect_b32 s{s_t1}, s{s_t1}, {f2u(math.log2(math.e)):#x}")
    A(f"v_mul_f32 v{v_big+16}, s{s_t1}, v{v_big+16}")
    A(f"v_exp_f32 v{v_big+16}, v{v_big+16}")
    A("s_nop 0")
    A(f"v_add_f32 v{v_big+16}, 1.0, v{v_big+16}")
    A(f"v_rcp_f32 v{v_gf}, v{v_big+16}")
    C("wo dma offsets: rows hq*128 + 32w + 4j + r, columns cq*128")
    A(f"v_lshlrev_b32 v{v_x}, 10, v24")
    A(f"v_lshl_add_u32 v{v_x}, v25, 4, v{v_x}")
    A(f"s_lshl_b32 s{s_t0}, s{s_hkv}, 2")
    A(f"s_lshr_b32 s{s_t1}, s{s_j}, 2")
    A(f"s_add_u32 s{s_t0}, s{s_t0}, s{s_t1}")
    A(f"s_lshl_b32 s{s_wooff}, s{s_t0}, 17")
    A(f"s_lshl_b32 s{s_t1}, s{s_w}, 15")
    A(f"s_add_u32 s{s_wooff}, s{s_wooff}, s{s_t1}")
    A(f"s_and_b32 s{s_t1}, s{s_j}, 3")
    A(f"s_lshl_b32 s{s_t1}, s{s_t1}, 8")
    A(f"s_add_u32 s{s_wooff}, s{s_wooff}, s{s_t1}")
    C("q gather offsets")
    A(f"v_lshlrev_b32 v{v_x+1}, 9, v26")
    A(f"v_lshl_add_u32 v{v_x+1}, v24, 5, v{v_x+1}")
    A(f"s_lshr_b32 s{s_t0}, s{s_grp}, 3")
    A(f"s_lshl_b32 s{s_qoff}, s{s_t0}, 14")
    A(f"s_lshl_b32 s{s_t0}, s{s_hkv}, 11")
    A(f"s_add_u32 s{s_qoff}, s{s_qoff}, s{s_t0}")
    A(f"s_add_u32 s{s_qoff}, s{s_qoff}, {WS_QB}")

    nsm = [0]
    def KR(t):
        for j in range(4):
            A(f"ds_read_b128 {vr(v_kf+4*j,4)}, v{v_rk+j} offset:{slot_of(t)*8192}")
    def QK(t):
        A("s_waitcnt lgkmcnt(0)")
        for j in range(4):
            A(f"v_mfma_f32_16x16x32_bf16 {vr(v_s,4)}, {vr(v_kf+4*j,4)}, {vr(v_q+4*j,4)}, " + ("0" if j == 0 else vr(v_s, 4)))
    def SM(t):
        nsm[0] += 1
        A("s_nop 7")
        A(f"v_max3_f32 v{v_t}, v{v_s}, v{v_s+1}, v{v_s+2}")
        A(f"v_max_f32 v{v_t}, v{v_t}, v{v_s+3}")
        A(f"v_cmp_gt_f32 vcc, v{v_t}, v{v_mthr}")
        A(f"s_cbranch_vccz L_sm{nsm[0]}")
        A(f"s_call_b64 s[{s_ret}:{s_ret+1}], L_rescale")
        L(f"L_sm{nsm[0]}")
        for r in range(4):
            A(f"v_fma_f32 v{v_s+r}, v{v_s+r}, s{s_c}, v{v_nmc}")
        for r in range(4):
            A(f"v_exp_f32 v{v_s+r}, v{v_s+r}")
        A("s_nop 0")
        A(f"v_cvt_pk_bf16_f32 v{v_p}, v{v_s}, v{v_s+1}")
        A(f"v_cvt_pk_bf16_f32 v{v_p+1}, v{v_s+2}, v{v_s+3}")
    def VR(t):
        for cb in range(8):
            A(f"ds_read_b64_tr_b16 {vr(v_vf+2*cb,2)}, v{v_rv+cb} offset:{slot_of(t)*8192+4096}")
    def PV(t):
        A(f"v_mfma_f32_16x16x16_bf16 {vr(v_l,4)}, {vr(v_one,2)}, {vr(v_p,2)}, {vr(v_l,4)}")
        A("s_waitcnt lgkmcnt(0)")
        for cb in range(8):
            A(f"v_mfma_f32_16x16x16_bf16 {vr(v_o+4*cb,4)}, {vr(v_vf+2*cb,2)}, {vr(v_p,2)}, {vr(v_o+4*cb,4)}")
    phases = []
    for t in range(NT):
        pk = pos_of(t, 3) + N
        pv = pos_of(t, 7) + N
        phases += [(KR, t, pk, pos_of(t, 3)), (QK, t, pk + 1, None), (SM, t, pk + 2, None),
                   (VR, t, pv, pos_of(t, 7)), (PV, t, pv + 1, None)]
    done = set()

    def qloads(track):
        last = None
        for j in range(4):
            for hf in range(2):
                s = f"buffer_load_dwordx4 {vr(v_big+8*j+4*hf,4)}, v{v_x+1}, {srd(sWS)}, s{s_qoff} offen offset:{j*128+hf*16} sc1"
                if track:
                    last = g.vmem(s)
                else:
                    A(s)
        return last

    def tagcheck(regs, stag, mask, acc):
        A(f"v_xor_b32 v{acc}, s{stag}, v{regs[0]}")
        for r in regs[1:]:
            A(f"v_bitop3_b32 v{acc}, v{acc}, v{r}, s{stag} bitop3:0xf6")
        A(f"v_and_b32 v{acc}, {mask:#x}, v{acc}")

    PVAL = PQ + N + 1
    LOOP0 = pos_of(8, 0)
    nextph = 0
    q_last = None
    sched_log = []

    def run_phases(p, maxn):
        nonlocal nextph
        n = 0
        while nextph < len(phases) and n < maxn and phases[nextph][2] <= p:
            f, t, tp, ld = phases[nextph]
            if ld is not None:
                assert ids[ld] not in g.vm, (f.__name__, t, p)
            f(t)
            done.add((f.__name__, t))
            sched_log.append((p, f.__name__, t))
            nextph += 1
            n += 1

    def check_slot(p):
        z = Z[p]
        if z[0] == "kv" and z[1] >= 4:
            t, j = z[1], z[2]
            prev = t - 4 if t < 6 else t - 2
            need = ("QK", prev) if j < 4 else ("PV", prev)
            assert need in done, (p, z, need)

    for p in range(P0, LOOP0):
        check_slot(p)
        issue(p)
        if p == P0 + 4:
            C("every wave has read the q partials: staging may be refilled with wo")
            A("s_barrier")
        if p == PQ:
            q_last = qloads(True)
        if p == PVAL:
            C("---- validate the gathered q ----")
            g.wait_vm(q_last)
            A(f"s_mov_b32 s{s_spin}, {SPIN}")
            L("L_qcheck")
            tagcheck(list(range(v_big, v_big + 32)), s_tag16, 0xffff, v_t)
            A(f"v_cmp_ne_u32 vcc, 0, v{v_t}")
            A("s_cbranch_vccnz L_qretry")
            for r in range(16):
                A(f"v_perm_b32 v{v_q+r}, v{v_big+2*r+1}, v{v_big+2*r}, s{s_perm}")
            stamp("qval")
        if p >= PVAL:
            run_phases(p, CATCH)
    assert phases[nextph][2] >= LOOP0, (phases[nextph], LOOP0)
    niter = (NT - 8) // 2
    A(f"s_mov_b32 s{s_cnt}, {niter}")
    g.o.append(".p2align 3")
    L("L_loop")
    assert len(g.vm) <= N, g.vm
    for p in range(LOOP0, LOOP0 + 16):
        check_slot(p)
        issue(p)
        run_phases(p, 1)
    A(f"s_sub_u32 s{s_cnt}, s{s_cnt}, 1")
    A(f"s_cmp_lg_u32 s{s_cnt}, 0")
    A("s_cbranch_scc1 L_loop")
    shift_t = NT - 10
    rem = [ph for ph in phases[nextph:] if ph[1] < 10]
    stamp("issued")
    C("---- drain: remaining phases of the last tiles ----")
    for f, t, tp, ld in rem:
        if ld is not None:
            g.wait_vm(ids[ld])
        f(t)
    assert not g.vm
    stamp("drained")

    SCR = 16384
    C("---- combine the four waves ----")
    C("O[h][128] fp32 at wb + 16384 ; {m,l}[h] at wb + 16384 + 2048 (slot 2 of the wave's own ring)")
    A("v_lshrrev_b32 v24, 4, v1")
    A("v_and_b32 v26, 3, v1")
    A(f"v_lshl_add_u32 v28, v26, 9, s{s_wb}")
    A("v_lshl_add_u32 v28, v24, 4, v28")
    A(f"v_lshl_add_u32 v29, v26, 3, s{s_wb}")
    A("s_mov_b32 exec_lo, 0x000f000f")
    A("s_mov_b32 exec_hi, 0x000f000f")
    A(f"ds_write_b32 v29, v{v_m} offset:{SCR+2048}")
    A(f"ds_write_b32 v29, v{v_l} offset:{SCR+2052}")
    for cb in range(8):
        A(f"ds_write_b128 v28, {vr(v_o+4*cb,4)} offset:{SCR+cb*64}")
    A("s_mov_b64 exec, -1")
    C("reader: h = 2*(w&1) + (l>>5), d4 = l&31")
    A(f"s_and_b32 s{s_t0}, s{s_w}, 1")
    A(f"s_lshl_b32 s{s_t1}, s{s_t0}, 10")
    A(f"v_lshl_add_u32 v28, v1, 4, s{s_t1}")
    A("v_add_u32 v30, 0x10000, v28")
    A("v_lshrrev_b32 v29, 5, v1")
    A(f"s_lshl_b32 s{s_t1}, s{s_t0}, 1")
    A(f"v_add_u32 v29, s{s_t1}, v29")
    A(f"v_mul_u32_u24 v31, {16*H1_ROW}, v29")
    A("v_lshlrev_b32 v29, 3, v29")
    A("v_add_u32 v26, 0x10000, v29")
    A("v_and_b32 v27, 31, v1")
    A("v_lshl_add_u32 v27, v27, 4, v31")
    A(f"s_lshl_b32 s{s_t1}, s{s_set}, 6")
    A(f"s_add_u32 s{s_t1}, s{s_t1}, s{s_j}")
    A(f"s_mul_i32 s{s_t1}, s{s_t1}, {H1_ROW}")
    A(f"s_add_u32 s{s_t1}, s{s_t1}, {WS_H1}")
    A("s_waitcnt lgkmcnt(0)")
    A("s_barrier")
    stamp("bar")
    A(f"s_cmp_ge_u32 s{s_w}, 2")
    A("s_cbranch_scc1 L_nopub1")
    B = v_big
    A(f"ds_read_b64 {vr(B+16,2)}, v29 offset:{SCR+2048}")
    A(f"ds_read_b64 {vr(B+18,2)}, v29 offset:{SCR+2048+RING}")
    A(f"ds_read_b64 {vr(B+20,2)}, v26 offset:{SCR+2048}")
    A(f"ds_read_b64 {vr(B+22,2)}, v26 offset:{SCR+2048+RING}")
    A(f"ds_read_b128 {vr(B,4)}, v28 offset:{SCR}")
    A(f"ds_read_b128 {vr(B+4,4)}, v28 offset:{SCR+RING}")
    A(f"ds_read_b128 {vr(B+8,4)}, v30 offset:{SCR}")
    A(f"ds_read_b128 {vr(B+12,4)}, v30 offset:{SCR+RING}")
    A("s_waitcnt lgkmcnt(4)")
    A(f"v_max3_f32 v24, v{B+16}, v{B+18}, v{B+20}")
    A(f"v_max_f32 v24, v24, v{B+22}")
    A(f"v_mul_f32 v25, s{s_c}, v24")
    for w in range(4):
        A(f"v_fma_f32 v{B+16+2*w}, v{B+16+2*w}, s{s_c}, -v25")
    for w in range(4):
        A(f"v_exp_f32 v{B+16+2*w}, v{B+16+2*w}")
    A(f"v_mul_f32 v26, v{B+16}, v{B+17}")
    for w in range(1, 4):
        A(f"v_fmac_f32 v26, v{B+16+2*w}, v{B+17+2*w}")
    A("v_rcp_f32 v24, v26")
    A("v_log_f32 v26, v26")
    A("s_waitcnt lgkmcnt(0)")
    for e in range(4):
        A(f"v_mul_f32 v{B+e}, v{B+16}, v{B+e}")
    for w in range(1, 4):
        for e in range(4):
            A(f"v_fmac_f32 v{B+e}, v{B+16+2*w}, v{B+4*w+e}")
    for e in range(4):
        A(f"v_mul_f32 v{B+e}, v24, v{B+e}")
    for e in range(4):
        A(f"v_cvt_pk_bf16_f32 v{B+e}, 0, v{B+e}")
    for e in range(4):
        A(f"v_or_b32 v{B+e}, s{s_tag16}, v{B+e}")
    A(f"buffer_store_dwordx4 {vr(B,4)}, v27, {srd(sWS)}, s{s_t1} offen sc1")
    A("v_add_f32 v24, v25, v26")
    A(f"v_mov_b32 v25, s{s_tag32}")
    A("s_mov_b32 exec_lo, 1")
    A("s_mov_b32 exec_hi, 1")
    A(f"buffer_store_dwordx2 v[24:25], v27, {srd(sWS)}, s{s_t1} offen offset:512 sc1")
    A("s_mov_b64 exec, -1")
    L("L_nopub1")
    stamp("pub1")

    C("---- output projection of head hq, columns cq*128 + w*32 .. +32 ----")
    A("v_lshrrev_b32 v24, 4, v1")
    A("v_and_b32 v25, 15, v1")
    A(f"v_mul_u32_u24 v26, {H1_ROW}, v25")
    A("v_lshl_add_u32 v27, v24, 5, v26")
    A(f"s_lshr_b32 s{s_t0}, s{s_j}, 2")
    A(f"s_lshl_b32 s{s_t1}, s{s_set}, 2")
    A(f"s_add_u32 s{s_t2}, s{s_t1}, s{s_t0}")
    A(f"s_mul_i32 s{s_t1}, s{s_t2}, {16*H1_ROW}")
    A(f"s_add_u32 s{s_t1}, s{s_t1}, {WS_H1}")
    def h1loads():
        A(f"buffer_load_dwordx2 {vr(B+32,2)}, v26, {srd(sWS)}, s{s_t1} offen offset:512 sc1")
        for ks in range(4):
            for hf in range(2):
                A(f"buffer_load_dwordx4 {vr(B+8*ks+4*hf,4)}, v27, {srd(sWS)}, s{s_t1} offen offset:{ks*128+hf*16} sc1")
    A("s_nop 0")
    h1loads()
    C("wo operand from staging: stg + (g*8+r)*256 + c*8 + w*64")
    A("v_bfe_u32 v28, v1, 2, 2")
    A("v_lshl_add_u32 v28, v24, 3, v28")
    A(f"s_lshl_b32 s{s_t0}, s{s_w}, 6")
    A(f"s_add_u32 s{s_t0}, s{s_t0}, {STG}")
    A(f"v_lshl_add_u32 v28, v28, 8, s{s_t0}")
    A("v_and_b32 v29, 3, v1")
    A("v_lshl_add_u32 v28, v29, 3, v28")
    for ks in range(4):
        for e in range(2):
            for hf in range(2):
                A(f"ds_read_b64_tr_b16 {vr(v_a+(ks*2+e)*4+hf*2,2)}, v28 offset:{ks*8192+hf*1024+e*32}")
    C("hop-2 store offsets: H2 + ((b*32 + cg)*64 + p)*64 + g*16 ; cg = cq*8 + 2w + e ; b = n>>3")
    A("v_lshrrev_b32 v29, 3, v25")
    A("v_lshlrev_b32 v29, 17, v29")
    A("v_lshl_add_u32 v29, v24, 4, v29")
    A(f"s_and_b32 s{s_t0}, s{s_j}, 3")
    A(f"s_lshl_b32 s{s_t0}, s{s_t0}, 2")
    A(f"s_add_u32 s{s_t0}, s{s_t0}, s{s_w}")
    A(f"s_lshl_b32 s{s_t0}, s{s_t0}, 13")
    A(f"s_lshl_b32 s{s_t2}, s{s_t2}, 6")
    A(f"s_add_u32 s{s_t0}, s{s_t0}, s{s_t2}")
    A(f"s_add_u32 s{s_t0}, s{s_t0}, {WS_H2}")
    A(f"s_add_u32 s{s_t3}, s{s_t0}, 4096")
    A(f"s_mov_b32 s{s_spin}, {SPIN}")
    if diag and smap == "tail":
        A("s_waitcnt vmcnt(0)")
        stamp("h1first")
    L("L_h1check")
    A("s_waitcnt vmcnt(0)")
    tagcheck(list(range(B, B + 32)), s_tag16, 0xffff, 30)
    A(f"v_bitop3_b32 v30, v30, v{B+33}, s{s_tag32} bitop3:0xf6")
    A("v_cmp_ne_u32 vcc, 0, v30")
    A("s_cbranch_vccnz L_h1retry")
    stamp("h1ok")
    for r in range(16):
        A(f"v_perm_b32 v{v_q+r}, v{B+2*r+1}, v{B+2*r}, s{s_perm}")
    A("s_waitcnt lgkmcnt(0)")
    D = [v_kf, v_kf + 4]
    for ks in range(4):
        for e in range(2):
            A(f"v_mfma_f32_16x16x32_bf16 {vr(D[e],4)}, {vr(v_a+(ks*2+e)*4,4)}, {vr(v_q+4*ks,4)}, " + ("0" if ks == 0 else vr(D[e], 4)))
    C("weights: softmax of lambda over the 8 splits, times the gate factor")
    lam = B + 32
    dpps = ["quad_perm:[1,0,3,2]", "quad_perm:[2,3,0,1]", "row_half_mirror"]
    A(f"v_max_f32_dpp v30, v{lam}, v{lam} {dpps[0]} row_mask:0xf bank_mask:0xf")
    for d in dpps[1:]:
        A("s_nop 1")
        A(f"v_max_f32_dpp v30, v30, v30 {d} row_mask:0xf bank_mask:0xf")
    A(f"v_sub_f32 v30, v{lam}, v30")
    A("v_exp_f32 v30, v30")
    A("s_nop 1")
    A(f"v_add_f32_dpp v31, v30, v30 {dpps[0]} row_mask:0xf bank_mask:0xf")
    for d in dpps[1:]:
        A("s_nop 1")
        A(f"v_add_f32_dpp v31, v31, v31 {d} row_mask:0xf bank_mask:0xf")
    A("v_rcp_f32 v31, v31")
    A(f"v_mul_f32 v30, v30, v{v_gf}")
    A("v_mul_f32 v30, v30, v31")
    for r in range(8):
        A(f"v_mul_f32 v{v_kf+r}, v30, v{v_kf+r}")
    for d in dpps:
        for r in range(8):
            A(f"v_add_f32_dpp v{v_kf+r}, v{v_kf+r}, v{v_kf+r} {d} row_mask:0xf bank_mask:0xf")
    C("round to 20 bits, tag")
    A(f"v_mov_b32 v31, s{s_tag12}")
    for r in range(8):
        A(f"v_add_u32 v{v_kf+r}, 0x800, v{v_kf+r}")
    for r in range(8):
        A(f"v_and_or_b32 v{v_kf+r}, v{v_kf+r}, s{s_m12}, v31")
    A("s_mov_b32 exec_lo, 0x01010101")
    A("s_mov_b32 exec_hi, 0x01010101")
    A(f"buffer_store_dwordx4 {vr(D[0],4)}, v29, {srd(sWS)}, s{s_t0} offen sc1")
    A(f"buffer_store_dwordx4 {vr(D[1],4)}, v29, {srd(sWS)}, s{s_t3} offen sc1")
    A("s_mov_b64 exec, -1")

    stamp("pub2")
    C("---- final reduction: wave 0 of workgroups 0..63 ----")
    A("s_cmp_ge_u32 s2, 64")
    A("s_cbranch_scc1 L_fin")
    A(f"s_cmp_lg_u32 s{s_w}, 0")
    A("s_cbranch_scc1 L_fin")
    A("v_lshlrev_b32 v24, 4, v1")
    A(f"s_lshl_b32 s{s_t1}, s2, 12")
    A(f"s_add_u32 s{s_t1}, s{s_t1}, {WS_H2}")
    def h2loads():
        for j in range(4):
            A(f"buffer_load_dwordx4 {vr(B+4*j,4)}, v24, {srd(sWS)}, s{s_t1} offen offset:{j*1024} sc1")
    h2loads()
    C("output offset: f*32 + (c4*4 + e(row))*2, e = [0,2,1,3][row]")
    A("v_and_b32 v25, 3, v1")
    A("v_lshlrev_b32 v25, 3, v25")
    A("v_bfe_u32 v26, v1, 4, 1")
    A("v_lshl_add_u32 v25, v26, 2, v25")
    A("v_bfe_u32 v26, v1, 5, 1")
    A("v_lshl_add_u32 v25, v26, 1, v25")
    A(f"s_lshl_b32 s{s_t0}, s2, 5")
    A(f"s_mov_b32 s{s_spin}, {SPIN}")
    L("L_h2check")
    A("s_waitcnt vmcnt(0)")
    tagcheck(list(range(B, B + 16)), s_tag12, 0xfff, 30)
    A("v_cmp_ne_u32 vcc, 0, v30")
    A("s_cbranch_vccnz L_h2retry")
    for r in range(16):
        A(f"v_and_b32 v{B+r}, s{s_m12}, v{B+r}")
    for e in range(4):
        A(f"v_add_f32 v{B+e}, v{B+e}, v{B+4+e}")
        A(f"v_add_f32 v{B+8+e}, v{B+8+e}, v{B+12+e}")
    for e in range(4):
        A(f"v_add_f32 v{B+e}, v{B+e}, v{B+8+e}")
    A("s_nop 1")
    A(f"v_permlane32_swap_b32 v{B}, v{B+1}")
    A(f"v_permlane32_swap_b32 v{B+2}, v{B+3}")
    A("s_nop 1")
    A(f"v_add_f32 v{B}, v{B}, v{B+1}")
    A(f"v_add_f32 v{B+2}, v{B+2}, v{B+3}")
    A("s_nop 1")
    A(f"v_permlane16_swap_b32 v{B}, v{B+2}")
    A("s_nop 1")
    A(f"v_add_f32 v{B}, v{B}, v{B+2}")
    A("s_nop 1")
    A(f"v_add_f32_dpp v{B}, v{B}, v{B} row_ror:4 row_mask:0xf bank_mask:0xf")
    A("s_nop 1")
    A(f"v_add_f32_dpp v{B}, v{B}, v{B} row_ror:8 row_mask:0xf bank_mask:0xf")
    if perturb:
        A(f"v_mul_f32 v{B}, {f2u(perturb):#x}, v{B}")
    A(f"v_cvt_pk_bf16_f32 v{B}, v{B}, v{B}")
    A("s_mov_b32 exec_lo, 0x000f000f")
    A("s_mov_b32 exec_hi, 0x000f000f")
    A(f"buffer_store_short v{B}, v25, {srd(sO)}, s{s_t0} offen")
    A("s_cmp_lg_u32 s2, 0")
    A("s_cbranch_scc1 L_fin")
    C("every workgroup has published, hence read, the epoch word: advance it")
    A("s_mov_b64 exec, 1")
    A(f"v_mov_b32 v24, s{s_tag32}")
    A("v_mov_b32 v25, 0")
    A(f"buffer_store_dword v24, v25, {srd(sWS)}, 0 offen offset:{WS_E} sc1")
    L("L_fin")
    stamp("end")
    if diag:
        A("s_mov_b64 exec, 1")
        A("s_waitcnt lgkmcnt(0)")
        A(f"s_lshl_b32 s{s_t0}, s2, 2")
        A(f"s_add_u32 s{s_t0}, s{s_t0}, s{s_w}")
        A(f"s_lshl_b32 s{s_t0}, s{s_t0}, 5")
        A(f"s_add_u32 s{s_t0}, s{s_t0}, {WS_DIAG}")
        for i in range(8):
            A(f"v_mov_b32 v{B+i}, s{s_st+2*i}")
        A("v_mov_b32 v24, 0")
        A(f"buffer_store_dwordx4 {vr(B,4)}, v24, {srd(sWS)}, s{s_t0} offen")
        A(f"buffer_store_dwordx4 {vr(B+4,4)}, v24, {srd(sWS)}, s{s_t0} offen offset:16")
    if dbgdiag:
        A("s_load_dwordx2 s[4:5], s[0:1], 96")
        A("s_waitcnt lgkmcnt(0)")
        A(f"s_cmp_lg_u32 s{s_w}, 0")
        A("s_cbranch_scc1 L_end")
        A(f"v_not_b32 v{B+8}, v{B}")
        A(f"v_not_b32 v{B+9}, v{B+5}")
        for i in range(10):
            A(f"global_atomic_umax v24, v{B+i}, s[4:5] offset:{4*i}")
    L("L_end")
    A("s_endpgm")

    def retry(label, back, loads, wait):
        L(label)
        A(f"s_sub_u32 s{s_spin}, s{s_spin}, 1")
        A(f"s_cmp_eq_u32 s{s_spin}, 0")
        A("s_cbranch_scc1 L_end")
        loads()
        if wait:
            A("s_waitcnt vmcnt(0)")
        A(f"s_branch {back}")
    retry("L_h1retry", "L_h1check", h1loads, False)
    retry("L_h2retry", "L_h2check", h2loads, False)
    retry("L_qretry", "L_qcheck", lambda: qloads(False), True)

    L("L_rescale")
    C("new running max over the four lane groups; rescale O and l")
    A(f"v_max_f32 v{v_t}, v{v_t}, v{v_m}")
    A(f"v_mov_b32 v{v_t+1}, v{v_t}")
    A("s_nop 1")
    A(f"v_permlane32_swap_b32 v{v_t}, v{v_t+1}")
    A("s_nop 1")
    A(f"v_max_f32 v{v_t}, v{v_t}, v{v_t+1}")
    A(f"v_mov_b32 v{v_t+1}, v{v_t}")
    A("s_nop 1")
    A(f"v_permlane16_swap_b32 v{v_t}, v{v_t+1}")
    A("s_nop 1")
    A(f"v_max_f32 v{v_t}, v{v_t}, v{v_t+1}")
    A(f"v_mul_f32 v{v_nmc}, s{s_c}, v{v_t}")
    A(f"v_fma_f32 v{v_t+1}, v{v_m}, s{s_c}, -v{v_nmc}")
    A(f"v_exp_f32 v{v_t+1}, v{v_t+1}")
    A(f"v_sub_f32 v{v_nmc}, 0, v{v_nmc}")
    A(f"v_mov_b32 v{v_m}, v{v_t}")
    if THR:
        A(f"v_add_f32 v{v_mthr}, {f2u(THR/scale):#x}, v{v_t}")
    else:
        A(f"v_mov_b32 v{v_mthr}, v{v_t}")
    for r in range(33):
        A(f"v_mul_f32 v{v_o+r}, v{v_t+1}, v{v_o+r}")
    A(f"s_setpc_b64 s[{s_ret}:{s_ret+1}]")

    g.o.append('.section .rodata,"a"')
    g.o.append(".p2align 6")
    g.o.append(f".amdhsa_kernel {KNAME}")
    g.o.append(f"  .amdhsa_next_free_vgpr {NV}")
    g.o.append("  .amdhsa_next_free_sgpr 102")
    g.o.append(f"  .amdhsa_accum_offset {NV}")
    g.o.append("  .amdhsa_group_segment_fixed_size 0")
    g.o.append("  .amdhsa_kernarg_size 112")
    g.o.append("  .amdhsa_user_sgpr_count 2")
    g.o.append("  .amdhsa_user_sgpr_kernarg_segment_ptr 1")
    g.o.append("  .amdhsa_system_sgpr_workgroup_id_x 1")
    g.o.append("  .amdhsa_float_denorm_mode_32 3")
    g.o.append(".end_amdhsa_kernel")
    gen.sched_log = sched_log
    return "\n".join(g.o) + "\n"


if __name__ == "__main__":
    kw = {}
    for a in sys.argv[2:]:
        k, v = a.split("=")
        kw[k] = eval(v)
    src = gen(**kw)
    open(sys.argv[1], "w").write(src)
```

```python
import sys, math, struct

KNAME = "gated_mix__gqa_block_cached__gqa_block_cached__decode_kernel"

WS_E = 0x0
WS_QB = 0x1000
WS_H1 = 0x40000
H1_ROW = 512
WS_H2 = 0x100000
WS_DIAG = 0x200000
WS_SIZE = 0x400000
EPOCH_INC = 0x9E3779B1

RING = 32768
STG = 131072
LDS_BYTES = 163840


def f2u(x):
    return struct.unpack("<I", struct.pack("<f", x))[0]


class Gen:
    def __init__(self):
        self.o = []
        self.vm = []
        self.nid = 0

    def A(self, s):
        self.o.append("  " + s)

    def L(self, s):
        self.o.append(s + ":")

    def C(self, s):
        self.o.append("  ; " + s)

    def vmem(self, s, optional=False):
        self.A(s)
        self.nid += 1
        if not optional:
            self.vm.append(self.nid)
        return self.nid

    def wait_vm(self, op, force=False):
        if op not in self.vm:
            if force:
                self.A("s_nop 0")
            return False
        k = len(self.vm) - 1 - self.vm.index(op)
        assert k <= 63
        self.A(f"s_waitcnt vmcnt({k})")
        self.vm = self.vm[len(self.vm) - k:] if k else []
        return True

    def wait_vm_all(self):
        self.A("s_waitcnt vmcnt(0)")
        self.vm = []


def gen(N=6, Npat=None, MIMIC=True, H2FULL=False, WARM=False, P7=False, P0=16, PQ=36, THR=0.0, diag=False, CATCH=2, SPIN=1 << 18, dbgdiag=False, pad=None, smap='head', perturb=None):
    diag = diag or dbgdiag
    g = Gen()
    A, L, C = g.A, g.L, g.C
    scale = math.log2(math.e) if MIMIC else (128 ** -0.5) * math.log2(math.e)
    Npat = Npat or [N] * 16
    NMAX = max(Npat)
    assert P0 <= 16 or not P7

    sK, sV, sWQ, sWO, sWS, sX, sG, sO = 20, 24, 28, 32, 36, 40, 44, 48
    srd = lambda b: f"s[{b}:{b+3}]"
    s_w, s_s, s_grp, s_br, s_b, s_hkv, s_kvoff, s_wb, s_tag32, s_cnt, s_c = 52, 53, 54, 55, 56, 57, 58, 59, 60, 61, 62
    s_tag8, s_tag12, s_t0, s_t1, s_t2, s_t3 = 63, 66, 67, 68, 69, 70
    s_rs, s_h1pub, s_h1get, s_h2pub, s_h2get, s_kvb, s_tile, s_sel0, s_sel1 = 81, 3, 4, 5, 6, 7, 8, 9, 10
    s_ret = 64
    s_wqoff, s_wooff, s_stg, s_qoff, s_perm, s_j, s_set, s_spin, s_colb, s_m12 = 71, 72, 73, 74, 75, 76, 77, 78, 79, 80
    s_st = 84

    v_lane = 1
    v_dk = 2
    v_dv = 6
    v_rk = 8
    v_rv = 12
    v_m, v_nmc, v_mthr, v_gf = 20, 21, 22, 23
    v_t = 24
    v_q = 32
    v_kf = 48
    v_vf = 64
    v_s = 80
    v_p = 84
    v_one = 86
    v_o = 88
    v_l = 120
    v_x = 124
    v_ad = 132
    v_gx = 144
    v_big = 160
    v_a = 192
    NV = 224
    a_wo, a_q, a_cw, a_cml, a_cr, a_cr2, a_crm, a_crm2, a_p1, a_g1, a_ow, a_or = range(v_ad, v_ad + 12)
    a_p2, a_g2, a_out = v_x, v_x + 1, v_x + 2
    vr = lambda b, n: f"v[{b}:{b+n-1}]"

    SMAPS = {"head": ["start", "wq", "qpub", "qval", "issued", "drained", "h1ok", "end"],
             "tail": ["start", "drained", "bar", "pub1", "bar2", "h1ok", "pub2", "end"]}
    def stamp(name):
        if name not in SMAPS[smap]:
            return
        i = SMAPS[smap].index(name)
        if diag or (pad and i == 0):
            A(f"s_memrealtime s[{s_st+2*i}:{s_st+2*i+1}]")
        if pad and pad[0] == i:
            L("L_pad")
            A("s_memrealtime s[82:83]")
            A("s_waitcnt lgkmcnt(0)")
            A(f"s_sub_u32 s82, s82, s{s_st}")
            A(f"s_cmp_lt_u32 s82, {int(pad[1]*100)}")
            A("s_cbranch_scc1 L_pad")

    hdr = open("gated_mix__gqa_block_cached__gqa_block_cached__decode.s.ref").read().split("\n")
    for line in hdr:
        if line.startswith(";") and "@launch" not in line:
            g.o.append(line)
        elif not line.startswith(";"):
            break
    g.o.append(f"; @launch grid=(256,1,1) block=(256,1,1) lds={LDS_BYTES}")
    g.o.append('.amdgcn_target "amdgcn-amd-amdhsa--gfx950"')
    g.o.append(".text")
    g.o.append(f".globl {KNAME}")
    g.o.append(".p2align 8")
    g.o.append(f".type {KNAME},@function")
    L(KNAME)
    A("s_cmp_ge_u32 s2, 256")
    A("s_cbranch_scc1 L_end")
    A("s_lshr_b32 s55, s2, 7")
    A("s_mul_i32 s3, s55, 40")
    A("s_add_u32 s16, s0, s3")
    A("s_addc_u32 s17, s1, 0")
    A("s_load_dwordx8 s[4:11], s[16:17], 8")
    A("s_load_dwordx2 s[12:13], s[0:1], 0")
    A("s_load_dwordx2 s[18:19], s[0:1], 104")
    A("s_load_dwordx4 s[96:99], s[0:1], 80")
    stamp("start")
    C("ids")
    A("v_lshrrev_b32 v24, 6, v0")
    A("v_and_b32 v1, 63, v0")
    A(f"v_readfirstlane_b32 s{s_w}, v24")
    A(f"s_and_b32 s{s_s}, s2, 7")
    A(f"s_lshr_b32 s{s_grp}, s2, 3")
    A(f"s_bfe_u32 s{s_b}, s2, 0x10006")
    A(f"s_and_b32 s{s_hkv}, s{s_grp}, 7")
    C("lane fields: v24 = l>>4 (r / g), v25 = l&15 (p / n / i), v26 = l&3, v27 = (l>>2)&3")
    A("v_lshrrev_b32 v24, 4, v1")
    A("v_and_b32 v25, 15, v1")
    A("v_and_b32 v26, 3, v1")
    A("v_bfe_u32 v27, v1, 2, 2")
    C("x operand offset, gate offsets, wq dma offset")
    A("v_and_b32 v29, 1, v1")
    A("v_lshlrev_b32 v29, 10, v29")
    A("v_lshl_add_u32 v29, v24, 4, v29")
    A("v_lshrrev_b32 v30, 3, v1")
    A("v_lshlrev_b32 v30, 13, v30")
    A("v_and_b32 v28, 7, v1")
    A("v_lshl_add_u32 v30, v28, 4, v30")
    C("member j = b*8+s ; q slice: columns hkv*512 + (j>>1)*64, rows (j&1)*256 + w*64")
    A(f"s_lshl_b32 s{s_j}, s{s_b}, 3")
    A(f"s_add_u32 s{s_j}, s{s_j}, s{s_s}")
    A(f"s_lshr_b32 s{s_t0}, s{s_j}, 1")
    A(f"s_lshl_b32 s{s_t0}, s{s_t0}, 6")
    A(f"s_lshl_b32 s{s_colb}, s{s_hkv}, 9")
    A(f"s_add_u32 s{s_colb}, s{s_colb}, s{s_t0}")
    A(f"s_and_b32 s{s_t0}, s{s_j}, 1")
    A(f"s_lshl_b32 s{s_t0}, s{s_t0}, 2")
    A(f"s_add_u32 s{s_t0}, s{s_t0}, s{s_w}")
    A(f"s_lshl_b32 s{s_t2}, s{s_t0}, 7")
    A(f"s_lshl_b32 s{s_t0}, s{s_t0}, 19")
    A(f"s_lshl_b32 s{s_wqoff}, s{s_colb}, 1")
    A(f"s_add_u32 s{s_wqoff}, s{s_wqoff}, s{s_t0}")
    A(f"s_lshl_b32 s{s_stg}, s{s_w}, 13")
    A(f"s_add_u32 s{s_stg}, s{s_stg}, {STG}")
    A(f"s_lshl_b32 s{s_wb}, s{s_w}, 15")
    C("KV offset: (group&15)<<23 | s<<20 | w<<12")
    A(f"s_and_b32 s{s_t0}, s2, 127")
    A(f"s_lshl_b32 s{s_kvoff}, s{s_t0}, 20")
    A(f"s_lshl_b32 s{s_t0}, s{s_w}, 12")
    A(f"s_add_u32 s{s_kvoff}, s{s_kvoff}, s{s_t0}")
    C("DMA voffsets for K (xor key&15) and V (xor 2*(key&7))")
    A("v_lshlrev_b32 v31, 8, v24")
    for j in range(4):
        A(f"v_add_u32 v{v_dk+j}, {4*j}, v24")
        A(f"v_xor_b32 v{v_dk+j}, v{v_dk+j}, v25")
        A(f"v_lshl_add_u32 v{v_dk+j}, v{v_dk+j}, 4, v31")
    for j in range(2):
        A(f"v_add_u32 v{v_dv+j}, {4*j}, v24")
        A(f"v_lshlrev_b32 v{v_dv+j}, 1, v{v_dv+j}")
        A(f"v_xor_b32 v{v_dv+j}, v{v_dv+j}, v25")
        A(f"v_lshl_add_u32 v{v_dv+j}, v{v_dv+j}, 4, v31")
    A("s_waitcnt lgkmcnt(0)")
    def mksrd(d, p, size):
        A(f"s_mov_b32 s{d}, s{p}")
        A(f"s_and_b32 s{d+1}, s{p+1}, 0xffff")
        A(f"s_mov_b32 s{d+2}, {size:#x}")
        A(f"s_mov_b32 s{d+3}, 0x20000")
    A(f"s_load_dword s{s_tag32}, s[18:19], {WS_E}")
    mksrd(sWQ, 8, 0x400000)
    mksrd(sX, 12, 2048)
    mksrd(sG, 96, 1024)

    NT = 64
    def pos_of(t, j):
        return (8 if t < 4 else 16) + t * 8 + j
    Z = [("wq", j) for j in range(8)] + [("kv", t, j) for t in range(4) for j in range(8)] + \
        [("wo", j) for j in range(8)] + [("kv", t, j) for t in range(4, NT) for j in range(8)]
    slot_of = lambda t: t if t < 4 else t % 2
    ids = {}

    def issue(p, throttle=True):
        z = Z[p]
        need_nop = False
        if z[0] == "wq":
            j = z[1]
            if j:
                A(f"s_add_u32 s{s_wqoff}, s{s_wqoff}, 0x10000")
            A(f"s_add_u32 m0, s{s_stg}, {j*1024}")
            need_nop = True
        elif z[0] == "wo":
            j = z[1]
            if j:
                A(f"s_add_u32 s{s_wooff}, s{s_wooff}, 4096")
            A(f"s_add_u32 m0, s{s_stg}, {j*1024}")
            need_nop = True
        else:
            _, t, j = z
            if j == 0 and t > 0:
                if P7:
                    A(f"s_add_u32 s{s_tile}, s{s_tile}, 1")
                    A(f"s_and_b32 s{s_t0}, s{s_tile}, 0x38")
                    A(f"s_bfe_u32 s{s_t1}, s{s_tile}, 0x10002")
                    A(f"s_or_b32 s{s_t0}, s{s_t0}, s{s_t1}")
                    A(f"s_and_b32 s{s_t1}, s{s_tile}, 3")
                    A(f"s_lshl1_add_u32 s{s_t0}, s{s_t1}, s{s_t0}")
                    A(f"s_lshl_b32 s{s_t0}, s{s_t0}, 14")
                    A(f"s_add_u32 s{s_kvoff}, s{s_kvb}, s{s_t0}")
                else:
                    A(f"s_add_u32 s{s_kvoff}, s{s_kvoff}, 16384")
            if j % 4 == 0:
                A(f"s_add_u32 m0, s{s_wb}, {slot_of(t)*8192 + (j//4)*4096}")
                need_nop = True
        waited = False
        if throttle and p - Npat[p % 16] >= 0:
            waited = g.wait_vm(ids[p - Npat[p % 16]])
        if need_nop and not waited:
            A("s_nop 0")
        if z[0] == "wq":
            ids[p] = g.vmem(f"buffer_load_dwordx4 v30, {srd(sWQ)}, s{s_wqoff} offen nt lds")
        elif z[0] == "wo":
            ids[p] = g.vmem(f"buffer_load_dwordx4 v{a_wo}, {srd(sWO)}, s{s_wooff} offen nt lds")
        else:
            _, t, j = z
            if j < 4:
                ids[p] = g.vmem(f"buffer_load_dwordx4 v{v_dk+j}, {srd(sK)}, s{s_kvoff} offen offset:{j*1024} nt lds")
            else:
                ids[p] = g.vmem(f"buffer_load_dwordx4 v{v_dv+(j&1)}, {srd(sV)}, s{s_kvoff} offen offset:{(j-4)*1024} nt lds")

    C("wq slice -> staging")
    for p in range(8):
        issue(p, throttle=False)
    C("x operand")
    for j in range(2):
        last_small = g.vmem(f"buffer_load_dwordx4 {vr(v_x+4*j,4)}, v29, {srd(sX)}, s{s_t2} offen offset:{j*64}")
    mksrd(sK, 4, 0x8000000)
    mksrd(sV, 6, 0x8000000)
    for p in range(8, P0):
        issue(p, throttle=False)
    C("gate inputs: lane l holds 16 elements of batch l>>5")
    A("v_lshlrev_b32 v28, 5, v1")
    A("v_and_b32 v29, 0x3ff, v28")
    for j in range(2):
        g.vmem(f"buffer_load_dwordx4 {vr(v_gx+4*j,4)}, v28, {srd(sX)}, 0 offen offset:{j*16}")
    for j in range(2):
        last_gate = g.vmem(f"buffer_load_dwordx4 {vr(v_gx+8+4*j,4)}, v29, {srd(sG)}, 0 offen offset:{j*16}")
    mksrd(sWO, 10, 0x400000)
    mksrd(sWS, 18, WS_SIZE)
    mksrd(sO, 98, 2048)
    C("LDS read addresses")
    A(f"v_lshl_add_u32 v31, v25, 8, s{s_wb}")
    for j in range(4):
        A(f"v_add_u32 v{v_rk+j}, {4*j}, v24")
        A(f"v_xor_b32 v{v_rk+j}, v{v_rk+j}, v25")
        A(f"v_lshl_add_u32 v{v_rk+j}, v{v_rk+j}, 4, v31")
    A("v_lshl_add_u32 v28, v24, 2, v27")
    A(f"v_lshl_add_u32 v31, v28, 8, s{s_wb}")
    A("v_and_b32 v29, 1, v26")
    A("v_lshl_add_u32 v31, v29, 3, v31")
    A("v_and_b32 v28, 7, v28")
    A("v_lshlrev_b32 v28, 1, v28")
    A("v_lshrrev_b32 v29, 1, v26")
    A("v_or_b32 v28, v28, v29")
    for cb in range(8):
        A(f"v_xor_b32 v{v_rv+cb}, {2*cb}, v28")
        A(f"v_lshl_add_u32 v{v_rv+cb}, v{v_rv+cb}, 4, v31")
    C("q-proj LDS read address: stg + (g*8+r)*128 + c*8")
    A("v_lshl_add_u32 v28, v24, 3, v27")
    A(f"v_lshl_add_u32 v28, v28, 7, s{s_stg}")
    A("v_lshl_add_u32 v28, v26, 3, v28")
    C("constants, accumulators")
    A(f"s_mov_b32 s{s_c}, {f2u(scale):#x}")
    A(f"s_mov_b32 s{s_perm}, 0x07060302")
    A(f"s_mov_b32 s{s_m12}, 0xfffff000")
    A(f"v_mov_b32 v{v_m}, 0xff800000")
    A(f"v_mov_b32 v{v_mthr}, 0xff800000")
    A(f"v_mov_b32 v{v_nmc}, 0")
    A(f"v_mov_b32 v{v_one}, 0x3f803f80")
    A(f"v_mov_b32 v{v_one+1}, 0x3f803f80")
    for r in range(36):
        A(f"v_mov_b32 v{v_o+r}, 0")
    A(f"s_mov_b32 s{s_rs}, {f2u(128 ** -0.5):#x}")
    A(f"s_mov_b32 s{s_kvb}, s{s_kvoff}")
    A(f"s_mov_b32 s{s_tile}, 0")
    A(f"s_lshl_b32 s{s_set}, s{s_br}, 3")
    A(f"s_add_u32 s{s_set}, s{s_set}, s{s_hkv}")
    A("s_waitcnt lgkmcnt(0)")
    A(f"s_add_u32 s{s_tag32}, s{s_tag32}, {EPOCH_INC:#x}")
    A(f"s_and_b32 s{s_tag8}, s{s_tag32}, 0xff")
    A(f"s_and_b32 s{s_tag12}, s{s_tag32}, 0xfff")

    C("---- q projection: 64 columns, half of the rows ----")
    g.wait_vm(last_small)
    stamp("wq")
    for ks in range(2):
        for cb in range(4):
            for hf in range(2):
                r = v_big + (ks * 4 + cb) * 4 + hf * 2
                A(f"ds_read_b64_tr_b16 {vr(r,2)}, v28 offset:{ks*4096 + hf*512 + cb*32}")
    dq = [v_kf + 4 * cb for cb in range(4)]
    C("partials -> own staging area: (n&1)*256 + cb*64 + g*16")
    A("v_and_b32 v29, 1, v1")
    A(f"v_lshl_add_u32 v30, v29, 8, s{s_stg}")
    A("v_lshl_add_u32 v30, v24, 4, v30")
    for ks in range(2):
        A(f"s_waitcnt lgkmcnt({8-8*ks})")
        for cb in range(4):
            A(f"v_mfma_f32_16x16x32_bf16 {vr(dq[cb],4)}, {vr(v_big+(ks*4+cb)*4,4)}, {vr(v_x+4*ks,4)}, " + ("0" if ks == 0 else vr(dq[cb], 4)))
    A("v_and_b32 v31, 31, v1")
    A("v_lshlrev_b32 v31, 4, v31")
    A(f"v_add_u32 v31, {STG}, v31")
    A("s_nop 4")
    for cb in range(4):
        A(f"ds_write_b128 v30, {vr(dq[cb],4)} offset:{cb*64}")
    C("store address: QB + half*65536 + ((br*2+n)*4096 + colbase + c16*4)*4 ; lane = n*16 + c16")
    A("v_bfe_u32 v30, v1, 4, 1")
    A("v_lshlrev_b32 v30, 14, v30")
    A("v_lshl_add_u32 v30, v25, 4, v30")
    A(f"s_lshl_b32 s{s_t0}, s{s_br}, 13")
    A(f"s_add_u32 s{s_t0}, s{s_t0}, s{s_colb}")
    A(f"s_lshl_b32 s{s_t0}, s{s_t0}, 2")
    A(f"s_and_b32 s{s_t1}, s{s_j}, 1")
    A(f"s_lshl_b32 s{s_t1}, s{s_t1}, 16")
    A(f"s_add_u32 s{s_t0}, s{s_t0}, s{s_t1}")
    A(f"s_add_u32 s{s_t0}, s{s_t0}, {WS_QB}")
    A("s_waitcnt lgkmcnt(0)")
    A("s_barrier")
    A(f"s_cmp_eq_u32 s{s_w}, 0")
    A("s_cbranch_scc0 L_noqstore")
    for w in range(4):
        A(f"ds_read_b128 {vr(v_big+4*w,4)}, v31 offset:{w*8192}")
    A(f"s_movk_i32 s{s_t1}, 0xff00")
    A(f"v_mov_b32 v29, s{s_tag8}")
    A("s_waitcnt lgkmcnt(0)")
    for e in range(4):
        A(f"v_add_f32 v{v_big+e}, v{v_big+e}, v{v_big+4+e}")
        A(f"v_add_f32 v{v_big+8+e}, v{v_big+8+e}, v{v_big+12+e}")
    for e in range(4):
        A(f"v_add_f32 v{v_big+e}, v{v_big+e}, v{v_big+8+e}")
    for e in range(4):
        A(f"v_add_u32 v{v_big+e}, 0x80, v{v_big+e}")
    for e in range(4):
        A(f"v_and_or_b32 v{v_big+e}, v{v_big+e}, s{s_t1}, v29")
    A("s_mov_b32 exec_hi, 0")
    g.vmem(f"buffer_store_dwordx4 {vr(v_big,4)}, v30, {srd(sWS)}, s{s_t0} offen sc1", optional=True)
    A("s_mov_b64 exec, -1")
    L("L_noqstore")
    stamp("qpub")
    C("wo dma offsets: rows hq*128 + 32w + 4j + r, columns cq*128")
    A(f"v_lshlrev_b32 v{a_wo}, 10, v24")
    A(f"v_lshl_add_u32 v{a_wo}, v25, 4, v{a_wo}")
    A(f"s_lshl_b32 s{s_t0}, s{s_hkv}, 2")
    A(f"s_lshr_b32 s{s_t1}, s{s_j}, 2")
    A(f"s_add_u32 s{s_t0}, s{s_t0}, s{s_t1}")
    A(f"s_lshl_b32 s{s_wooff}, s{s_t0}, 17")
    A(f"s_lshl_b32 s{s_t1}, s{s_w}, 15")
    A(f"s_add_u32 s{s_wooff}, s{s_wooff}, s{s_t1}")
    A(f"s_and_b32 s{s_t1}, s{s_j}, 3")
    A(f"s_lshl_b32 s{s_t1}, s{s_t1}, 8")
    A(f"s_add_u32 s{s_wooff}, s{s_wooff}, s{s_t1}")
    C("q gather offsets")
    A(f"v_lshlrev_b32 v{a_q}, 9, v26")
    A(f"v_lshl_add_u32 v{a_q}, v24, 5, v{a_q}")
    A(f"s_lshr_b32 s{s_t0}, s{s_grp}, 3")
    A(f"s_lshl_b32 s{s_qoff}, s{s_t0}, 14")
    A(f"s_lshl_b32 s{s_t0}, s{s_hkv}, 11")
    A(f"s_add_u32 s{s_qoff}, s{s_qoff}, s{s_t0}")
    A(f"s_add_u32 s{s_qoff}, s{s_qoff}, {WS_QB}")

    SCR = 16384
    OL = 24576

    def setup_gate():
        C("gate: gf = br ? 1-g : g for batch l>>5")
        g.wait_vm(last_gate)
        X, Wt, T = v_gx, v_gx + 8, v_big
        if MIMIC:
            for r in range(8):
                A(f"v_lshlrev_b32 v{T}, 16, v{X+r}")
                A(f"v_lshlrev_b32 v{T+1}, 16, v{Wt+r}")
                A(f"v_and_b32 v{X+r}, 0xffff0000, v{X+r}")
                A(f"v_and_b32 v{Wt+r}, 0xffff0000, v{Wt+r}")
                A(f"v_mul_f32 v{T}, v{T}, v{T+1}")
                A(f"v_mul_f32 v{X+r}, v{X+r}, v{Wt+r}")
                A(f"v_cvt_pk_bf16_f32 v{X+r}, v{T}, v{X+r}")
        for r in range(8):
            o2 = f"v{v_one}" if MIMIC else f"v{Wt+r}"
            A(f"v_dot2_f32_bf16 v{T+2}, v{X+r}, {o2}, " + ("0" if r == 0 else f"v{T+2}"))
        A("s_nop 2")
        for d in (1, 2, 4, 8):
            A(f"v_add_f32_dpp v{T+2}, v{T+2}, v{T+2} row_ror:{d} row_mask:0xf bank_mask:0xf")
            A("s_nop 1")
        A(f"v_mov_b32 v{T+3}, v{T+2}")
        A("s_nop 1")
        A(f"v_permlane16_swap_b32 v{T+2}, v{T+3}")
        A("s_nop 1")
        A(f"v_add_f32 v{T+2}, v{T+2}, v{T+3}")
        if MIMIC:
            A(f"v_cvt_pk_bf16_f32 v{T+2}, 0, v{T+2}")
        A(f"v_mul_f32 v{T+2}, {f2u(-math.log2(math.e)):#x}, v{T+2}")
        A(f"v_exp_f32 v{T+2}, v{T+2}")
        A("s_nop 0")
        A(f"v_add_f32 v{T+2}, 1.0, v{T+2}")
        A(f"v_rcp_f32 v{v_gf}, v{T+2}")
        A("s_nop 0")
        if MIMIC:
            A(f"v_cvt_pk_bf16_f32 v{v_gf}, 0, v{v_gf}")
        A(f"s_cmp_eq_u32 s{s_br}, 0")
        A("s_cbranch_scc1 L_gate_done")
        A(f"v_sub_f32 v{v_gf}, 1.0, v{v_gf}")
        if MIMIC:
            A(f"v_cvt_pk_bf16_f32 v{v_gf}, 0, v{v_gf}")
        L("L_gate_done")

    def setup_tail():
        C("tail addresses")
        A(f"v_lshl_add_u32 v{a_cw}, v26, 9, s{s_wb}")
        A(f"v_lshl_add_u32 v{a_cw}, v24, 4, v{a_cw}")
        A(f"v_lshl_add_u32 v{a_cml}, v26, 3, s{s_wb}")
        C("combine reader: h = 2*(w&1) + (l>>5), d4 = l&31")
        A(f"s_and_b32 s{s_t0}, s{s_w}, 1")
        A(f"s_lshl_b32 s{s_t1}, s{s_t0}, 10")
        A(f"v_lshl_add_u32 v{a_cr}, v1, 4, s{s_t1}")
        A(f"v_add_u32 v{a_cr2}, 0x10000, v{a_cr}")
        A("v_lshrrev_b32 v28, 5, v1")
        A(f"s_lshl_b32 s{s_t1}, s{s_t0}, 1")
        A(f"v_add_u32 v28, s{s_t1}, v28")
        A(f"v_lshlrev_b32 v{a_crm}, 3, v28")
        A(f"v_add_u32 v{a_crm2}, 0x10000, v{a_crm}")
        A("v_and_b32 v29, 31, v1")
        A("v_lshlrev_b32 v29, 4, v29")
        A(f"v_lshl_add_u32 v{a_p1}, v28, 13, v29")
        A(f"s_lshl_b32 s{s_t1}, s{s_set}, 6")
        A(f"s_add_u32 s{s_t1}, s{s_t1}, s{s_j}")
        A(f"s_lshl_b32 s{s_t1}, s{s_t1}, 9")
        A(f"s_add_u32 s{s_h1pub}, s{s_t1}, {WS_H1}")
        C("hop-1 gather: lane = (b, s2, d4): row b*8 + i*4 + s2, bytes w*128 + d4*16")
        A("v_lshrrev_b32 v28, 5, v1")
        A("v_bfe_u32 v29, v1, 3, 2")
        A("v_lshl_add_u32 v29, v28, 3, v29")
        A("v_and_b32 v30, 7, v1")
        A("v_lshlrev_b32 v31, 4, v30")
        A(f"v_lshl_add_u32 v{a_g1}, v29, 9, v31")
        A(f"s_lshr_b32 s{s_t0}, s{s_j}, 2")
        A(f"s_lshl_b32 s{s_t1}, s{s_set}, 2")
        A(f"s_add_u32 s{s_t2}, s{s_t1}, s{s_t0}")
        A(f"s_lshl_b32 s{s_t1}, s{s_t2}, 13")
        A(f"s_lshl_b32 s{s_t0}, s{s_w}, 7")
        A(f"s_add_u32 s{s_t1}, s{s_t1}, s{s_t0}")
        A(f"s_add_u32 s{s_h1get}, s{s_t1}, {WS_H1}")
        C("combined o in LDS: [b][128] bf16 ; writer b*256 + w*64 + d4*8 + (row&1)*4 ; reader (n&1)*256 + g*16")
        A(f"s_lshl_b32 s{s_t0}, s{s_w}, 6")
        A(f"v_lshl_add_u32 v{a_ow}, v28, 8, s{s_t0}")
        A(f"v_lshl_add_u32 v{a_ow}, v30, 3, v{a_ow}")
        A("v_bfe_u32 v31, v1, 4, 1")
        A(f"v_lshl_add_u32 v{a_ow}, v31, 2, v{a_ow}")
        A("v_and_b32 v31, 1, v1")
        A(f"v_lshlrev_b32 v{a_or}, 8, v31")
        A(f"v_lshl_add_u32 v{a_or}, v24, 4, v{a_or}")
        C("hop-2 store: lane (g, n<4): b = n&1, e = n>>1")
        A(f"v_lshlrev_b32 v{a_p2}, 17, v31")
        A(f"v_lshl_add_u32 v{a_p2}, v24, 4, v{a_p2}")
        A("v_bfe_u32 v31, v1, 1, 1")
        A(f"v_lshl_add_u32 v{a_p2}, v31, {6 if H2FULL else 12}, v{a_p2}")
        A(f"s_and_b32 s{s_t0}, s{s_j}, 3")
        A(f"s_lshl_b32 s{s_t0}, s{s_t0}, 2")
        A(f"s_add_u32 s{s_t0}, s{s_t0}, s{s_w}")
        A(f"s_lshl_b32 s{s_t0}, s{s_t0}, 13")
        A(f"s_lshl_b32 s{s_t2}, s{s_t2}, {7 if H2FULL else 6}")
        A(f"s_add_u32 s{s_t0}, s{s_t0}, s{s_t2}")
        A(f"s_add_u32 s{s_h2pub}, s{s_t0}, {WS_H2}")
        C("hop-2 gather and output offsets")
        if H2FULL:
            A("v_lshrrev_b32 v28, 2, v1")
            A("v_lshlrev_b32 v28, 7, v28")
            A(f"v_lshl_add_u32 v{a_g2}, v26, 4, v28")
            A(f"s_lshr_b32 s{s_t0}, s2, 1")
            A(f"s_lshl_b32 s{s_t0}, s{s_t0}, 13")
            A(f"s_and_b32 s{s_t1}, s2, 1")
            A(f"s_lshl_b32 s{s_t1}, s{s_t1}, 6")
            A(f"s_add_u32 s{s_t0}, s{s_t0}, s{s_t1}")
        else:
            A(f"v_lshlrev_b32 v{a_g2}, 4, v1")
            A(f"s_lshl_b32 s{s_t0}, s2, 12")
        A(f"s_add_u32 s{s_h2get}, s{s_t0}, {WS_H2}")
        A(f"v_lshlrev_b32 v{a_out}, 3, v26")
        A("v_bfe_u32 v28, v1, 4, 1")
        A(f"v_lshl_add_u32 v{a_out}, v28, 2, v{a_out}")
        A("v_bfe_u32 v28, v1, 5, 1")
        A(f"v_lshl_add_u32 v{a_out}, v28, 1, v{a_out}")
        C("wo operand address (kept in v{}): stg + (g*8+r)*256 + c*8 + w*64".format(a_out + 1))
        A("v_lshl_add_u32 v28, v24, 3, v27")
        A(f"s_lshl_b32 s{s_t0}, s{s_w}, 6")
        A(f"s_add_u32 s{s_t0}, s{s_t0}, {STG}")
        A(f"v_lshl_add_u32 v28, v28, 8, s{s_t0}")
        A(f"v_lshl_add_u32 v{a_out+1}, v26, 3, v28")
        A(f"s_mov_b32 s{s_sel0}, 0x0c0c0501")
        A(f"s_mov_b32 s{s_sel1}, 0x05010c0c")

    B = v_big
    def h1loads(track=False):
        for i in range(2):
            t = f"buffer_load_dwordx4 {vr(B+4*i,4)}, v{a_g1}, {srd(sWS)}, s{s_h1get} offen offset:{i*2048} sc1"
            g.vmem(t) if track else A(t)
    def h2loads(track=False):
        if H2FULL:
            A(f"s_add_u32 s{s_t3}, s{s_h2get}, 4096")
        for j in range(4):
            if H2FULL:
                t = f"buffer_load_dwordx4 {vr(B+8+4*j,4)}, v{a_g2}, {srd(sWS)}, s{s_h2get if j < 2 else s_t3} offen offset:{(j&1)*2048} sc1"
            else:
                t = f"buffer_load_dwordx4 {vr(B+8+4*j,4)}, v{a_g2}, {srd(sWS)}, s{s_h2get} offen offset:{j*1024} sc1"
            g.vmem(t, optional=True) if track else A(t)

    nsm = [0]
    def KR(t):
        for j in range(4):
            A(f"ds_read_b128 {vr(v_kf+4*j,4)}, v{v_rk+j} offset:{slot_of(t)*8192}")
    def QK(t):
        A("s_waitcnt lgkmcnt(0)")
        for j in range(4):
            A(f"v_mfma_f32_16x16x32_bf16 {vr(v_s,4)}, {vr(v_kf+4*j,4)}, {vr(v_q+4*j,4)}, " + ("0" if j == 0 else vr(v_s, 4)))
    def SM(t):
        nsm[0] += 1
        A("s_nop 7")
        if MIMIC:
            for r in range(4):
                A(f"v_cvt_pk_bf16_f32 v{v_s+r}, 0, v{v_s+r}")
            for r in range(4):
                A(f"v_mul_f32 v{v_s+r}, s{s_rs}, v{v_s+r}")
            for r in range(4):
                A(f"v_cvt_pk_bf16_f32 v{v_s+r}, 0, v{v_s+r}")
        A(f"v_max3_f32 v{v_t}, v{v_s}, v{v_s+1}, v{v_s+2}")
        A(f"v_max_f32 v{v_t}, v{v_t}, v{v_s+3}")
        A(f"v_cmp_gt_f32 vcc, v{v_t}, v{v_mthr}")
        A(f"s_cbranch_vccz L_sm{nsm[0]}")
        A(f"s_call_b64 s[{s_ret}:{s_ret+1}], L_rescale")
        L(f"L_sm{nsm[0]}")
        for r in range(4):
            A(f"v_fma_f32 v{v_s+r}, v{v_s+r}, s{s_c}, v{v_nmc}")
        for r in range(4):
            A(f"v_exp_f32 v{v_s+r}, v{v_s+r}")
        A("s_nop 0")
        A(f"v_cvt_pk_bf16_f32 v{v_p}, v{v_s}, v{v_s+1}")
        A(f"v_cvt_pk_bf16_f32 v{v_p+1}, v{v_s+2}, v{v_s+3}")
    def VR(t):
        for cb in range(8):
            A(f"ds_read_b64_tr_b16 {vr(v_vf+2*cb,2)}, v{v_rv+cb} offset:{slot_of(t)*8192+4096}")
    def PV(t):
        A(f"v_mfma_f32_16x16x16_bf16 {vr(v_l,4)}, {vr(v_one,2)}, {vr(v_p,2)}, {vr(v_l,4)}")
        A("s_waitcnt lgkmcnt(0)")
        for cb in range(8):
            A(f"v_mfma_f32_16x16x16_bf16 {vr(v_o+4*cb,4)}, {vr(v_vf+2*cb,2)}, {vr(v_p,2)}, {vr(v_o+4*cb,4)}")
    phases = []
    for t in range(NT):
        pk = pos_of(t, 3) + NMAX
        pv = pos_of(t, 7) + NMAX
        phases += [(KR, t, pk, pos_of(t, 3)), (QK, t, pk + 1, None), (SM, t, pk + 2, None),
                   (VR, t, pv, pos_of(t, 7)), (PV, t, pv + 1, None)]
    done = set()

    def qloads(track):
        last = None
        A(f"s_add_u32 s{s_t3}, s{s_qoff}, 0x10000")
        for half in range(2):
            for j in range(4):
                for hf in range(2):
                    s = f"buffer_load_dwordx4 {vr(v_big+32*half+8*j+4*hf,4)}, v{a_q}, {srd(sWS)}, s{s_t3 if half else s_qoff} offen offset:{j*128+hf*16} sc1"
                    if track:
                        last = g.vmem(s)
                    else:
                        A(s)
        return last

    def tagcheck(regs, stag, mask, acc):
        A(f"v_xor_b32 v{acc}, s{stag}, v{regs[0]}")
        for r in regs[1:]:
            A(f"v_bitop3_b32 v{acc}, v{acc}, v{r}, s{stag} bitop3:0xf6")
        A(f"v_and_b32 v{acc}, {mask:#x}, v{acc}")

    PVAL = PQ + NMAX + 1
    PWO = 47 + NMAX + 3
    LOOP0 = pos_of(8, 0)
    nextph = 0
    q_last = None
    sched_log = []

    def run_phases(p, maxn):
        nonlocal nextph
        n = 0
        while nextph < len(phases) and n < maxn and phases[nextph][2] <= p:
            f, t, tp, ld = phases[nextph]
            if ld is not None:
                assert ids[ld] not in g.vm, (f.__name__, t, p)
            f(t)
            done.add((f.__name__, t))
            sched_log.append((p, f.__name__, t))
            nextph += 1
            n += 1

    def check_slot(p):
        z = Z[p]
        if z[0] == "kv" and z[1] >= 4:
            t, j = z[1], z[2]
            prev = t - 4 if t < 6 else t - 2
            need = ("QK", prev) if j < 4 else ("PV", prev)
            assert need in done, (p, z, need)

    for p in range(P0, LOOP0):
        check_slot(p)
        issue(p)
        if p == P0 + 4:
            C("every wave has read the q partials: staging may be refilled with wo")
            A("s_barrier")
        if p == P0 + 6:
            setup_gate()
        if p == P0 + 9:
            setup_tail()
        if p == PQ:
            q_last = qloads(True)
        if p == PWO:
            C("every wave's part of wo has landed: fetch the output-projection operand")
            assert ids[47] not in g.vm
            A("s_barrier")
            A("s_waitcnt lgkmcnt(0)")
            for ks in range(4):
                for e in range(2):
                    for hf in range(2):
                        A(f"ds_read_b64_tr_b16 {vr(v_a+(ks*2+e)*4+hf*2,2)}, v{a_out+1} offset:{ks*8192+hf*1024+e*32}")
        if WARM and p == PWO + 8:
            h1loads(True)
            A("s_cmp_ge_u32 s2, 64")
            A("s_cbranch_scc1 L_nowarm")
            A(f"s_cmp_lg_u32 s{s_w}, 0")
            A("s_cbranch_scc1 L_nowarm")
            h2loads(True)
            L("L_nowarm")
        if p == PVAL:
            C("---- validate the gathered q ----")
            g.wait_vm(q_last)
            A(f"s_mov_b32 s{s_spin}, {SPIN}")
            L("L_qcheck")
            for r in range(64):
                A(f"v_xor_b32 v{v_big+r}, s{s_tag8}, v{v_big+r}")
            A(f"v_or_b32 v{v_t}, v{v_big}, v{v_big+1}")
            for r in range(2, 64, 2):
                A(f"v_or3_b32 v{v_t}, v{v_t}, v{v_big+r}, v{v_big+r+1}")
            A(f"v_and_b32 v{v_t}, 0xff, v{v_t}")
            A(f"v_cmp_ne_u32 vcc, 0, v{v_t}")
            A("s_cbranch_vccnz L_qretry")
            for r in range(32):
                A(f"v_add_f32 v{v_big+r}, v{v_big+r}, v{v_big+32+r}")
            for r in range(16):
                A(f"v_cvt_pk_bf16_f32 v{v_q+r}, v{v_big+2*r}, v{v_big+2*r+1}")
            stamp("qval")
        if p >= PVAL:
            run_phases(p, CATCH)
    assert phases[nextph][2] >= LOOP0, (phases[nextph], LOOP0)
    niter = (NT - 8) // 2
    A(f"s_mov_b32 s{s_cnt}, {niter}")
    g.o.append(".p2align 3")
    L("L_loop")
    vm_entry = len(g.vm)
    assert vm_entry <= NMAX, g.vm
    for p in range(LOOP0, LOOP0 + 16):
        check_slot(p)
        issue(p)
        run_phases(p, 1)
    assert len(g.vm) == vm_entry
    A(f"s_sub_u32 s{s_cnt}, s{s_cnt}, 1")
    A(f"s_cmp_lg_u32 s{s_cnt}, 0")
    A("s_cbranch_scc1 L_loop")
    shift_t = NT - 10
    rem = [ph for ph in phases[nextph:] if ph[1] < 10]
    stamp("issued")
    C("---- drain: remaining phases of the last tiles ----")
    for f, t, tp, ld in rem:
        if ld is not None:
            g.wait_vm(ids[ld])
        f(t)
    assert not g.vm
    stamp("drained")

    C("---- combine the four waves: O[h][128] fp32 and {m,l}[h] in slot 2 of each wave's own ring ----")
    A("s_mov_b32 exec_lo, 0x000f000f")
    A("s_mov_b32 exec_hi, 0x000f000f")
    A(f"ds_write_b32 v{a_cml}, v{v_m} offset:{SCR+2048}")
    A(f"ds_write_b32 v{a_cml}, v{v_l} offset:{SCR+2052}")
    for cb in range(8):
        A(f"ds_write_b128 v{a_cw}, {vr(v_o+4*cb,4)} offset:{SCR+cb*64}")
    A("s_mov_b64 exec, -1")
    A(f"s_mov_b32 s{s_spin}, {SPIN}")
    A(f"s_cmp_ge_u32 s{s_w}, 2")
    A("s_waitcnt lgkmcnt(0)")
    A("s_barrier")
    stamp("bar")
    A("s_cbranch_scc1 L_nopub1")
    Cb = v_o
    A(f"ds_read_b64 {vr(Cb+16,2)}, v{a_crm} offset:{SCR+2048}")
    A(f"ds_read_b64 {vr(Cb+18,2)}, v{a_crm} offset:{SCR+2048+RING}")
    A(f"ds_read_b64 {vr(Cb+20,2)}, v{a_crm2} offset:{SCR+2048}")
    A(f"ds_read_b64 {vr(Cb+22,2)}, v{a_crm2} offset:{SCR+2048+RING}")
    A(f"ds_read_b128 {vr(Cb,4)}, v{a_cr} offset:{SCR}")
    A(f"ds_read_b128 {vr(Cb+4,4)}, v{a_cr} offset:{SCR+RING}")
    A(f"ds_read_b128 {vr(Cb+8,4)}, v{a_cr2} offset:{SCR}")
    A(f"ds_read_b128 {vr(Cb+12,4)}, v{a_cr2} offset:{SCR+RING}")
    A(f"v_mov_b32 v27, s{s_tag8}")
    A(f"s_mov_b32 s{s_t0}, 0x05000400")
    A(f"s_mov_b32 s{s_t1}, 0x07000600")
    A(f"s_mov_b32 s{s_t2}, 0x05040100")
    A("s_waitcnt lgkmcnt(4)")
    A(f"v_max3_f32 v24, v{Cb+16}, v{Cb+18}, v{Cb+20}")
    A(f"v_max_f32 v24, v24, v{Cb+22}")
    A(f"v_mul_f32 v25, s{s_c}, v24")
    for w in range(4):
        A(f"v_fma_f32 v{Cb+16+2*w}, v{Cb+16+2*w}, s{s_c}, -v25")
    for w in range(4):
        A(f"v_exp_f32 v{Cb+16+2*w}, v{Cb+16+2*w}")
    A(f"v_mul_f32 v26, v{Cb+16}, v{Cb+17}")
    for w in range(1, 4):
        A(f"v_fmac_f32 v26, v{Cb+16+2*w}, v{Cb+17+2*w}")
    A("v_rcp_f32 v24, v26")
    A("v_log_f32 v26, v26")
    A("s_waitcnt lgkmcnt(0)")
    for e in range(4):
        A(f"v_mul_f32 v{Cb+e}, v{Cb+16}, v{Cb+e}")
    A("v_add_f32 v25, v25, v26")
    for w in range(1, 4):
        for e in range(4):
            A(f"v_fmac_f32 v{Cb+e}, v{Cb+16+2*w}, v{Cb+4*w+e}")
    A(f"v_perm_b32 v28, v25, v27, s{s_t0}")
    A(f"v_perm_b32 v29, v25, v27, s{s_t1}")
    for e in range(4):
        A(f"v_mul_f32 v{Cb+e}, v24, v{Cb+e}")
    A(f"v_cvt_pk_bf16_f32 v30, v{Cb}, v{Cb+1}")
    A(f"v_cvt_pk_bf16_f32 v31, v{Cb+2}, v{Cb+3}")
    A(f"v_perm_b32 v{Cb}, v30, v28, s{s_t2}")
    A(f"v_perm_b32 v{Cb+1}, v30, v28, s{s_perm}")
    A(f"v_perm_b32 v{Cb+2}, v31, v29, s{s_t2}")
    A(f"v_perm_b32 v{Cb+3}, v31, v29, s{s_perm}")
    A(f"buffer_store_dwordx4 {vr(Cb,4)}, v{a_p1}, {srd(sWS)}, s{s_h1pub} offen sc1")
    L("L_nopub1")
    stamp("pub1")

    C("---- gather 32 dims of head hq from the 16 partials ----")
    L("L_h1poll")
    h1loads()
    A(f"s_sub_u32 s{s_spin}, s{s_spin}, 1")
    A("s_cbranch_scc1 L_end")
    A("s_waitcnt vmcnt(0)")
    tagcheck(list(range(B, B + 8)), s_tag8, 0xff, 30)
    A("v_cmp_ne_u32 vcc, 0, v30")
    A("s_cbranch_vccnz L_h1poll")
    stamp("h1ok")
    for i in range(2):
        A(f"v_perm_b32 v{24+2*i}, v{B+4*i+1}, v{B+4*i}, s{s_sel0}")
        A(f"v_perm_b32 v{25+2*i}, v{B+4*i+3}, v{B+4*i+2}, s{s_sel1}")
    A("v_or_b32 v24, v24, v25")
    A("v_or_b32 v25, v26, v27")
    A("v_max_f32 v26, v24, v25")
    A(f"v_and_b32 v{B}, 0xffff0000, v{B}")
    A(f"v_and_b32 v{B+1}, 0xffff0000, v{B+1}")
    A("v_max_f32_dpp v26, v26, v26 row_ror:8 row_mask:0xf bank_mask:0xf")
    A(f"v_and_b32 v{B+2}, 0xffff0000, v{B+2}")
    A("v_mov_b32 v27, v26")
    A(f"v_and_b32 v{B+3}, 0xffff0000, v{B+3}")
    A(f"v_and_b32 v{B+4}, 0xffff0000, v{B+4}")
    A("v_permlane16_swap_b32 v26, v27")
    A(f"v_and_b32 v{B+5}, 0xffff0000, v{B+5}")
    A(f"v_and_b32 v{B+6}, 0xffff0000, v{B+6}")
    A("v_max_f32 v26, v26, v27")
    A("v_sub_f32 v24, v24, v26")
    A("v_sub_f32 v25, v25, v26")
    A("v_exp_f32 v24, v24")
    A("v_exp_f32 v25, v25")
    A(f"v_and_b32 v{B+7}, 0xffff0000, v{B+7}")
    A("v_add_f32 v26, v24, v25")
    for e in range(4):
        A(f"v_mul_f32 v{B+e}, v24, v{B+e}")
    A("v_add_f32_dpp v26, v26, v26 row_ror:8 row_mask:0xf bank_mask:0xf")
    for e in range(4):
        A(f"v_fmac_f32 v{B+e}, v25, v{B+4+e}")
    A("v_mov_b32 v27, v26")
    for e in range(4):
        A(f"v_add_f32_dpp v{B+e}, v{B+e}, v{B+e} row_ror:8 row_mask:0xf bank_mask:0xf")
    A("v_permlane16_swap_b32 v26, v27")
    A("s_nop 0")
    A(f"v_permlane16_swap_b32 v{B}, v{B+2}")
    A(f"v_permlane16_swap_b32 v{B+1}, v{B+3}")
    A("v_add_f32 v26, v26, v27")
    A("v_rcp_f32 v26, v26")
    A(f"v_add_f32 v{B}, v{B}, v{B+2}")
    A(f"v_add_f32 v{B+1}, v{B+1}, v{B+3}")
    A(f"v_mul_f32 v26, v26, v{v_gf}")
    A(f"v_mul_f32 v{B}, v26, v{B}")
    A(f"v_mul_f32 v{B+1}, v26, v{B+1}")
    A(f"v_cvt_pk_bf16_f32 v{B}, v{B}, v{B+1}")
    A(f"ds_write_b32 v{a_ow}, v{B} offset:{OL}")
    A("s_waitcnt lgkmcnt(0)")
    A("s_barrier")
    stamp("bar2")
    for ks in range(4):
        A(f"ds_read_b128 {vr(v_q+4*ks,4)}, v{a_or} offset:{OL+ks*64}")
    A("v_bfe_u32 v24, v1, 1, 1")
    A("v_cmp_ne_u32 vcc, 0, v24")
    A(f"v_mov_b32 v31, s{s_tag12}")
    D = [v_kf, v_kf + 4]
    for ks in range(4):
        A(f"s_waitcnt lgkmcnt({3-ks})")
        for e in range(2):
            A(f"v_mfma_f32_16x16x32_bf16 {vr(D[e],4)}, {vr(v_a+(ks*2+e)*4,4)}, {vr(v_q+4*ks,4)}, " + ("0" if ks == 0 else vr(D[e], 4)))
    A("s_mov_b32 exec_lo, 0x000f000f")
    A("s_mov_b32 exec_hi, 0x000f000f")
    A("s_nop 5")
    for r in range(4):
        A(f"v_cndmask_b32 v{v_kf+r}, v{v_kf+r}, v{v_kf+4+r}, vcc")
    for r in range(4):
        A(f"v_add_u32 v{v_kf+r}, 0x800, v{v_kf+r}")
    for r in range(4):
        A(f"v_and_or_b32 v{v_kf+r}, v{v_kf+r}, s{s_m12}, v31")
    A(f"buffer_store_dwordx4 {vr(v_kf,4)}, v{a_p2}, {srd(sWS)}, s{s_h2pub} offen sc1")
    A("s_mov_b64 exec, -1")
    stamp("pub2")

    C("---- final reduction: wave 0 of workgroups 0..63 ----")
    A("s_cmp_ge_u32 s2, 64")
    A("s_cbranch_scc1 L_fin")
    A(f"s_cmp_lg_u32 s{s_w}, 0")
    A("s_cbranch_scc1 L_fin")
    A(f"s_lshl_b32 s{s_t0}, s2, 5")
    A(f"s_mov_b32 s{s_spin}, {SPIN}")
    F = B + 8
    L("L_h2poll")
    h2loads()
    A(f"s_sub_u32 s{s_spin}, s{s_spin}, 1")
    A("s_cbranch_scc1 L_end")
    for j in range(4):
        A(f"s_waitcnt vmcnt({3-j})")
        for e in range(4):
            A(f"v_xor_b32 v{F+4*j+e}, s{s_tag12}, v{F+4*j+e}")
        if j == 0:
            A(f"v_or_b32 v30, v{F}, v{F+1}")
            A(f"v_or3_b32 v30, v30, v{F+2}, v{F+3}")
        else:
            A(f"v_or3_b32 v30, v30, v{F+4*j}, v{F+4*j+1}")
            A(f"v_or3_b32 v30, v30, v{F+4*j+2}, v{F+4*j+3}")
            for e in range(4):
                A(f"v_add_f32 v{F+e}, v{F+e}, v{F+4*j+e}")
    A("v_and_b32 v30, 0xfff, v30")
    A("v_cmp_ne_u32 vcc, 0, v30")
    A("s_cbranch_vccnz L_h2poll")
    A(f"v_permlane32_swap_b32 v{F}, v{F+1}")
    A(f"v_permlane32_swap_b32 v{F+2}, v{F+3}")
    A("s_nop 0")
    A(f"v_add_f32 v{F}, v{F}, v{F+1}")
    A(f"v_add_f32 v{F+2}, v{F+2}, v{F+3}")
    A("s_nop 1")
    A(f"v_permlane16_swap_b32 v{F}, v{F+2}")
    A("s_nop 0")
    A(f"v_add_f32 v{F}, v{F}, v{F+2}")
    A("s_nop 1")
    A(f"v_add_f32_dpp v{F}, v{F}, v{F} row_ror:4 row_mask:0xf bank_mask:0xf")
    A("s_nop 1")
    A(f"v_add_f32_dpp v{F}, v{F}, v{F} row_ror:8 row_mask:0xf bank_mask:0xf")
    if perturb:
        A(f"v_mul_f32 v{F}, {f2u(perturb):#x}, v{F}")
    A(f"v_cvt_pk_bf16_f32 v{F}, v{F}, v{F}")
    A("s_mov_b32 exec_lo, 0x000f000f")
    A("s_mov_b32 exec_hi, 0x000f000f")
    A(f"buffer_store_short v{F}, v{a_out}, {srd(sO)}, s{s_t0} offen")
    A("s_cmp_lg_u32 s2, 0")
    A("s_cbranch_scc1 L_fin")
    C("every workgroup has published, hence read, the epoch word: advance it")
    A("s_mov_b64 exec, 1")
    A(f"v_mov_b32 v24, s{s_tag32}")
    A("v_mov_b32 v25, 0")
    A(f"buffer_store_dword v24, v25, {srd(sWS)}, 0 offen offset:{WS_E} sc1")
    L("L_fin")
    stamp("end")
    if diag:
        A("s_mov_b64 exec, 1")
        A("s_waitcnt lgkmcnt(0)")
        A(f"s_lshl_b32 s{s_t0}, s2, 2")
        A(f"s_add_u32 s{s_t0}, s{s_t0}, s{s_w}")
        A(f"s_lshl_b32 s{s_t0}, s{s_t0}, 5")
        A(f"s_add_u32 s{s_t0}, s{s_t0}, {WS_DIAG}")
        for i in range(8):
            A(f"v_mov_b32 v{B+i}, s{s_st+2*i}")
        A("v_mov_b32 v24, 0")
        A(f"buffer_store_dwordx4 {vr(B,4)}, v24, {srd(sWS)}, s{s_t0} offen")
        A(f"buffer_store_dwordx4 {vr(B+4,4)}, v24, {srd(sWS)}, s{s_t0} offen offset:16")
    if dbgdiag:
        A("s_load_dwordx2 s[4:5], s[0:1], 96")
        A("s_waitcnt lgkmcnt(0)")
        A(f"s_cmp_lg_u32 s{s_w}, 0")
        A("s_cbranch_scc1 L_end")
        A(f"v_not_b32 v{B+8}, v{B}")
        A(f"v_not_b32 v{B+9}, v{B+5}")
        for i in range(10):
            A(f"global_atomic_umax v24, v{B+i}, s[4:5] offset:{4*i}")
    L("L_end")
    A("s_endpgm")

    def retry(label, back, loads, wait):
        L(label)
        A(f"s_sub_u32 s{s_spin}, s{s_spin}, 1")
        A(f"s_cmp_eq_u32 s{s_spin}, 0")
        A("s_cbranch_scc1 L_end")
        loads()
        if wait:
            A("s_waitcnt vmcnt(0)")
        A(f"s_branch {back}")
    retry("L_qretry", "L_qcheck", lambda: qloads(False), True)

    L("L_rescale")
    C("new running max over the four lane groups; rescale O and l")
    A(f"v_max_f32 v{v_t}, v{v_t}, v{v_m}")
    A(f"v_mov_b32 v{v_t+1}, v{v_t}")
    A("s_nop 1")
    A(f"v_permlane32_swap_b32 v{v_t}, v{v_t+1}")
    A("s_nop 1")
    A(f"v_max_f32 v{v_t}, v{v_t}, v{v_t+1}")
    A(f"v_mov_b32 v{v_t+1}, v{v_t}")
    A("s_nop 1")
    A(f"v_permlane16_swap_b32 v{v_t}, v{v_t+1}")
    A("s_nop 1")
    A(f"v_max_f32 v{v_t}, v{v_t}, v{v_t+1}")
    A(f"v_mul_f32 v{v_nmc}, s{s_c}, v{v_t}")
    A(f"v_fma_f32 v{v_t+1}, v{v_m}, s{s_c}, -v{v_nmc}")
    A(f"v_exp_f32 v{v_t+1}, v{v_t+1}")
    A(f"v_sub_f32 v{v_nmc}, 0, v{v_nmc}")
    A(f"v_mov_b32 v{v_m}, v{v_t}")
    if THR:
        A(f"v_add_f32 v{v_mthr}, {f2u(THR/scale):#x}, v{v_t}")
    else:
        A(f"v_mov_b32 v{v_mthr}, v{v_t}")
    for r in range(33):
        A(f"v_mul_f32 v{v_o+r}, v{v_t+1}, v{v_o+r}")
    A(f"s_setpc_b64 s[{s_ret}:{s_ret+1}]")

    g.o.append('.section .rodata,"a"')
    g.o.append(".p2align 6")
    g.o.append(f".amdhsa_kernel {KNAME}")
    g.o.append(f"  .amdhsa_next_free_vgpr {NV}")
    g.o.append("  .amdhsa_next_free_sgpr 102")
    g.o.append(f"  .amdhsa_accum_offset {NV}")
    g.o.append("  .amdhsa_group_segment_fixed_size 0")
    g.o.append("  .amdhsa_kernarg_size 112")
    g.o.append("  .amdhsa_user_sgpr_count 2")
    g.o.append("  .amdhsa_user_sgpr_kernarg_segment_ptr 1")
    g.o.append("  .amdhsa_system_sgpr_workgroup_id_x 1")
    g.o.append("  .amdhsa_float_denorm_mode_32 3")
    g.o.append(".end_amdhsa_kernel")
    gen.sched_log = sched_log
    return "\n".join(g.o) + "\n"


if __name__ == "__main__":
    kw = {}
    for a in sys.argv[2:]:
        k, v = a.split("=")
        kw[k] = eval(v)
    src = gen(**kw)
    open(sys.argv[1], "w").write(src)
```

```python
import sys, math, struct

KNAME = "gated_mix__gqa_block_cached__gqa_block_cached__decode_kernel"

WS_E = 0x0
WS_QB = 0x1000
WS_H2 = 0x40000
WS_H1 = 0x100000
WS_DIAG = 0x200000
WS_SIZE = 0x400000
EPOCH_INC = 0x9E3779B1

NSLOT = 7
RING = NSLOT * 4096
STG = 4 * RING
SCR = STG + 32768
QP, QX, OPA, MLA, MLB, OX, FL = 0, 2048, 4096, 12288, 12416, 12544, 13056
LDS_BYTES = 163840


def f2u(x):
    return struct.unpack("<I", struct.pack("<f", x))[0]


class Gen:
    def __init__(self):
        self.o = []
        self.vm = []
        self.nid = 0

    def A(self, s):
        self.o.append("  " + s)

    def L(self, s):
        self.o.append(s + ":")

    def C(self, s):
        self.o.append("  ; " + s)

    def vmem(self, s, optional=False):
        self.A(s)
        self.nid += 1
        if not optional:
            self.vm.append(self.nid)
        return self.nid

    def wait_vm(self, op):
        if op not in self.vm:
            return False
        k = len(self.vm) - 1 - self.vm.index(op)
        assert k <= 63
        self.A(f"s_waitcnt vmcnt({k})")
        self.vm = self.vm[len(self.vm) - k:] if k else []
        return True

    def split(self, fn, n):
        keep, self.o = self.o, []
        nvm = self.nid
        fn()
        assert self.nid == nvm
        body, self.o = self.o, keep
        out, cur, k = [], [], 0
        for line in body:
            assert not line.endswith(":") and "cbranch" not in line and "s_cmp" not in line
            cur.append(line)
            if not line.strip().startswith(";"):
                k += 1
            if k == n:
                out.append(cur); cur, k = [], 0
        if cur:
            out.append(cur)
        return [(lambda c=c: self.o.extend(c)) for c in out]


def gen(N=5, Npat=None, NH=None, PH=64, NB=None, BL=0, BZ=(1, 2, 3, 4), BP=128, R=3, P0=16, PQ=38, QLAG=3, ALAG=8, PGA=400, CH=16, WARM=False, KSW='v', skip=(),
        diag=False, SPIN=1 << 21, pad=None, smap="head"):
    g = Gen()
    A, L, C = g.A, g.L, g.C
    LOG2E = math.log2(math.e)
    Npat = Npat or [N]
    NH = NH or max(Npat)
    def Nof(p):
        if p < PH:
            return NH
        if NB:
            for k in BZ:
                pb = 16 + BP * k
                if pb - BL <= p < pb:
                    return NB
        return Npat[p % len(Npat)]

    sKV = [20, 24, 28, 32]
    sWQ, sWO, sWS, sX, sG, sO = 36, 40, 44, 48, 52, 56
    srd = lambda b: f"s[{b}:{b+3}]"
    (s_w, s_b, s_hkv, s_j, s_kvb, s_kvoff, s_wb, s_stg, s_tag32, s_tag8, s_tag12, s_c, s_rs, s_t0, s_t1, s_t2, s_t3,
     s_wqoff, s_wooff, s_spin, s_colb, s_m12) = range(60, 82)
    s_qoff, s_perm, s_sel0, s_sel1, s_h1pub, s_h1get, s_h2pub, s_h2get, s_pa, s_pb, s_pc = 3, 4, 5, 6, 7, 8, 9, 10, 11, 12, 13
    s_st = 84

    v_g, v_n, v_c, v_r = 2, 3, 4, 5
    v_dk, v_dv, v_rk, v_rv = 6, 10, 12, 16
    v_mx, v_m, v_nmc, v_gfa, v_gfb = 24, 25, 26, 27, 28
    (a_wo, a_q, a_qw, a_qr, a_fw, a_fr, a_cwa, a_cwb, a_cml, a_cra, a_crb, a_crb2, a_crm, a_p1, a_g1, a_ow, a_or,
     a_p2, a_g2, a_out, a_wor) = range(29, 50)
    v_mt = 50
    v_s = 52
    v_one = 56
    v_d = 60
    v_sc = 68
    T = 132
    B = 140
    NV = 176
    a_qop = 0
    a_vf = 32
    a_wop = 64
    a_o = 96
    a_l = 128
    a_kf = 132
    NA = a_kf + 16 * R
    assert NA <= 256
    vr = lambda b, n: f"v[{b}:{b+n-1}]"
    ar = lambda b, n: f"a[{b}:{b+n-1}]"

    SMAPS = {"head": ["start", "qpub", "qval", "endKA", "endVA", "endKB", "drained", "end"],
             "tail": ["start", "drained", "bar", "pub1", "bar2", "h1ok", "pub2", "end"]}
    def stamp(name):
        if name not in SMAPS[smap]:
            return
        i = SMAPS[smap].index(name)
        if diag or (pad and i == 0):
            A(f"s_memrealtime s[{s_st+2*i}:{s_st+2*i+1}]")
        if pad and pad[0] == i:
            L("L_pad")
            A("s_memrealtime s[82:83]")
            A("s_waitcnt lgkmcnt(0)")
            A(f"s_sub_u32 s82, s82, s{s_st}")
            A(f"s_cmp_lt_u32 s82, {int(pad[1]*100)}")
            A("s_cbranch_scc1 L_pad")

    hdr = open("gated_mix__gqa_block_cached__gqa_block_cached__decode.s.ref").read().split("\n")
    for line in hdr:
        if line.startswith(";") and "@launch" not in line:
            g.o.append(line)
        elif not line.startswith(";"):
            break
    g.o.append(f"; @launch grid=(256,1,1) block=(256,1,1) lds={LDS_BYTES}")
    g.o.append('.amdgcn_target "amdgcn-amd-amdhsa--gfx950"')
    g.o.append(".text")
    g.o.append(f".globl {KNAME}")
    g.o.append(".p2align 8")
    g.o.append(f".type {KNAME},@function")
    L(KNAME)
    C("workgroup = (b, hkv, split of 2048 keys) for both branches; extra workgroups leave at once")
    A("s_cmp_ge_u32 s2, 256")
    A("s_cbranch_scc0 L_go")
    A("s_endpgm")
    L("L_go")
    A(f"s_lshr_b32 s{s_b}, s2, 7")
    A(f"s_mul_i32 s3, s{s_b}, 40")
    A("s_add_u32 s16, s0, s3")
    A("s_addc_u32 s17, s1, 0")
    A("s_load_dwordx2 s[14:15], s[16:17], 24")
    A("s_load_dwordx4 s[4:7], s[0:1], 8")
    A("s_load_dwordx2 s[12:13], s[0:1], 0")
    A("s_load_dwordx2 s[18:19], s[0:1], 104")
    A("s_load_dwordx4 s[8:11], s[0:1], 48")
    A("s_load_dwordx4 s[96:99], s[0:1], 80")
    stamp("start")
    A(f"v_lshrrev_b32 v{T}, 6, v0")
    A("v_and_b32 v1, 63, v0")
    A(f"v_readfirstlane_b32 s{s_w}, v{T}")
    A(f"s_bfe_u32 s{s_hkv}, s2, 0x30004")
    A(f"s_and_b32 s{s_j}, s2, 15")
    A(f"s_lshl_b32 s{s_t0}, s{s_b}, 4")
    A(f"s_add_u32 s{s_j}, s{s_j}, s{s_t0}")
    A(f"s_lshr_b32 s{s_t0}, s{s_w}, 1")
    A(f"s_mul_i32 s{s_t0}, s{s_t0}, 40")
    A(f"s_add_u32 s82, s0, s{s_t0}")
    A("s_addc_u32 s83, s1, 0")
    A(f"v_lshrrev_b32 v{v_g}, 4, v1")
    A(f"v_and_b32 v{v_n}, 15, v1")
    A(f"v_and_b32 v{v_c}, 3, v1")
    A(f"v_bfe_u32 v{v_r}, v1, 2, 2")
    C("x operand offset, wq dma offset")
    A(f"v_and_b32 v{T+1}, 1, v1")
    A(f"v_lshlrev_b32 v{T+1}, 10, v{T+1}")
    A(f"v_lshl_add_u32 v{T+1}, v{v_g}, 4, v{T+1}")
    A(f"v_lshrrev_b32 v{T+2}, 3, v1")
    A(f"v_lshlrev_b32 v{T+2}, 13, v{T+2}")
    A(f"v_and_b32 v{T}, 7, v1")
    A(f"v_lshl_add_u32 v{T+2}, v{T}, 4, v{T+2}")
    C("q slice: branch b, columns hkv*512 + ((j>>1)&7)*64, rows (j&1)*256 + w*64")
    A(f"s_bfe_u32 s{s_t0}, s2, 0x30001")
    A(f"s_lshl_b32 s{s_t0}, s{s_t0}, 6")
    A(f"s_lshl_b32 s{s_colb}, s{s_hkv}, 9")
    A(f"s_add_u32 s{s_colb}, s{s_colb}, s{s_t0}")
    A(f"s_and_b32 s{s_t0}, s2, 1")
    A(f"s_lshl_b32 s{s_t0}, s{s_t0}, 2")
    A(f"s_add_u32 s{s_t0}, s{s_t0}, s{s_w}")
    A(f"s_lshl_b32 s{s_t2}, s{s_t0}, 7")
    A(f"s_lshl_b32 s{s_t0}, s{s_t0}, 19")
    A(f"s_lshl_b32 s{s_wqoff}, s{s_colb}, 1")
    A(f"s_add_u32 s{s_wqoff}, s{s_wqoff}, s{s_t0}")
    A(f"s_lshl_b32 s{s_stg}, s{s_w}, 13")
    A(f"s_add_u32 s{s_stg}, s{s_stg}, {STG}")
    A(f"s_mul_i32 s{s_wb}, s{s_w}, {RING}")
    A(f"s_lshl_b32 s{s_kvb}, s2, 19")
    A(f"s_lshl_b32 s{s_t0}, s{s_w}, 12")
    A(f"s_add_u32 s{s_kvb}, s{s_kvb}, s{s_t0}")
    C("DMA voffsets: 16-byte chunk index xor 2*(key&7)")
    A(f"v_lshlrev_b32 v{T+3}, 8, v{v_g}")
    if KSW == "full":
        for j in range(4):
            A(f"v_add_u32 v{v_dk+j}, {4*j}, v{v_g}")
            A(f"v_xor_b32 v{v_dk+j}, v{v_dk+j}, v{v_n}")
            A(f"v_lshl_add_u32 v{v_dk+j}, v{v_dk+j}, 4, v{T+3}")
    for j in range(2):
        A(f"v_add_u32 v{v_dv+j}, {4*j}, v{v_g}")
        A(f"v_lshlrev_b32 v{v_dv+j}, 1, v{v_dv+j}")
        A(f"v_xor_b32 v{v_dv+j}, v{v_dv+j}, v{v_n}")
        A(f"v_lshl_add_u32 v{v_dv+j}, v{v_dv+j}, 4, v{T+3}")
    A("s_waitcnt lgkmcnt(0)")
    def mksrd(d, p, size):
        A(f"s_mov_b32 s{d}, s{p}")
        A(f"s_and_b32 s{d+1}, s{p+1}, 0xffff")
        A(f"s_mov_b32 s{d+2}, {size:#x}")
        A(f"s_mov_b32 s{d+3}, 0x20000")
    A(f"s_load_dword s{s_tag32}, s[18:19], {WS_E}")
    A("s_load_dwordx2 s[16:17], s[82:83], 32")
    mksrd(sWQ, 14, 0x400000)

    NT = 128
    Z = [("wq", j) for j in range(8)] + [("kv", t, j) for t in range(2) for j in range(4)] + \
        [("wo", j) for j in range(8)] + [("kv", t, j) for t in range(2, NT) for j in range(4)]
    pos = {z: p for p, z in enumerate(Z)}
    pos_of = lambda t, j: pos[("kv", t, j)]
    slot_of = lambda t: t % NSLOT
    isK = lambda t: (t // 32) % 2 == 0
    ids = {}

    def issue(p, throttle=True):
        z = Z[p]
        need_nop = False
        if z[0] == "wq":
            if z[1]:
                A(f"s_add_u32 s{s_wqoff}, s{s_wqoff}, 0x10000")
            A(f"s_add_u32 m0, s{s_stg}, {z[1]*1024}")
            need_nop = True
        elif z[0] == "wo":
            if z[1]:
                A(f"s_add_u32 s{s_wooff}, s{s_wooff}, 4096")
            A(f"s_add_u32 m0, s{s_stg}, {z[1]*1024}")
            need_nop = True
        elif z[2] == 0:
            t = z[1]
            A(f"s_add_u32 s{s_kvoff}, s{s_kvb}, {(t % 32) * 16384}")
            A(f"s_add_u32 m0, s{s_wb}, {slot_of(t)*4096}")
            need_nop = True
        waited = False
        if throttle and p - Nof(p) >= 0:
            waited = g.wait_vm(ids[p - Nof(p)])
        if need_nop and not waited:
            A("s_nop 0")
        if z[0] == "wq":
            ids[p] = g.vmem(f"buffer_load_dwordx4 v{T+2}, {srd(sWQ)}, s{s_wqoff} offen nt lds")
        elif z[0] == "wo":
            ids[p] = g.vmem(f"buffer_load_dwordx4 v{a_wo}, {srd(sWO)}, s{s_wooff} offen nt lds")
        else:
            _, t, j = z
            vo = v_dk + j if isK(t) and KSW == "full" else v_dv + (j & 1)
            ids[p] = g.vmem(f"buffer_load_dwordx4 v{vo}, {srd(sKV[t//32])}, s{s_kvoff} offen offset:{j*1024} nt lds")

    C("wq slice -> staging")
    for p in range(8):
        issue(p, throttle=False)
    mksrd(sX, 12, 2048)
    XO = B + 24
    assert XO + 8 <= NV
    GX = v_sc
    for j in range(2):
        last_small = g.vmem(f"buffer_load_dwordx4 {vr(v_d+4*j,4)}, v{T+1}, {srd(sX)}, s{s_t2} offen offset:{j*64}")
    mksrd(sKV[0], 4, 0x8000000)
    for p in range(8, P0):
        issue(p, throttle=False)
    assert P0 == 16
    C("gate inputs: lane l holds 16 elements (l&31) of batch w>>1")
    mksrd(sG, 96, 1024)
    A(f"v_and_b32 v{T}, 31, v1")
    A(f"v_lshlrev_b32 v{T}, 5, v{T}")
    A(f"s_lshr_b32 s{s_t0}, s{s_w}, 1")
    A(f"s_lshl_b32 s{s_t0}, s{s_t0}, 10")
    for j in range(2):
        g.vmem(f"buffer_load_dwordx4 {vr(GX+4*j,4)}, v{T}, {srd(sX)}, s{s_t0} offen offset:{j*16}")
    for j in range(2):
        last_gate = g.vmem(f"buffer_load_dwordx4 {vr(GX+8+4*j,4)}, v{T}, {srd(sG)}, 0 offen offset:{j*16}")
    mksrd(sKV[1], 6, 0x8000000)
    mksrd(sKV[2], 8, 0x8000000)
    mksrd(sKV[3], 10, 0x8000000)
    mksrd(sWS, 18, WS_SIZE)
    mksrd(sO, 98, 2048)
    C("clear the LDS flags")
    A(f"v_mov_b32 v{a_fr}, {SCR+FL}")
    A(f"v_lshl_add_u32 v{T}, v{v_n}, 2, v{a_fr}")
    A(f"v_mov_b32 v{T+1}, 0")
    A(f"ds_write_b32 v{T}, v{T+1}")
    C("LDS read addresses for K")
    A(f"v_lshl_add_u32 v{T+3}, v{v_n}, 8, s{s_wb}")
    if KSW != "full":
        A(f"v_and_b32 v{T+4}, 7, v{v_n}")
        A(f"v_lshlrev_b32 v{T+4}, 1, v{T+4}")
    for j in range(4):
        A(f"v_add_u32 v{v_rk+j}, {4*j}, v{v_g}")
        A(f"v_xor_b32 v{v_rk+j}, v{v_rk+j}, v{v_n if KSW == 'full' else T+4}")
        A(f"v_lshl_add_u32 v{v_rk+j}, v{v_rk+j}, 4, v{T+3}")
    C("wo dma offsets: branch w>>1, rows hq*128 + dh*64 + (w&1)*32 + 4j + r, columns cq*128")
    A(f"v_lshlrev_b32 v{a_wo}, 10, v{v_g}")
    A(f"v_lshl_add_u32 v{a_wo}, v{v_n}, 4, v{a_wo}")
    A(f"s_lshl_b32 s{s_t0}, s{s_hkv}, 3")
    A(f"s_lshr_b32 s{s_t1}, s{s_j}, 2")
    A(f"s_add_u32 s{s_t3}, s{s_t0}, s{s_t1}")
    A(f"s_lshl_b32 s{s_wooff}, s{s_t3}, 16")
    A(f"s_and_b32 s{s_t1}, s{s_w}, 1")
    A(f"s_lshl_b32 s{s_t1}, s{s_t1}, 15")
    A(f"s_add_u32 s{s_wooff}, s{s_wooff}, s{s_t1}")
    A(f"s_and_b32 s{s_t1}, s{s_j}, 3")
    A(f"s_lshl_b32 s{s_t1}, s{s_t1}, 8")
    A(f"s_add_u32 s{s_wooff}, s{s_wooff}, s{s_t1}")
    C("q-proj addresses")
    A(f"v_lshl_add_u32 v{T}, v{v_g}, 3, v{v_r}")
    A(f"v_lshl_add_u32 v{T}, v{T}, 7, s{s_stg}")
    A(f"v_lshl_add_u32 v{T}, v{v_c}, 3, v{T}")
    A(f"s_lshl_b32 s{s_t0}, s{s_w}, 9")
    A(f"s_add_u32 s{s_t0}, s{s_t0}, {SCR+QP}")
    A(f"v_and_b32 v{T+1}, 1, v1")
    A(f"v_lshl_add_u32 v{T+1}, v{T+1}, 8, s{s_t0}")
    A(f"v_lshl_add_u32 v{T+1}, v{v_g}, 4, v{T+1}")
    A(f"v_and_b32 v{T+3}, 31, v1")
    A(f"v_lshlrev_b32 v{T+3}, 4, v{T+3}")
    A(f"v_add_u32 v{T+3}, {SCR+QP}, v{T+3}")
    A(f"v_bfe_u32 v{T+4}, v1, 4, 1")
    A(f"v_lshlrev_b32 v{T+4}, 14, v{T+4}")
    A(f"v_lshl_add_u32 v{T+4}, v{v_n}, 4, v{T+4}")
    A(f"s_lshl_b32 s{s_t0}, s{s_b}, 13")
    A(f"s_add_u32 s{s_t0}, s{s_t0}, s{s_colb}")
    A(f"s_lshl_b32 s{s_t0}, s{s_t0}, 2")
    A(f"s_and_b32 s{s_t1}, s2, 1")
    A(f"s_lshl_b32 s{s_t1}, s{s_t1}, 16")
    A(f"s_add_u32 s{s_t0}, s{s_t0}, s{s_t1}")
    A(f"s_add_u32 s{s_t0}, s{s_t0}, {WS_QB}")
    A(f"s_movk_i32 s{s_t1}, 0xff00")
    A("s_waitcnt lgkmcnt(0)")
    mksrd(sWO, 16, 0x400000)
    A(f"s_add_u32 s{s_tag32}, s{s_tag32}, {EPOCH_INC:#x}")
    A(f"s_and_b32 s{s_tag8}, s{s_tag32}, 0xff")
    A(f"s_and_b32 s{s_tag12}, s{s_tag32}, 0xfff")
    A(f"v_mov_b32 v{T+5}, s{s_tag8}")

    C("---- q projection: 64 columns, half of the rows ----")
    g.wait_vm(last_small)
    for ks in range(2):
        for cb in range(4):
            for hf in range(2):
                A(f"ds_read_b64_tr_b16 {ar(a_vf+(ks*4+cb)*4+hf*2,2)}, v{T} offset:{ks*4096 + hf*512 + cb*32}")
    for ks in range(2):
        A(f"s_waitcnt lgkmcnt({8-8*ks})")
        for cb in range(4):
            A(f"v_mfma_f32_16x16x32_bf16 {vr(B+4*cb,4)}, {ar(a_vf+(ks*4+cb)*4,4)}, {vr(v_d+4*ks,4)}, " + ("0" if ks == 0 else vr(B + 4 * cb, 4)))
    A("s_nop 4")
    for cb in range(4):
        A(f"ds_write_b128 v{T+1}, {vr(B+4*cb,4)} offset:{cb*64}")
    A(f"s_cmp_eq_u32 s{s_w}, 0")
    A("s_waitcnt lgkmcnt(0)")
    A("s_barrier")
    A("s_cbranch_scc0 L_noqstore")
    for w in range(4):
        A(f"ds_read_b128 {vr(B+4*w,4)}, v{T+3} offset:{w*512}")
    A("s_waitcnt lgkmcnt(0)")
    for e in range(4):
        A(f"v_add_f32 v{B+e}, v{B+e}, v{B+4+e}")
        A(f"v_add_f32 v{B+8+e}, v{B+8+e}, v{B+12+e}")
    for e in range(4):
        A(f"v_add_f32 v{B+e}, v{B+e}, v{B+8+e}")
    for e in range(4):
        A(f"v_add_u32 v{B+e}, 0x80, v{B+e}")
    for e in range(4):
        A(f"v_and_or_b32 v{B+e}, v{B+e}, s{s_t1}, v{T+5}")
    A("s_mov_b32 exec_hi, 0")
    g.vmem(f"buffer_store_dwordx4 {vr(B,4)}, v{T+4}, {srd(sWS)}, s{s_t0} offen sc1", optional=True)
    A("s_mov_b64 exec, -1")
    L("L_noqstore")
    stamp("qpub")

    def setup_rest():
        C("constants")
        A(f"s_mov_b32 s{s_c}, {f2u(LOG2E):#x}")
        A(f"s_mov_b32 s{s_rs}, {f2u(128 ** -0.5):#x}")
        A(f"s_mov_b32 s{s_perm}, 0x07060302")
        A(f"s_mov_b32 s{s_m12}, 0xfffff000")
        A(f"s_mov_b32 s{s_sel0}, 0x0c0c0501")
        A(f"s_mov_b32 s{s_sel1}, 0x05010c0c")
        A(f"s_mov_b32 s{s_pa}, 0x05000400")
        A(f"s_mov_b32 s{s_pb}, 0x07000600")
        A(f"s_mov_b32 s{s_pc}, 0x05040100")
        A(f"s_mov_b32 s{s_spin}, {SPIN}")
        for r in range(4):
            A(f"v_mov_b32 v{v_one+r}, 0x3f803f80")
        C("q gather: head w, lanes 0-31 half 0, lanes 32-63 half 1")
        A(f"v_lshrrev_b32 v{T}, 5, v1")
        A(f"v_and_b32 v{T+1}, 31, v1")
        A(f"v_lshlrev_b32 v{T+2}, 4, v{T+1}")
        A(f"v_lshl_add_u32 v{a_q}, v{T}, 16, v{T+2}")
        A(f"s_lshl_b32 s{s_t0}, s{s_b}, 14")
        A(f"s_lshl_b32 s{s_t1}, s{s_hkv}, 11")
        A(f"s_add_u32 s{s_t0}, s{s_t0}, s{s_t1}")
        A(f"s_lshl_b32 s{s_t1}, s{s_w}, 9")
        A(f"s_add_u32 s{s_t0}, s{s_t0}, s{s_t1}")
        A(f"s_add_u32 s{s_qoff}, s{s_t0}, {WS_QB}")
        A(f"s_lshl_b32 s{s_t0}, s{s_w}, 8")
        A(f"s_add_u32 s{s_t0}, s{s_t0}, {SCR+QX}")
        A(f"v_lshl_add_u32 v{a_qw}, v{T+1}, 3, s{s_t0}")
        A(f"v_lshl_add_u32 v{a_qw}, v{T}, 2, v{a_qw}")
        A(f"v_lshlrev_b32 v{a_qr}, 8, v{v_c}")
        A(f"v_lshl_add_u32 v{a_qr}, v{v_g}, 4, v{a_qr}")
        A(f"v_add_u32 v{a_qr}, {SCR+QX}, v{a_qr}")
        A(f"s_lshl_b32 s{s_t0}, s{s_w}, 2")
        A(f"v_add_u32 v{a_fw}, s{s_t0}, v{a_fr}")
        C("wo operand address: STG + (g*8+r)*256 + c*8 + w*64")
        A(f"v_lshl_add_u32 v{T+3}, v{v_g}, 3, v{v_r}")
        A(f"s_lshl_b32 s{s_t0}, s{s_w}, 6")
        A(f"s_add_u32 s{s_t0}, s{s_t0}, {STG}")
        A(f"v_lshl_add_u32 v{T+3}, v{T+3}, 8, s{s_t0}")
        A(f"v_lshl_add_u32 v{a_wor}, v{v_c}, 3, v{T+3}")
        C("V transposed read addresses")
        A(f"v_lshl_add_u32 v{T+3}, v{v_g}, 2, v{v_r}")
        A(f"v_lshl_add_u32 v{T+4}, v{T+3}, 8, s{s_wb}")
        A(f"v_and_b32 v{T+5}, 1, v{v_c}")
        A(f"v_lshl_add_u32 v{T+4}, v{T+5}, 3, v{T+4}")
        A(f"v_and_b32 v{T+3}, 7, v{T+3}")
        A(f"v_lshlrev_b32 v{T+3}, 1, v{T+3}")
        A(f"v_lshrrev_b32 v{T+5}, 1, v{v_c}")
        A(f"v_or_b32 v{T+3}, v{T+3}, v{T+5}")
        for cb in range(8):
            A(f"v_xor_b32 v{v_rv+cb}, {2*cb}, v{T+3}")
            A(f"v_lshl_add_u32 v{v_rv+cb}, v{v_rv+cb}, 4, v{T+4}")
        C("combine: writers (lane (g,h)) and readers (head w, d4)")
        A(f"v_lshlrev_b32 v{T+3}, 9, v{v_c}")
        A(f"v_lshl_add_u32 v{T+3}, v{v_g}, 4, v{T+3}")
        A(f"s_lshl_b32 s{s_t0}, s{s_w}, 11")
        A(f"s_add_u32 s{s_t0}, s{s_t0}, {SCR+OPA}")
        A(f"v_add_u32 v{a_cwa}, s{s_t0}, v{T+3}")
        A(f"v_add_u32 v{a_cwb}, s{s_wb}, v{T+3}")
        A(f"s_lshl_b32 s{s_t0}, s{s_w}, 2")
        A(f"s_add_u32 s{s_t0}, s{s_t0}, {SCR}")
        A(f"v_lshl_add_u32 v{a_cml}, v{v_c}, 4, s{s_t0}")
        A(f"s_lshl_b32 s{s_t0}, s{s_w}, 9")
        A(f"v_add_u32 v{a_crb}, s{s_t0}, v{T+2}")
        A(f"v_add_u32 v{a_cra}, {SCR+OPA}, v{a_crb}")
        A(f"v_add_u32 v{a_crb2}, {2*RING}, v{a_crb}")
        A(f"s_lshl_b32 s{s_t0}, s{s_w}, 4")
        A(f"s_add_u32 s{s_t0}, s{s_t0}, {SCR}")
        A(f"v_mov_b32 v{a_crm}, s{s_t0}")
        C("hop-1 publish: row (hkv, h=w, j)")
        A(f"v_mov_b32 v{a_p1}, v{T+2}")
        A(f"s_lshl_b32 s{s_t0}, s{s_hkv}, 2")
        A(f"s_add_u32 s{s_t0}, s{s_t0}, s{s_w}")
        A(f"s_lshl_b32 s{s_t0}, s{s_t0}, 5")
        A(f"s_add_u32 s{s_t0}, s{s_t0}, s{s_j}")
        A(f"s_lshl_b32 s{s_t0}, s{s_t0}, 9")
        A(f"s_add_u32 s{s_h1pub}, s{s_t0}, {WS_H1}")
        C("hop-1 gather: rows (hkv, h=j>>3, (w>>1)*16 + 2*s3 + i), bytes dh*256 + (w&1)*128 + d8*16")
        A(f"v_lshrrev_b32 v{T+3}, 3, v1")
        A(f"v_and_b32 v{T+4}, 7, v1")
        A(f"v_lshlrev_b32 v{T+5}, 4, v{T+4}")
        A(f"v_lshl_add_u32 v{a_g1}, v{T+3}, 10, v{T+5}")
        A(f"s_lshr_b32 s{s_t0}, s{s_t3}, 1")
        A(f"s_lshl_b32 s{s_t0}, s{s_t0}, 14")
        A(f"s_lshr_b32 s{s_t1}, s{s_w}, 1")
        A(f"s_lshl_b32 s{s_t1}, s{s_t1}, 13")
        A(f"s_add_u32 s{s_t0}, s{s_t0}, s{s_t1}")
        A(f"s_and_b32 s{s_t1}, s{s_t3}, 1")
        A(f"s_lshl_b32 s{s_t1}, s{s_t1}, 8")
        A(f"s_add_u32 s{s_t0}, s{s_t0}, s{s_t1}")
        A(f"s_and_b32 s{s_t1}, s{s_w}, 1")
        A(f"s_lshl_b32 s{s_t1}, s{s_t1}, 7")
        A(f"s_add_u32 s{s_t0}, s{s_t0}, s{s_t1}")
        A(f"s_add_u32 s{s_h1get}, s{s_t0}, {WS_H1}")
        C("combined o in LDS [br][b][64] bf16: writer w*64 + d8*8 + bit5*4 + bit4*2 ; reader (n&1)*128 + g*16")
        A(f"s_lshl_b32 s{s_t0}, s{s_w}, 6")
        A(f"s_add_u32 s{s_t0}, s{s_t0}, {SCR+OX}")
        A(f"v_lshl_add_u32 v{a_ow}, v{T+4}, 3, s{s_t0}")
        A(f"v_lshl_add_u32 v{a_ow}, v{T}, 2, v{a_ow}")
        A(f"v_bfe_u32 v{T+5}, v1, 4, 1")
        A(f"v_lshl_add_u32 v{a_ow}, v{T+5}, 1, v{a_ow}")
        A(f"v_and_b32 v{T+3}, 1, v1")
        A(f"v_lshlrev_b32 v{a_or}, 7, v{T+3}")
        A(f"v_lshl_add_u32 v{a_or}, v{v_g}, 4, v{a_or}")
        A(f"v_add_u32 v{a_or}, {SCR+OX}, v{a_or}")
        C("hop-2 store: lane (g, n<4): b = n&1, e = n>>1")
        A(f"v_lshlrev_b32 v{a_p2}, 17, v{T+3}")
        A(f"v_lshl_add_u32 v{a_p2}, v{v_g}, 4, v{a_p2}")
        A(f"v_bfe_u32 v{T+3}, v1, 1, 1")
        A(f"v_lshl_add_u32 v{a_p2}, v{T+3}, 12, v{a_p2}")
        A(f"s_and_b32 s{s_t0}, s{s_j}, 3")
        A(f"s_lshl_b32 s{s_t0}, s{s_t0}, 2")
        A(f"s_add_u32 s{s_t0}, s{s_t0}, s{s_w}")
        A(f"s_lshl_b32 s{s_t0}, s{s_t0}, 13")
        A(f"s_lshl_b32 s{s_t1}, s{s_t3}, 6")
        A(f"s_add_u32 s{s_t0}, s{s_t0}, s{s_t1}")
        A(f"s_add_u32 s{s_h2pub}, s{s_t0}, {WS_H2}")
        C("hop-2 gather and output offsets")
        A(f"v_lshlrev_b32 v{a_g2}, 4, v1")
        A(f"s_lshl_b32 s{s_t0}, s2, 12")
        A(f"s_add_u32 s{s_h2get}, s{s_t0}, {WS_H2}")
        A(f"v_lshlrev_b32 v{a_out}, 3, v{v_c}")
        A(f"v_lshl_add_u32 v{a_out}, v{T+5}, 2, v{a_out}")
        A(f"v_lshl_add_u32 v{a_out}, v{T}, 1, v{a_out}")

    def setup_gate():
        C("gate g and 1-g for batch w>>1, with the reference's bf16 rounding points")
        X, Wt = GX, GX + 8
        for r in range(8):
            A(f"v_lshlrev_b32 v{T}, 16, v{X+r}")
            A(f"v_lshlrev_b32 v{T+1}, 16, v{Wt+r}")
            A(f"v_and_b32 v{X+r}, 0xffff0000, v{X+r}")
            A(f"v_and_b32 v{Wt+r}, 0xffff0000, v{Wt+r}")
            A(f"v_mul_f32 v{T}, v{T}, v{T+1}")
            A(f"v_mul_f32 v{X+r}, v{X+r}, v{Wt+r}")
            A(f"v_cvt_pk_bf16_f32 v{X+r}, v{T}, v{X+r}")
        for r in range(8):
            A(f"v_dot2_f32_bf16 v{T+2}, v{X+r}, v{v_one}, " + ("0" if r == 0 else f"v{T+2}"))
        A("s_nop 2")
        for d in (1, 2, 4, 8):
            A(f"v_add_f32_dpp v{T+2}, v{T+2}, v{T+2} row_ror:{d} row_mask:0xf bank_mask:0xf")
            A("s_nop 1")
        A(f"v_mov_b32 v{T+3}, v{T+2}")
        A("s_nop 1")
        A(f"v_permlane16_swap_b32 v{T+2}, v{T+3}")
        A("s_nop 0")
        A(f"v_add_f32 v{T+2}, v{T+2}, v{T+3}")
        A(f"v_cvt_pk_bf16_f32 v{T+2}, 0, v{T+2}")
        A(f"v_mul_f32 v{T+2}, {f2u(-LOG2E):#x}, v{T+2}")
        A(f"v_exp_f32 v{T+2}, v{T+2}")
        A("s_nop 0")
        A(f"v_add_f32 v{T+2}, 1.0, v{T+2}")
        A(f"v_rcp_f32 v{v_gfa}, v{T+2}")
        A("s_nop 0")
        A(f"v_cvt_pk_bf16_f32 v{v_gfa}, 0, v{v_gfa}")
        A(f"v_sub_f32 v{v_gfb}, 1.0, v{v_gfa}")
        A(f"v_cvt_pk_bf16_f32 v{v_gfb}, 0, v{v_gfb}")

    st = {}
    def spin_guard():
        A(f"s_sub_u32 s{s_spin}, s{s_spin}, 1")
        A("s_cbranch_scc1 L_end")

    def qloads(track):
        A(f"s_add_u32 s{s_t0}, s{s_qoff}, 0x8000")
        for br in range(2):
            s = f"buffer_load_dwordx4 {vr(B+4*br,4)}, v{a_q}, {srd(sWS)}, s{s_t0 if br else s_qoff} offen sc1"
            if track:
                st["q"] = g.vmem(s)
            else:
                A(s)

    def xorcheck(regs, stag, mask, acc, inplace):
        if inplace:
            for r in regs:
                A(f"v_xor_b32 v{r}, s{stag}, v{r}")
            A(f"v_or_b32 v{acc}, v{regs[0]}, v{regs[1]}")
            for i in range(2, len(regs), 2):
                A(f"v_or3_b32 v{acc}, v{acc}, v{regs[i]}, v{regs[i+1]}")
        else:
            A(f"v_xor_b32 v{acc}, s{stag}, v{regs[0]}")
            for r in regs[1:]:
                A(f"v_bitop3_b32 v{acc}, v{acc}, v{r}, s{stag} bitop3:0xf6")
        A(f"v_and_b32 v{acc}, {mask:#x}, v{acc}")
        A(f"v_cmp_ne_u32 vcc, 0, v{acc}")

    def q_validate():
        C("---- validate this wave's head of q (both branches), share through LDS ----")
        g.wait_vm(st["q"])
        assert ids[pos[("wo", 7)]] not in g.vm
        L("L_qcheck")
        xorcheck(list(range(B, B + 8)), s_tag8, 0xff, T, True)
        A("s_cbranch_vccnz L_qretry")
        for br in range(2):
            A(f"v_permlane32_swap_b32 v{B+4*br}, v{B+4*br+2}")
            A(f"v_permlane32_swap_b32 v{B+4*br+1}, v{B+4*br+3}")
        for br in range(2):
            A(f"v_add_f32 v{B+4*br}, v{B+4*br}, v{B+4*br+2}")
            A(f"v_add_f32 v{B+4*br+1}, v{B+4*br+1}, v{B+4*br+3}")
        for br in range(2):
            A(f"v_cvt_pk_bf16_f32 v{B+4*br}, v{B+4*br}, v{B+4*br+1}")
        for br in range(2):
            A(f"ds_write_b32 v{a_qw}, v{B+4*br} offset:{br*1024}")
        A("s_waitcnt lgkmcnt(0)")
        A(f"ds_write_b32 v{a_fw}, v{v_one}")

    def flag_wait(name, off):
        L(name)
        A(f"ds_read_b128 {vr(B,4)}, v{a_fr} offset:{off}")
        spin_guard()
        A("s_waitcnt lgkmcnt(0)")
        A(f"v_and_b32 v{B}, v{B}, v{B+1}")
        A(f"v_and_b32 v{B+2}, v{B+2}, v{B+3}")
        A(f"v_and_b32 v{B}, v{B}, v{B+2}")
        A(f"v_cmp_eq_u32 vcc, 0, v{B}")
        A(f"s_cbranch_vccnz {name}")

    def q_fetch():
        flag_wait("L_qflag", 0)
        for j in range(4):
            A(f"ds_read_b128 {ar(a_qop+4*j,4)}, v{a_qr} offset:{j*64}")
        stamp("qval")
        st["qready"] = True

    def q_fetch_b():
        for j in range(4):
            A(f"ds_read_b128 {ar(a_qop+16+4*j,4)}, v{a_qr} offset:{1024+j*64}")

    def wo_fetch(k):
        def f():
            for e in range(2):
                for hf in range(2):
                    A(f"ds_read_b64_tr_b16 {ar(a_wop+(k*2+e)*4+hf*2,2)}, v{a_wor} offset:{k*8192+hf*1024+e*32}")
        return f

    FSLOT = slot_of(NT)
    def dump_o(br):
        adr, off, ml = (a_cwa, 0, MLA) if br == 0 else (a_cwb, FSLOT * 4096, MLB)
        A("s_mov_b32 exec_lo, 0x000f000f")
        A("s_mov_b32 exec_hi, 0x000f000f")
        A(f"ds_write_b32 v{a_cml}, v{v_m} offset:{ml}")
        A(f"ds_write_b32 v{a_cml}, a{a_l} offset:{ml+64}")
        for cb in range(8):
            A(f"ds_write_b128 v{adr}, {ar(a_o+4*cb,4)} offset:{off+cb*64}")
        A("s_mov_b64 exec, -1")

    def comb_read(br):
        ml = MLA if br == 0 else MLB
        A(f"ds_read_b128 {vr(B+16,4)}, v{a_crm} offset:{ml}")
        A(f"ds_read_b128 {vr(B+20,4)}, v{a_crm} offset:{ml+64}")
        for w in range(4):
            if br == 0:
                A(f"ds_read_b128 {vr(B+4*w,4)}, v{a_cra} offset:{w*2048}")
            else:
                A(f"ds_read_b128 {vr(B+4*w,4)}, v{a_crb if w < 2 else a_crb2} offset:{(w&1)*RING + FSLOT*4096}")

    def comb_math(extra=None):
        def wl(k):
            if extra is not None:
                A(f"s_waitcnt lgkmcnt({k+extra})")
        A(f"v_mov_b32 v{T+3}, s{s_tag8}")
        wl(5)
        A(f"v_max3_f32 v{T}, v{B+16}, v{B+17}, v{B+18}")
        A(f"v_max_f32 v{T}, v{T}, v{B+19}")
        A(f"v_mul_f32 v{T+1}, s{s_c}, v{T}")
        for w in range(4):
            A(f"v_fma_f32 v{B+16+w}, v{B+16+w}, s{s_c}, -v{T+1}")
        for w in range(4):
            A(f"v_exp_f32 v{B+16+w}, v{B+16+w}")
        wl(4)
        A(f"v_mul_f32 v{T+2}, v{B+16}, v{B+20}")
        for w in range(1, 4):
            A(f"v_fmac_f32 v{T+2}, v{B+16+w}, v{B+20+w}")
        A(f"v_rcp_f32 v{T}, v{T+2}")
        A(f"v_log_f32 v{T+2}, v{T+2}")
        wl(0)
        for e in range(4):
            A(f"v_mul_f32 v{B+e}, v{B+16}, v{B+e}")
        A(f"v_add_f32 v{T+1}, v{T+1}, v{T+2}")
        for w in range(1, 4):
            for e in range(4):
                A(f"v_fmac_f32 v{B+e}, v{B+16+w}, v{B+4*w+e}")
        A(f"v_perm_b32 v{T+4}, v{T+1}, v{T+3}, s{s_pa}")
        A(f"v_perm_b32 v{T+5}, v{T+1}, v{T+3}, s{s_pb}")
        for e in range(4):
            A(f"v_mul_f32 v{B+e}, v{T}, v{B+e}")
        A(f"v_cvt_pk_bf16_f32 v{T+6}, v{B}, v{B+1}")
        A(f"v_cvt_pk_bf16_f32 v{T+7}, v{B+2}, v{B+3}")
        A(f"v_perm_b32 v{B+24}, v{T+6}, v{T+4}, s{s_pc}")
        A(f"v_perm_b32 v{B+25}, v{T+6}, v{T+4}, s{s_perm}")
        A(f"v_perm_b32 v{B+26}, v{T+7}, v{T+5}, s{s_pc}")
        A(f"v_perm_b32 v{B+27}, v{T+7}, v{T+5}, s{s_perm}")

    def comb_store(br, track):
        A("s_mov_b32 exec_hi, 0")
        s = f"buffer_store_dwordx4 {vr(B+24,4)}, v{a_p1}, {srd(sWS)}, s{s_h1pub} offen sc1"
        g.vmem(s) if track else A(s)
        A("s_mov_b64 exec, -1")
        if br == 0:
            A(f"s_add_u32 s{s_h1pub}, s{s_h1pub}, 0x80000")

    def h1loads(track=False):
        for i in range(2):
            s = f"buffer_load_dwordx4 {vr(B+4*i,4)}, v{a_g1}, {srd(sWS)}, s{s_h1get} offen offset:{i*512} sc1"
            if track:
                st["h1"] = g.vmem(s)
            else:
                A(s)

    def gather_math(br):
        gf = v_gfa if br == 0 else v_gfb
        msk = lambda r: A(f"v_and_b32 v{B+r}, 0xffff0000, v{B+r}")
        for i in range(2):
            A(f"v_perm_b32 v{T+2*i}, v{B+4*i+1}, v{B+4*i}, s{s_sel0}")
            A(f"v_perm_b32 v{T+1+2*i}, v{B+4*i+3}, v{B+4*i+2}, s{s_sel1}")
        A(f"v_or_b32 v{T}, v{T}, v{T+1}")
        A(f"v_or_b32 v{T+1}, v{T+2}, v{T+3}")
        A(f"v_max_f32 v{T+2}, v{T}, v{T+1}")
        msk(0); msk(1)
        A(f"v_max_f32_dpp v{T+2}, v{T+2}, v{T+2} row_ror:8 row_mask:0xf bank_mask:0xf")
        A(f"v_mov_b32 v{T+3}, v{T+2}")
        msk(2); msk(3)
        A(f"v_permlane16_swap_b32 v{T+2}, v{T+3}")
        A(f"v_max_f32 v{T+2}, v{T+2}, v{T+3}")
        A(f"v_mov_b32 v{T+3}, v{T+2}")
        msk(4); msk(5)
        A(f"v_permlane32_swap_b32 v{T+2}, v{T+3}")
        A(f"v_max_f32 v{T+2}, v{T+2}, v{T+3}")
        A(f"v_sub_f32 v{T}, v{T}, v{T+2}")
        A(f"v_sub_f32 v{T+1}, v{T+1}, v{T+2}")
        A(f"v_exp_f32 v{T}, v{T}")
        A(f"v_exp_f32 v{T+1}, v{T+1}")
        msk(6); msk(7)
        A(f"v_add_f32 v{T+2}, v{T}, v{T+1}")
        for e in range(4):
            A(f"v_mul_f32 v{B+e}, v{T}, v{B+e}")
        A(f"v_mov_b32 v{T+3}, v{T+2}")
        for e in range(4):
            A(f"v_fmac_f32 v{B+e}, v{T+1}, v{B+4+e}")
        A(f"v_permlane32_swap_b32 v{T+2}, v{T+3}")
        A(f"v_add_f32 v{T+2}, v{T+2}, v{T+3}")
        A(f"v_permlane32_swap_b32 v{B}, v{B+2}")
        A(f"v_permlane32_swap_b32 v{B+1}, v{B+3}")
        A(f"v_mov_b32 v{T+3}, v{T+2}")
        A(f"v_add_f32 v{B}, v{B}, v{B+2}")
        A(f"v_add_f32 v{B+1}, v{B+1}, v{B+3}")
        A(f"v_permlane16_swap_b32 v{T+2}, v{T+3}")
        A(f"v_add_f32 v{T+2}, v{T+2}, v{T+3}")
        A(f"v_permlane16_swap_b32 v{B}, v{B+1}")
        A(f"v_add_f32 v{B}, v{B}, v{B+1}")
        A(f"v_add_f32_dpp v{T+2}, v{T+2}, v{T+2} row_ror:8 row_mask:0xf bank_mask:0xf")
        A(f"v_rcp_f32 v{T+2}, v{T+2}")
        A(f"v_add_f32_dpp v{B}, v{B}, v{B} row_ror:8 row_mask:0xf bank_mask:0xf")
        A(f"v_mul_f32 v{T+2}, v{T+2}, v{gf}")
        A(f"v_mul_f32 v{B}, v{T+2}, v{B}")
        A(f"v_cvt_pk_bf16_f32 v{B}, v{B}, v{B}")
        A(f"ds_write_b16 v{a_ow}, v{B} offset:{br*256}")

    def gatherA_validate():
        g.wait_vm(st["h1"])
        L("L_gacheck")
        xorcheck(list(range(B, B + 8)), s_tag8, 0xff, T, False)
        A("s_cbranch_vccnz L_garetry")
        A(f"s_add_u32 s{s_h1get}, s{s_h1get}, 0x80000")

    F = B + 8
    def h2loads(track=False):
        for j in range(4):
            s = f"buffer_load_dwordx4 {vr(F+4*j,4)}, v{a_g2}, {srd(sWS)}, s{s_h2get} offen offset:{j*1024} sc1"
            g.vmem(s, optional=True) if track else A(s)

    def warm():
        h1loads(True)
        A("s_cmp_ge_u32 s2, 64")
        A("s_cbranch_scc1 L_nowarm")
        A(f"s_cmp_lg_u32 s{s_w}, 0")
        A("s_cbranch_scc1 L_nowarm")
        h2loads(True)
        L("L_nowarm")

    kf = lambda t: a_kf + 16 * (t % R)
    def KR(t):
        for j in range(4):
            A(f"ds_read_b128 {ar(kf(t)+4*j,4)}, v{v_rk+j} offset:{slot_of(t)*4096}")
    def LW(t):
        A("s_waitcnt lgkmcnt(0)")
    def QK(t):
        A("s_waitcnt lgkmcnt(0)")
        q = a_qop + 16 * (t // 64)
        for j in range(4):
            A(f"v_mfma_f32_16x16x32_bf16 {vr(v_s,4)}, {ar(kf(t)+4*j,4)}, {ar(q+4*j,4)}, " + ("0" if j == 0 else vr(v_s, 4)))
    def SC(t):
        k = t % 32
        A("s_nop 7")
        for r in range(4):
            A(f"v_cvt_pk_bf16_f32 v{v_s+r}, 0, v{v_s+r}")
        for r in range(4):
            A(f"v_mul_f32 v{v_s+r}, s{s_rs}, v{v_s+r}")
        if k == 0:
            A(f"v_max_f32 v{v_mx}, v{v_s}, v{v_s+1}")
        else:
            A(f"v_max3_f32 v{v_mx}, v{v_mx}, v{v_s}, v{v_s+1}")
        A(f"v_cvt_pk_bf16_f32 v{v_sc+2*k}, v{v_s}, v{v_s+1}")
        A(f"v_max3_f32 v{v_mx}, v{v_mx}, v{v_s+2}, v{v_s+3}")
        A(f"v_cvt_pk_bf16_f32 v{v_sc+2*k+1}, v{v_s+2}, v{v_s+3}")
    def MX(t):
        C("true maximum of this wave's scores per head")
        A(f"v_mov_b32 v{v_mt}, v{v_mx}")
        A("s_nop 1")
        A(f"v_permlane32_swap_b32 v{v_mx}, v{v_mt}")
        A(f"v_max_f32 v{v_mx}, v{v_mx}, v{v_mt}")
        A(f"v_mov_b32 v{v_mt}, v{v_mx}")
        A("s_nop 1")
        A(f"v_permlane16_swap_b32 v{v_mx}, v{v_mt}")
        A(f"v_max_f32 v{v_mx}, v{v_mx}, v{v_mt}")
        A(f"v_cvt_pk_bf16_f32 v{v_m}, 0, v{v_mx}")
        A(f"v_mul_f32 v{v_nmc}, {f2u(-LOG2E):#x}, v{v_m}")
        stamp("endKA" if t < 64 else "endKB")
    def PP(t):
        k = t % 32
        A(f"v_lshlrev_b32 v{v_s}, 16, v{v_sc+2*k}")
        A(f"v_and_b32 v{v_s+1}, 0xffff0000, v{v_sc+2*k}")
        A(f"v_lshlrev_b32 v{v_s+2}, 16, v{v_sc+2*k+1}")
        A(f"v_and_b32 v{v_s+3}, 0xffff0000, v{v_sc+2*k+1}")
        for r in range(4):
            A(f"v_fma_f32 v{v_s+r}, v{v_s+r}, s{s_c}, v{v_nmc}")
        for r in range(4):
            A(f"v_exp_f32 v{v_s+r}, v{v_s+r}")
        A(f"v_cvt_pk_bf16_f32 v{v_sc+2*k}, v{v_s}, v{v_s+1}")
        A(f"v_cvt_pk_bf16_f32 v{v_sc+2*k+1}, v{v_s+2}, v{v_s+3}")
    def VR(t):
        for cb in range(8):
            A(f"ds_read_b64_tr_b16 {ar(a_vf+4*cb+2*(t&1),2)}, v{v_rv+cb} offset:{slot_of(t)*4096}")
    def pv(t, cb):
        k = t % 32 - 1
        A(f"v_mfma_f32_16x16x32_bf16 {ar(a_o+4*cb,4)}, {ar(a_vf+4*cb,4)}, {vr(v_sc+2*k,4)}, " + ("0" if k == 0 else ar(a_o + 4 * cb, 4)))
    def PL(t):
        k = t % 32 - 1
        A("s_nop 1")
        A(f"v_mfma_f32_16x16x32_bf16 {ar(a_l,4)}, {vr(v_one,4)}, {vr(v_sc+2*k,4)}, " + ("0" if k == 0 else ar(a_l, 4)))
    def PVa(t):
        A("s_waitcnt lgkmcnt(0)")
        for cb in range(4):
            pv(t, cb)
    def PVb(t):
        for cb in range(4, 8):
            pv(t, cb)
        if t == 63:
            stamp("endVA")

    def landed(pl):
        p = pl + 1
        while p < len(Z) and p - Nof(p) < pl:
            p += 1
        return max(p, P0)

    main = []
    for t in range(R):
        main.append((KR, t, landed(pos_of(t, 3)), pos_of(t, 3), False))
    main.append((LW, R - 1, landed(pos_of(R - 1, 3)) + 1, None, False))
    for t in range(NT):
        l0 = landed(pos_of(t, 3))
        if isK(t):
            if t >= R:
                main.append((KR, t, l0, pos_of(t, 3), True))
            main += [(QK, t, l0 + 1, None, True), (SC, t, l0 + 2, None, True)]
            if t % 32 == 31:
                main.append((MX, t, l0 + 3, None, True))
        elif t % 2 == 0:
            main += [(VR, t, l0, pos_of(t, 3), True), (PP, t, l0 + 1, None, True), (PP, t + 1, l0 + 2, None, True),
                     (PL, t + 1, l0 + 2, None, True)]
        else:
            main += [(VR, t, l0, pos_of(t, 3), True), (PVa, t, l0 + 1, None, True), (PVb, t, l0 + 2, None, True)]
    done = set()
    cost = {"KR": 1, "LW": 0, "QK": 1, "SC": 1, "MX": 1, "VR": 1, "PP": 1, "PL": 0, "PVa": 1, "PVb": 1}

    PVAL = landed(PQ) + 1
    side = []
    for f in g.split(setup_rest, CH):
        side.append((P0, f, False))
    side.append((P0, lambda: g.wait_vm(last_gate), True))
    for f in g.split(setup_gate, CH):
        side.append((P0, f, False))
    side.append((PQ, lambda: qloads(True), True))
    side.append((PVAL, q_validate, True))
    side.append((PVAL + QLAG, q_fetch, True))
    side.append((0, q_fetch_b, False))
    for k in range(4):
        side.append((0, wo_fetch(k), False))
    pA = landed(pos_of(63, 3)) + 3
    def dumpA():
        assert ("PVb", 63) in done
        A("s_nop 4")
        dump_o(0)
        A("s_waitcnt lgkmcnt(0)")
        A(f"ds_write_b32 v{a_fw}, v{v_one} offset:16")
    side.append((pA, dumpA, False))
    side.append((pA + ALAG, lambda: (flag_wait("L_aflag", 16), comb_read(0)), False))
    for f in g.split(lambda: (A("s_waitcnt lgkmcnt(0)"), comb_math()), CH):
        side.append((0, f, False))
    if "puba" in skip:
        side.append((0, lambda: (A(f"s_add_u32 s{s_h1pub}, s{s_h1pub}, 0x80000"), A(f"s_add_u32 s{s_h1get}, s{s_h1get}, 0x80000")), False))
    else:
        side.append((0, lambda: comb_store(0, True), False))
        side.append((PGA, lambda: h1loads(True), False))
        side.append((PGA + 10, gatherA_validate, False))
    for f in g.split(lambda: gather_math(0), CH):
        side.append((0, f, False))
    if WARM:
        side.append((0, warm, False))

    mi = si = 0
    log = []
    for p in range(P0, len(Z)):
        z = Z[p]
        if z[0] == "kv" and z[2] == 0 and z[1] >= NSLOT:
            prev = z[1] - NSLOT
            if isK(prev):
                ok = ("QK", prev) in done or (prev < R and ("LW", R - 1) in done)
            else:
                ok = ("PVa", prev | 1) in done
            assert ok, (p, z)
        issue(p)
        used = 0
        while mi < len(main):
            f, t, e, ld, nq = main[mi]
            if e > p or (nq and not st.get("qready")):
                break
            behind = e < p - 1
            if used + cost[f.__name__] > (3 if behind else 1):
                break
            if ld is not None:
                assert ids[ld] not in g.vm, (f.__name__, t, p)
            if f.__name__ not in skip or t % 32 == 31:
                f(t)
            done.add((f.__name__, t)); log.append((p, f.__name__, t))
            used += cost[f.__name__]; mi += 1
        while si < len(side) and side[si][0] <= p and (used == 0 or side[si][2]):
            e, f, forced = side[si]
            f()
            log.append((p, "side", si))
            si += 1
            if not forced:
                used += 1
    assert si == len(side), (si, len(side))
    C("---- drain ----")
    while mi < len(main):
        f, t, e, ld, nq = main[mi]
        if ld is not None:
            g.wait_vm(ids[ld])
        if t == NT - 1 and f is PVa:
            for cb in range(8):
                A(f"s_waitcnt lgkmcnt({7-cb})")
                pv(t, cb)
        elif not (t == NT - 1 and f is PVb):
            f(t)
        mi += 1
    assert not g.vm
    stamp("drained")

    C("---- combine the four waves ----")
    dump_o(1)
    A("s_waitcnt lgkmcnt(0)")
    A("s_barrier")
    stamp("bar")
    comb_read(1)
    OPD = v_sc
    for ks in range(2):
        A(f"ds_read_b128 {vr(OPD+4*ks,4)}, v{a_or} offset:{ks*64}")
    comb_math(2)
    comb_store(1, False)
    stamp("pub1")
    C("branch A's share of the output projection")
    A("s_waitcnt lgkmcnt(0)")
    def oproj(br, ks):
        for e in range(2):
            A(f"v_mfma_f32_16x16x32_bf16 {vr(v_d+4*e,4)}, {ar(a_wop+((br*2+ks)*2+e)*4,4)}, {vr(OPD+8*br+4*ks,4)}, " +
              ("0" if br == 0 and ks == 0 else vr(v_d + 4 * e, 4)))
    oproj(0, 0); oproj(0, 1)
    C("---- gather branch B ----")
    L("L_h1poll")
    h1loads()
    spin_guard()
    A("s_waitcnt vmcnt(0)")
    xorcheck(list(range(B, B + 8)), s_tag8, 0xff, T, False)
    A("s_cbranch_vccnz L_h1poll")
    stamp("h1ok")
    gather_math(1)
    A("s_waitcnt lgkmcnt(0)")
    A("s_barrier")
    stamp("bar2")
    for ks in range(2):
        A(f"ds_read_b128 {vr(OPD+8+4*ks,4)}, v{a_or} offset:{256+ks*64}")
    A(f"v_bfe_u32 v{T}, v1, 1, 1")
    A(f"v_cmp_ne_u32 vcc, 0, v{T}")
    A(f"v_mov_b32 v{T+1}, s{s_tag12}")
    for ks in range(2):
        A(f"s_waitcnt lgkmcnt({1-ks})")
        oproj(1, ks)
    A("s_mov_b32 exec_lo, 0x000f000f")
    A("s_mov_b32 exec_hi, 0x000f000f")
    A("s_nop 5")
    for r in range(4):
        A(f"v_cndmask_b32 v{v_d+r}, v{v_d+r}, v{v_d+4+r}, vcc")
    for r in range(4):
        A(f"v_add_u32 v{v_d+r}, 0x800, v{v_d+r}")
    for r in range(4):
        A(f"v_and_or_b32 v{v_d+r}, v{v_d+r}, s{s_m12}, v{T+1}")
    A(f"buffer_store_dwordx4 {vr(v_d,4)}, v{a_p2}, {srd(sWS)}, s{s_h2pub} offen sc1")
    A("s_mov_b64 exec, -1")
    stamp("pub2")

    C("---- final reduction: wave 0 of workgroups 0..63 ----")
    A("s_cmp_ge_u32 s2, 64")
    A("s_cbranch_scc1 L_fin")
    A(f"s_cmp_lg_u32 s{s_w}, 0")
    A("s_cbranch_scc1 L_fin")
    A(f"s_lshl_b32 s{s_t0}, s2, 5")
    L("L_h2poll")
    h2loads()
    spin_guard()
    for j in range(4):
        A(f"s_waitcnt vmcnt({3-j})")
        for e in range(4):
            A(f"v_xor_b32 v{F+4*j+e}, s{s_tag12}, v{F+4*j+e}")
        if j == 0:
            A(f"v_or_b32 v{T}, v{F}, v{F+1}")
            A(f"v_or3_b32 v{T}, v{T}, v{F+2}, v{F+3}")
        else:
            A(f"v_or3_b32 v{T}, v{T}, v{F+4*j}, v{F+4*j+1}")
            A(f"v_or3_b32 v{T}, v{T}, v{F+4*j+2}, v{F+4*j+3}")
            for e in range(4):
                A(f"v_add_f32 v{F+e}, v{F+e}, v{F+4*j+e}")
    A(f"v_and_b32 v{T}, 0xfff, v{T}")
    A(f"v_cmp_ne_u32 vcc, 0, v{T}")
    A("s_cbranch_vccnz L_h2poll")
    A(f"v_permlane32_swap_b32 v{F}, v{F+1}")
    A(f"v_permlane32_swap_b32 v{F+2}, v{F+3}")
    A(f"v_add_f32 v{F}, v{F}, v{F+1}")
    A(f"v_add_f32 v{F+2}, v{F+2}, v{F+3}")
    A("s_nop 1")
    A(f"v_permlane16_swap_b32 v{F}, v{F+2}")
    A(f"v_add_f32 v{F}, v{F}, v{F+2}")
    A("s_nop 1")
    A(f"v_add_f32_dpp v{F}, v{F}, v{F} row_ror:4 row_mask:0xf bank_mask:0xf")
    A("s_nop 1")
    A(f"v_add_f32_dpp v{F}, v{F}, v{F} row_ror:8 row_mask:0xf bank_mask:0xf")
    A(f"v_cvt_pk_bf16_f32 v{F}, v{F}, v{F}")
    A("s_mov_b32 exec_lo, 0x000f000f")
    A("s_mov_b32 exec_hi, 0x000f000f")
    A(f"buffer_store_short v{F}, v{a_out}, {srd(sO)}, s{s_t0} offen")
    A("s_cmp_lg_u32 s2, 0")
    A("s_cbranch_scc1 L_fin")
    C("every workgroup has published, hence read, the epoch word: advance it")
    A("s_mov_b64 exec, 1")
    A(f"v_mov_b32 v{T}, s{s_tag32}")
    A(f"v_mov_b32 v{T+1}, 0")
    A(f"buffer_store_dword v{T}, v{T+1}, {srd(sWS)}, 0 offen offset:{WS_E} sc1")
    L("L_fin")
    stamp("end")
    if diag:
        A("s_mov_b64 exec, 1")
        A("s_waitcnt lgkmcnt(0)")
        A(f"s_lshl_b32 s{s_t0}, s2, 2")
        A(f"s_add_u32 s{s_t0}, s{s_t0}, s{s_w}")
        A(f"s_lshl_b32 s{s_t0}, s{s_t0}, 5")
        A(f"s_add_u32 s{s_t0}, s{s_t0}, {WS_DIAG}")
        for i in range(8):
            A(f"v_mov_b32 v{v_sc+16+i}, s{s_st+2*i}")
        A(f"v_mov_b32 v{T+2}, 0")
        A(f"buffer_store_dwordx4 {vr(v_sc+16,4)}, v{T+2}, {srd(sWS)}, s{s_t0} offen")
        A(f"buffer_store_dwordx4 {vr(v_sc+20,4)}, v{T+2}, {srd(sWS)}, s{s_t0} offen offset:16")
    L("L_end")
    A("s_endpgm")

    for label, back, loads in (("L_qretry", "L_qcheck", lambda: qloads(False)), ("L_garetry", "L_gacheck", h1loads)):
        if label == "L_garetry" and "puba" in skip:
            continue
        L(label)
        spin_guard()
        loads()
        A("s_waitcnt vmcnt(0)")
        A(f"s_branch {back}")

    acc = (NV + 3) // 4 * 4
    g.o.append('.section .rodata,"a"')
    g.o.append(".p2align 6")
    g.o.append(f".amdhsa_kernel {KNAME}")
    g.o.append(f"  .amdhsa_next_free_vgpr {acc+NA}")
    g.o.append("  .amdhsa_next_free_sgpr 102")
    g.o.append(f"  .amdhsa_accum_offset {acc}")
    g.o.append("  .amdhsa_group_segment_fixed_size 0")
    g.o.append("  .amdhsa_kernarg_size 112")
    g.o.append("  .amdhsa_user_sgpr_count 2")
    g.o.append("  .amdhsa_user_sgpr_kernarg_segment_ptr 1")
    g.o.append("  .amdhsa_system_sgpr_workgroup_id_x 1")
    g.o.append("  .amdhsa_float_denorm_mode_32 3")
    g.o.append(".end_amdhsa_kernel")
    gen.log = log
    return "\n".join(g.o) + "\n"


if __name__ == "__main__":
    kw = {}
    for a in sys.argv[2:]:
        k, v = a.split("=")
        kw[k] = eval(v)
    src = gen(**kw)
    open(sys.argv[1], "w").write(src)
```

```python
import sys, math, struct

KNAME = "gated_mix__gqa_block_cached__gqa_block_cached__decode_kernel"

WS_E = 0x0
WS_QB = 0x1000
WS_H2 = 0x40000
WS_PR = 0x80000
WS_H1 = 0x100000
WS_DIAG = 0x200000
WS_SIZE = 0x400000
EPOCH_INC = 0x9E3779B1

NSLOT = 7
RING = NSLOT * 4096
STG = 4 * RING
SCR = STG + 32768
QP, QX, OPA, MLA, MLB, OX, FL = 0, 2048, 4096, 12288, 12416, 12544, 13056
LDS_BYTES = 163840


PATS = {
    "P1": ([[14], [15], [16], [17], [18]], [[12], [13]], [[19], [20], [21], [22]]),
    "T8": ([[14], [15], [16], [17], [18]], [[12, 17], [13, 18]], [[19], [20], [21, 18], [22]]),
    "T2": ([[14], [17], [18], [19], [20]], [[12], [13]], [[15], [16], [21], [22]]),
    "U1": ([[14], [17], [18], [19], [20]], [[12, 17], [13, 18]], [[15], [16], [21, 18], [22]]),
    "U4": ([[14], [22], [17], [18], [19]], [[12], [13]], [[15], [16], [21], [20]]),
    "U5": ([[14], [22], [17], [18], [19]], [[12, 17], [13, 18]], [[15], [16], [21, 18], [20]]),
    "T7": ([[14], [16], [17], [18], [19]], [[12], [13]], [[15], [20], [21], [22, 14]]),
    "T9": ([[15], [16], [14], [17], [18]], [[12, 17], [13, 18]], [[19], [20], [21, 18], [22]]),
}


def f2u(x):
    return struct.unpack("<I", struct.pack("<f", x))[0]


class Gen:
    def __init__(self):
        self.o = []
        self.vm = []
        self.seq = []
        self.nid = 0

    def A(self, s):
        self.o.append("  " + s)

    def L(self, s):
        self.o.append(s + ":")

    def C(self, s):
        self.o.append("  ; " + s)

    def vmem(self, s, optional=False):
        self.A(s)
        self.nid += 1
        if not optional:
            self.seq.append(self.nid)
            if "store" not in s:
                self.vm.append(self.nid)
        return self.nid

    def after(self, op):
        return len(self.seq) - 1 - self.seq.index(op)

    def throttle(self, op):
        if op not in self.vm:
            return False
        k = self.after(op)
        assert k <= 63
        self.A(f"s_waitcnt vmcnt({k})")
        if k < len(self.vm):
            self.vm = self.vm[len(self.vm) - k:] if k else []
        return True

    def wait_vm(self, op):
        if op not in self.vm:
            return False
        k = len(self.vm) - 1 - self.vm.index(op)
        assert k <= 63
        self.A(f"s_waitcnt vmcnt({k})")
        self.vm = self.vm[len(self.vm) - k:] if k else []
        return True

    def split(self, fn, n):
        keep, self.o = self.o, []
        nvm = self.nid
        fn()
        assert self.nid == nvm
        body, self.o = self.o, keep
        out, cur, k = [], [], 0
        for line in body:
            assert not line.endswith(":") and "cbranch" not in line and "s_cmp" not in line
            cur.append(line)
            if not line.strip().startswith(";"):
                k += 1
            if k == n:
                out.append(cur); cur, k = [], 0
        if cur:
            out.append(cur)
        return [(lambda c=c: self.o.extend(c)) for c in out]


def gen(N=5, Npat=None, NH=None, PH=64, NB=None, BL=0, BZ=(1, 2, 3, 4), BP=128, R=3, P0=16, PQ=38, QLAG=3, ALAG=8, CH=16, WARM=False, skip=(), PAT='P1', GX_=(), PU=8, N0=8, XM=None, BE=None, SL1=0, SL2=0, M2=False, H1SC='sc1',
        CTL=False, NHI=7, CK=4, C0=16, GAIN=3.0, BIAS=3.0, NMAXB=8, PT=4,
        diag=False, SPIN=1 << 21, pad=None, smap="head"):
    g = Gen()
    A, L, C = g.A, g.L, g.C
    LOG2E = math.log2(math.e)
    Npat = Npat or [N]
    NH = NH or max(Npat)
    def Nof(p):
        if p < 16:
            return N0
        if p < PH:
            return NH
        if BE and p >= 528 - BE[1]:
            return BE[0]
        if NB:
            for k in BZ:
                pb = 16 + BP * k
                if pb - BL <= p < pb:
                    return NB
        return Npat[p % len(Npat)]
    PC0 = 16 + 4 * C0
    def Nguar(p):
        return max(Nof(p), NHI) if (CTL or XM) and p >= PC0 else Nof(p)

    sKV = [20, 24, 28, 32]
    sWQ, sWO, sWS, sX, sG, sO = 36, 40, 44, 48, 52, 56
    srd = lambda b: f"s[{b}:{b+3}]"
    (s_w, s_b, s_hkv, s_j, s_kvb, s_kvoff, s_wb, s_stg, s_tag32, s_tag8, s_tag12, s_c, s_rs, s_t0, s_t1, s_t2, s_t3,
     s_wqoff, s_wooff, s_spin, s_colb, s_m12) = range(60, 82)
    s_qoff, s_perm, s_sel0, s_sel1, s_h1pub, s_h1get, s_h2pub, s_h2get, s_pa, s_pb, s_pc = 3, 4, 5, 6, 7, 8, 9, 10, 11, 12, 13
    s_boost, s_pph, s_pro, s_tagp, s_u, s_xm = 14, 15, 16, 17, 18, 19
    s_st = 84

    v_g, v_n, v_c, v_r = 2, 3, 4, 5
    a_pw, a_pr, v_pd, v_pl = 6, 7, 8, 9
    v_dv, v_rk, v_rv = 10, 12, 16
    v_mx, v_m, v_nmc, v_gf = 24, 25, 26, 27
    (a_wo, a_q, a_qw, a_qr, a_fw, a_fr, a_cwa, a_cwb, a_cml, a_cra, a_crb, a_crb2, a_crm, a_p1, a_g1, a_ow, a_or,
     a_p2, a_g2, a_out, a_wor) = range(29, 50)
    v_mt = 28
    v_ct = 50
    v_s = 52
    v_one = 56
    v_d = 60
    v_sc = 68
    T = 132
    B = 140
    v_pub = 176
    NV = 180
    a_qop = 0
    a_vf = 32
    a_wop = 64
    a_o = 96
    a_l = 128
    a_kf = 132
    NA = a_kf + 16 * R
    assert NA <= 256
    vr = lambda b, n: f"v[{b}:{b+n-1}]"
    ar = lambda b, n: f"a[{b}:{b+n-1}]"

    SMAPS = {"head": ["start", "qpub", "qval", "endKA", "endVA", "endKB", "drained", "end"],
             "tail": ["start", "drained", "bar", "pub1", "bar2", "h1ok", "pub2", "end"]}
    def stamp(name):
        if name not in SMAPS[smap]:
            return
        i = SMAPS[smap].index(name)
        if diag or (pad and i == 0):
            A(f"s_memrealtime s[{s_st+2*i}:{s_st+2*i+1}]")
        if pad and pad[0] == i:
            L("L_pad")
            A("s_memrealtime s[82:83]")
            A("s_waitcnt lgkmcnt(0)")
            A(f"s_sub_u32 s82, s82, s{s_st}")
            A(f"s_cmp_lt_u32 s82, {int(pad[1]*100)}")
            A("s_cbranch_scc1 L_pad")

    hdr = open("gated_mix__gqa_block_cached__gqa_block_cached__decode.s.ref").read().split("\n")
    for line in hdr:
        if line.startswith(";") and "@launch" not in line:
            g.o.append(line)
        elif not line.startswith(";"):
            break
    g.o.append(f"; @launch grid=(256,1,1) block=(256,1,1) lds={LDS_BYTES}")
    g.o.append('.amdgcn_target "amdgcn-amd-amdhsa--gfx950"')
    g.o.append(".text")
    g.o.append(f".globl {KNAME}")
    g.o.append(".p2align 8")
    g.o.append(f".type {KNAME},@function")
    L(KNAME)
    C("workgroup = (b, hkv, split of 2048 keys) for both branches; extra workgroups leave at once")
    A("s_cmp_ge_u32 s2, 256")
    A("s_cbranch_scc0 L_go")
    A("s_endpgm")
    L("L_go")
    A(f"s_lshr_b32 s{s_b}, s2, 7")
    A(f"s_mul_i32 s3, s{s_b}, 40")
    A("s_add_u32 s16, s0, s3")
    A("s_addc_u32 s17, s1, 0")
    A("s_load_dwordx2 s[14:15], s[16:17], 24")
    A("s_load_dwordx4 s[4:7], s[0:1], 8")
    A("s_load_dwordx2 s[12:13], s[0:1], 0")
    A("s_load_dwordx2 s[18:19], s[0:1], 104")
    A("s_load_dwordx4 s[8:11], s[0:1], 48")
    A("s_load_dwordx4 s[96:99], s[0:1], 80")
    stamp("start")
    A(f"v_lshrrev_b32 v{T}, 6, v0")
    A("v_and_b32 v1, 63, v0")
    A(f"v_readfirstlane_b32 s{s_w}, v{T}")
    if M2:
        C("logical id b*128 + hkv*16 + s with hkv = wg & 7")
        A(f"s_and_b32 s{s_hkv}, s2, 7")
        A(f"s_bfe_u32 s{s_j}, s2, 0x40003")
        A("s_and_b32 s100, s2, 0x80")
        A(f"s_lshl4_add_u32 s100, s{s_hkv}, s100")
        A(f"s_add_u32 s100, s100, s{s_j}")
    else:
        A(f"s_bfe_u32 s{s_hkv}, s2, 0x30004")
        A(f"s_and_b32 s{s_j}, s2, 15")
        A("s_mov_b32 s100, s2")
    A(f"s_lshl_b32 s{s_t0}, s{s_b}, 4")
    A(f"s_add_u32 s{s_j}, s{s_j}, s{s_t0}")
    A(f"s_lshr_b32 s{s_t0}, s{s_w}, 1")
    A(f"s_mul_i32 s{s_t0}, s{s_t0}, 40")
    A(f"s_add_u32 s82, s0, s{s_t0}")
    A("s_addc_u32 s83, s1, 0")
    A(f"v_lshrrev_b32 v{v_g}, 4, v1")
    A(f"v_and_b32 v{v_n}, 15, v1")
    A(f"v_and_b32 v{v_c}, 3, v1")
    A(f"v_bfe_u32 v{v_r}, v1, 2, 2")
    C("x operand offset, wq dma offset")
    A(f"v_and_b32 v{T+1}, 1, v1")
    A(f"v_lshlrev_b32 v{T+1}, 10, v{T+1}")
    A(f"v_lshl_add_u32 v{T+1}, v{v_g}, 4, v{T+1}")
    A(f"v_lshrrev_b32 v{T+2}, 3, v1")
    A(f"v_lshlrev_b32 v{T+2}, 13, v{T+2}")
    A(f"v_and_b32 v{T}, 7, v1")
    A(f"v_lshl_add_u32 v{T+2}, v{T}, 4, v{T+2}")
    C("q slice: branch b, columns hkv*512 + ((j>>1)&7)*64, rows (j&1)*256 + w*64")
    A(f"s_bfe_u32 s{s_t0}, s100, 0x30001")
    A(f"s_lshl_b32 s{s_t0}, s{s_t0}, 6")
    A(f"s_lshl_b32 s{s_colb}, s{s_hkv}, 9")
    A(f"s_add_u32 s{s_colb}, s{s_colb}, s{s_t0}")
    A(f"s_and_b32 s{s_t0}, s100, 1")
    A(f"s_lshl_b32 s{s_t0}, s{s_t0}, 2")
    A(f"s_add_u32 s{s_t0}, s{s_t0}, s{s_w}")
    A(f"s_lshl_b32 s{s_t2}, s{s_t0}, 7")
    A(f"s_lshl_b32 s{s_t0}, s{s_t0}, 19")
    A(f"s_lshl_b32 s{s_wqoff}, s{s_colb}, 1")
    A(f"s_add_u32 s{s_wqoff}, s{s_wqoff}, s{s_t0}")
    A(f"s_lshl_b32 s{s_stg}, s{s_w}, 13")
    A(f"s_add_u32 s{s_stg}, s{s_stg}, {STG}")
    A(f"s_mul_i32 s{s_wb}, s{s_w}, {RING}")
    S5, WM, G4 = PATS[PAT] if isinstance(PAT, str) else PAT
    msk = lambda bs: sum(1 << b for b in bs)
    basis = {}
    for v in [msk(x) for x in S5 + WM + G4]:
        while v:
            h = v.bit_length() - 1
            if h not in basis:
                basis[h] = v
                break
            v ^= basis[h]
    assert sorted(basis) == list(range(12, 23)), "pattern is not a bijection"
    def tile_off(t):
        x = 0
        for k in range(5):
            if t >> k & 1:
                x ^= msk(S5[k])
        return x
    A(f"s_lshr_b32 s{s_kvb}, s100, 4")
    A(f"s_lshl_b32 s{s_kvb}, s{s_kvb}, 23")
    for src, ms in (("s100", list(G4) + [[b for k, b in GX_ if k == kk] for kk in range(4, 8)]), (f"s{s_w}", WM)):
        for k, x in enumerate(ms):
            if x:
                A(f"s_bitcmp1_b32 {src}, {k}")
                A(f"s_cselect_b32 s{s_t0}, {msk(x):#x}, 0")
                A(f"s_xor_b32 s{s_kvb}, s{s_kvb}, s{s_t0}")
    C("DMA voffsets: 16-byte chunk index xor 2*(key&7)")
    A(f"v_lshlrev_b32 v{T+3}, 8, v{v_g}")
    for j in range(2):
        A(f"v_add_u32 v{v_dv+j}, {4*j}, v{v_g}")
        A(f"v_lshlrev_b32 v{v_dv+j}, 1, v{v_dv+j}")
        A(f"v_xor_b32 v{v_dv+j}, v{v_dv+j}, v{v_n}")
        A(f"v_lshl_add_u32 v{v_dv+j}, v{v_dv+j}, 4, v{T+3}")
    A("s_waitcnt lgkmcnt(0)")
    def mksrd(d, p, size):
        A(f"s_mov_b32 s{d}, s{p}")
        A(f"s_and_b32 s{d+1}, s{p+1}, 0xffff")
        A(f"s_mov_b32 s{d+2}, {size:#x}")
        A(f"s_mov_b32 s{d+3}, 0x20000")
    A(f"s_load_dword s{s_tag32}, s[18:19], {WS_E}")
    A("s_load_dwordx2 s[16:17], s[82:83], 32")
    mksrd(sWQ, 14, 0x400000)

    NT = 128
    Z = [("wq", j) for j in range(8)] + [("kv", t, j) for t in range(2) for j in range(4)] + \
        [("wo", j) for j in range(8)] + [("kv", t, j) for t in range(2, NT) for j in range(4)]
    pos = {z: p for p, z in enumerate(Z)}
    pos_of = lambda t, j: pos[("kv", t, j)]
    slot_of = lambda t: t % NSLOT
    isK = lambda t: (t // 32) % 2 == 0
    ids = {}

    def issue(p, throttle=True):
        z = Z[p]
        need_nop = False
        if z[0] == "wq":
            if z[1]:
                A(f"s_add_u32 s{s_wqoff}, s{s_wqoff}, 0x10000")
            A(f"s_add_u32 m0, s{s_stg}, {z[1]*1024}")
            need_nop = True
        elif z[0] == "wo":
            if z[1]:
                A(f"s_add_u32 s{s_wooff}, s{s_wooff}, 4096")
            A(f"s_add_u32 m0, s{s_stg}, {z[1]*1024}")
            need_nop = True
        elif z[2] == 0:
            t = z[1]
            A(f"s_xor_b32 s{s_kvoff}, s{s_kvb}, {tile_off(t % 32):#x}")
            A(f"s_add_u32 m0, s{s_wb}, {slot_of(t)*4096}")
            need_nop = True
            if CTL and p >= PC0:
                A(f"s_cmp_gt_i32 s{s_boost}, {t}")
                A("s_cselect_b64 vcc, -1, 0")
                need_nop = False
            if XM and p >= PC0:
                A(f"s_bitcmp1_b32 s{s_xm}, {t % 32}")
                A("s_cselect_b64 vcc, -1, " + ("vcc" if CTL else "0"))
                need_nop = False
        waited = False
        if throttle and p - Nguar(p) >= 0:
            waited = g.throttle(ids[p - Nguar(p)])
            if Nguar(p) > Nof(p) and ids[p - Nof(p)] in g.vm:
                A(f"s_cbranch_vccnz L_b{p}")
                A(f"s_waitcnt vmcnt({g.after(ids[p - Nof(p)])})")
                L(f"L_b{p}")
                waited = True
        if need_nop and not waited:
            A("s_nop 0")
        if z[0] == "wq":
            ids[p] = g.vmem(f"buffer_load_dwordx4 v{T+2}, {srd(sWQ)}, s{s_wqoff} offen nt lds")
        elif z[0] == "wo":
            ids[p] = g.vmem(f"buffer_load_dwordx4 v{a_wo}, {srd(sWO)}, s{s_wooff} offen nt lds")
        else:
            _, t, j = z
            vo = v_dv + (j & 1)
            ids[p] = g.vmem(f"buffer_load_dwordx4 v{vo}, {srd(sKV[t//32])}, s{s_kvoff} offen offset:{j*1024} nt lds")
            if CTL and j == 1 and C0 - 8 <= t < NT - 4:
                A(f"s_cmp_eq_u32 s{s_pph}, {t % PT}")
                A(f"s_cselect_b32 s{s_u}, s{s_pro}, {WS_SIZE:#x}")
                A(f"v_or_b32 v{v_pd}, {t}, v{v_pl}")
                g.vmem(f"buffer_store_dword v{v_pd}, v{a_pw}, {srd(sWS)}, s{s_u} offen" + ("" if CTL == "local" else " sc1"))

    C("wq slice -> staging")
    for p in range(8):
        issue(p, throttle=False)
    mksrd(sX, 12, 2048)
    XO = B + 24
    assert XO + 8 <= NV
    GX = v_sc
    for j in range(2):
        last_small = g.vmem(f"buffer_load_dwordx4 {vr(v_d+4*j,4)}, v{T+1}, {srd(sX)}, s{s_t2} offen offset:{j*64}")
    mksrd(sKV[0], 4, 0x8000000)
    for p in range(8, 8 + PU):
        issue(p, throttle=False)
    assert P0 == 16
    C("gate inputs: lane l holds 16 elements (l&31) of batch w&1")
    mksrd(sG, 96, 1024)
    A(f"v_and_b32 v{T}, 31, v1")
    A(f"v_lshlrev_b32 v{T}, 5, v{T}")
    A(f"s_and_b32 s{s_t0}, s{s_w}, 1")
    A(f"s_lshl_b32 s{s_t0}, s{s_t0}, 10")
    for j in range(2):
        g.vmem(f"buffer_load_dwordx4 {vr(GX+4*j,4)}, v{T}, {srd(sX)}, s{s_t0} offen offset:{j*16}")
    for j in range(2):
        last_gate = g.vmem(f"buffer_load_dwordx4 {vr(GX+8+4*j,4)}, v{T}, {srd(sG)}, 0 offen offset:{j*16}")
    mksrd(sKV[1], 6, 0x8000000)
    mksrd(sKV[2], 8, 0x8000000)
    mksrd(sKV[3], 10, 0x8000000)
    mksrd(sWS, 18, WS_SIZE)
    mksrd(sO, 98, 2048)
    C("clear the LDS flags")
    A(f"v_mov_b32 v{a_fr}, {SCR+FL}")
    A(f"v_lshl_add_u32 v{T}, v{v_n}, 2, v{a_fr}")
    A(f"v_mov_b32 v{T+1}, 0")
    A(f"ds_write_b32 v{T}, v{T+1}")
    C("LDS read addresses for K")
    A(f"v_lshl_add_u32 v{T+3}, v{v_n}, 8, s{s_wb}")
    A(f"v_and_b32 v{T+4}, 7, v{v_n}")
    A(f"v_lshlrev_b32 v{T+4}, 1, v{T+4}")
    for j in range(4):
        A(f"v_add_u32 v{v_rk+j}, {4*j}, v{v_g}")
        A(f"v_xor_b32 v{v_rk+j}, v{v_rk+j}, v{T+4}")
        A(f"v_lshl_add_u32 v{v_rk+j}, v{v_rk+j}, 4, v{T+3}")
    C("wo dma offsets: branch w>>1, rows hq*128 + dh*64 + (w&1)*32 + 4j + r, columns cq*128")
    A(f"v_lshlrev_b32 v{a_wo}, 10, v{v_g}")
    A(f"v_lshl_add_u32 v{a_wo}, v{v_n}, 4, v{a_wo}")
    A(f"s_lshl_b32 s{s_t0}, s{s_hkv}, 3")
    A(f"s_lshr_b32 s{s_t1}, s{s_j}, 2")
    A(f"s_add_u32 s{s_t3}, s{s_t0}, s{s_t1}")
    A(f"s_lshl_b32 s{s_wooff}, s{s_t3}, 16")
    A(f"s_and_b32 s{s_t1}, s{s_w}, 1")
    A(f"s_lshl_b32 s{s_t1}, s{s_t1}, 15")
    A(f"s_add_u32 s{s_wooff}, s{s_wooff}, s{s_t1}")
    A(f"s_and_b32 s{s_t1}, s{s_j}, 3")
    A(f"s_lshl_b32 s{s_t1}, s{s_t1}, 8")
    A(f"s_add_u32 s{s_wooff}, s{s_wooff}, s{s_t1}")
    C("q-proj addresses")
    A(f"v_lshl_add_u32 v{T}, v{v_g}, 3, v{v_r}")
    A(f"v_lshl_add_u32 v{T}, v{T}, 7, s{s_stg}")
    A(f"v_lshl_add_u32 v{T}, v{v_c}, 3, v{T}")
    A(f"s_lshl_b32 s{s_t0}, s{s_w}, 9")
    A(f"s_add_u32 s{s_t0}, s{s_t0}, {SCR+QP}")
    A(f"v_and_b32 v{T+1}, 1, v1")
    A(f"v_lshl_add_u32 v{T+1}, v{T+1}, 8, s{s_t0}")
    A(f"v_lshl_add_u32 v{T+1}, v{v_g}, 4, v{T+1}")
    A(f"v_and_b32 v{T+3}, 31, v1")
    A(f"v_lshlrev_b32 v{T+3}, 4, v{T+3}")
    A(f"v_add_u32 v{T+3}, {SCR+QP}, v{T+3}")
    A(f"v_bfe_u32 v{T+4}, v1, 4, 1")
    A(f"v_lshlrev_b32 v{T+4}, 14, v{T+4}")
    A(f"v_lshl_add_u32 v{T+4}, v{v_n}, 4, v{T+4}")
    A(f"s_lshl_b32 s{s_t0}, s{s_b}, 13")
    A(f"s_add_u32 s{s_t0}, s{s_t0}, s{s_colb}")
    A(f"s_lshl_b32 s{s_t0}, s{s_t0}, 2")
    A(f"s_and_b32 s{s_t1}, s100, 1")
    A(f"s_lshl_b32 s{s_t1}, s{s_t1}, 16")
    A(f"s_add_u32 s{s_t0}, s{s_t0}, s{s_t1}")
    A(f"s_add_u32 s{s_t0}, s{s_t0}, {WS_QB}")
    A(f"s_movk_i32 s{s_t1}, 0xff00")
    A("s_waitcnt lgkmcnt(0)")
    mksrd(sWO, 16, 0x400000)
    A(f"s_add_u32 s{s_tag32}, s{s_tag32}, {EPOCH_INC:#x}")
    A(f"s_and_b32 s{s_tag8}, s{s_tag32}, 0xff")
    A(f"s_and_b32 s{s_tag12}, s{s_tag32}, 0xfff")
    A(f"v_mov_b32 v{T+5}, s{s_tag8}")

    for p in range(8 + PU, P0):
        issue(p)
    C("---- q projection: 64 columns, half of the rows ----")
    g.wait_vm(last_small)
    for ks in range(2):
        for cb in range(4):
            for hf in range(2):
                A(f"ds_read_b64_tr_b16 {ar(a_vf+(ks*4+cb)*4+hf*2,2)}, v{T} offset:{ks*4096 + hf*512 + cb*32}")
    for ks in range(2):
        A(f"s_waitcnt lgkmcnt({8-8*ks})")
        for cb in range(4):
            A(f"v_mfma_f32_16x16x32_bf16 {vr(B+4*cb,4)}, {ar(a_vf+(ks*4+cb)*4,4)}, {vr(v_d+4*ks,4)}, " + ("0" if ks == 0 else vr(B + 4 * cb, 4)))
    A("s_nop 4")
    for cb in range(4):
        A(f"ds_write_b128 v{T+1}, {vr(B+4*cb,4)} offset:{cb*64}")
    A(f"s_cmp_eq_u32 s{s_w}, 0")
    A("s_waitcnt lgkmcnt(0)")
    A("s_barrier")
    A("s_cbranch_scc0 L_noqstore")
    for w in range(4):
        A(f"ds_read_b128 {vr(B+4*w,4)}, v{T+3} offset:{w*512}")
    A("s_waitcnt lgkmcnt(0)")
    for e in range(4):
        A(f"v_add_f32 v{B+e}, v{B+e}, v{B+4+e}")
        A(f"v_add_f32 v{B+8+e}, v{B+8+e}, v{B+12+e}")
    for e in range(4):
        A(f"v_add_f32 v{B+e}, v{B+e}, v{B+8+e}")
    for e in range(4):
        A(f"v_add_u32 v{B+e}, 0x80, v{B+e}")
    for e in range(4):
        A(f"v_and_or_b32 v{B+e}, v{B+e}, s{s_t1}, v{T+5}")
    A("s_mov_b32 exec_hi, 0")
    g.vmem(f"buffer_store_dwordx4 {vr(B,4)}, v{T+4}, {srd(sWS)}, s{s_t0} offen sc1", optional=True)
    A("s_mov_b64 exec, -1")
    L("L_noqstore")
    stamp("qpub")

    def setup_rest():
        C("constants")
        A(f"s_mov_b32 s{s_c}, {f2u(LOG2E):#x}")
        A(f"s_mov_b32 s{s_rs}, {f2u(128 ** -0.5):#x}")
        A(f"s_mov_b32 s{s_perm}, 0x07060302")
        A(f"s_mov_b32 s{s_m12}, 0xfffff000")
        A(f"s_mov_b32 s{s_sel0}, 0x0c0c0501")
        A(f"s_mov_b32 s{s_sel1}, 0x05010c0c")
        A(f"s_mov_b32 s{s_pa}, 0x05000400")
        A(f"s_mov_b32 s{s_pb}, 0x07000600")
        A(f"s_mov_b32 s{s_pc}, 0x05040100")
        A(f"s_mov_b32 s{s_spin}, {SPIN}")
        for r in range(4):
            A(f"v_mov_b32 v{v_one+r}, 0x3f803f80")
        C("q gather: head w, lanes 0-31 half 0, lanes 32-63 half 1")
        A(f"v_lshrrev_b32 v{T}, 5, v1")
        A(f"v_and_b32 v{T+1}, 31, v1")
        A(f"v_lshlrev_b32 v{T+2}, 4, v{T+1}")
        A(f"v_lshl_add_u32 v{a_q}, v{T}, 16, v{T+2}")
        A(f"s_lshl_b32 s{s_t0}, s{s_b}, 14")
        A(f"s_lshl_b32 s{s_t1}, s{s_hkv}, 11")
        A(f"s_add_u32 s{s_t0}, s{s_t0}, s{s_t1}")
        A(f"s_lshl_b32 s{s_t1}, s{s_w}, 9")
        A(f"s_add_u32 s{s_t0}, s{s_t0}, s{s_t1}")
        A(f"s_add_u32 s{s_qoff}, s{s_t0}, {WS_QB}")
        A(f"s_lshl_b32 s{s_t0}, s{s_w}, 8")
        A(f"s_add_u32 s{s_t0}, s{s_t0}, {SCR+QX}")
        A(f"v_lshl_add_u32 v{a_qw}, v{T+1}, 3, s{s_t0}")
        A(f"v_lshl_add_u32 v{a_qw}, v{T}, 2, v{a_qw}")
        A(f"v_lshlrev_b32 v{a_qr}, 8, v{v_c}")
        A(f"v_lshl_add_u32 v{a_qr}, v{v_g}, 4, v{a_qr}")
        A(f"v_add_u32 v{a_qr}, {SCR+QX}, v{a_qr}")
        A(f"s_lshl_b32 s{s_t0}, s{s_w}, 2")
        A(f"v_add_u32 v{a_fw}, s{s_t0}, v{a_fr}")
        C("wo operand address: STG + (g*8+r)*256 + c*8 + w*64")
        A(f"v_lshl_add_u32 v{T+3}, v{v_g}, 3, v{v_r}")
        A(f"s_lshl_b32 s{s_t0}, s{s_w}, 6")
        A(f"s_add_u32 s{s_t0}, s{s_t0}, {STG}")
        A(f"v_lshl_add_u32 v{T+3}, v{T+3}, 8, s{s_t0}")
        A(f"v_lshl_add_u32 v{a_wor}, v{v_c}, 3, v{T+3}")
        C("V transposed read addresses")
        A(f"v_lshl_add_u32 v{T+3}, v{v_g}, 2, v{v_r}")
        A(f"v_lshl_add_u32 v{T+4}, v{T+3}, 8, s{s_wb}")
        A(f"v_and_b32 v{T+5}, 1, v{v_c}")
        A(f"v_lshl_add_u32 v{T+4}, v{T+5}, 3, v{T+4}")
        A(f"v_and_b32 v{T+3}, 7, v{T+3}")
        A(f"v_lshlrev_b32 v{T+3}, 1, v{T+3}")
        A(f"v_lshrrev_b32 v{T+5}, 1, v{v_c}")
        A(f"v_or_b32 v{T+3}, v{T+3}, v{T+5}")
        for cb in range(8):
            A(f"v_xor_b32 v{v_rv+cb}, {2*cb}, v{T+3}")
            A(f"v_lshl_add_u32 v{v_rv+cb}, v{v_rv+cb}, 4, v{T+4}")
        C("combine: writers (lane (g,h)) and readers (head w, d4)")
        A(f"v_lshlrev_b32 v{T+3}, 9, v{v_c}")
        A(f"v_lshl_add_u32 v{T+3}, v{v_g}, 4, v{T+3}")
        A(f"s_lshl_b32 s{s_t0}, s{s_w}, 11")
        A(f"s_add_u32 s{s_t0}, s{s_t0}, {SCR+OPA}")
        A(f"v_add_u32 v{a_cwa}, s{s_t0}, v{T+3}")
        A(f"v_add_u32 v{a_cwb}, s{s_wb}, v{T+3}")
        A(f"s_lshl_b32 s{s_t0}, s{s_w}, 2")
        A(f"s_add_u32 s{s_t0}, s{s_t0}, {SCR}")
        A(f"v_lshl_add_u32 v{a_cml}, v{v_c}, 4, s{s_t0}")
        A(f"s_lshl_b32 s{s_t0}, s{s_w}, 9")
        A(f"v_add_u32 v{a_crb}, s{s_t0}, v{T+2}")
        A(f"v_add_u32 v{a_cra}, {SCR+OPA}, v{a_crb}")
        A(f"v_add_u32 v{a_crb2}, {2*RING}, v{a_crb}")
        A(f"s_lshl_b32 s{s_t0}, s{s_w}, 4")
        A(f"s_add_u32 s{s_t0}, s{s_t0}, {SCR}")
        A(f"v_mov_b32 v{a_crm}, s{s_t0}")
        C("hop-1 publish: row (hkv, h=w, j) = [B | A]")
        A(f"v_lshlrev_b32 v{a_p1}, 4, v1")
        A(f"s_lshl_b32 s{s_t0}, s{s_hkv}, 2")
        A(f"s_add_u32 s{s_t0}, s{s_t0}, s{s_w}")
        A(f"s_lshl_b32 s{s_t0}, s{s_t0}, 5")
        A(f"s_add_u32 s{s_t0}, s{s_t0}, s{s_j}")
        A(f"s_lshl_b32 s{s_t0}, s{s_t0}, 10")
        A(f"s_add_u32 s{s_h1pub}, s{s_t0}, {WS_H1}")
        C("hop-1 gather, wave = (br, b): rows (hkv, h=j>>3, b*16 + 4*g + i), bytes (1-br)*512 + dh*256 + n*16")
        A(f"v_lshlrev_b32 v{T+5}, 4, v{v_n}")
        A(f"v_lshl_add_u32 v{a_g1}, v{v_g}, 12, v{T+5}")
        A(f"s_lshr_b32 s{s_t0}, s{s_t3}, 1")
        A(f"s_lshl_b32 s{s_t0}, s{s_t0}, 15")
        A(f"s_and_b32 s{s_t1}, s{s_w}, 1")
        A(f"s_lshl_b32 s{s_t1}, s{s_t1}, 14")
        A(f"s_add_u32 s{s_t0}, s{s_t0}, s{s_t1}")
        A(f"s_and_b32 s{s_t1}, s{s_t3}, 1")
        A(f"s_lshl_b32 s{s_t1}, s{s_t1}, 8")
        A(f"s_add_u32 s{s_t0}, s{s_t0}, s{s_t1}")
        A(f"s_and_b32 s{s_t1}, s{s_w}, 2")
        A(f"s_xor_b32 s{s_t1}, s{s_t1}, 2")
        A(f"s_lshl_b32 s{s_t1}, s{s_t1}, 8")
        A(f"s_add_u32 s{s_t0}, s{s_t0}, s{s_t1}")
        A(f"s_add_u32 s{s_h1get}, s{s_t0}, {WS_H1}")
        C("combined o in LDS [br][b][64] bf16: writer w*128 + n*8 + bit5*4 + bit4*2 ; reader (n&1)*128 + g*16")
        A(f"s_lshl_b32 s{s_t0}, s{s_w}, 7")
        A(f"s_add_u32 s{s_t0}, s{s_t0}, {SCR+OX}")
        A(f"v_lshl_add_u32 v{a_ow}, v{v_n}, 3, s{s_t0}")
        A(f"v_lshl_add_u32 v{a_ow}, v{T}, 2, v{a_ow}")
        A(f"v_bfe_u32 v{T+5}, v1, 4, 1")
        A(f"v_lshl_add_u32 v{a_ow}, v{T+5}, 1, v{a_ow}")
        A(f"v_and_b32 v{T+3}, 1, v1")
        A(f"v_lshlrev_b32 v{a_or}, 7, v{T+3}")
        A(f"v_lshl_add_u32 v{a_or}, v{v_g}, 4, v{a_or}")
        A(f"v_add_u32 v{a_or}, {SCR+OX}, v{a_or}")
        C("hop-2 store: lane (g, n<4): b = n&1, e = n>>1")
        A(f"v_lshlrev_b32 v{a_p2}, 17, v{T+3}")
        A(f"v_lshl_add_u32 v{a_p2}, v{v_g}, 4, v{a_p2}")
        A(f"v_bfe_u32 v{T+3}, v1, 1, 1")
        A(f"v_lshl_add_u32 v{a_p2}, v{T+3}, 12, v{a_p2}")
        A(f"s_and_b32 s{s_t0}, s{s_j}, 3")
        A(f"s_lshl_b32 s{s_t0}, s{s_t0}, 2")
        A(f"s_add_u32 s{s_t0}, s{s_t0}, s{s_w}")
        A(f"s_lshl_b32 s{s_t0}, s{s_t0}, 13")
        A(f"s_lshl_b32 s{s_t1}, s{s_t3}, 6")
        A(f"s_add_u32 s{s_t0}, s{s_t0}, s{s_t1}")
        A(f"s_add_u32 s{s_h2pub}, s{s_t0}, {WS_H2}")
        C("hop-2 gather and output offsets")
        A(f"v_lshlrev_b32 v{a_g2}, 4, v1")
        A(f"s_lshl_b32 s{s_t0}, s2, 12")
        A(f"s_add_u32 s{s_h2get}, s{s_t0}, {WS_H2}")
        A(f"v_lshlrev_b32 v{a_out}, 3, v{v_c}")
        A(f"v_lshl_add_u32 v{a_out}, v{T+5}, 2, v{a_out}")
        A(f"v_lshl_add_u32 v{a_out}, v{T}, 1, v{a_out}")
        if XM:
            C("tiles with one more load in flight, by die parity (speed only)")
            A(f"s_getreg_b32 s{s_t0}, hwreg(HW_REG_XCC_ID)")
            A(f"s_and_b32 s{s_t0}, s{s_t0}, 1")
            A(f"s_mul_i32 s{s_t0}, s{s_t0}, {XM[0] ^ XM[1]:#x}")
            A(f"s_xor_b32 s{s_xm}, s{s_t0}, {XM[0]:#x}")
        if CTL:
            C("progress words: slot = ref*4 + w at (slot>>3)*4352 + (slot&7)*4 ; references are workgroups 40..47 and 168..175")
            A(f"s_mov_b32 s{s_boost}, 0")
            A(f"s_and_b32 s{s_tagp}, s{s_tag32}, 0xffffff00")
            A(f"v_mov_b32 v{v_pl}, s{s_tagp}")
            A(f"v_min_u32 v{a_pw}, 1, v1")
            A(f"v_lshlrev_b32 v{a_pw}, 30, v{a_pw}")
            A(f"v_lshrrev_b32 v{T+3}, 3, v1")
            A(f"v_mul_u32_u24 v{T+3}, 4352, v{T+3}")
            A(f"v_and_b32 v{T+4}, 7, v1")
            A(f"v_lshl_add_u32 v{a_pr}, v{T+4}, 2, v{T+3}")
            A(f"v_add_u32 v{a_pr}, {WS_PR}, v{a_pr}")
            A(f"s_bfe_u32 s{s_t0}, s2, 0x40003")
            A(f"s_xor_b32 s{s_t0}, s{s_t0}, 5")
            A(f"s_lshl_b32 s{s_t0}, s{s_t0}, 2")
            A(f"s_add_u32 s{s_pph}, s{s_t0}, s{s_w}")
            A(f"s_and_b32 s{s_t0}, s2, 7")
            A(f"s_mul_i32 s{s_t0}, s{s_t0}, 4352")
            A(f"s_lshl_b32 s{s_t1}, s{s_b}, 2")
            A(f"s_add_u32 s{s_t1}, s{s_t1}, s{s_w}")
            A(f"s_lshl_b32 s{s_t1}, s{s_t1}, 2")
            A(f"s_add_u32 s{s_t0}, s{s_t0}, s{s_t1}")
            A(f"s_add_u32 s{s_pro}, s{s_t0}, {WS_PR}")
        if CTL == "local":
            C("one line per group of workgroups with equal wg&7; wave 0 reports every PT tiles")
            A(f"s_and_b32 s{s_t0}, s2, 7")
            A(f"s_mul_i32 s{s_t0}, s{s_t0}, 4352")
            A(f"s_add_u32 s{s_t0}, s{s_t0}, {WS_PR}")
            A(f"v_and_b32 v{T+4}, 31, v1")
            A(f"v_lshl_add_u32 v{a_pr}, v{T+4}, 2, s{s_t0}")
            A(f"s_lshr_b32 s{s_t1}, s2, 3")
            A(f"s_lshl2_add_u32 s{s_pro}, s{s_t1}, s{s_t0}")
            A(f"s_and_b32 s{s_t1}, s{s_t1}, {PT-1}")
            A(f"s_lshl4_add_u32 s{s_pph}, s{s_w}, s{s_t1}")

    def setup_gate():
        C("gate factor (g or 1-g) for wave = (branch, batch), with the reference's bf16 rounding points")
        X, Wt = GX, GX + 8
        for r in range(8):
            A(f"v_lshlrev_b32 v{T}, 16, v{X+r}")
            A(f"v_lshlrev_b32 v{T+1}, 16, v{Wt+r}")
            A(f"v_and_b32 v{X+r}, 0xffff0000, v{X+r}")
            A(f"v_and_b32 v{Wt+r}, 0xffff0000, v{Wt+r}")
            A(f"v_mul_f32 v{T}, v{T}, v{T+1}")
            A(f"v_mul_f32 v{X+r}, v{X+r}, v{Wt+r}")
            A(f"v_cvt_pk_bf16_f32 v{X+r}, v{T}, v{X+r}")
        for r in range(8):
            A(f"v_dot2_f32_bf16 v{T+2}, v{X+r}, v{v_one}, " + ("0" if r == 0 else f"v{T+2}"))
        A("s_nop 2")
        for d in (1, 2, 4, 8):
            A(f"v_add_f32_dpp v{T+2}, v{T+2}, v{T+2} row_ror:{d} row_mask:0xf bank_mask:0xf")
            A("s_nop 1")
        A(f"v_mov_b32 v{T+3}, v{T+2}")
        A("s_nop 1")
        A(f"v_permlane16_swap_b32 v{T+2}, v{T+3}")
        A("s_nop 0")
        A(f"v_add_f32 v{T+2}, v{T+2}, v{T+3}")
        A(f"v_cvt_pk_bf16_f32 v{T+2}, 0, v{T+2}")
        A(f"v_mul_f32 v{T+2}, {f2u(-LOG2E):#x}, v{T+2}")
        A(f"v_exp_f32 v{T+2}, v{T+2}")
        A("s_nop 0")
        A(f"v_add_f32 v{T+2}, 1.0, v{T+2}")
        A(f"v_rcp_f32 v{T+2}, v{T+2}")
        A(f"s_lshr_b32 s{s_t0}, s{s_w}, 1")
        A(f"v_cvt_pk_bf16_f32 v{T+2}, 0, v{T+2}")
        A(f"v_sub_f32 v{T+3}, 1.0, v{T+2}")
        A(f"v_cvt_pk_bf16_f32 v{T+3}, 0, v{T+3}")
        A(f"v_cvt_f32_u32 v{T+4}, s{s_t0}")
        A(f"v_sub_f32 v{T+5}, 1.0, v{T+4}")
        A(f"v_mul_f32 v{v_gf}, v{T+2}, v{T+5}")
        A(f"v_fmac_f32 v{v_gf}, v{T+3}, v{T+4}")

    st = {}
    def spin_guard():
        A(f"s_sub_u32 s{s_spin}, s{s_spin}, 1")
        A("s_cbranch_scc1 L_end")

    def qloads(track):
        A(f"s_add_u32 s{s_t0}, s{s_qoff}, 0x8000")
        for br in range(2):
            s = f"buffer_load_dwordx4 {vr(B+4*br,4)}, v{a_q}, {srd(sWS)}, s{s_t0 if br else s_qoff} offen sc1"
            if track:
                st["q"] = g.vmem(s)
            else:
                A(s)

    def xorcheck(regs, stag, mask, acc, inplace):
        if inplace:
            for r in regs:
                A(f"v_xor_b32 v{r}, s{stag}, v{r}")
            A(f"v_or_b32 v{acc}, v{regs[0]}, v{regs[1]}")
            for i in range(2, len(regs), 2):
                A(f"v_or3_b32 v{acc}, v{acc}, v{regs[i]}, v{regs[i+1]}")
        else:
            A(f"v_xor_b32 v{acc}, s{stag}, v{regs[0]}")
            for r in regs[1:]:
                A(f"v_bitop3_b32 v{acc}, v{acc}, v{r}, s{stag} bitop3:0xf6")
        A(f"v_and_b32 v{acc}, {mask:#x}, v{acc}")
        A(f"v_cmp_ne_u32 vcc, 0, v{acc}")

    def q_validate():
        C("---- validate this wave's head of q (both branches), share through LDS ----")
        g.wait_vm(st["q"])
        assert ids[pos[("wo", 7)]] not in g.vm
        L("L_qcheck")
        xorcheck(list(range(B, B + 8)), s_tag8, 0xff, T, True)
        A("s_cbranch_vccnz L_qretry")
        for br in range(2):
            A(f"v_permlane32_swap_b32 v{B+4*br}, v{B+4*br+2}")
            A(f"v_permlane32_swap_b32 v{B+4*br+1}, v{B+4*br+3}")
        for br in range(2):
            A(f"v_add_f32 v{B+4*br}, v{B+4*br}, v{B+4*br+2}")
            A(f"v_add_f32 v{B+4*br+1}, v{B+4*br+1}, v{B+4*br+3}")
        for br in range(2):
            A(f"v_cvt_pk_bf16_f32 v{B+4*br}, v{B+4*br}, v{B+4*br+1}")
        for br in range(2):
            A(f"ds_write_b32 v{a_qw}, v{B+4*br} offset:{br*1024}")
        A("s_waitcnt lgkmcnt(0)")
        A(f"ds_write_b32 v{a_fw}, v{v_one}")

    def flag_wait(name, off):
        L(name)
        A(f"ds_read_b128 {vr(B,4)}, v{a_fr} offset:{off}")
        spin_guard()
        A("s_waitcnt lgkmcnt(0)")
        A(f"v_and_b32 v{B}, v{B}, v{B+1}")
        A(f"v_and_b32 v{B+2}, v{B+2}, v{B+3}")
        A(f"v_and_b32 v{B}, v{B}, v{B+2}")
        A(f"v_cmp_eq_u32 vcc, 0, v{B}")
        A(f"s_cbranch_vccnz {name}")

    def q_fetch():
        flag_wait("L_qflag", 0)
        for j in range(4):
            A(f"ds_read_b128 {ar(a_qop+4*j,4)}, v{a_qr} offset:{j*64}")
        stamp("qval")
        st["qready"] = True

    def q_fetch_b():
        for j in range(4):
            A(f"ds_read_b128 {ar(a_qop+16+4*j,4)}, v{a_qr} offset:{1024+j*64}")

    def wo_fetch(k):
        def f():
            for e in range(2):
                for hf in range(2):
                    A(f"ds_read_b64_tr_b16 {ar(a_wop+(k*2+e)*4+hf*2,2)}, v{a_wor} offset:{k*8192+hf*1024+e*32}")
        return f

    FSLOT = slot_of(NT)
    def dump_o(br):
        adr, off, ml = (a_cwa, 0, MLA) if br == 0 else (a_cwb, FSLOT * 4096, MLB)
        A("s_mov_b32 exec_lo, 0x000f000f")
        A("s_mov_b32 exec_hi, 0x000f000f")
        A(f"ds_write_b32 v{a_cml}, v{v_m} offset:{ml}")
        A(f"ds_write_b32 v{a_cml}, a{a_l} offset:{ml+64}")
        for cb in range(8):
            A(f"ds_write_b128 v{adr}, {ar(a_o+4*cb,4)} offset:{off+cb*64}")
        A("s_mov_b64 exec, -1")

    def comb_read(br):
        ml = MLA if br == 0 else MLB
        A(f"ds_read_b128 {vr(B+16,4)}, v{a_crm} offset:{ml}")
        A(f"ds_read_b128 {vr(B+20,4)}, v{a_crm} offset:{ml+64}")
        for w in range(4):
            if br == 0:
                A(f"ds_read_b128 {vr(B+4*w,4)}, v{a_cra} offset:{w*2048}")
            else:
                A(f"ds_read_b128 {vr(B+4*w,4)}, v{a_crb if w < 2 else a_crb2} offset:{(w&1)*RING + FSLOT*4096}")

    def comb_math(extra=None):
        def wl(k):
            if extra is not None:
                A(f"s_waitcnt lgkmcnt({k+extra})")
        A(f"v_mov_b32 v{T+3}, s{s_tag8}")
        wl(5)
        A(f"v_max3_f32 v{T}, v{B+16}, v{B+17}, v{B+18}")
        A(f"v_max_f32 v{T}, v{T}, v{B+19}")
        A(f"v_mul_f32 v{T+1}, s{s_c}, v{T}")
        for w in range(4):
            A(f"v_fma_f32 v{B+16+w}, v{B+16+w}, s{s_c}, -v{T+1}")
        for w in range(4):
            A(f"v_exp_f32 v{B+16+w}, v{B+16+w}")
        wl(4)
        A(f"v_mul_f32 v{T+2}, v{B+16}, v{B+20}")
        for w in range(1, 4):
            A(f"v_fmac_f32 v{T+2}, v{B+16+w}, v{B+20+w}")
        A(f"v_rcp_f32 v{T}, v{T+2}")
        A(f"v_log_f32 v{T+2}, v{T+2}")
        wl(0)
        for e in range(4):
            A(f"v_mul_f32 v{B+e}, v{B+16}, v{B+e}")
        A(f"v_add_f32 v{T+1}, v{T+1}, v{T+2}")
        for w in range(1, 4):
            for e in range(4):
                A(f"v_fmac_f32 v{B+e}, v{B+16+w}, v{B+4*w+e}")
        A(f"v_perm_b32 v{T+4}, v{T+1}, v{T+3}, s{s_pa}")
        A(f"v_perm_b32 v{T+5}, v{T+1}, v{T+3}, s{s_pb}")
        for e in range(4):
            A(f"v_mul_f32 v{B+e}, v{T}, v{B+e}")
        A(f"v_cvt_pk_bf16_f32 v{T+6}, v{B}, v{B+1}")
        A(f"v_cvt_pk_bf16_f32 v{T+7}, v{B+2}, v{B+3}")
        A(f"v_perm_b32 v{v_pub}, v{T+6}, v{T+4}, s{s_pc}")
        A(f"v_perm_b32 v{v_pub+1}, v{T+6}, v{T+4}, s{s_perm}")
        A(f"v_perm_b32 v{v_pub+2}, v{T+7}, v{T+5}, s{s_pc}")
        A(f"v_perm_b32 v{v_pub+3}, v{T+7}, v{T+5}, s{s_perm}")

    def h1loads(track=False):
        for i in range(4):
            s = f"buffer_load_dwordx4 {vr(B+4*i,4)}, v{a_g1}, {srd(sWS)}, s{s_h1get} offen offset:{i*1024} sc1"
            g.vmem(s) if track else A(s)

    def gather_math():
        U = B + 16
        mk = list(range(16))
        def msk(n):
            for _ in range(n):
                r = mk.pop(0)
                A(f"v_and_b32 v{B+r}, 0xffff0000, v{B+r}")
        A(f"v_max3_f32 v{T+2}, v{U}, v{U+1}, v{U+2}")
        A(f"v_max_f32 v{T+2}, v{T+2}, v{U+3}")
        A(f"v_mov_b32 v{T+3}, v{T+2}")
        msk(2)
        A(f"v_permlane16_swap_b32 v{T+2}, v{T+3}")
        A(f"v_max_f32 v{T+2}, v{T+2}, v{T+3}")
        A(f"v_mov_b32 v{T+3}, v{T+2}")
        msk(2)
        A(f"v_permlane32_swap_b32 v{T+2}, v{T+3}")
        A(f"v_max_f32 v{T+2}, v{T+2}, v{T+3}")
        for i in range(4):
            A(f"v_sub_f32 v{U+i}, v{U+i}, v{T+2}")
        for i in range(4):
            A(f"v_exp_f32 v{U+i}, v{U+i}")
        msk(4)
        A(f"v_add_f32 v{T+2}, v{U}, v{U+1}")
        A(f"v_add_f32 v{T+3}, v{U+2}, v{U+3}")
        for e in range(4):
            A(f"v_mul_f32 v{B+e}, v{U}, v{B+e}")
        A(f"v_add_f32 v{T+2}, v{T+2}, v{T+3}")
        A(f"v_mov_b32 v{T+3}, v{T+2}")
        for e in range(4):
            A(f"v_fmac_f32 v{B+e}, v{U+1}, v{B+4+e}")
        A(f"v_permlane32_swap_b32 v{T+2}, v{T+3}")
        A(f"v_add_f32 v{T+2}, v{T+2}, v{T+3}")
        A(f"v_mov_b32 v{T+3}, v{T+2}")
        msk(4)
        A(f"v_permlane16_swap_b32 v{T+2}, v{T+3}")
        A(f"v_add_f32 v{T+2}, v{T+2}, v{T+3}")
        A(f"v_rcp_f32 v{T+2}, v{T+2}")
        msk(4)
        for i in (2, 3):
            for e in range(4):
                A(f"v_fmac_f32 v{B+e}, v{U+i}, v{B+4*i+e}")
        A(f"v_mul_f32 v{T+2}, v{T+2}, v{v_gf}")
        A(f"v_permlane32_swap_b32 v{B}, v{B+2}")
        A(f"v_permlane32_swap_b32 v{B+1}, v{B+3}")
        A(f"v_add_f32 v{B}, v{B}, v{B+2}")
        A(f"v_add_f32 v{B+1}, v{B+1}, v{B+3}")
        A("s_nop 1")
        A(f"v_permlane16_swap_b32 v{B}, v{B+1}")
        A(f"v_add_f32 v{B}, v{B}, v{B+1}")
        A(f"v_mul_f32 v{B}, v{T+2}, v{B}")
        A(f"v_cvt_pk_bf16_f32 v{B}, v{B}, v{B}")
        A(f"ds_write_b16 v{a_ow}, v{B}")

    def ctl_load(t):
        def f():
            st["ctl"] = g.vmem(f"buffer_load_dword v{v_ct}, v{a_pr}, {srd(sWS)}, 0 offen sc1")
            st["ctl_t"] = Z[st["p"]][1] + Z[st["p"]][2] / 4.0
        return f

    def ctl_use():
        g.wait_vm(st["ctl"])
        t0 = st["ctl_t"]
        ti = int(t0)
        tn = Z[st["p"]][1] + 1
        x, y = v_ct, v_ct + 1
        A(f"v_xor_b32 v{x}, s{s_tagp}, v{x}")
        A(f"v_cmp_gt_u32 s[82:83], {256 // 4}, v{x}" if False else f"v_lshrrev_b32 v{y}, 8, v{x}")
        A(f"v_cmp_eq_u32 s[82:83], 0, v{y}")
        A(f"v_mov_b32 v{y}, {max(0, ti - round(BIAS))}")
        A("s_nop 0")
        A(f"v_cndmask_b32 v{x}, v{y}, v{x}, s[82:83]")
        for d in (1, 2, 4, 8):
            A("s_nop 1")
            A(f"v_add_u32_dpp v{x}, v{x}, v{x} row_ror:{d} row_mask:0xf bank_mask:0xf")
        A("s_nop 0")
        for k in range(4):
            A(f"v_readlane_b32 s{s_t0+k}, v{x}, {16*k}")
        A(f"s_add_u32 s{s_t0}, s{s_t0}, s{s_t1}")
        A(f"s_add_u32 s{s_t2}, s{s_t2}, s{s_t3}")
        A(f"s_add_u32 s{s_t0}, s{s_t0}, s{s_t2}")
        A(f"s_sub_i32 s{s_t0}, s{s_t0}, {round(64 * (t0 - BIAS))}")
        A(f"s_mul_i32 s{s_t0}, s{s_t0}, {round(GAIN * 4)}")
        A(f"s_ashr_i32 s{s_t0}, s{s_t0}, 8")
        A(f"s_min_i32 s{s_t0}, s{s_t0}, {NMAXB}")
        A(f"s_add_i32 s{s_boost}, s{s_t0}, {tn}")

    F = B + 8
    def h2loads(track=False):
        for j in range(4):
            s = f"buffer_load_dwordx4 {vr(F+4*j,4)}, v{a_g2}, {srd(sWS)}, s{s_h2get} offen offset:{j*1024} sc1"
            g.vmem(s, optional=True) if track else A(s)

    def warm():
        h1loads(True)
        A("s_cmp_ge_u32 s2, 64")
        A("s_cbranch_scc1 L_nowarm")
        A(f"s_cmp_lg_u32 s{s_w}, 0")
        A("s_cbranch_scc1 L_nowarm")
        h2loads(True)
        L("L_nowarm")

    kf = lambda t: a_kf + 16 * (t % R)
    def KR(t):
        for j in range(4):
            A(f"ds_read_b128 {ar(kf(t)+4*j,4)}, v{v_rk+j} offset:{slot_of(t)*4096}")
    def LW(t):
        A("s_waitcnt lgkmcnt(0)")
    def QK(t):
        A("s_waitcnt lgkmcnt(0)")
        q = a_qop + 16 * (t // 64)
        for j in range(4):
            A(f"v_mfma_f32_16x16x32_bf16 {vr(v_s,4)}, {ar(kf(t)+4*j,4)}, {ar(q+4*j,4)}, " + ("0" if j == 0 else vr(v_s, 4)))
    def SC(t):
        k = t % 32
        A("s_nop 7")
        for r in range(4):
            A(f"v_cvt_pk_bf16_f32 v{v_s+r}, 0, v{v_s+r}")
        for r in range(4):
            A(f"v_mul_f32 v{v_s+r}, s{s_rs}, v{v_s+r}")
        if k == 0:
            A(f"v_max_f32 v{v_mx}, v{v_s}, v{v_s+1}")
        else:
            A(f"v_max3_f32 v{v_mx}, v{v_mx}, v{v_s}, v{v_s+1}")
        A(f"v_cvt_pk_bf16_f32 v{v_sc+2*k}, v{v_s}, v{v_s+1}")
        A(f"v_max3_f32 v{v_mx}, v{v_mx}, v{v_s+2}, v{v_s+3}")
        A(f"v_cvt_pk_bf16_f32 v{v_sc+2*k+1}, v{v_s+2}, v{v_s+3}")
    def MX(t):
        C("true maximum of this wave's scores per head")
        A(f"v_mov_b32 v{v_mt}, v{v_mx}")
        A("s_nop 1")
        A(f"v_permlane32_swap_b32 v{v_mx}, v{v_mt}")
        A(f"v_max_f32 v{v_mx}, v{v_mx}, v{v_mt}")
        A(f"v_mov_b32 v{v_mt}, v{v_mx}")
        A("s_nop 1")
        A(f"v_permlane16_swap_b32 v{v_mx}, v{v_mt}")
        A(f"v_max_f32 v{v_mx}, v{v_mx}, v{v_mt}")
        A(f"v_cvt_pk_bf16_f32 v{v_m}, 0, v{v_mx}")
        A(f"v_mul_f32 v{v_nmc}, {f2u(-LOG2E):#x}, v{v_m}")
        stamp("endKA" if t < 64 else "endKB")
    def PP(t):
        k = t % 32
        A(f"v_lshlrev_b32 v{v_s}, 16, v{v_sc+2*k}")
        A(f"v_and_b32 v{v_s+1}, 0xffff0000, v{v_sc+2*k}")
        A(f"v_lshlrev_b32 v{v_s+2}, 16, v{v_sc+2*k+1}")
        A(f"v_and_b32 v{v_s+3}, 0xffff0000, v{v_sc+2*k+1}")
        for r in range(4):
            A(f"v_fma_f32 v{v_s+r}, v{v_s+r}, s{s_c}, v{v_nmc}")
        for r in range(4):
            A(f"v_exp_f32 v{v_s+r}, v{v_s+r}")
        A(f"v_cvt_pk_bf16_f32 v{v_sc+2*k}, v{v_s}, v{v_s+1}")
        A(f"v_cvt_pk_bf16_f32 v{v_sc+2*k+1}, v{v_s+2}, v{v_s+3}")
    def VR(t):
        for cb in range(8):
            A(f"ds_read_b64_tr_b16 {ar(a_vf+4*cb+2*(t&1),2)}, v{v_rv+cb} offset:{slot_of(t)*4096}")
    def pv(t, cb):
        k = t % 32 - 1
        A(f"v_mfma_f32_16x16x32_bf16 {ar(a_o+4*cb,4)}, {ar(a_vf+4*cb,4)}, {vr(v_sc+2*k,4)}, " + ("0" if k == 0 else ar(a_o + 4 * cb, 4)))
    def PL(t):
        k = t % 32 - 1
        A("s_nop 1")
        A(f"v_mfma_f32_16x16x32_bf16 {ar(a_l,4)}, {vr(v_one,4)}, {vr(v_sc+2*k,4)}, " + ("0" if k == 0 else ar(a_l, 4)))
    def PVa(t):
        A("s_waitcnt lgkmcnt(0)")
        for cb in range(4):
            pv(t, cb)
    def PVb(t):
        for cb in range(4, 8):
            pv(t, cb)
        if t == 63:
            stamp("endVA")

    def landed(pl):
        p = pl + 1
        while p < len(Z) and p - Nguar(p) - ((Nguar(p) + 3) // 4 if CTL and p >= PC0 - 32 else 0) < pl:
            p += 1
        return max(p, P0)

    main = []
    for t in range(R):
        main.append((KR, t, landed(pos_of(t, 3)), pos_of(t, 3), False))
    main.append((LW, R - 1, landed(pos_of(R - 1, 3)) + 1, None, False))
    for t in range(NT):
        l0 = landed(pos_of(t, 3))
        if isK(t):
            if t >= R:
                main.append((KR, t, l0, pos_of(t, 3), True))
            main += [(QK, t, l0 + 1, None, True), (SC, t, l0 + 2, None, True)]
            if t % 32 == 31:
                main.append((MX, t, l0 + 3, None, True))
        elif t % 2 == 0:
            main += [(VR, t, l0, pos_of(t, 3), True), (PP, t, l0 + 1, None, True), (PP, t + 1, l0 + 2, None, True),
                     (PL, t + 1, l0 + 2, None, True)]
        else:
            main += [(VR, t, l0, pos_of(t, 3), True), (PVa, t, l0 + 1, None, True), (PVb, t, l0 + 2, None, True)]
    done = set()
    cost = {"KR": 1, "LW": 0, "QK": 1, "SC": 1, "MX": 1, "VR": 1, "PP": 1, "PL": 0, "PVa": 1, "PVb": 1}

    PVAL = landed(PQ) + 1
    side = []
    for f in g.split(setup_rest, CH):
        side.append((P0, f, False))
    side.append((P0, lambda: g.wait_vm(last_gate), True))
    for f in g.split(setup_gate, CH):
        side.append((P0, f, False))
    side.append((PQ, lambda: qloads(True), True))
    side.append((PVAL, q_validate, True))
    side.append((PVAL + QLAG, q_fetch, True))
    side.append((0, q_fetch_b, False))
    for k in range(4):
        side.append((0, wo_fetch(k), False))
    pA = landed(pos_of(63, 3)) + 3
    def dumpA():
        assert ("PVb", 63) in done
        A("s_nop 4")
        dump_o(0)
        A("s_waitcnt lgkmcnt(0)")
        A(f"ds_write_b32 v{a_fw}, v{v_one} offset:16")
    side.append((pA, dumpA, False))
    side.append((pA + ALAG, lambda: (flag_wait("L_aflag", 16), comb_read(0)), False))
    for f in g.split(lambda: (A("s_waitcnt lgkmcnt(0)"), comb_math()), CH):
        side.append((0, f, False))
    if WARM:
        side.append((0, warm, False))

    ctl = []
    if CTL:
        for t in range(C0 - 2, NT - 6, CK):
            ctl.append((pos_of(t, 2), ctl_load(t)))
            ctl.append((landed(pos_of(t, 3)), ctl_use))
        ctl.sort(key=lambda x: x[0])
    mi = si = ci = 0
    log = []
    for p in range(P0, len(Z)):
        z = Z[p]
        st["p"] = p
        if z[0] == "kv" and z[2] == 0 and z[1] >= NSLOT:
            prev = z[1] - NSLOT
            if isK(prev):
                ok = ("QK", prev) in done or (prev < R and ("LW", R - 1) in done)
            else:
                ok = ("PVa", prev | 1) in done
            assert ok, (p, z)
        issue(p)
        while ci < len(ctl) and ctl[ci][0] <= p:
            ctl[ci][1]()
            ci += 1
        used = 0
        while mi < len(main):
            f, t, e, ld, nq = main[mi]
            if e > p or (nq and not st.get("qready")):
                break
            behind = e < p - 1
            if used + cost[f.__name__] > (3 if behind else 1):
                break
            if ld is not None:
                assert ids[ld] not in g.vm, (f.__name__, t, p)
            if f.__name__ not in skip or t % 32 == 31:
                f(t)
            done.add((f.__name__, t)); log.append((p, f.__name__, t))
            used += cost[f.__name__]; mi += 1
        while si < len(side) and side[si][0] <= p and (used == 0 or side[si][2]):
            e, f, forced = side[si]
            f()
            log.append((p, "side", si))
            si += 1
            if not forced:
                used += 1
    assert si == len(side), (si, len(side))
    C("---- drain ----")
    while mi < len(main):
        f, t, e, ld, nq = main[mi]
        if ld is not None:
            g.wait_vm(ids[ld])
        if t == NT - 1 and f is PVa:
            for cb in range(8):
                A(f"s_waitcnt lgkmcnt({7-cb})")
                pv(t, cb)
        elif not (t == NT - 1 and f is PVb):
            f(t)
        mi += 1
    assert not g.vm
    stamp("drained")

    C("---- combine the four waves ----")
    dump_o(1)
    A("s_waitcnt lgkmcnt(0)")
    A("s_barrier")
    stamp("bar")
    comb_read(1)
    A("s_mov_b32 exec_hi, 0")
    comb_math(0)
    A("s_mov_b64 exec, -1")
    A(f"buffer_store_dwordx4 {vr(v_pub,4)}, v{a_p1}, {srd(sWS)}, s{s_h1pub} offen {H1SC}")
    stamp("pub1")
    C("---- gather the 16 partials of (branch, batch) ----")
    if SL1:
        A("s_branch L_h1first")
    L("L_h1poll")
    if SL1:
        A(f"s_sleep {SL1}")
        L("L_h1first")
    h1loads()
    spin_guard()
    for i in range(4):
        A(f"s_waitcnt vmcnt({3-i})")
        for e in range(4):
            if i == 0 and e == 0:
                A(f"v_xor_b32 v{T}, s{s_tag8}, v{B}")
            else:
                A(f"v_bitop3_b32 v{T}, v{T}, v{B+4*i+e}, s{s_tag8} bitop3:0xf6")
        A(f"v_perm_b32 v{B+16+i}, v{B+4*i+1}, v{B+4*i}, s{s_sel0}")
        A(f"v_perm_b32 v{B+20+i}, v{B+4*i+3}, v{B+4*i+2}, s{s_sel1}")
        A(f"v_or_b32 v{B+16+i}, v{B+16+i}, v{B+20+i}")
    A(f"v_and_b32 v{T}, 0xff, v{T}")
    A(f"v_cmp_ne_u32 vcc, 0, v{T}")
    A("s_cbranch_vccnz L_h1poll")
    stamp("h1ok")
    gather_math()
    A("s_waitcnt lgkmcnt(0)")
    A("s_barrier")
    stamp("bar2")
    OPD = v_sc
    for k in range(4):
        A(f"ds_read_b128 {vr(OPD+4*k,4)}, v{a_or} offset:{(k>>1)*256+(k&1)*64}")
    A(f"v_bfe_u32 v{T}, v1, 1, 1")
    A(f"v_cmp_ne_u32 vcc, 0, v{T}")
    A(f"v_mov_b32 v{T+1}, s{s_tag12}")
    for k in range(4):
        A(f"s_waitcnt lgkmcnt({3-k})")
        for e in range(2):
            A(f"v_mfma_f32_16x16x32_bf16 {vr(v_d+4*e,4)}, {ar(a_wop+(k*2+e)*4,4)}, {vr(OPD+4*k,4)}, " + ("0" if k == 0 else vr(v_d + 4 * e, 4)))
    A("s_mov_b32 exec_lo, 0x000f000f")
    A("s_mov_b32 exec_hi, 0x000f000f")
    A("s_nop 5")
    for r in range(4):
        A(f"v_cndmask_b32 v{v_d+r}, v{v_d+r}, v{v_d+4+r}, vcc")
    for r in range(4):
        A(f"v_add_u32 v{v_d+r}, 0x800, v{v_d+r}")
    for r in range(4):
        A(f"v_and_or_b32 v{v_d+r}, v{v_d+r}, s{s_m12}, v{T+1}")
    A(f"buffer_store_dwordx4 {vr(v_d,4)}, v{a_p2}, {srd(sWS)}, s{s_h2pub} offen sc1")
    A("s_mov_b64 exec, -1")
    stamp("pub2")

    C("---- final reduction: wave 0 of workgroups 0..63 ----")
    A("s_cmp_ge_u32 s2, 64")
    A("s_cbranch_scc1 L_fin")
    A(f"s_cmp_lg_u32 s{s_w}, 0")
    A("s_cbranch_scc1 L_fin")
    A(f"s_lshl_b32 s{s_t0}, s2, 5")
    L("L_h2poll")
    if SL2:
        A(f"s_sleep {SL2}")
    h2loads()
    spin_guard()
    for j in range(4):
        A(f"s_waitcnt vmcnt({3-j})")
        for e in range(4):
            A(f"v_xor_b32 v{F+4*j+e}, s{s_tag12}, v{F+4*j+e}")
        if j == 0:
            A(f"v_or_b32 v{T}, v{F}, v{F+1}")
            A(f"v_or3_b32 v{T}, v{T}, v{F+2}, v{F+3}")
        else:
            A(f"v_or3_b32 v{T}, v{T}, v{F+4*j}, v{F+4*j+1}")
            A(f"v_or3_b32 v{T}, v{T}, v{F+4*j+2}, v{F+4*j+3}")
            for e in range(4):
                A(f"v_add_f32 v{F+e}, v{F+e}, v{F+4*j+e}")
    A(f"v_and_b32 v{T}, 0xfff, v{T}")
    A(f"v_cmp_ne_u32 vcc, 0, v{T}")
    A("s_cbranch_vccnz L_h2poll")
    A(f"v_permlane32_swap_b32 v{F}, v{F+1}")
    A(f"v_permlane32_swap_b32 v{F+2}, v{F+3}")
    A(f"v_add_f32 v{F}, v{F}, v{F+1}")
    A(f"v_add_f32 v{F+2}, v{F+2}, v{F+3}")
    A("s_nop 1")
    A(f"v_permlane16_swap_b32 v{F}, v{F+2}")
    A(f"v_add_f32 v{F}, v{F}, v{F+2}")
    A("s_nop 1")
    A(f"v_add_f32_dpp v{F}, v{F}, v{F} row_ror:4 row_mask:0xf bank_mask:0xf")
    A("s_nop 1")
    A(f"v_add_f32_dpp v{F}, v{F}, v{F} row_ror:8 row_mask:0xf bank_mask:0xf")
    A(f"v_cvt_pk_bf16_f32 v{F}, v{F}, v{F}")
    A("s_mov_b32 exec_lo, 0x000f000f")
    A("s_mov_b32 exec_hi, 0x000f000f")
    A(f"buffer_store_short v{F}, v{a_out}, {srd(sO)}, s{s_t0} offen")
    A("s_cmp_lg_u32 s2, 0")
    A("s_cbranch_scc1 L_fin")
    C("every workgroup has published, hence read, the epoch word: advance it")
    A("s_mov_b64 exec, 1")
    A(f"v_mov_b32 v{T}, s{s_tag32}")
    A(f"v_mov_b32 v{T+1}, 0")
    A(f"buffer_store_dword v{T}, v{T+1}, {srd(sWS)}, 0 offen offset:{WS_E} sc1")
    L("L_fin")
    stamp("end")
    if diag:
        A("s_mov_b64 exec, 1")
        A("s_waitcnt lgkmcnt(0)")
        A(f"s_lshl_b32 s{s_t0}, s2, 2")
        A(f"s_add_u32 s{s_t0}, s{s_t0}, s{s_w}")
        A(f"s_lshl_b32 s{s_t0}, s{s_t0}, 5")
        A(f"s_add_u32 s{s_t0}, s{s_t0}, {WS_DIAG}")
        for i in range(8):
            A(f"v_mov_b32 v{v_sc+16+i}, s{s_st+2*i}")
        A(f"v_mov_b32 v{T+2}, 0")
        A(f"buffer_store_dwordx4 {vr(v_sc+16,4)}, v{T+2}, {srd(sWS)}, s{s_t0} offen")
        A(f"buffer_store_dwordx4 {vr(v_sc+20,4)}, v{T+2}, {srd(sWS)}, s{s_t0} offen offset:16")
    L("L_end")
    A("s_endpgm")

    for label, back, loads in (("L_qretry", "L_qcheck", lambda: qloads(False)),):
        L(label)
        spin_guard()
        loads()
        A("s_waitcnt vmcnt(0)")
        A(f"s_branch {back}")

    acc = (NV + 3) // 4 * 4
    g.o.append('.section .rodata,"a"')
    g.o.append(".p2align 6")
    g.o.append(f".amdhsa_kernel {KNAME}")
    g.o.append(f"  .amdhsa_next_free_vgpr {acc+NA}")
    g.o.append("  .amdhsa_next_free_sgpr 102")
    g.o.append(f"  .amdhsa_accum_offset {acc}")
    g.o.append("  .amdhsa_group_segment_fixed_size 0")
    g.o.append("  .amdhsa_kernarg_size 112")
    g.o.append("  .amdhsa_user_sgpr_count 2")
    g.o.append("  .amdhsa_user_sgpr_kernarg_segment_ptr 1")
    g.o.append("  .amdhsa_system_sgpr_workgroup_id_x 1")
    g.o.append("  .amdhsa_float_denorm_mode_32 3")
    g.o.append(".end_amdhsa_kernel")
    gen.log = log
    return "\n".join(g.o) + "\n"


if __name__ == "__main__":
    kw = {}
    for a in sys.argv[2:]:
        k, v = a.split("=")
        kw[k] = eval(v)
    src = gen(**kw)
    open(sys.argv[1], "w").write(src)
```

```python
import sys, math, struct

KNAME = "gated_mix__gqa_block_cached__gqa_block_cached__decode_kernel"

WS_E = 0x0
WS_QB = 0x1000
WS_LB = 0x30000
WS_P1 = 0x40000
WS_P2 = 0x60000
WS_PR = 0x80000
WS_GP = 0x90000
WS_H1 = 0x100000
WS_DIAG = 0x200000
WS_SIZE = 0x400000
EPOCH_INC = 0x9E3779B1

NSLOT = 7
RING = NSLOT * 4096
STG = 4 * RING
SCR = STG + 32768
QP, QX, OPA, ML, OX, FL = 0, 2048, 4096, 12288, 12544, 13568
LDS_BYTES = 163840

PATS = {
    "P1": ([[14], [15], [16], [17], [18]], [[12], [13]], [[19], [20], [21], [22]]),
    "T2": ([[14], [17], [18], [19], [20]], [[12], [13]], [[15], [16], [21], [22]]),
    "U4": ([[14], [22], [17], [18], [19]], [[12], [13]], [[15], [16], [21], [20]]),
    "U5": ([[14], [22], [17], [18], [19]], [[12, 17], [13, 18]], [[15], [16], [21, 18], [20]]),
}


def f2u(x):
    return struct.unpack("<I", struct.pack("<f", x))[0]


class Gen:
    def __init__(self):
        self.o = []
        self.vm = []
        self.seq = []
        self.nid = 0

    def A(self, s):
        self.o.append("  " + s)

    def L(self, s):
        self.o.append(s + ":")

    def C(self, s):
        self.o.append("  ; " + s)

    def vmem(self, s, optional=False):
        self.A(s)
        self.nid += 1
        if not optional:
            self.seq.append(self.nid)
            if "store" not in s:
                self.vm.append(self.nid)
        return self.nid

    def after(self, op):
        return len(self.seq) - 1 - self.seq.index(op)

    def throttle(self, op):
        if op not in self.vm:
            return False
        k = self.after(op)
        assert k <= 63
        self.A(f"s_waitcnt vmcnt({k})")
        if k < len(self.vm):
            self.vm = self.vm[len(self.vm) - k:] if k else []
        return True

    def wait_vm(self, op):
        if op not in self.vm:
            return False
        k = len(self.vm) - 1 - self.vm.index(op)
        assert k <= 63
        self.A(f"s_waitcnt vmcnt({k})")
        self.vm = self.vm[len(self.vm) - k:] if k else []
        return True

    def split(self, fn, n):
        keep, self.o = self.o, []
        nvm = self.nid
        fn()
        assert self.nid == nvm
        body, self.o = self.o, keep
        out, cur, k = [], [], 0
        for line in body:
            assert not line.endswith(":") and "cbranch" not in line and "s_cmp" not in line and "vcc" not in line \
                and "exec" not in line and "cselect" not in line, line
            cur.append(line)
            if not line.strip().startswith(";"):
                k += 1
            if k == n:
                out.append(cur); cur, k = [], 0
        if cur:
            out.append(cur)
        return [(lambda c=c: self.o.extend(c)) for c in out]


def gen(N=5, Npat=None, N0=8, NH=5, PH=64, NB=10, BL=16, BZ=(1, 2, 3, 4), NWO=10, R=5, PQ=36, QLAG=3, LLAG=8, PWG=484, CH=16,
        PAT="U4", XM=(0x00100401, 0), NHI=7, CK=4, C0=16, GAIN=3.0, BIAS=2.0, NMAXB=8, PT=4,
        SL1=4, SL2=0, P2AFTER=32, WARM2=True, TW=False, FWAVE=0, P1SC="", GR=(), GWIN=(4, 6), GK=3.0, GOFF=0.0, GMAX=12,
        diag=False, SPIN=1 << 21, pad=None, smap="head"):
    g = Gen()
    A, L, C = g.A, g.L, g.C
    LOG2E = math.log2(math.e)
    Npat = Npat or [N]
    P0, OFF = 16, 8
    def Nof(p):
        if p < P0:
            return N0
        if p < PH:
            return NH
        if p >= OFF + 512:
            return NWO
        if NB:
            for k in BZ:
                if OFF + 128 * k - BL <= p < OFF + 128 * k:
                    return NB
        return Npat[p % len(Npat)]
    PC0 = OFF + 4 * C0
    def Nguar(p):
        return max(Nof(p), NHI) if p >= PC0 else Nof(p)

    sKV = [20, 24, 28, 32]
    sWQ, sWO, sWS, sX, sG, sO = 36, 40, 44, 48, 52, 56
    srd = lambda b: f"s[{b}:{b+3}]"
    (s_w, s_b, s_hkv, s_j, s_kvb, s_kvoff, s_wb, s_stg, s_tag32, s_tag8, s_tag12, s_c, s_rs, s_t0, s_t1, s_t2, s_t3,
     s_wqoff, s_wooff, s_spin, s_colb, s_m12) = range(60, 82)
    s_qoff, s_perm, s_h1pub, s_h1get, s_h2pub, s_h2get, s_lpub, s_lget, s_m15, s_f, s_cnt = range(3, 14)
    s_boost, s_pph, s_pro, s_tagp, s_u, s_xm = range(14, 20)
    s_c0, s_c1 = 100, 101
    s_gb, s_dev, s_gpo, s_bc = 36, 37, 38, 39
    s_fw = 48
    s_st = 84

    v_g, v_n, v_c, v_r = 2, 3, 4, 5
    a_pw, a_pr, v_pd, v_pl = 6, 7, 8, 9
    v_dv, v_rk, v_rv = 10, 12, 16
    v_mx, v_m, v_nmc, v_gf, v_mt = 24, 25, 26, 27, 28
    (a_wo, a_q, a_qw, a_qr, a_fw, a_fr, a_cwa, a_cwb, a_cml, a_cra, a_crb, a_crb2, a_mlr, a_l16, a_g1, a_ow, a_or,
     a_p2, a_lg, a_out, a_wor) = range(29, 50)
    v_ct = 50
    v_s = 52
    v_one = 56
    v_d = 60
    v_sc = 68
    T = 132
    B = 140
    v_pub = 164
    v_pat = 168
    v_sel = 172
    v_aw = 176
    v_tw = 180
    a_gs = 182
    v_gs = 184
    NV = 196
    a_qop = 0
    a_vf = 32
    a_wop = 64
    a_o = 96
    a_l = 128
    a_kf = 132
    NA = a_kf + 16 * R
    assert NA <= 256
    vr = lambda b, n: f"v[{b}:{b+n-1}]"
    ar = lambda b, n: f"a[{b}:{b+n-1}]"

    SMAPS = {"head": ["start", "qpub", "qval", "endKA", "endVA", "endKB", "drained", "end"],
             "tail": ["start", "drained", "bar", "pub1", "bar2", "h1ok", "pub2", "end"]}
    def stamp(name):
        if name not in SMAPS[smap]:
            return
        i = SMAPS[smap].index(name)
        if diag or (pad and i == 0):
            A(f"s_memrealtime s[{s_st+2*i}:{s_st+2*i+1}]")
        if pad and pad[0] == i:
            L("L_pad")
            A("s_memrealtime s[82:83]")
            A("s_waitcnt lgkmcnt(0)")
            A(f"s_sub_u32 s82, s82, s{s_st}")
            A(f"s_cmp_lt_u32 s82, {int(pad[1]*100)}")
            A("s_cbranch_scc1 L_pad")

    hdr = open("gated_mix__gqa_block_cached__gqa_block_cached__decode.s.ref").read().split("\n")
    for line in hdr:
        if line.startswith(";") and "@launch" not in line:
            g.o.append(line)
        elif not line.startswith(";"):
            break
    g.o.append(f"; @launch grid=(256,1,1) block=(256,1,1) lds={LDS_BYTES}")
    g.o.append('.amdgcn_target "amdgcn-amd-amdhsa--gfx950"')
    g.o.append(".text")
    g.o.append(f".globl {KNAME}")
    g.o.append(".p2align 8")
    g.o.append(f".type {KNAME},@function")
    L(KNAME)
    C("workgroup = (b, hkv, one of 16 key splits) for both branches; extra workgroups leave at once")
    A("s_cmp_ge_u32 s2, 256")
    A("s_cbranch_scc0 L_go")
    A("s_endpgm")
    L("L_go")
    A(f"s_lshr_b32 s{s_b}, s2, 7")
    A(f"s_mul_i32 s3, s{s_b}, 40")
    A("s_add_u32 s16, s0, s3")
    A("s_addc_u32 s17, s1, 0")
    A("s_load_dwordx2 s[14:15], s[16:17], 24")
    A("s_load_dwordx4 s[4:7], s[0:1], 8")
    A("s_load_dwordx2 s[12:13], s[0:1], 0")
    A("s_load_dwordx2 s[18:19], s[0:1], 104")
    A("s_load_dwordx4 s[8:11], s[0:1], 48")
    A("s_load_dwordx4 s[96:99], s[0:1], 80")
    stamp("start")
    A(f"v_lshrrev_b32 v{T}, 6, v0")
    A("v_and_b32 v1, 63, v0")
    A(f"v_readfirstlane_b32 s{s_w}, v{T}")
    C("q slice: branch b, columns (wg>>1 & 63)*64, rows (wg&1)*256 + w*64")
    A(f"v_lshrrev_b32 v{T+2}, 3, v1")
    A(f"v_lshlrev_b32 v{T+2}, 13, v{T+2}")
    A(f"v_and_b32 v{T}, 7, v1")
    A(f"v_lshl_add_u32 v{T+2}, v{T}, 4, v{T+2}")
    A(f"s_bfe_u32 s{s_colb}, s2, 0x60001")
    A(f"s_lshl_b32 s{s_colb}, s{s_colb}, 6")
    A(f"s_and_b32 s{s_t0}, s2, 1")
    A(f"s_lshl2_add_u32 s{s_t2}, s{s_t0}, s{s_w}")
    A(f"s_lshl_b32 s{s_t0}, s{s_t2}, 19")
    A(f"s_lshl1_add_u32 s{s_wqoff}, s{s_colb}, s{s_t0}")
    A(f"s_lshl_b32 s{s_stg}, s{s_w}, 13")
    A(f"s_add_u32 s{s_stg}, s{s_stg}, {STG}")
    A(f"s_mov_b32 s{sWQ+2}, 0x400000")
    A(f"s_mov_b32 s{sWQ+3}, 0x20000")
    A("s_waitcnt lgkmcnt(0)")
    A(f"s_mov_b32 s{sWQ}, s14")
    A(f"s_and_b32 s{sWQ+1}, s15, 0xffff")
    def mksrd(d, p, size):
        A(f"s_mov_b32 s{d}, s{p}")
        A(f"s_and_b32 s{d+1}, s{p+1}, 0xffff")
        A(f"s_mov_b32 s{d+2}, {size:#x}")
        A(f"s_mov_b32 s{d+3}, 0x20000")

    S5, WM, G4 = PATS[PAT] if isinstance(PAT, str) else PAT
    msk = lambda bs: sum(1 << b for b in bs)
    basis = {}
    for v in [msk(x) for x in S5 + WM + G4]:
        while v:
            h = v.bit_length() - 1
            if h not in basis:
                basis[h] = v
                break
            v ^= basis[h]
    assert sorted(basis) == list(range(12, 23)), "pattern is not a bijection"
    def tile_off(t):
        x = 0
        for k in range(5):
            if t >> k & 1:
                x ^= msk(S5[k])
        return x
    NT = 128
    Z = [("wq", j) for j in range(8)] + [("kv", t, j) for t in range(NT) for j in range(4)] + [("wo", j) for j in range(8)]
    pos = {z: p for p, z in enumerate(Z)}
    pos_of = lambda t, j: pos[("kv", t, j)]
    slot_of = lambda t: t % NSLOT
    isK = lambda t: (t // 32) % 2 == 0
    ids = {}
    st = {}
    log = []

    def issue(p, throttle=True):
        z = Z[p]
        need_nop = False
        if z[0] == "wq":
            if z[1]:
                A(f"s_add_u32 s{s_wqoff}, s{s_wqoff}, 0x10000")
            A(f"s_add_u32 m0, s{s_stg}, {z[1]*1024}")
            need_nop = True
        elif z[0] == "wo":
            if z[1]:
                A(f"s_add_u32 s{s_wooff}, s{s_wooff}, 8192")
            A(f"s_add_u32 m0, s{s_stg}, {z[1]*1024}")
            need_nop = True
        elif z[2] == 0:
            t = z[1]
            A(f"s_xor_b32 s{s_kvoff}, s{s_kvb}, {tile_off(t % 32):#x}")
            A(f"s_add_u32 m0, s{s_wb}, {slot_of(t)*4096}")
            need_nop = True
            if p >= PC0 and any(Nguar(q) > Nof(q) for q in range(p, p + 4)):
                A(f"s_cmp_gt_i32 s{s_boost}, {t}")
                A("s_cselect_b64 vcc, -1, 0")
                need_nop = False
                if XM and (XM[0] | XM[1]) >> (t % 32) & 1:
                    A(f"s_bitcmp1_b32 s{s_xm}, {t % 32}")
                    A("s_cselect_b64 vcc, -1, vcc")
        waited = False
        if throttle and p - Nguar(p) >= 0:
            waited = g.throttle(ids[p - Nguar(p)])
            if Nguar(p) > Nof(p) and ids[p - Nof(p)] in g.vm:
                A(f"s_cbranch_vccnz L_b{p}")
                A(f"s_waitcnt vmcnt({g.after(ids[p - Nof(p)])})")
                L(f"L_b{p}")
                waited = True
        if need_nop and not waited:
            A("s_nop 0")
        if z[0] == "wq":
            ids[p] = g.vmem(f"buffer_load_dwordx4 v{T+2}, {srd(sWQ)}, s{s_wqoff} offen nt lds")
        elif z[0] == "wo":
            ids[p] = g.vmem(f"buffer_load_dwordx4 v{a_wo}, {srd(sWO)}, s{s_wooff} offen nt lds")
        else:
            _, t, j = z
            ids[p] = g.vmem(f"buffer_load_dwordx4 v{v_dv+(j&1)}, {srd(sKV[t//32])}, s{s_kvoff} offen offset:{j*1024} nt lds")
            if j == 1 and C0 - 8 <= t < NT - 6:
                assert st["setup"]
                A(f"s_cmp_eq_u32 s{s_pph}, {t % PT}")
                A(f"s_cselect_b32 s{s_u}, s{s_pro}, {WS_SIZE:#x}")
                A(f"v_or_b32 v{v_pd}, {t}, v{v_pl}")
                g.vmem(f"buffer_store_dword v{v_pd}, v{a_pw}, {srd(sWS)}, s{s_u} offen")

    C("wq slice -> staging")
    for p in range(8):
        issue(p, throttle=False)
    A(f"s_load_dword s{s_tag32}, s[18:19], {WS_E}")
    A(f"s_lshr_b32 s{s_t0}, s{s_w}, 1")
    A(f"s_mul_i32 s{s_t0}, s{s_t0}, 40")
    A(f"s_add_u32 s82, s0, s{s_t0}")
    A("s_addc_u32 s83, s1, 0")
    A("s_load_dwordx2 s[16:17], s[82:83], 32")
    A(f"v_lshrrev_b32 v{v_g}, 4, v1")
    A(f"v_and_b32 v{v_n}, 15, v1")
    A(f"v_and_b32 v{v_c}, 3, v1")
    A(f"v_bfe_u32 v{v_r}, v1, 2, 2")
    C("x operand of the q projection, gate inputs (lane l: 16 elements (l&31) of batch b)")
    mksrd(sX, 12, 2048)
    mksrd(sG, 96, 1024)
    A(f"v_and_b32 v{T+1}, 1, v1")
    A(f"v_lshlrev_b32 v{T+1}, 10, v{T+1}")
    A(f"v_lshl_add_u32 v{T+1}, v{v_g}, 4, v{T+1}")
    A(f"s_lshl_b32 s{s_t2}, s{s_t2}, 7")
    GX = v_sc
    for j in range(2):
        last_small = g.vmem(f"buffer_load_dwordx4 {vr(v_d+4*j,4)}, v{T+1}, {srd(sX)}, s{s_t2} offen offset:{j*64}")
    A(f"v_and_b32 v{T}, 31, v1")
    A(f"v_lshlrev_b32 v{T}, 5, v{T}")
    A(f"s_lshl_b32 s{s_t0}, s{s_b}, 10")
    for j in range(2):
        g.vmem(f"buffer_load_dwordx4 {vr(GX+4*j,4)}, v{T}, {srd(sX)}, s{s_t0} offen offset:{j*16}")
    for j in range(2):
        last_gate = g.vmem(f"buffer_load_dwordx4 {vr(GX+8+4*j,4)}, v{T}, {srd(sG)}, 0 offen offset:{j*16}")
    for k in range(4):
        mksrd(sKV[k], 4 + 2 * k, 0x8000000)
    mksrd(sWS, 18, WS_SIZE)
    mksrd(sO, 98, 2048)
    A(f"s_bfe_u32 s{s_hkv}, s2, 0x30004")
    A(f"s_and_b32 s{s_j}, s2, 15")
    A(f"s_lshl4_add_u32 s{s_j}, s{s_b}, s{s_j}")
    A(f"s_mul_i32 s{s_wb}, s{s_w}, {RING}")
    C("first byte of this wave's keys")
    A(f"s_lshr_b32 s{s_kvb}, s2, 4")
    A(f"s_lshl_b32 s{s_kvb}, s{s_kvb}, 23")
    for src, ms in (("s2", G4), (f"s{s_w}", WM)):
        for k, x in enumerate(ms):
            A(f"s_bitcmp1_b32 {src}, {k}")
            A(f"s_cselect_b32 s{s_t0}, {msk(x):#x}, 0")
            A(f"s_xor_b32 s{s_kvb}, s{s_kvb}, s{s_t0}")
    C("DMA voffsets: 16-byte chunk index xor 2*(key&7)")
    A(f"v_lshlrev_b32 v{T+3}, 8, v{v_g}")
    for j in range(2):
        A(f"v_add_u32 v{v_dv+j}, {4*j}, v{v_g}")
        A(f"v_lshlrev_b32 v{v_dv+j}, 1, v{v_dv+j}")
        A(f"v_xor_b32 v{v_dv+j}, v{v_dv+j}, v{v_n}")
        A(f"v_lshl_add_u32 v{v_dv+j}, v{v_dv+j}, 4, v{T+3}")
    C("clear the LDS flags")
    A(f"v_mov_b32 v{a_fr}, {SCR+FL}")
    A(f"v_lshl_add_u32 v{T}, v{v_n}, 2, v{a_fr}")
    A(f"v_mov_b32 v{T+1}, 0")
    A(f"ds_write_b32 v{T}, v{T+1}")
    C("LDS read addresses for K")
    A(f"v_lshl_add_u32 v{T+3}, v{v_n}, 8, s{s_wb}")
    A(f"v_and_b32 v{T+4}, 7, v{v_n}")
    A(f"v_lshlrev_b32 v{T+4}, 1, v{T+4}")
    for j in range(4):
        A(f"v_add_u32 v{v_rk+j}, {4*j}, v{v_g}")
        A(f"v_xor_b32 v{v_rk+j}, v{v_rk+j}, v{T+4}")
        A(f"v_lshl_add_u32 v{v_rk+j}, v{v_rk+j}, 4, v{T+3}")
    C("q-proj addresses")
    A(f"v_lshl_add_u32 v{T}, v{v_g}, 3, v{v_r}")
    A(f"v_lshl_add_u32 v{T}, v{T}, 7, s{s_stg}")
    A(f"v_lshl_add_u32 v{T}, v{v_c}, 3, v{T}")
    A(f"s_lshl_b32 s{s_t0}, s{s_w}, 9")
    A(f"s_add_u32 s{s_t0}, s{s_t0}, {SCR+QP}")
    A(f"v_and_b32 v{T+1}, 1, v1")
    A(f"v_lshl_add_u32 v{T+1}, v{T+1}, 8, s{s_t0}")
    A(f"v_lshl_add_u32 v{T+1}, v{v_g}, 4, v{T+1}")
    A(f"v_and_b32 v{T+3}, 31, v1")
    A(f"v_lshlrev_b32 v{T+3}, 4, v{T+3}")
    A(f"v_add_u32 v{T+3}, {SCR+QP}, v{T+3}")
    A(f"v_bfe_u32 v{T+4}, v1, 4, 1")
    A(f"v_lshlrev_b32 v{T+4}, 14, v{T+4}")
    A(f"v_lshl_add_u32 v{T+4}, v{v_n}, 4, v{T+4}")
    A(f"s_lshl_b32 s{s_t0}, s{s_b}, 13")
    A(f"s_add_u32 s{s_t0}, s{s_t0}, s{s_colb}")
    A(f"s_lshl_b32 s{s_t0}, s{s_t0}, 2")
    A(f"s_and_b32 s{s_t1}, s2, 1")
    A(f"s_lshl_b32 s{s_t1}, s{s_t1}, 16")
    A(f"s_add_u32 s{s_t0}, s{s_t0}, s{s_t1}")
    A(f"s_add_u32 s{s_t0}, s{s_t0}, {WS_QB}")
    A(f"s_movk_i32 s{s_t1}, 0xff00")
    for p in range(8, P0):
        issue(p)
    A("s_waitcnt lgkmcnt(0)")
    C("---- q projection: 64 columns, half of the rows ----")
    g.wait_vm(last_small)
    for ks in range(2):
        for cb in range(4):
            for hf in range(2):
                A(f"ds_read_b64_tr_b16 {ar(a_vf+(ks*4+cb)*4+hf*2,2)}, v{T} offset:{ks*4096 + hf*512 + cb*32}")
    mksrd(sWO, 16, 0x400000)
    A(f"s_add_u32 s{s_tag32}, s{s_tag32}, {EPOCH_INC:#x}")
    A(f"s_and_b32 s{s_tag8}, s{s_tag32}, 0xff")
    A(f"s_and_b32 s{s_tag12}, s{s_tag32}, 0xfff")
    A(f"v_mov_b32 v{T+5}, s{s_tag8}")
    for ks in range(2):
        A(f"s_waitcnt lgkmcnt({8-8*ks})")
        for cb in range(4):
            A(f"v_mfma_f32_16x16x32_bf16 {vr(B+4*cb,4)}, {ar(a_vf+(ks*4+cb)*4,4)}, {vr(v_d+4*ks,4)}, " + ("0" if ks == 0 else vr(B + 4 * cb, 4)))
    A("s_nop 4")
    for cb in range(4):
        A(f"ds_write_b128 v{T+1}, {vr(B+4*cb,4)} offset:{cb*64}")
    A(f"s_cmp_eq_u32 s{s_w}, 0")
    A("s_waitcnt lgkmcnt(0)")
    A("s_barrier")
    A("s_cbranch_scc0 L_noqstore")
    for w in range(4):
        A(f"ds_read_b128 {vr(B+4*w,4)}, v{T+3} offset:{w*512}")
    A("s_waitcnt lgkmcnt(0)")
    for e in range(4):
        A(f"v_add_f32 v{B+e}, v{B+e}, v{B+4+e}")
        A(f"v_add_f32 v{B+8+e}, v{B+8+e}, v{B+12+e}")
    for e in range(4):
        A(f"v_add_f32 v{B+e}, v{B+e}, v{B+8+e}")
    for e in range(4):
        A(f"v_add_u32 v{B+e}, 0x80, v{B+e}")
    for e in range(4):
        A(f"v_and_or_b32 v{B+e}, v{B+e}, s{s_t1}, v{T+5}")
    A("s_mov_b32 exec_hi, 0")
    g.vmem(f"buffer_store_dwordx4 {vr(B,4)}, v{T+4}, {srd(sWS)}, s{s_t0} offen sc1", optional=True)
    A("s_mov_b64 exec, -1")
    L("L_noqstore")
    stamp("qpub")

    FSLOT = slot_of(NT)

    def setup_head():
        C("constants")
        A(f"s_mov_b32 s{s_c}, {f2u(LOG2E):#x}")
        A(f"s_mov_b32 s{s_rs}, {f2u(128 ** -0.5):#x}")
        A(f"s_mov_b32 s{s_spin}, {SPIN}")
        for r in range(4):
            A(f"v_mov_b32 v{v_one+r}, 0x3f803f80")
        C("q gather: head w, lanes 0-31 half 0, lanes 32-63 half 1")
        A(f"v_lshrrev_b32 v{T}, 5, v1")
        A(f"v_and_b32 v{T+1}, 31, v1")
        A(f"v_lshlrev_b32 v{T+2}, 4, v{T+1}")
        A(f"v_lshl_add_u32 v{a_q}, v{T}, 16, v{T+2}")
        A(f"s_lshr_b32 s{s_t0}, s2, 4")
        A(f"s_lshl2_add_u32 s{s_t0}, s{s_t0}, s{s_w}")
        A(f"s_lshl_b32 s{s_t0}, s{s_t0}, 9")
        A(f"s_add_u32 s{s_qoff}, s{s_t0}, {WS_QB}")
        A(f"s_lshl_b32 s{s_t0}, s{s_w}, 8")
        A(f"s_add_u32 s{s_t0}, s{s_t0}, {SCR+QX}")
        A(f"v_lshl_add_u32 v{a_qw}, v{T+1}, 3, s{s_t0}")
        A(f"v_lshl_add_u32 v{a_qw}, v{T}, 2, v{a_qw}")
        A(f"v_lshlrev_b32 v{a_qr}, 8, v{v_c}")
        A(f"v_lshl_add_u32 v{a_qr}, v{v_g}, 4, v{a_qr}")
        A(f"v_add_u32 v{a_qr}, {SCR+QX}, v{a_qr}")
        A(f"s_lshl_b32 s{s_t0}, s{s_w}, 2")
        A(f"v_add_u32 v{a_fw}, s{s_t0}, v{a_fr}")
        C("pacing hints (speed only): one line of tile indices per group of workgroups with equal wg&7")
        A(f"s_mov_b32 s{s_boost}, 0")
        A(f"s_and_b32 s{s_tagp}, s{s_tag32}, 0xffffff00")
        A(f"v_mov_b32 v{v_pl}, s{s_tagp}")
        A(f"v_min_u32 v{a_pw}, 1, v1")
        A(f"v_lshlrev_b32 v{a_pw}, 30, v{a_pw}")
        A(f"s_and_b32 s{s_t0}, s2, 7")
        A(f"s_mul_i32 s{s_t0}, s{s_t0}, 4352")
        A(f"s_add_u32 s{s_t0}, s{s_t0}, {WS_PR}")
        A(f"v_lshl_add_u32 v{a_pr}, v1, 2, s{s_t0}")
        if GR:
            C("wave 1 of workgroups 32..39 compares the groups a few times")
            A(f"s_add_u32 s{s_bc}, s{s_t0}, 128")
            A(f"s_mov_b32 s{s_gb}, 0")
            A(f"s_mov_b32 s{s_dev}, 0")
            A(f"s_lshr_b32 s{s_t1}, s2, 3")
            A(f"s_lshl_b32 s{s_t2}, s{s_w}, 5")
            A(f"s_add_u32 s{s_t1}, s{s_t1}, s{s_t2}")
            A(f"s_xor_b32 s{s_t1}, s{s_t1}, {32 + 4}")
            A(f"s_min_u32 s{s_t1}, s{s_t1}, 1")
            A(f"s_lshl_b32 s{s_t1}, s{s_t1}, 30")
            A(f"s_add_u32 s{s_t1}, s{s_t1}, {WS_GP}")
            A(f"v_lshrrev_b32 v{T+3}, 3, v1")
            A(f"v_min_u32 v{T+3}, 1, v{T+3}")
            A(f"v_lshlrev_b32 v{T+3}, 30, v{T+3}")
            A(f"v_mul_u32_u24 v{T+4}, 4224, v1")
            A(f"v_add3_u32 v{a_gs}, v{T+3}, v{T+4}, s{s_t1}")
            A(f"s_and_b32 s{s_t2}, s2, 7")
            A(f"s_mul_i32 s{s_t2}, s{s_t2}, 4224")
            A(f"s_add_u32 s{s_gpo}, s{s_t1}, s{s_t2}")
        A(f"s_lshr_b32 s{s_t1}, s2, 3")
        A(f"s_lshl2_add_u32 s{s_pro}, s{s_t1}, s{s_t0}")
        A(f"s_and_b32 s{s_t1}, s{s_t1}, {PT-1}")
        A(f"s_lshl4_add_u32 s{s_pph}, s{s_w}, s{s_t1}")
        if XM:
            A(f"s_getreg_b32 s{s_t0}, hwreg(HW_REG_XCC_ID)")
            A(f"s_and_b32 s{s_t0}, s{s_t0}, 1")
            A(f"s_mul_i32 s{s_t0}, s{s_t0}, {XM[0] ^ XM[1]:#x}")
            A(f"s_xor_b32 s{s_xm}, s{s_t0}, {XM[0]:#x}")

    def setup_rest():
        A(f"s_mov_b32 s{s_perm}, 0x07060302")
        A(f"s_mov_b32 s{s_m12}, 0xfffff000")
        A(f"s_mov_b32 s{s_m15}, 0xfffefffe")
        C("V transposed read addresses")
        A(f"v_lshl_add_u32 v{T+3}, v{v_g}, 2, v{v_r}")
        A(f"v_and_b32 v{T+5}, 1, v{v_c}")
        A(f"v_lshlrev_b32 v{T+5}, 3, v{T+5}")
        A(f"v_lshrrev_b32 v{T+6}, 1, v{v_c}")
        A(f"v_lshl_add_u32 v{T+4}, v{T+3}, 8, v{T+5}")
        A(f"v_add_u32 v{T+4}, s{s_wb}, v{T+4}")
        A(f"v_and_b32 v{T+7}, 7, v{T+3}")
        A(f"v_lshl_or_b32 v{T+7}, v{T+7}, 1, v{T+6}")
        for cb in range(8):
            A(f"v_xor_b32 v{v_rv+cb}, {2*cb}, v{T+7}")
            A(f"v_lshl_add_u32 v{v_rv+cb}, v{v_rv+cb}, 4, v{T+4}")
        C("wo: head hq = hkv*4 + (j>>3), columns (wg&7)*64; wave w loads rows (w&1)*64.. of branch w>>1")
        A(f"v_lshl_add_u32 v{T+4}, v{T+3}, 7, v{T+5}")
        A(f"v_add_u32 v{T+4}, {STG}, v{T+4}")
        A(f"v_and_b32 v{T+7}, 6, v{T+3}")
        A(f"v_or_b32 v{T+7}, v{T+7}, v{T+6}")
        A(f"s_lshl_b32 s{s_t0}, s{s_w}, 1")
        A(f"v_xor_b32 v{T+7}, s{s_t0}, v{T+7}")
        A(f"v_lshl_add_u32 v{a_wor}, v{T+7}, 4, v{T+4}")
        A(f"v_lshrrev_b32 v{T+3}, 3, v1")
        A(f"v_and_b32 v{T+4}, 6, v{T+3}")
        A(f"v_and_b32 v{T+5}, 7, v1")
        A(f"v_xor_b32 v{T+4}, v{T+4}, v{T+5}")
        A(f"v_lshlrev_b32 v{T+4}, 4, v{T+4}")
        A(f"v_lshl_add_u32 v{a_wo}, v{T+3}, 10, v{T+4}")
        A(f"s_lshr_b32 s{s_t0}, s{s_j}, 3")
        A(f"s_lshl2_add_u32 s{s_t3}, s{s_hkv}, s{s_t0}")
        A(f"s_and_b32 s{s_t0}, s{s_w}, 1")
        A(f"s_lshl1_add_u32 s{s_t0}, s{s_t3}, s{s_t0}")
        A(f"s_lshl_b32 s{s_t0}, s{s_t0}, 16")
        A(f"s_and_b32 s{s_t2}, s2, 7")
        A(f"s_lshl_b32 s{s_t1}, s{s_t2}, 7")
        A(f"s_add_u32 s{s_wooff}, s{s_t0}, s{s_t1}")
        C("hop-2 store: line (cg = (wg&7)*4 + w, p = hq), lane (g, n<2): b = n")
        A(f"s_lshl2_add_u32 s{s_t0}, s{s_t2}, s{s_w}")
        A(f"s_lshl_b32 s{s_t0}, s{s_t0}, 12")
        A(f"s_lshl_b32 s{s_t1}, s{s_t3}, 7")
        A(f"s_add_u32 s{s_t0}, s{s_t0}, s{s_t1}")
        A(f"s_add_u32 s{s_h2pub}, s{s_t0}, {WS_P1}")
        A(f"v_and_b32 v{T+3}, 1, v1")
        A(f"v_lshlrev_b32 v{a_p2}, 6, v{T+3}")
        A(f"v_lshl_add_u32 v{a_p2}, v{v_g}, 4, v{a_p2}")
        C("o operand reader: OX + (n&1)*256 + g*16")
        A(f"v_lshlrev_b32 v{a_or}, 8, v{T+3}")
        A(f"v_lshl_add_u32 v{a_or}, v{v_g}, 4, v{a_or}")
        A(f"v_add_u32 v{a_or}, {SCR+OX}, v{a_or}")
        C("final role f = (wg&7)*4 + w (the wave's own column group) for one workgroup per f, else >= 32")
        A(f"s_lshl2_add_u32 s{s_f}, s{s_t2}, s{s_w}")
        A(f"s_lshl_b32 s{s_t1}, s{s_f}, 12")
        A(f"s_add_u32 s{s_h2get}, s{s_t1}, {WS_P1}")
        A(f"s_lshr_b32 s{s_t0}, s2, 3")
        if FWAVE == 0:
            A(f"s_xor_b32 s{s_t0}, s{s_t0}, s{s_w}")
        A(f"s_lshl_b32 s{s_t0}, s{s_t0}, 5")
        A(f"s_or_b32 s{s_f}, s{s_f}, s{s_t0}")
        A(f"v_lshlrev_b32 v{a_l16}, 4, v1")
        A(f"v_bfe_u32 v{T+3}, v1, 2, 1")
        A(f"v_lshlrev_b32 v{a_out}, 10, v{T+3}")
        A(f"v_lshl_add_u32 v{a_out}, v{v_c}, 3, v{a_out}")
        A(f"v_bfe_u32 v{T+4}, v1, 4, 1")
        A(f"v_lshl_add_u32 v{a_out}, v{T+4}, 2, v{a_out}")
        A(f"v_lshrrev_b32 v{T+5}, 5, v1")
        A(f"v_lshl_add_u32 v{a_out}, v{T+5}, 1, v{a_out}")
        C("hop-1 gather, wave = (dims half w>>1, batch w&1): rows (hq, b*16 + 4*g + i)")
        A(f"v_lshlrev_b32 v{T+5}, 4, v{v_n}")
        A(f"v_lshl_add_u32 v{a_g1}, v{v_g}, 11, v{T+5}")
        A(f"s_and_b32 s{s_t0}, s{s_w}, 1")
        A(f"s_lshl1_add_u32 s{s_t1}, s{s_t3}, s{s_t0}")
        A(f"s_lshl_b32 s{s_t1}, s{s_t1}, 13")
        A(f"s_lshr_b32 s{s_t2}, s{s_w}, 1")
        A(f"s_lshl_b32 s{s_t3}, s{s_t2}, 8")
        A(f"s_add_u32 s{s_t1}, s{s_t1}, s{s_t3}")
        A(f"s_add_u32 s{s_h1get}, s{s_t1}, {WS_H1}")
        C("summed o -> LDS [br][b][ks][g][hf][4] bf16; lanes 0-15 hold branch B, lanes 16-31 branch A")
        A(f"s_lshl1_add_u32 s{s_t0}, s{s_t0}, s{s_t2}")
        A(f"s_lshl_b32 s{s_t0}, s{s_t0}, 7")
        A(f"s_add_u32 s{s_t0}, s{s_t0}, {SCR+OX}")
        A(f"v_lshl_add_u32 v{a_ow}, v{v_c}, 4, s{s_t0}")
        A(f"v_lshl_add_u32 v{a_ow}, v{T+3}, 3, v{a_ow}")
        A(f"v_bfe_u32 v{T+5}, v1, 3, 1")
        A(f"v_lshl_add_u32 v{a_ow}, v{T+5}, 6, v{a_ow}")
        A(f"v_xor_b32 v{T+4}, 1, v{T+4}")
        A(f"v_lshl_add_u32 v{a_ow}, v{T+4}, 9, v{a_ow}")
        C("hop-1 publish: row (hkv, h=w, j)")
        A(f"s_lshl2_add_u32 s{s_t0}, s{s_hkv}, s{s_w}")
        A(f"s_lshl_b32 s{s_t0}, s{s_t0}, 5")
        A(f"s_add_u32 s{s_t0}, s{s_t0}, s{s_j}")
        A(f"s_lshl_b32 s{s_t0}, s{s_t0}, 9")
        A(f"s_add_u32 s{s_h1pub}, s{s_t0}, {WS_H1}")
        C("combine: writers (lane (g,h)) and readers (head w, d4)")
        A(f"v_lshlrev_b32 v{T+3}, 9, v{v_c}")
        A(f"v_lshl_add_u32 v{T+3}, v{v_g}, 4, v{T+3}")
        A(f"s_lshl_b32 s{s_t0}, s{s_w}, 11")
        A(f"s_add_u32 s{s_t0}, s{s_t0}, {SCR+OPA}")
        A(f"v_add_u32 v{a_cwa}, s{s_t0}, v{T+3}")
        A(f"v_add_u32 v{a_cwb}, s{s_wb}, v{T+3}")
        A(f"s_lshl_b32 s{s_t0}, s{s_w}, 2")
        A(f"s_add_u32 s{s_t0}, s{s_t0}, {SCR+ML}")
        A(f"v_lshl_add_u32 v{a_cml}, v{v_c}, 4, s{s_t0}")
        A(f"v_and_b32 v{T+3}, 7, v1")
        A(f"v_lshlrev_b32 v{T+3}, 4, v{T+3}")
        A(f"v_add_u32 v{a_mlr}, {SCR+ML}, v{T+3}")
        A(f"v_and_b32 v{T+3}, 31, v1")
        A(f"s_lshl_b32 s{s_t0}, s{s_w}, 9")
        A(f"v_lshl_add_u32 v{a_crb}, v{T+3}, 4, s{s_t0}")
        A(f"v_add_u32 v{a_cra}, {SCR+OPA}, v{a_crb}")
        A(f"v_add_u32 v{a_crb2}, {2*RING}, v{a_crb}")
        C("log-sum-exp exchange among the 16 splits: lane = (br = bit4, s = n)")
        A(f"s_lshl_b32 s{s_t0}, s2, 7")
        A(f"s_add_u32 s{s_lpub}, s{s_t0}, {WS_LB}")
        A(f"s_andn2_b32 s{s_t0}, s{s_t0}, 0x7ff")
        A(f"s_lshl3_add_u32 s{s_t0}, s{s_w}, s{s_t0}")
        A(f"s_add_u32 s{s_lget}, s{s_t0}, {WS_LB}")
        A(f"v_bfe_u32 v{T+3}, v1, 4, 1")
        A(f"v_lshlrev_b32 v{T+3}, 5, v{T+3}")
        A(f"v_lshl_add_u32 v{a_lg}, v{v_n}, 7, v{T+3}")
        C("tag bit patterns and the selector operand (1.0 where element == row)")
        for e in range(4):
            A(f"s_bfe_u32 s{s_t0}, s{s_tag8}, {0x10000 + 2*e:#x}")
            A(f"s_bfe_u32 s{s_t1}, s{s_tag8}, {0x10001 + 2*e:#x}")
            A(f"s_pack_ll_b32_b16 s{s_t0}, s{s_t0}, s{s_t1}")
            A(f"v_mov_b32 v{v_pat+e}, s{s_t0}")
        A(f"v_and_b32 v{T+3}, 1, v1")
        A(f"v_lshlrev_b32 v{T+3}, 4, v{T+3}")
        A(f"v_mov_b32 v{T+4}, 0x3f80")
        A(f"v_lshlrev_b32 v{T+3}, v{T+3}, v{T+4}")
        A(f"v_lshrrev_b32 v{T+4}, 1, v{v_n}")
        for e in range(4):
            A(f"v_xor_b32 v{T+5}, {e}, v{T+4}")
            A(f"v_min_u32 v{T+5}, 1, v{T+5}")
            A(f"v_add_u32 v{T+5}, -1, v{T+5}")
            A(f"v_and_b32 v{v_sel+e}, v{T+5}, v{T+3}")

    def setup_gate():
        C("gate factor: g in lanes with bit 2 clear, 1-g in the others, with the reference's bf16 rounding points")
        X, Wt = GX, GX + 8
        for r in range(8):
            A(f"v_lshlrev_b32 v{T}, 16, v{X+r}")
            A(f"v_lshlrev_b32 v{T+1}, 16, v{Wt+r}")
            A(f"v_and_b32 v{X+r}, 0xffff0000, v{X+r}")
            A(f"v_and_b32 v{Wt+r}, 0xffff0000, v{Wt+r}")
            A(f"v_mul_f32 v{T}, v{T}, v{T+1}")
            A(f"v_mul_f32 v{X+r}, v{X+r}, v{Wt+r}")
            A(f"v_cvt_pk_bf16_f32 v{X+r}, v{T}, v{X+r}")
        for r in range(8):
            A(f"v_dot2_f32_bf16 v{T+2}, v{X+r}, v{v_one}, " + ("0" if r == 0 else f"v{T+2}"))
        A("s_nop 2")
        for d in (1, 2, 4, 8):
            A(f"v_add_f32_dpp v{T+2}, v{T+2}, v{T+2} row_ror:{d} row_mask:0xf bank_mask:0xf")
            A("s_nop 1")
        A(f"v_mov_b32 v{T+3}, v{T+2}")
        A("s_nop 1")
        A(f"v_permlane16_swap_b32 v{T+2}, v{T+3}")
        A("s_nop 0")
        A(f"v_add_f32 v{T+2}, v{T+2}, v{T+3}")
        A(f"v_cvt_pk_bf16_f32 v{T+2}, 0, v{T+2}")
        A(f"v_mul_f32 v{T+2}, {f2u(-LOG2E):#x}, v{T+2}")
        A(f"v_exp_f32 v{T+2}, v{T+2}")
        A("s_nop 0")
        A(f"v_add_f32 v{T+2}, 1.0, v{T+2}")
        A(f"v_rcp_f32 v{T+2}, v{T+2}")
        A(f"v_bfe_i32 v{T+4}, v1, 2, 1")
        A(f"v_cvt_pk_bf16_f32 v{T+2}, 0, v{T+2}")
        A(f"v_sub_f32 v{T+3}, 1.0, v{T+2}")
        A(f"v_cvt_pk_bf16_f32 v{T+3}, 0, v{T+3}")
        A(f"v_bfi_b32 v{v_gf}, v{T+4}, v{T+3}, v{T+2}")

    def spin_guard():
        A(f"s_sub_u32 s{s_spin}, s{s_spin}, 1")
        A("s_cbranch_scc1 L_end")

    def qloads(track):
        A(f"s_add_u32 s{s_t0}, s{s_qoff}, 0x8000")
        for br in range(2):
            s = f"buffer_load_dwordx4 {vr(B+4*br,4)}, v{a_q}, {srd(sWS)}, s{s_t0 if br else s_qoff} offen sc1"
            if track:
                st["q"] = g.vmem(s)
            else:
                A(s)

    def q_validate():
        C("---- validate this wave's head of q (both branches), share through LDS ----")
        g.wait_vm(st["q"])
        L("L_qcheck")
        for r in range(8):
            A(f"v_xor_b32 v{B+r}, s{s_tag8}, v{B+r}")
        A(f"v_or_b32 v{T}, v{B}, v{B+1}")
        for i in range(2, 8, 2):
            A(f"v_or3_b32 v{T}, v{T}, v{B+i}, v{B+i+1}")
        A(f"v_and_b32 v{T}, 0xff, v{T}")
        A(f"v_cmp_ne_u32 vcc, 0, v{T}")
        A("s_cbranch_vccnz L_qretry")
        for br in range(2):
            A(f"v_permlane32_swap_b32 v{B+4*br}, v{B+4*br+2}")
            A(f"v_permlane32_swap_b32 v{B+4*br+1}, v{B+4*br+3}")
        for br in range(2):
            A(f"v_add_f32 v{B+4*br}, v{B+4*br}, v{B+4*br+2}")
            A(f"v_add_f32 v{B+4*br+1}, v{B+4*br+1}, v{B+4*br+3}")
        for br in range(2):
            A(f"v_cvt_pk_bf16_f32 v{B+4*br}, v{B+4*br}, v{B+4*br+1}")
        for br in range(2):
            A(f"ds_write_b32 v{a_qw}, v{B+4*br} offset:{br*1024}")
        A("s_waitcnt lgkmcnt(0)")
        A(f"ds_write_b32 v{a_fw}, v{v_one}")

    def flag_wait(name, off):
        L(name)
        A(f"ds_read_b128 {vr(B,4)}, v{a_fr} offset:{off}")
        spin_guard()
        A("s_waitcnt lgkmcnt(0)")
        A(f"v_and_b32 v{B}, v{B}, v{B+1}")
        A(f"v_and_b32 v{B+2}, v{B+2}, v{B+3}")
        A(f"v_and_b32 v{B}, v{B}, v{B+2}")
        A(f"v_cmp_eq_u32 vcc, 0, v{B}")
        A(f"s_cbranch_vccnz {name}")

    def q_fetch():
        flag_wait("L_qflag", 0)
        for j in range(4):
            A(f"ds_read_b128 {ar(a_qop+4*j,4)}, v{a_qr} offset:{j*64}")
        stamp("qval")
        st["qready"] = True

    def q_fetch_b():
        for j in range(4):
            A(f"ds_read_b128 {ar(a_qop+16+4*j,4)}, v{a_qr} offset:{1024+j*64}")

    def lanes_h():
        A("s_mov_b32 exec_lo, 0x000f000f")
        A("s_mov_b32 exec_hi, 0x000f000f")

    def dump_ml(br):
        A(f"ds_write_b32 v{a_cml}, v{v_m} offset:{br*64}")
        A(f"ds_write_b32 v{a_cml}, a{a_l} offset:{128+br*64}")

    def dump_o(br):
        adr, off = (a_cwa, 0) if br == 0 else (a_cwb, FSLOT * 4096)
        for cb in range(8):
            A(f"ds_write_b128 v{adr}, {ar(a_o+4*cb,4)} offset:{off+cb*64}")

    def lam_math():
        C("lane (br, h): workgroup maximum, sum, log-sum-exp and the weights of the four waves")
        A("s_waitcnt lgkmcnt(0)")
        A(f"v_max3_f32 v{T}, v{B}, v{B+1}, v{B+2}")
        A(f"v_max_f32 v{T}, v{T}, v{B+3}")
        A(f"v_mul_f32 v{T+1}, s{s_c}, v{T}")
        for w in range(4):
            A(f"v_fma_f32 v{B+w}, v{B+w}, s{s_c}, -v{T+1}")
        for w in range(4):
            A(f"v_exp_f32 v{B+w}, v{B+w}")
        A(f"v_mul_f32 v{T+2}, v{B}, v{B+4}")
        for w in range(1, 4):
            A(f"v_fmac_f32 v{T+2}, v{B+w}, v{B+4+w}")
        A(f"v_rcp_f32 v{T}, v{T+2}")
        A(f"v_log_f32 v{T+2}, v{T+2}")
        A(f"v_mov_b32 v{T+3}, s{s_tag32}")
        A(f"v_add_f32 v{T+2}, v{T+1}, v{T+2}")
        A(f"v_mul_f32 v{T}, v{T}, v{v_gf}")
        for w in range(4):
            A(f"v_mul_f32 v{v_aw+w}, v{B+w}, v{T}")
        A(f"v_lshlrev_b32 v{T+4}, 3, v1")

    def lam_store():
        A(f"s_cmp_eq_u32 s{s_w}, 0")
        A("s_cbranch_scc0 L_nolam")
        A("s_mov_b64 exec, 0xff")
        g.vmem(f"buffer_store_dwordx2 {vr(T+2,2)}, v{T+4}, {srd(sWS)}, s{s_lpub} offen sc1", optional=True)
        A("s_mov_b64 exec, -1")
        L("L_nolam")

    def lamloads(track):
        s = f"buffer_load_dwordx2 {vr(B,2)}, v{a_lg}, {srd(sWS)}, s{s_lget} offen sc1"
        if track:
            st["lam"] = g.vmem(s)
        else:
            A(s)

    def lam_validate():
        g.wait_vm(st["lam"])
        L("L_lcheck")
        A(f"v_cmp_ne_u32 vcc, s{s_tag32}, v{B+1}")
        A("s_cbranch_vccnz L_lretry")

    def wgt_math():
        C("softmax over the 16 splits -> this workgroup's share; weights of the four waves into SGPRs")
        A(f"v_max_f32_dpp v{T}, v{B}, v{B} row_ror:1 row_mask:0xf bank_mask:0xf")
        for d in (2, 4, 8):
            A("s_nop 1")
            A(f"v_max_f32_dpp v{T}, v{T}, v{T} row_ror:{d} row_mask:0xf bank_mask:0xf")
        A(f"v_sub_f32 v{T}, v{B}, v{T}")
        A(f"v_exp_f32 v{T}, v{T}")
        A("s_nop 1")
        A(f"v_add_f32_dpp v{T+1}, v{T}, v{T} row_ror:1 row_mask:0xf bank_mask:0xf")
        for d in (2, 4, 8):
            A("s_nop 1")
            A(f"v_add_f32_dpp v{T+1}, v{T+1}, v{T+1} row_ror:{d} row_mask:0xf bank_mask:0xf")
        A(f"v_rcp_f32 v{T+1}, v{T+1}")
        A(f"s_and_b32 s{s_t0}, s2, 15")
        A(f"v_mul_f32 v{T}, v{T}, v{T+1}")
        A(f"s_add_u32 s{s_t1}, s{s_t0}, 16")
        A(f"v_readlane_b32 s{s_t2}, v{T}, s{s_t0}")
        A(f"v_readlane_b32 s{s_t3}, v{T}, s{s_t1}")
        A(f"v_bfe_i32 v{T+2}, v1, 2, 1")
        A(f"s_add_u32 s{s_t1}, s{s_w}, 4")
        A(f"v_mov_b32 v{T}, s{s_t2}")
        A(f"v_mov_b32 v{T+1}, s{s_t3}")
        A(f"v_bfi_b32 v{T}, v{T+2}, v{T+1}, v{T}")
        for w in range(4):
            A(f"v_mul_f32 v{v_aw+w}, v{v_aw+w}, v{T}")
        A("s_nop 0")
        for w in range(4):
            A(f"v_readlane_b32 s{s_fw+w}, v{v_aw+w}, s{s_w}")
            A(f"v_readlane_b32 s{s_fw+4+w}, v{v_aw+w}, s{s_t1}")
        A("s_nop 1")

    def comb_read(br):
        for w in range(4):
            if br == 0:
                A(f"ds_read_b128 {vr(B+4*w,4)}, v{a_cra} offset:{w*2048}")
            else:
                A(f"ds_read_b128 {vr(B+4*w,4)}, v{a_crb if w < 2 else a_crb2} offset:{(w&1)*RING + FSLOT*4096}")

    def comb_math(br, counted):
        for w in range(4):
            if counted:
                A(f"s_waitcnt lgkmcnt({3-w})")
            elif w == 0:
                A("s_waitcnt lgkmcnt(0)")
            for e in range(4):
                if w == 0:
                    A(f"v_mul_f32 v{B+e}, s{s_fw+4*br}, v{B+e}")
                else:
                    A(f"v_fmac_f32 v{B+e}, s{s_fw+4*br+w}, v{B+4*w+e}")
        for e in range(4):
            A(f"v_add_u32 v{B+e}, 0x10000, v{B+e}")
        o = 2 - 2 * br
        for k in range(2):
            A(f"v_perm_b32 v{v_pub+o+k}, v{B+2*k+1}, v{B+2*k}, s{s_perm}")
        for k in range(2):
            A(f"v_and_or_b32 v{v_pub+o+k}, v{v_pub+o+k}, s{s_m15}, v{v_pat+o+k}")

    def h2loads(off, flags="sc1", track=False):
        for j in range(4):
            s = f"buffer_load_dwordx4 {vr(B+4*j,4)}, v{a_l16}, {srd(sWS)}, s{off} offen offset:{j*1024} {flags}"
            g.vmem(s, optional=True) if track else A(s)

    def warm2():
        C("bring the lines of the final reduction into this die's cache")
        A(f"s_cmp_ge_u32 s{s_f}, 32")
        A("s_cbranch_scc1 L_nowarm")
        A("s_mov_b32 exec_lo, 0x01010101")
        A("s_mov_b32 exec_hi, 0x01010101")
        for j in range(4):
            g.vmem(f"buffer_load_dword v{v_tw}, v{a_l16}, {srd(sWS)}, s{s_h2get} offen offset:{j*1024} {WARM2 if isinstance(WARM2, str) else 'sc1'}", optional=True)
        A("s_mov_b64 exec, -1")
        L("L_nowarm")

    def touch(k):
        def f():
            C("touch the next buffer's pages")
            A("s_mov_b64 exec, 3")
            A(f"v_lshlrev_b32 v{v_tw+1}, 22, v1")
            if k < 4:
                A(f"s_andn2_b32 s{s_u}, s{s_kvb}, 0x400000")
                g.vmem(f"buffer_load_dword v{v_tw}, v{v_tw+1}, {srd(sKV[k])}, s{s_u} offen nt")
            else:
                A("s_mov_b64 exec, 1")
                g.vmem(f"buffer_load_dword v{v_tw}, v{v_tw+1}, {srd(sWO)}, s{s_wooff} offen nt")
                g.vmem(f"buffer_load_dword v{v_tw}, v{v_tw+1}, {srd(sO)}, 0 offen nt")
            A("s_mov_b64 exec, -1")
        return f

    def ctl_load():
        st["ctl"] = g.vmem(f"buffer_load_dword v{v_ct}, v{a_pr}, {srd(sWS)}, 0 offen sc1")
        st["ctl_t"] = Z[st["p"]][1] + Z[st["p"]][2] / 4.0
        if "geval" in st and st["p"] >= st["geval"][1] + 8:
            st["pick"] = st.pop("geval")[0]
            log.append((st["p"], "pick", st["pick"]))

    def ctl_use():
        g.wait_vm(st["ctl"])
        t0 = st["ctl_t"]
        tn = Z[st["p"]][1] + 1
        x, y = v_ct, v_ct + 1
        A(f"v_xor_b32 v{x}, s{s_tagp}, v{x}")
        A(f"v_lshrrev_b32 v{y}, 8, v{x}")
        pick = st.pop("pick", None)
        if pick is not None:
            A(f"v_readlane_b32 s{s_c0}, v{x}, {32 + pick}")
            A(f"s_cmp_lt_u32 s{s_c0}, 256")
            A(f"s_cselect_b32 s{s_c0}, s{s_c0}, 0")
            A(f"s_add_u32 s{s_gb}, s{s_c0}, {tn}")
        A(f"v_cmp_eq_u32 s[82:83], 0, v{y}")
        A(f"v_mov_b32 v{y}, {max(0, int(t0) - round(BIAS))}")
        A("s_nop 0")
        A(f"v_cndmask_b32 v{x}, v{y}, v{x}, s[82:83]")
        for d in (1, 2, 4, 8):
            A("s_nop 1")
            A(f"v_add_u32_dpp v{x}, v{x}, v{x} row_ror:{d} row_mask:0xf bank_mask:0xf")
        A("s_nop 0")
        A(f"v_readlane_b32 s{s_c0}, v{x}, 0")
        A(f"v_readlane_b32 s{s_c1}, v{x}, 16")
        A(f"s_add_u32 s{s_c0}, s{s_c0}, s{s_c1}")
        A(f"s_sub_i32 s{s_c0}, s{s_c0}, {round(32 * (t0 - BIAS))}")
        if GR:
            A(f"s_ashr_i32 s{s_dev}, s{s_c0}, 1")
        A(f"s_mul_i32 s{s_c0}, s{s_c0}, {round(GAIN * 8)}")
        A(f"s_ashr_i32 s{s_c0}, s{s_c0}, 8")
        A(f"s_min_i32 s{s_c0}, s{s_c0}, {NMAXB}")
        A(f"s_add_i32 s{s_boost}, s{s_c0}, {tn}")
        if GR:
            A(f"s_max_i32 s{s_boost}, s{s_boost}, s{s_gb}")

    def g_sample(r, k):
        def f():
            A(f"s_mov_b32 s{s_u}, {r * 8 * 4224}")
            st["gs"] = g.vmem(f"buffer_load_dword v{v_gs+k}, v{a_gs}, {srd(sWS)}, s{s_u} offen sc1")
        return f

    def g_publish(r):
        def f():
            A(f"s_bitcmp1_b32 s{s_gpo}, 30")
            A(f"s_cbranch_scc1 L_gp{r}")
            A(f"s_add_i32 s{s_c0}, s{s_dev}, 128")
            A(f"s_max_i32 s{s_c0}, s{s_c0}, 0")
            A(f"s_min_i32 s{s_c0}, s{s_c0}, 255")
            A(f"v_or_b32 v{v_tw}, s{s_c0}, v{v_pl}")
            A(f"s_add_u32 s{s_u}, s{s_gpo}, {r * 8 * 4224}")
            g.vmem(f"buffer_store_dword v{v_tw}, v{a_pw}, {srd(sWS)}, s{s_u} offen sc1", optional=True)
            L(f"L_gp{r}")
        return f

    def g_eval(r):
        def f():
            W = GWIN[0] + GWIN[1]
            g.wait_vm(st["gs"])
            A(f"s_bitcmp1_b32 s{s_gpo}, 30")
            A(f"s_cbranch_scc1 L_ge{r}")
            for k in range(W):
                A(f"v_xor_b32 v{v_gs+k}, s{s_tagp}, v{v_gs+k}")
            A(f"v_min_u32 v{v_tw}, 0x100, v{v_gs+W-1}")
            A(f"v_lshrrev_b32 v{v_tw+1}, 1, v{v_tw}")
            A(f"v_and_b32 v{v_tw+1}, 0x80, v{v_tw+1}")
            A(f"v_and_b32 v{v_tw}, 0xff, v{v_tw}")
            A(f"v_add_u32 v{v_tw}, v{v_tw}, v{v_tw+1}")
            for k in range(W):
                A(f"v_lshrrev_b32 v{v_gs+k}, 8, v{v_gs+k}")
                A(f"v_min_u32 v{v_gs+k}, 1, v{v_gs+k}")
                A(f"v_lshlrev_b32 v{v_gs+k}, 4, v{v_gs+k}")
                A(f"v_sub_u32 v{v_tw}, v{v_tw}, v{v_gs+k}")
            A(f"s_and_b32 s{s_c1}, s2, 7")
            A(f"v_readlane_b32 s{s_c0}, v{v_tw}, s{s_c1}")
            for d in ("quad_perm:[1,0,3,2]", "quad_perm:[2,3,0,1]", "row_half_mirror"):
                A("s_nop 1")
                A(f"v_add_u32_dpp v{v_tw}, v{v_tw}, v{v_tw} {d} row_mask:0xf bank_mask:0xf")
            A("s_nop 0")
            A(f"v_readlane_b32 s{s_c1}, v{v_tw}, 0")
            A(f"s_lshl_b32 s{s_c0}, s{s_c0}, 3")
            A(f"s_sub_i32 s{s_c0}, s{s_c1}, s{s_c0}")
            A(f"s_add_i32 s{s_c0}, s{s_c0}, {round(128 * GOFF)}")
            A(f"s_mul_i32 s{s_c0}, s{s_c0}, {round(GK * 8)}")
            A(f"s_add_i32 s{s_c0}, s{s_c0}, 512")
            A(f"s_ashr_i32 s{s_c0}, s{s_c0}, 10")
            A(f"s_max_i32 s{s_c0}, s{s_c0}, 0")
            A(f"s_min_i32 s{s_c0}, s{s_c0}, {GMAX}")
            A(f"v_or_b32 v{v_tw}, s{s_c0}, v{v_pl}")
            g.vmem(f"buffer_store_dword v{v_tw}, v{a_pw}, {srd(sWS)}, s{s_bc} offen offset:{4*r}", optional=True)
            L(f"L_ge{r}")
            st["geval"] = (r, st["p"])
        return f

    kf = lambda t: a_kf + 16 * (t % R)
    def KR(t):
        for j in range(4):
            A(f"ds_read_b128 {ar(kf(t)+4*j,4)}, v{v_rk+j} offset:{slot_of(t)*4096}")
    def LW(t):
        A("s_waitcnt lgkmcnt(0)")
    def QK(t):
        A("s_waitcnt lgkmcnt(0)")
        q = a_qop + 16 * (t // 64)
        for j in range(4):
            A(f"v_mfma_f32_16x16x32_bf16 {vr(v_s,4)}, {ar(kf(t)+4*j,4)}, {ar(q+4*j,4)}, " + ("0" if j == 0 else vr(v_s, 4)))
    def SC(t):
        k = t % 32
        A("s_nop 7")
        for r in range(4):
            A(f"v_cvt_pk_bf16_f32 v{v_s+r}, 0, v{v_s+r}")
        for r in range(4):
            A(f"v_mul_f32 v{v_s+r}, s{s_rs}, v{v_s+r}")
        if k == 0:
            A(f"v_max_f32 v{v_mx}, v{v_s}, v{v_s+1}")
        else:
            A(f"v_max3_f32 v{v_mx}, v{v_mx}, v{v_s}, v{v_s+1}")
        A(f"v_cvt_pk_bf16_f32 v{v_sc+2*k}, v{v_s}, v{v_s+1}")
        A(f"v_max3_f32 v{v_mx}, v{v_mx}, v{v_s+2}, v{v_s+3}")
        A(f"v_cvt_pk_bf16_f32 v{v_sc+2*k+1}, v{v_s+2}, v{v_s+3}")
    def MX(t):
        C("true maximum of this wave's scores per head")
        assert t < 64 or st["dumpA"]
        A(f"v_mov_b32 v{v_mt}, v{v_mx}")
        A("s_nop 1")
        A(f"v_permlane32_swap_b32 v{v_mx}, v{v_mt}")
        A(f"v_max_f32 v{v_mx}, v{v_mx}, v{v_mt}")
        A(f"v_mov_b32 v{v_mt}, v{v_mx}")
        A("s_nop 1")
        A(f"v_permlane16_swap_b32 v{v_mx}, v{v_mt}")
        A(f"v_max_f32 v{v_mx}, v{v_mx}, v{v_mt}")
        A(f"v_cvt_pk_bf16_f32 v{v_m}, 0, v{v_mx}")
        A(f"v_mul_f32 v{v_nmc}, {f2u(-LOG2E):#x}, v{v_m}")
        stamp("endKA" if t < 64 else "endKB")
    def PP(t):
        k = t % 32
        A(f"v_lshlrev_b32 v{v_s}, 16, v{v_sc+2*k}")
        A(f"v_and_b32 v{v_s+1}, 0xffff0000, v{v_sc+2*k}")
        A(f"v_lshlrev_b32 v{v_s+2}, 16, v{v_sc+2*k+1}")
        A(f"v_and_b32 v{v_s+3}, 0xffff0000, v{v_sc+2*k+1}")
        for r in range(4):
            A(f"v_fma_f32 v{v_s+r}, v{v_s+r}, s{s_c}, v{v_nmc}")
        for r in range(4):
            A(f"v_exp_f32 v{v_s+r}, v{v_s+r}")
        A(f"v_cvt_pk_bf16_f32 v{v_sc+2*k}, v{v_s}, v{v_s+1}")
        A(f"v_cvt_pk_bf16_f32 v{v_sc+2*k+1}, v{v_s+2}, v{v_s+3}")
        if k & 1:
            A("s_nop 1")
            A(f"v_mfma_f32_16x16x32_bf16 {ar(a_l,4)}, {vr(v_one,4)}, {vr(v_sc+2*k-2,4)}, " + ("0" if k == 1 else ar(a_l, 4)))
    def VR(t):
        assert st["rest"]
        for cb in range(8):
            A(f"ds_read_b64_tr_b16 {ar(a_vf+4*cb+2*(t&1),2)}, v{v_rv+cb} offset:{slot_of(t)*4096}")
    def pv(t, cb):
        k = t % 32 - 1
        assert ("PP", t) in done
        A(f"v_mfma_f32_16x16x32_bf16 {ar(a_o+4*cb,4)}, {ar(a_vf+4*cb,4)}, {vr(v_sc+2*k,4)}, " + ("0" if k == 0 else ar(a_o + 4 * cb, 4)))
    def PVa(t):
        A("s_waitcnt lgkmcnt(0)")
        for cb in range(4):
            pv(t, cb)
    def PVb(t):
        for cb in range(4, 8):
            pv(t, cb)
        if t == 63:
            stamp("endVA")

    def landed(pl):
        p = pl + 1
        while p < len(Z) and p - Nguar(p) - ((Nguar(p) + 3) // 4 if PC0 - 32 <= p < pos_of(NT - 6, 0) + 16 else 0) < pl:
            p += 1
        return max(p, P0)

    main = []
    for t in range(R):
        main.append((KR, t, landed(pos_of(t, 3)), pos_of(t, 3), False))
        main.append((LW, t, landed(pos_of(t, 3)) + 1, None, False))
    for t in range(NT):
        l0 = landed(pos_of(t, 3))
        if isK(t):
            if t >= R:
                main.append((KR, t, l0, pos_of(t, 3), True))
            main += [(QK, t, l0 + 1, None, True), (SC, t, l0 + 2, None, True)]
            if t % 32 == 31:
                main.append((MX, t, l0 + 3, None, True))
        elif t % 2 == 0:
            main.append((VR, t, l0, pos_of(t, 3), True))
        else:
            main += [(VR, t, l0, pos_of(t, 3), True), (PVa, t, l0 + 1, None, True), (PVb, t, l0 + 2, None, True)]
    done = set()
    cost = {"LW": 0}
    ppq = [t for t in range(NT) if not isK(t)]

    PVAL = landed(PQ) + 1
    mark = lambda k: (lambda: st.__setitem__(k, True))
    side = []
    for f in g.split(setup_head, CH):
        side.append((P0, f, False))
    side.append((P0, mark("setup"), True))
    side.append((P0, lambda: g.wait_vm(last_gate), True))
    for f in g.split(setup_gate, CH):
        side.append((P0, f, False))
    side.append((PQ, lambda: qloads(True), True))
    side.append((PVAL, q_validate, True))
    side.append((PVAL + QLAG, q_fetch, True))
    side.append((0, q_fetch_b, False))
    for f in g.split(setup_rest, CH):
        side.append((0, f, False))
    side.append((0, mark("rest"), True))
    def dumpA():
        A("s_nop 5")
        lanes_h()
        dump_ml(0)
        dump_o(0)
        A("s_mov_b64 exec, -1")
        st["dumpA"] = True
    side.append((lambda p: ("PVb", 63) in done, dumpA, False))
    def dumpB():
        A("s_nop 5")
        lanes_h()
        dump_ml(1)
        A("s_mov_b64 exec, -1")
        A("s_waitcnt lgkmcnt(0)")
        A(f"ds_write_b32 v{a_fw}, v{v_one} offset:16")
        st["pB"] = st["p"]
    side.append((lambda p: ("PP", NT - 1) in done, dumpB, False))
    def lam_read():
        flag_wait("L_lflag", 16)
        A(f"ds_read_b128 {vr(B,4)}, v{a_mlr}")
        A(f"ds_read_b128 {vr(B+4,4)}, v{a_mlr} offset:128")
    side.append((lambda p: p >= st["pB"] + LLAG, lam_read, False))
    for f in g.split(lam_math, CH):
        side.append((0, f, False))
    side.append((0, lam_store, True))
    side.append((PWG, lambda: lamloads(True), True))
    side.append((landed(PWG) + 1, lam_validate, True))
    for f in g.split(wgt_math, 24):
        side.append((0, f, False))
    side.append((0, lambda: comb_read(0), True))
    side.append((0, lambda: comb_math(0, False), False))

    extra = []
    for t in range(C0 - 2, NT - 8, CK):
        extra.append((pos_of(t, 2), ctl_load))
        extra.append((landed(pos_of(t, 3)), ctl_use))
    for r, tr in enumerate(GR):
        assert GWIN[0] + GWIN[1] <= 12
        for k in range(GWIN[0] + GWIN[1]):
            extra.append((pos_of(tr - GWIN[0] + k + 1, 3), g_sample(r, k)))
        extra.append((pos_of(tr, 2), g_publish(r)))
        extra.append((landed(pos_of(tr + GWIN[1] + 1, 0)), g_eval(r)))
    if TW:
        for k in range(1, 5):
            extra.append((OFF + 128 * k - TW, touch(k)))
    if WARM2:
        extra.append((pos[("wo", 0)] - 1, warm2))
    extra.sort(key=lambda x: x[0])

    mi = si = ci = 0
    for p in range(P0, len(Z)):
        z = Z[p]
        st["p"] = p
        if z[0] == "kv" and z[2] == 0 and z[1] >= NSLOT:
            prev = z[1] - NSLOT
            assert (("QK", prev) in done or ("LW", prev) in done) if isK(prev) else ("PVa", prev | 1) in done, (p, z)
        issue(p)
        while ci < len(extra) and extra[ci][0] <= p:
            extra[ci][1]()
            ci += 1
        used = 0
        if ppq and ("MX", ppq[0] // 32 * 32 - 1) in done:
            t = ppq.pop(0)
            PP(t)
            done.add(("PP", t)); log.append((p, "PP", t))
        while mi < len(main):
            f, t, e, ld, nq = main[mi]
            if e > p or (nq and not st.get("qready")) or (f is PVa and ("PP", t) not in done):
                break
            c = cost.get(f.__name__, 1)
            if used + c > (3 if e < p - 1 else 1):
                break
            if ld is not None:
                assert ids[ld] not in g.vm, (f.__name__, t, p)
            f(t)
            done.add((f.__name__, t)); log.append((p, f.__name__, t))
            used += c; mi += 1
        while si < len(side) and (used == 0 or side[si][2]):
            e, f, forced = side[si]
            if not (e(p) if callable(e) else e <= p):
                break
            f()
            log.append((p, "side", si))
            si += 1
            if not forced:
                used += 1
    assert si == len(side) and not ppq and ci == len(extra), (si, len(side))
    C("---- drain ----")
    while mi < len(main):
        f, t, e, ld, nq = main[mi]
        if ld is not None:
            g.wait_vm(ids[ld])
        if t == NT - 1 and f is PVa:
            for cb in range(8):
                A(f"s_waitcnt lgkmcnt({7-cb})")
                pv(t, cb)
        elif not (t == NT - 1 and f is PVb):
            f(t)
        mi += 1
    stamp("drained")

    C("---- combine the four waves, publish both branches ----")
    lanes_h()
    dump_o(1)
    A("s_mov_b32 exec_lo, -1")
    A("s_mov_b32 exec_hi, 0")
    A("s_waitcnt lgkmcnt(0)")
    A("s_barrier")
    stamp("bar")
    comb_read(1)
    comb_math(1, True)
    A(f"buffer_store_dwordx4 {vr(v_pub,4)}, v{a_l16}, {srd(sWS)}, s{s_h1pub} offen sc1")
    A("s_mov_b64 exec, -1")
    stamp("pub1")
    C("the output-projection weights were the last loads of the stream")
    A("s_waitcnt vmcnt(0)")
    def h1loads():
        for i in range(4):
            A(f"buffer_load_dwordx4 {vr(B+4*i,4)}, v{a_g1}, {srd(sWS)}, s{s_h1get} offen offset:{i*512} sc1")
    h1loads()
    A("s_barrier")
    for k in range(8):
        for hf in range(2):
            A(f"ds_read_b64_tr_b16 {ar(a_wop+k*4+hf*2,2)}, v{a_wor} offset:{k*4096+hf*2048}")
    A("s_branch L_h1wait")
    C("---- sum the 16 partials of (dims half, batch) with a selector product ----")
    L("L_h1poll")
    if SL1:
        A(f"s_sleep {SL1}")
    h1loads()
    spin_guard()
    L("L_h1wait")
    for i in range(4):
        A(f"s_waitcnt vmcnt({3-i})")
        for e in range(4):
            A(f"v_xor_b32 v{B+4*i+e}, v{v_pat+e}, v{B+4*i+e}")
        if i == 0:
            A(f"v_or_b32 v{T}, v{B}, v{B+1}")
        else:
            A(f"v_or3_b32 v{T}, v{T}, v{B+4*i}, v{B+4*i+1}")
        A(f"v_or3_b32 v{T}, v{T}, v{B+4*i+2}, v{B+4*i+3}")
        A(f"v_mfma_f32_16x16x32_bf16 {vr(v_d,4)}, {vr(v_sel,4)}, {vr(B+4*i,4)}, " + ("0" if i == 0 else vr(v_d, 4)))
    A(f"v_and_b32 v{T}, 0x00010001, v{T}")
    A(f"v_cmp_ne_u32 vcc, 0, v{T}")
    A("s_cbranch_vccnz L_h1poll")
    stamp("h1ok")
    A("s_mov_b32 exec_hi, 0")
    A("s_nop 3")
    A(f"v_cvt_pk_bf16_f32 v{T}, v{v_d}, v{v_d+1}")
    A(f"v_cvt_pk_bf16_f32 v{T+1}, v{v_d+2}, v{v_d+3}")
    A(f"ds_write_b64 v{a_ow}, {vr(T,2)}")
    A("s_mov_b64 exec, -1")
    A("s_waitcnt lgkmcnt(0)")
    A("s_barrier")
    stamp("bar2")
    OPD = v_sc
    for k in range(8):
        A(f"ds_read_b128 {vr(OPD+4*k,4)}, v{a_or} offset:{(k>>2)*512+(k&3)*64}")
    A(f"v_mov_b32 v{T+2}, s{s_tag12}")
    A(f"s_add_u32 s{s_t2}, s{s_h2pub}, {WS_P2-WS_P1}")
    for k in range(8):
        A(f"s_waitcnt lgkmcnt({7-k})")
        A(f"v_mfma_f32_16x16x32_bf16 {vr(v_d+4,4)}, {ar(a_wop+4*k,4)}, {vr(OPD+4*k,4)}, " + ("0" if k == 0 else vr(v_d + 4, 4)))
    A("s_mov_b32 exec_lo, 0x00030003")
    A("s_mov_b32 exec_hi, 0x00030003")
    A(f"s_cmp_ge_u32 s{s_f}, 32")
    A("s_nop 4")
    for r in range(4):
        A(f"v_add_u32 v{v_d+4+r}, 0x800, v{v_d+4+r}")
    for r in range(4):
        A(f"v_and_or_b32 v{v_d+4+r}, v{v_d+4+r}, s{s_m12}, v{T+2}")
    C("once for a reader behind the same L2, once written through for any other placement")
    A(f"buffer_store_dwordx4 {vr(v_d+4,4)}, v{a_p2}, {srd(sWS)}, s{s_h2pub} offen {P1SC}")
    stamp("pub2")
    A("s_cbranch_scc0 L_final")
    A(f"buffer_store_dwordx4 {vr(v_d+4,4)}, v{a_p2}, {srd(sWS)}, s{s_t2} offen sc1")
    A("s_branch L_fin" if diag or pad else "s_endpgm")
    L("L_final")
    A("s_mov_b64 exec, -1")

    C("---- final reduction over the 32 heads ----")
    F = B
    A(f"s_lshl_b32 s{s_t0}, s{s_f}, 5")
    A(f"s_mov_b32 s{s_cnt}, {P2AFTER}")
    L("L_h2poll")
    if SL2:
        A(f"s_sleep {SL2}")
    h2loads(s_h2get)
    spin_guard()
    A(f"s_sub_u32 s{s_cnt}, s{s_cnt}, 1")
    A("s_cbranch_scc1 L_h2switch")
    L("L_h2wait")
    for j in range(4):
        A(f"s_waitcnt vmcnt({3-j})")
        for e in range(4):
            A(f"v_xor_b32 v{F+4*j+e}, s{s_tag12}, v{F+4*j+e}")
        if j == 0:
            A(f"v_or_b32 v{T}, v{F}, v{F+1}")
            A(f"v_or3_b32 v{T}, v{T}, v{F+2}, v{F+3}")
        else:
            A(f"v_or3_b32 v{T}, v{T}, v{F+4*j}, v{F+4*j+1}")
            A(f"v_or3_b32 v{T}, v{T}, v{F+4*j+2}, v{F+4*j+3}")
            for e in range(4):
                A(f"v_add_f32 v{F+e}, v{F+e}, v{F+4*j+e}")
    A(f"v_and_b32 v{T}, 0xfff, v{T}")
    A(f"v_cmp_ne_u32 vcc, 0, v{T}")
    A("s_cbranch_vccnz L_h2poll")
    A(f"v_permlane32_swap_b32 v{F}, v{F+1}")
    A(f"v_permlane32_swap_b32 v{F+2}, v{F+3}")
    A(f"v_add_f32 v{F}, v{F}, v{F+1}")
    A(f"v_add_f32 v{F+2}, v{F+2}, v{F+3}")
    A("s_nop 1")
    A(f"v_permlane16_swap_b32 v{F}, v{F+2}")
    A(f"v_add_f32 v{F}, v{F}, v{F+2}")
    A("s_nop 1")
    A(f"v_add_f32_dpp v{F}, v{F}, v{F} row_ror:8 row_mask:0xf bank_mask:0xf")
    A(f"v_cvt_pk_bf16_f32 v{F}, v{F}, v{F}")
    A("s_mov_b32 exec_lo, 0x00ff00ff")
    A("s_mov_b32 exec_hi, 0x00ff00ff")
    A(f"buffer_store_short v{F}, v{a_out}, {srd(sO)}, s{s_t0} offen")
    A(f"s_cmp_lg_u32 s{s_f}, 0")
    A("s_cbranch_scc1 L_fin")
    C("every workgroup has published, hence read, the epoch word: advance it")
    A("s_mov_b64 exec, 1")
    A(f"v_mov_b32 v{T}, s{s_tag32}")
    A(f"v_mov_b32 v{T+1}, 0")
    A(f"buffer_store_dword v{T}, v{T+1}, {srd(sWS)}, 0 offen offset:{WS_E} sc1")
    L("L_fin")
    stamp("end")
    if diag:
        A("s_mov_b64 exec, 1")
        A("s_waitcnt lgkmcnt(0)")
        if diag == 2:
            A("s_sleep 100")
        A(f"s_lshl2_add_u32 s{s_t0}, s2, s{s_w}")
        A(f"s_lshl_b32 s{s_t0}, s{s_t0}, 5")
        A(f"s_add_u32 s{s_t0}, s{s_t0}, {WS_DIAG}")
        for i in range(8):
            A(f"v_mov_b32 v{v_sc+40+i}, s{s_st+2*i}")
        A(f"v_mov_b32 v{T+3}, 0")
        A(f"buffer_store_dwordx4 {vr(v_sc+40,4)}, v{T+3}, {srd(sWS)}, s{s_t0} offen")
        A(f"buffer_store_dwordx4 {vr(v_sc+44,4)}, v{T+3}, {srd(sWS)}, s{s_t0} offen offset:16")
    L("L_end")
    A("s_endpgm")

    L("L_h2switch")
    C("not complete behind this L2: add this wave's own line to the written-through copy and read that from now on")
    A("s_waitcnt vmcnt(0)")
    A("s_mov_b32 exec_lo, 0x00030003")
    A("s_mov_b32 exec_hi, 0x00030003")
    A(f"buffer_store_dwordx4 {vr(v_d+4,4)}, v{a_p2}, {srd(sWS)}, s{s_t2} offen sc1")
    A("s_mov_b64 exec, -1")
    A(f"s_add_u32 s{s_h2get}, s{s_h2get}, {WS_P2-WS_P1}")
    A("s_branch L_h2poll")
    for label, back, loads in (("L_lretry", "L_lcheck", lambda: lamloads(False)), ("L_qretry", "L_qcheck", lambda: qloads(False))):
        L(label)
        spin_guard()
        loads()
        A("s_waitcnt vmcnt(0)")
        A(f"s_branch {back}")

    acc = (NV + 3) // 4 * 4
    g.o.append('.section .rodata,"a"')
    g.o.append(".p2align 6")
    g.o.append(f".amdhsa_kernel {KNAME}")
    g.o.append(f"  .amdhsa_next_free_vgpr {acc+NA}")
    g.o.append("  .amdhsa_next_free_sgpr 102")
    g.o.append(f"  .amdhsa_accum_offset {acc}")
    g.o.append("  .amdhsa_group_segment_fixed_size 0")
    g.o.append("  .amdhsa_kernarg_size 112")
    g.o.append("  .amdhsa_user_sgpr_count 2")
    g.o.append("  .amdhsa_user_sgpr_kernarg_segment_ptr 1")
    g.o.append("  .amdhsa_system_sgpr_workgroup_id_x 1")
    g.o.append("  .amdhsa_float_denorm_mode_32 3")
    g.o.append(".end_amdhsa_kernel")
    gen.log = log
    return "\n".join(g.o) + "\n"


if __name__ == "__main__":
    kw = {}
    for a in sys.argv[2:]:
        k, v = a.split("=")
        kw[k] = eval(v)
    src = gen(**kw)
    open(sys.argv[1], "w").write(src)
```

```python
import sys, math, struct

KNAME = "gated_mix__gqa_block_cached__gqa_block_cached__decode_kernel"

WS_E = 0x0
WS_QB = 0x1000
WS_LB = 0x30000
WS_P1 = 0x40000
WS_P2 = 0x60000
WS_PR = 0x80000
WS_GP = 0x90000
WS_H1 = 0x100000
WS_DIAG = 0x200000
WS_SIZE = 0x400000
EPOCH_INC = 0x9E3779B1

NSLOT = 7
RING = NSLOT * 4096
STG = 4 * RING
SCR = STG + 32768
QP, QX, OPA, ML, OX, FL = 0, 2048, 4096, 12288, 12544, 13568
LDS_BYTES = 163840

PATS = {
    "P1": ([[14], [15], [16], [17], [18]], [[12], [13]], [[19], [20], [21], [22]]),
    "T2": ([[14], [17], [18], [19], [20]], [[12], [13]], [[15], [16], [21], [22]]),
    "U4": ([[14], [22], [17], [18], [19]], [[12], [13]], [[15], [16], [21], [20]]),
    "U5": ([[14], [22], [17], [18], [19]], [[12, 17], [13, 18]], [[15], [16], [21, 18], [20]]),
}


def f2u(x):
    return struct.unpack("<I", struct.pack("<f", x))[0]


class Gen:
    def __init__(self):
        self.o = []
        self.vm = []
        self.seq = []
        self.nid = 0

    def A(self, s):
        self.o.append("  " + s)

    def L(self, s):
        self.o.append(s + ":")

    def C(self, s):
        self.o.append("  ; " + s)

    def vmem(self, s, optional=False):
        self.A(s)
        self.nid += 1
        if not optional:
            self.seq.append(self.nid)
            if "store" not in s:
                self.vm.append(self.nid)
        return self.nid

    def after(self, op):
        return len(self.seq) - 1 - self.seq.index(op)

    def throttle(self, op):
        if op not in self.vm:
            return False
        k = self.after(op)
        assert k <= 63
        self.A(f"s_waitcnt vmcnt({k})")
        if k < len(self.vm):
            self.vm = self.vm[len(self.vm) - k:] if k else []
        return True

    def wait_vm(self, op):
        if op not in self.vm:
            return False
        k = len(self.vm) - 1 - self.vm.index(op)
        assert k <= 63
        self.A(f"s_waitcnt vmcnt({k})")
        self.vm = self.vm[len(self.vm) - k:] if k else []
        return True

    def split(self, fn, n):
        keep, self.o = self.o, []
        nvm = self.nid
        fn()
        assert self.nid == nvm
        body, self.o = self.o, keep
        out, cur, k = [], [], 0
        for line in body:
            assert not line.endswith(":") and "cbranch" not in line and "s_cmp" not in line and "vcc" not in line \
                and "exec" not in line and "cselect" not in line, line
            cur.append(line)
            if not line.strip().startswith(";"):
                k += 1
            if k == n:
                out.append(cur); cur, k = [], 0
        if cur:
            out.append(cur)
        return [(lambda c=c: self.o.extend(c)) for c in out]


def gen(N=5, Npat=None, N0=8, NH=5, PH=64, NB=None, BL=16, BZ=(1, 2, 3, 4), NWO=10, R=5, PQ=36, QLAG=3, LLAG=8, PWG=484, CH=16,
        PAT="U4", XM=None, NHI=7, CK=4, C0=16, GAIN=3.0, BIAS=2.0, NMAXB=8, PT=4,
        SL1=0, SL2=0, P2AFTER=32, WARM2=True, TW=False, FWAVE=0, P1SC="", GR=(19, 41, 63, 83, 101), GWIN=(4, 6), GK=6.0, GOFF=0.5, GMAX=18,
        WOL=0, WOA=0, PX=0, NLO=None, BRK=1.0, BGAIN=3.0, GBRK=0.0, CEND=8, WOK=0, W2P=0, CP=None,
        diag=False, SPIN=1 << 21, pad=None, smap="head"):
    g = Gen()
    A, L, C = g.A, g.L, g.C
    LOG2E = math.log2(math.e)
    Npat = Npat or [N]
    P0, OFF = 16, 8
    def Nof(p):
        if p < P0:
            return N0
        if p < PH:
            return NH
        if p >= OFF + 512:
            return NWO
        if NB:
            for k in BZ:
                if OFF + 128 * k - BL <= p < OFF + 128 * k:
                    return NB
        return Npat[p % len(Npat)]
    PC0 = OFF + 4 * C0
    def Nguar(p):
        return max(Nof(p), NHI) if p >= PC0 else Nof(p)

    sKV = [20, 24, 28, 32]
    sWQ, sWO, sWS, sX, sG, sO = 36, 40, 44, 48, 52, 56
    srd = lambda b: f"s[{b}:{b+3}]"
    (s_w, s_b, s_hkv, s_j, s_kvb, s_kvoff, s_wb, s_stg, s_tag32, s_tag8, s_tag12, s_c, s_rs, s_t0, s_t1, s_t2, s_t3,
     s_wqoff, s_wooff, s_spin, s_colb, s_m12) = range(60, 82)
    s_qoff, s_perm, s_h1pub, s_h1get, s_h2pub, s_h2get, s_lpub, s_lget, s_m15, s_f, s_cnt = range(3, 14)
    s_boost, s_pph, s_pro, s_tagp, s_u, s_xm = range(14, 20)
    s_brk, s_bm, s_gk = s_colb, s_wqoff, s_qoff
    s_c0, s_c1 = 100, 101
    s_gb, s_dev, s_gpo, s_bc = 36, 37, 38, 39
    s_fw = 48
    s_st = 84

    v_g, v_n, v_c, v_r = 2, 3, 4, 5
    a_pw, a_pr, v_pd, v_pl = 6, 7, 8, 9
    v_dv, v_rk, v_rv = 10, 12, 16
    v_mx, v_m, v_nmc, v_gf, v_mt = 24, 25, 26, 27, 28
    (a_wo, a_q, a_qw, a_qr, a_fw, a_fr, a_cwa, a_cwb, a_cml, a_cra, a_crb, a_crb2, a_mlr, a_l16, a_g1, a_ow, a_or,
     a_p2, a_lg, a_out, a_wor) = range(29, 50)
    v_ct = 50
    v_s = 52
    v_one = 56
    v_d = 60
    v_sc = 68
    T = 132
    B = 140
    v_pub = 164
    v_pat = 168
    v_sel = 172
    v_aw = 176
    v_tw = 180
    a_gs = 182
    v_gs = 184
    NV = 196
    a_qop = 0
    a_vf = 32
    a_wop = 64
    a_o = 96
    a_l = 128
    a_kf = 132
    NA = a_kf + 16 * R
    assert NA <= 256
    vr = lambda b, n: f"v[{b}:{b+n-1}]"
    ar = lambda b, n: f"a[{b}:{b+n-1}]"

    SMAPS = {"head": ["start", "qpub", "qval", "endKA", "endVA", "endKB", "drained", "end"],
             "tail": ["start", "drained", "bar", "pub1", "bar2", "h1ok", "pub2", "end"],
             "late": ["start", "t100", "t110", "t116", "t121", "t125", "drained", "end"],
             "tail2": ["start", "drained", "pub1", "wo", "h1ok", "bar2", "pub2", "end"]}
    def stamp(name):
        if name not in SMAPS[smap]:
            return
        i = SMAPS[smap].index(name)
        if diag or (pad and i == 0):
            A(f"s_memrealtime s[{s_st+2*i}:{s_st+2*i+1}]")
        if pad and pad[0] == i:
            L("L_pad")
            A("s_memrealtime s[82:83]")
            A("s_waitcnt lgkmcnt(0)")
            A(f"s_sub_u32 s82, s82, s{s_st}")
            A(f"s_cmp_lt_u32 s82, {int(pad[1]*100)}")
            A("s_cbranch_scc1 L_pad")

    hdr = open("gated_mix__gqa_block_cached__gqa_block_cached__decode.s.ref").read().split("\n")
    for line in hdr:
        if line.startswith(";") and "@launch" not in line:
            g.o.append(line)
        elif not line.startswith(";"):
            break
    g.o.append(f"; @launch grid=(256,1,1) block=(256,1,1) lds={LDS_BYTES}")
    g.o.append('.amdgcn_target "amdgcn-amd-amdhsa--gfx950"')
    g.o.append(".text")
    g.o.append(f".globl {KNAME}")
    g.o.append(".p2align 8")
    g.o.append(f".type {KNAME},@function")
    L(KNAME)
    C("workgroup = (b, hkv, one of 16 key splits) for both branches; extra workgroups leave at once")
    A("s_cmp_ge_u32 s2, 256")
    A("s_cbranch_scc0 L_go")
    A("s_endpgm")
    L("L_go")
    A(f"s_lshr_b32 s{s_b}, s2, 7")
    A(f"s_mul_i32 s3, s{s_b}, 40")
    A("s_add_u32 s16, s0, s3")
    A("s_addc_u32 s17, s1, 0")
    A("s_load_dwordx2 s[14:15], s[16:17], 24")
    A("s_load_dwordx4 s[4:7], s[0:1], 8")
    A("s_load_dwordx2 s[12:13], s[0:1], 0")
    A("s_load_dwordx2 s[18:19], s[0:1], 104")
    A("s_load_dwordx4 s[8:11], s[0:1], 48")
    A("s_load_dwordx4 s[96:99], s[0:1], 80")
    stamp("start")
    A(f"v_lshrrev_b32 v{T}, 6, v0")
    A("v_and_b32 v1, 63, v0")
    A(f"v_readfirstlane_b32 s{s_w}, v{T}")
    C("q slice: branch b, columns (wg>>1 & 63)*64, rows (wg&1)*256 + w*64")
    A(f"v_lshrrev_b32 v{T+2}, 3, v1")
    A(f"v_lshlrev_b32 v{T+2}, 13, v{T+2}")
    A(f"v_and_b32 v{T}, 7, v1")
    A(f"v_lshl_add_u32 v{T+2}, v{T}, 4, v{T+2}")
    A(f"s_bfe_u32 s{s_colb}, s2, 0x60001")
    A(f"s_lshl_b32 s{s_colb}, s{s_colb}, 6")
    A(f"s_and_b32 s{s_t0}, s2, 1")
    A(f"s_lshl2_add_u32 s{s_t2}, s{s_t0}, s{s_w}")
    A(f"s_lshl_b32 s{s_t0}, s{s_t2}, 19")
    A(f"s_lshl1_add_u32 s{s_wqoff}, s{s_colb}, s{s_t0}")
    A(f"s_lshl_b32 s{s_stg}, s{s_w}, 13")
    A(f"s_add_u32 s{s_stg}, s{s_stg}, {STG}")
    A(f"s_mov_b32 s{sWQ+2}, 0x400000")
    A(f"s_mov_b32 s{sWQ+3}, 0x20000")
    A("s_waitcnt lgkmcnt(0)")
    A(f"s_mov_b32 s{sWQ}, s14")
    A(f"s_and_b32 s{sWQ+1}, s15, 0xffff")
    def mksrd(d, p, size):
        A(f"s_mov_b32 s{d}, s{p}")
        A(f"s_and_b32 s{d+1}, s{p+1}, 0xffff")
        A(f"s_mov_b32 s{d+2}, {size:#x}")
        A(f"s_mov_b32 s{d+3}, 0x20000")

    S5, WM, G4 = PATS[PAT] if isinstance(PAT, str) else PAT
    msk = lambda bs: sum(1 << b for b in bs)
    basis = {}
    for v in [msk(x) for x in S5 + WM + G4]:
        while v:
            h = v.bit_length() - 1
            if h not in basis:
                basis[h] = v
                break
            v ^= basis[h]
    assert sorted(basis) == list(range(12, 23)), "pattern is not a bijection"
    def tile_off(t):
        x = 0
        for k in range(5):
            if t >> k & 1:
                x ^= msk(S5[k])
        return x
    NT = 128
    Z = [("wq", j) for j in range(8)] + [("kv", t, j) for t in range(NT) for j in range(4)] + [("wo", j) for j in range(8)]
    pos = {z: p for p, z in enumerate(Z)}
    pos_of = lambda t, j: pos[("kv", t, j)]
    slot_of = lambda t: t % NSLOT
    isK = lambda t: (t // 32) % 2 == 0
    ids = {}
    st = {}
    log = []

    def issue(p, throttle=True):
        z = Z[p]
        need_nop = False
        if z[0] == "wq":
            if z[1]:
                A(f"s_add_u32 s{s_wqoff}, s{s_wqoff}, 0x10000")
            A(f"s_add_u32 m0, s{s_stg}, {z[1]*1024}")
            need_nop = True
        elif z[0] == "wo":
            if z[1]:
                A(f"s_add_u32 s{s_wooff}, s{s_wooff}, 8192")
            A(f"s_add_u32 m0, s{s_stg}, {z[1]*1024}")
            need_nop = True
        elif z[2] == 0:
            t = z[1]
            stamp(f"t{t}")
            A(f"s_xor_b32 s{s_kvoff}, s{s_kvb}, {tile_off(t % 32):#x}")
            A(f"s_add_u32 m0, s{s_wb}, {slot_of(t)*4096}")
            need_nop = True
            if p >= PC0 and any(Nguar(q) > Nof(q) for q in range(p, p + 4)):
                if NLO:
                    A(f"s_sub_i32 s{s_bm}, {t}, s{s_brk}")
                A(f"s_cmp_gt_i32 s{s_boost}, {t}")
                A("s_cselect_b64 vcc, -1, 0")
                need_nop = False
                if XM and (XM[0] | XM[1]) >> (t % 32) & 1:
                    A(f"s_bitcmp1_b32 s{s_xm}, {t % 32}")
                    A("s_cselect_b64 vcc, -1, vcc")
        waited = False
        if throttle and p - Nguar(p) >= 0:
            waited = g.throttle(ids[p - Nguar(p)])
            if Nguar(p) > Nof(p) and ids[p - Nof(p)] in g.vm:
                A(f"s_cbranch_vccnz L_b{p}")
                A(f"s_waitcnt vmcnt({g.after(ids[p - Nof(p)])})")
                if NLO:
                    A(f"s_bitcmp0_b32 s{s_bm}, 31")
                    A(f"s_cbranch_scc1 L_b{p}")
                    A(f"s_waitcnt vmcnt({g.after(ids[p - NLO])})")
                L(f"L_b{p}")
                waited = True
        if need_nop and not waited:
            A("s_nop 0")
        if z[0] == "wq":
            ids[p] = g.vmem(f"buffer_load_dwordx4 v{T+2}, {srd(sWQ)}, s{s_wqoff} offen nt lds")
        elif z[0] == "wo":
            ids[p] = g.vmem(f"buffer_load_dwordx4 v{a_wo}, {srd(sWO)}, s{s_wooff} offen nt lds")
        else:
            _, t, j = z
            ids[p] = g.vmem(f"buffer_load_dwordx4 v{v_dv+(j&1)}, {srd(sKV[t//32])}, s{s_kvoff} offen offset:{j*1024} nt lds")
            if j == 1 and C0 - 8 <= t < NT - 6:
                assert st["setup"]
                A(f"s_cmp_eq_u32 s{s_pph}, {t % PT}")
                A(f"s_cselect_b32 s{s_u}, s{s_pro}, {WS_SIZE:#x}")
                A(f"v_or_b32 v{v_pd}, {t}, v{v_pl}")
                g.vmem(f"buffer_store_dword v{v_pd}, v{a_pw}, {srd(sWS)}, s{s_u} offen")

    C("wq slice -> staging")
    for p in range(8):
        issue(p, throttle=False)
    A(f"s_load_dword s{s_tag32}, s[18:19], {WS_E}")
    A(f"s_lshr_b32 s{s_t0}, s{s_w}, 1")
    A(f"s_mul_i32 s{s_t0}, s{s_t0}, 40")
    A(f"s_add_u32 s82, s0, s{s_t0}")
    A("s_addc_u32 s83, s1, 0")
    A("s_load_dwordx2 s[16:17], s[82:83], 32")
    A(f"v_lshrrev_b32 v{v_g}, 4, v1")
    A(f"v_and_b32 v{v_n}, 15, v1")
    A(f"v_and_b32 v{v_c}, 3, v1")
    A(f"v_bfe_u32 v{v_r}, v1, 2, 2")
    C("x operand of the q projection, gate inputs (lane l: 16 elements (l&31) of batch b)")
    mksrd(sX, 12, 2048)
    mksrd(sG, 96, 1024)
    A(f"v_and_b32 v{T+1}, 1, v1")
    A(f"v_lshlrev_b32 v{T+1}, 10, v{T+1}")
    A(f"v_lshl_add_u32 v{T+1}, v{v_g}, 4, v{T+1}")
    A(f"s_lshl_b32 s{s_t2}, s{s_t2}, 7")
    GX = v_sc
    for j in range(2):
        last_small = g.vmem(f"buffer_load_dwordx4 {vr(v_d+4*j,4)}, v{T+1}, {srd(sX)}, s{s_t2} offen offset:{j*64}")
    A(f"v_and_b32 v{T}, 31, v1")
    A(f"v_lshlrev_b32 v{T}, 5, v{T}")
    A(f"s_lshl_b32 s{s_t0}, s{s_b}, 10")
    for j in range(2):
        g.vmem(f"buffer_load_dwordx4 {vr(GX+4*j,4)}, v{T}, {srd(sX)}, s{s_t0} offen offset:{j*16}")
    for j in range(2):
        last_gate = g.vmem(f"buffer_load_dwordx4 {vr(GX+8+4*j,4)}, v{T}, {srd(sG)}, 0 offen offset:{j*16}")
    for k in range(4):
        mksrd(sKV[k], 4 + 2 * k, 0x8000000)
    mksrd(sWS, 18, WS_SIZE)
    mksrd(sO, 98, 2048)
    A(f"s_bfe_u32 s{s_hkv}, s2, 0x30004")
    A(f"s_and_b32 s{s_j}, s2, 15")
    A(f"s_lshl4_add_u32 s{s_j}, s{s_b}, s{s_j}")
    A(f"s_mul_i32 s{s_wb}, s{s_w}, {RING}")
    C("first byte of this wave's keys")
    A(f"s_lshr_b32 s{s_kvb}, s2, 4")
    A(f"s_lshl_b32 s{s_kvb}, s{s_kvb}, 23")
    for src, ms in (("s2", G4), (f"s{s_w}", WM)):
        for k, x in enumerate(ms):
            A(f"s_bitcmp1_b32 {src}, {k}")
            A(f"s_cselect_b32 s{s_t0}, {msk(x):#x}, 0")
            A(f"s_xor_b32 s{s_kvb}, s{s_kvb}, s{s_t0}")
    C("DMA voffsets: 16-byte chunk index xor 2*(key&7)")
    A(f"v_lshlrev_b32 v{T+3}, 8, v{v_g}")
    for j in range(2):
        A(f"v_add_u32 v{v_dv+j}, {4*j}, v{v_g}")
        A(f"v_lshlrev_b32 v{v_dv+j}, 1, v{v_dv+j}")
        A(f"v_xor_b32 v{v_dv+j}, v{v_dv+j}, v{v_n}")
        A(f"v_lshl_add_u32 v{v_dv+j}, v{v_dv+j}, 4, v{T+3}")
    C("clear the LDS flags")
    A(f"v_mov_b32 v{a_fr}, {SCR+FL}")
    A(f"v_lshl_add_u32 v{T}, v{v_n}, 2, v{a_fr}")
    A(f"v_mov_b32 v{T+1}, 0")
    A(f"ds_write_b32 v{T}, v{T+1}")
    C("LDS read addresses for K")
    A(f"v_lshl_add_u32 v{T+3}, v{v_n}, 8, s{s_wb}")
    A(f"v_and_b32 v{T+4}, 7, v{v_n}")
    A(f"v_lshlrev_b32 v{T+4}, 1, v{T+4}")
    for j in range(4):
        A(f"v_add_u32 v{v_rk+j}, {4*j}, v{v_g}")
        A(f"v_xor_b32 v{v_rk+j}, v{v_rk+j}, v{T+4}")
        A(f"v_lshl_add_u32 v{v_rk+j}, v{v_rk+j}, 4, v{T+3}")
    C("q-proj addresses")
    A(f"v_lshl_add_u32 v{T}, v{v_g}, 3, v{v_r}")
    A(f"v_lshl_add_u32 v{T}, v{T}, 7, s{s_stg}")
    A(f"v_lshl_add_u32 v{T}, v{v_c}, 3, v{T}")
    A(f"s_lshl_b32 s{s_t0}, s{s_w}, 9")
    A(f"s_add_u32 s{s_t0}, s{s_t0}, {SCR+QP}")
    A(f"v_and_b32 v{T+1}, 1, v1")
    A(f"v_lshl_add_u32 v{T+1}, v{T+1}, 8, s{s_t0}")
    A(f"v_lshl_add_u32 v{T+1}, v{v_g}, 4, v{T+1}")
    A(f"v_and_b32 v{T+3}, 31, v1")
    A(f"v_lshlrev_b32 v{T+3}, 4, v{T+3}")
    A(f"v_add_u32 v{T+3}, {SCR+QP}, v{T+3}")
    A(f"v_bfe_u32 v{T+4}, v1, 4, 1")
    A(f"v_lshlrev_b32 v{T+4}, 14, v{T+4}")
    A(f"v_lshl_add_u32 v{T+4}, v{v_n}, 4, v{T+4}")
    A(f"s_lshl_b32 s{s_t0}, s{s_b}, 13")
    A(f"s_add_u32 s{s_t0}, s{s_t0}, s{s_colb}")
    A(f"s_lshl_b32 s{s_t0}, s{s_t0}, 2")
    A(f"s_and_b32 s{s_t1}, s2, 1")
    A(f"s_lshl_b32 s{s_t1}, s{s_t1}, 16")
    A(f"s_add_u32 s{s_t0}, s{s_t0}, s{s_t1}")
    A(f"s_add_u32 s{s_t0}, s{s_t0}, {WS_QB}")
    A(f"s_movk_i32 s{s_t1}, 0xff00")
    for p in range(8, P0):
        issue(p)
    for p in range(P0, P0 + PX):
        issue(p, throttle=False)
    A("s_waitcnt lgkmcnt(0)")
    C("---- q projection: 64 columns, half of the rows ----")
    g.wait_vm(last_small)
    for ks in range(2):
        for cb in range(4):
            for hf in range(2):
                A(f"ds_read_b64_tr_b16 {ar(a_vf+(ks*4+cb)*4+hf*2,2)}, v{T} offset:{ks*4096 + hf*512 + cb*32}")
    mksrd(sWO, 16, 0x400000)
    A(f"s_add_u32 s{s_tag32}, s{s_tag32}, {EPOCH_INC:#x}")
    A(f"s_and_b32 s{s_tag8}, s{s_tag32}, 0xff")
    A(f"s_and_b32 s{s_tag12}, s{s_tag32}, 0xfff")
    A(f"v_mov_b32 v{T+5}, s{s_tag8}")
    for ks in range(2):
        A(f"s_waitcnt lgkmcnt({8-8*ks})")
        for cb in range(4):
            A(f"v_mfma_f32_16x16x32_bf16 {vr(B+4*cb,4)}, {ar(a_vf+(ks*4+cb)*4,4)}, {vr(v_d+4*ks,4)}, " + ("0" if ks == 0 else vr(B + 4 * cb, 4)))
    A("s_nop 4")
    for cb in range(4):
        A(f"ds_write_b128 v{T+1}, {vr(B+4*cb,4)} offset:{cb*64}")
    A(f"s_cmp_eq_u32 s{s_w}, 0")
    A("s_waitcnt lgkmcnt(0)")
    A("s_barrier")
    A("s_cbranch_scc0 L_noqstore")
    for w in range(4):
        A(f"ds_read_b128 {vr(B+4*w,4)}, v{T+3} offset:{w*512}")
    A("s_waitcnt lgkmcnt(0)")
    for e in range(4):
        A(f"v_add_f32 v{B+e}, v{B+e}, v{B+4+e}")
        A(f"v_add_f32 v{B+8+e}, v{B+8+e}, v{B+12+e}")
    for e in range(4):
        A(f"v_add_f32 v{B+e}, v{B+e}, v{B+8+e}")
    for e in range(4):
        A(f"v_add_u32 v{B+e}, 0x80, v{B+e}")
    for e in range(4):
        A(f"v_and_or_b32 v{B+e}, v{B+e}, s{s_t1}, v{T+5}")
    A("s_mov_b32 exec_hi, 0")
    g.vmem(f"buffer_store_dwordx4 {vr(B,4)}, v{T+4}, {srd(sWS)}, s{s_t0} offen sc1", optional=True)
    A("s_mov_b64 exec, -1")
    L("L_noqstore")
    stamp("qpub")

    FSLOT = slot_of(NT)

    def setup_head():
        C("constants")
        A(f"s_mov_b32 s{s_c}, {f2u(LOG2E):#x}")
        A(f"s_mov_b32 s{s_rs}, {f2u(128 ** -0.5):#x}")
        A(f"s_mov_b32 s{s_spin}, {SPIN}")
        for r in range(4):
            A(f"v_mov_b32 v{v_one+r}, 0x3f803f80")
        C("q gather: head w, lanes 0-31 half 0, lanes 32-63 half 1")
        A(f"v_lshrrev_b32 v{T}, 5, v1")
        A(f"v_and_b32 v{T+1}, 31, v1")
        A(f"v_lshlrev_b32 v{T+2}, 4, v{T+1}")
        A(f"v_lshl_add_u32 v{a_q}, v{T}, 16, v{T+2}")
        A(f"s_lshr_b32 s{s_t0}, s2, 4")
        A(f"s_lshl2_add_u32 s{s_t0}, s{s_t0}, s{s_w}")
        A(f"s_lshl_b32 s{s_t0}, s{s_t0}, 9")
        A(f"s_add_u32 s{s_qoff}, s{s_t0}, {WS_QB}")
        A(f"s_lshl_b32 s{s_t0}, s{s_w}, 8")
        A(f"s_add_u32 s{s_t0}, s{s_t0}, {SCR+QX}")
        A(f"v_lshl_add_u32 v{a_qw}, v{T+1}, 3, s{s_t0}")
        A(f"v_lshl_add_u32 v{a_qw}, v{T}, 2, v{a_qw}")
        A(f"v_lshlrev_b32 v{a_qr}, 8, v{v_c}")
        A(f"v_lshl_add_u32 v{a_qr}, v{v_g}, 4, v{a_qr}")
        A(f"v_add_u32 v{a_qr}, {SCR+QX}, v{a_qr}")
        A(f"s_lshl_b32 s{s_t0}, s{s_w}, 2")
        A(f"v_add_u32 v{a_fw}, s{s_t0}, v{a_fr}")
        C("pacing hints (speed only): one line of tile indices per group of workgroups with equal wg&7")
        A(f"s_mov_b32 s{s_boost}, 0")
        A(f"s_and_b32 s{s_tagp}, s{s_tag32}, 0xffffff00")
        A(f"v_mov_b32 v{v_pl}, s{s_tagp}")
        A(f"v_min_u32 v{a_pw}, 1, v1")
        A(f"v_lshlrev_b32 v{a_pw}, 30, v{a_pw}")
        A(f"s_and_b32 s{s_t0}, s2, 7")
        A(f"s_mul_i32 s{s_t0}, s{s_t0}, 4352")
        A(f"s_add_u32 s{s_t0}, s{s_t0}, {WS_PR}")
        A(f"v_lshl_add_u32 v{a_pr}, v1, 2, s{s_t0}")
        if GR:
            C("wave 1 of workgroups 32..39 compares the groups a few times")
            A(f"s_add_u32 s{s_bc}, s{s_t0}, 128")
            A(f"s_mov_b32 s{s_gb}, 0")
            A(f"s_mov_b32 s{s_dev}, 0")
            A(f"s_lshr_b32 s{s_t1}, s2, 3")
            A(f"s_lshl_b32 s{s_t2}, s{s_w}, 5")
            A(f"s_add_u32 s{s_t1}, s{s_t1}, s{s_t2}")
            A(f"s_xor_b32 s{s_t1}, s{s_t1}, {32 + 4}")
            A(f"s_min_u32 s{s_t1}, s{s_t1}, 1")
            A(f"s_lshl_b32 s{s_t1}, s{s_t1}, 30")
            A(f"s_add_u32 s{s_t1}, s{s_t1}, {WS_GP}")
            A(f"v_lshrrev_b32 v{T+3}, 3, v1")
            A(f"v_min_u32 v{T+3}, 1, v{T+3}")
            A(f"v_lshlrev_b32 v{T+3}, 30, v{T+3}")
            A(f"v_mul_u32_u24 v{T+4}, 4224, v1")
            A(f"v_add3_u32 v{a_gs}, v{T+3}, v{T+4}, s{s_t1}")
            A(f"s_and_b32 s{s_t2}, s2, 7")
            A(f"s_mul_i32 s{s_t2}, s{s_t2}, 4224")
            A(f"s_add_u32 s{s_gpo}, s{s_t1}, s{s_t2}")
        A(f"s_lshr_b32 s{s_t1}, s2, 3")
        A(f"s_lshl2_add_u32 s{s_pro}, s{s_t1}, s{s_t0}")
        A(f"s_and_b32 s{s_t1}, s{s_t1}, {PT-1}")
        A(f"s_lshl4_add_u32 s{s_pph}, s{s_w}, s{s_t1}")
        if XM:
            A(f"s_getreg_b32 s{s_t0}, hwreg(HW_REG_XCC_ID)")
            A(f"s_and_b32 s{s_t0}, s{s_t0}, 1")
            A(f"s_mul_i32 s{s_t0}, s{s_t0}, {XM[0] ^ XM[1]:#x}")
            A(f"s_xor_b32 s{s_xm}, s{s_t0}, {XM[0]:#x}")

    def setup_rest():
        A(f"s_mov_b32 s{s_perm}, 0x07060302")
        A(f"s_mov_b32 s{s_m12}, 0xfffff000")
        A(f"s_mov_b32 s{s_m15}, 0xfffefffe")
        C("V transposed read addresses")
        A(f"v_lshl_add_u32 v{T+3}, v{v_g}, 2, v{v_r}")
        A(f"v_and_b32 v{T+5}, 1, v{v_c}")
        A(f"v_lshlrev_b32 v{T+5}, 3, v{T+5}")
        A(f"v_lshrrev_b32 v{T+6}, 1, v{v_c}")
        A(f"v_lshl_add_u32 v{T+4}, v{T+3}, 8, v{T+5}")
        A(f"v_add_u32 v{T+4}, s{s_wb}, v{T+4}")
        A(f"v_and_b32 v{T+7}, 7, v{T+3}")
        A(f"v_lshl_or_b32 v{T+7}, v{T+7}, 1, v{T+6}")
        for cb in range(8):
            A(f"v_xor_b32 v{v_rv+cb}, {2*cb}, v{T+7}")
            A(f"v_lshl_add_u32 v{v_rv+cb}, v{v_rv+cb}, 4, v{T+4}")
        C("wo: head hq = hkv*4 + (j>>3), columns (wg&7)*64; wave w loads rows (w&1)*64.. of branch w>>1")
        A(f"v_lshl_add_u32 v{T+4}, v{T+3}, 7, v{T+5}")
        A(f"v_add_u32 v{T+4}, {STG}, v{T+4}")
        A(f"v_and_b32 v{T+7}, 6, v{T+3}")
        A(f"v_or_b32 v{T+7}, v{T+7}, v{T+6}")
        A(f"s_lshl_b32 s{s_t0}, s{s_w}, 1")
        A(f"v_xor_b32 v{T+7}, s{s_t0}, v{T+7}")
        A(f"v_lshl_add_u32 v{a_wor}, v{T+7}, 4, v{T+4}")
        A(f"v_lshrrev_b32 v{T+3}, 3, v1")
        A(f"v_and_b32 v{T+4}, 6, v{T+3}")
        A(f"v_and_b32 v{T+5}, 7, v1")
        A(f"v_xor_b32 v{T+4}, v{T+4}, v{T+5}")
        A(f"v_lshlrev_b32 v{T+4}, 4, v{T+4}")
        A(f"v_lshl_add_u32 v{a_wo}, v{T+3}, 10, v{T+4}")
        A(f"s_lshr_b32 s{s_t0}, s{s_j}, 3")
        A(f"s_lshl2_add_u32 s{s_t3}, s{s_hkv}, s{s_t0}")
        A(f"s_and_b32 s{s_t0}, s{s_w}, 1")
        A(f"s_lshl1_add_u32 s{s_t0}, s{s_t3}, s{s_t0}")
        A(f"s_lshl_b32 s{s_t0}, s{s_t0}, 16")
        A(f"s_and_b32 s{s_t2}, s2, 7")
        A(f"s_lshl_b32 s{s_t1}, s{s_t2}, 7")
        A(f"s_add_u32 s{s_wooff}, s{s_t0}, s{s_t1}")
        C("hop-2 store: line (cg = (wg&7)*4 + w, p = hq), lane (g, n<2): b = n")
        A(f"s_lshl2_add_u32 s{s_t0}, s{s_t2}, s{s_w}")
        A(f"s_lshl_b32 s{s_t0}, s{s_t0}, 12")
        A(f"s_lshl_b32 s{s_t1}, s{s_t3}, 7")
        A(f"s_add_u32 s{s_t0}, s{s_t0}, s{s_t1}")
        A(f"s_add_u32 s{s_h2pub}, s{s_t0}, {WS_P1}")
        A(f"v_and_b32 v{T+3}, 1, v1")
        A(f"v_lshlrev_b32 v{a_p2}, 6, v{T+3}")
        A(f"v_lshl_add_u32 v{a_p2}, v{v_g}, 4, v{a_p2}")
        C("o operand reader: OX + (n&1)*256 + g*16")
        A(f"v_lshlrev_b32 v{a_or}, 8, v{T+3}")
        A(f"v_lshl_add_u32 v{a_or}, v{v_g}, 4, v{a_or}")
        A(f"v_add_u32 v{a_or}, {SCR+OX}, v{a_or}")
        C("final role f = (wg&7)*4 + w (the wave's own column group) for one workgroup per f, else >= 32")
        A(f"s_lshl2_add_u32 s{s_f}, s{s_t2}, s{s_w}")
        A(f"s_lshl_b32 s{s_t1}, s{s_f}, 12")
        A(f"s_add_u32 s{s_h2get}, s{s_t1}, {WS_P1}")
        A(f"s_lshr_b32 s{s_t0}, s2, 3")
        if FWAVE == 0:
            A(f"s_xor_b32 s{s_t0}, s{s_t0}, s{s_w}")
        A(f"s_lshl_b32 s{s_t0}, s{s_t0}, 5")
        A(f"s_or_b32 s{s_f}, s{s_f}, s{s_t0}")
        A(f"v_lshlrev_b32 v{a_l16}, 4, v1")
        A(f"v_bfe_u32 v{T+3}, v1, 2, 1")
        A(f"v_lshlrev_b32 v{a_out}, 10, v{T+3}")
        A(f"v_lshl_add_u32 v{a_out}, v{v_c}, 3, v{a_out}")
        A(f"v_bfe_u32 v{T+4}, v1, 4, 1")
        A(f"v_lshl_add_u32 v{a_out}, v{T+4}, 2, v{a_out}")
        A(f"v_lshrrev_b32 v{T+5}, 5, v1")
        A(f"v_lshl_add_u32 v{a_out}, v{T+5}, 1, v{a_out}")
        C("hop-1 gather, wave = (dims half w>>1, batch w&1): rows (hq, b*16 + 4*g + i)")
        A(f"v_lshlrev_b32 v{T+5}, 4, v{v_n}")
        A(f"v_lshl_add_u32 v{a_g1}, v{v_g}, 11, v{T+5}")
        A(f"s_and_b32 s{s_t0}, s{s_w}, 1")
        A(f"s_lshl1_add_u32 s{s_t1}, s{s_t3}, s{s_t0}")
        A(f"s_lshl_b32 s{s_t1}, s{s_t1}, 13")
        A(f"s_lshr_b32 s{s_t2}, s{s_w}, 1")
        A(f"s_lshl_b32 s{s_t3}, s{s_t2}, 8")
        A(f"s_add_u32 s{s_t1}, s{s_t1}, s{s_t3}")
        A(f"s_add_u32 s{s_h1get}, s{s_t1}, {WS_H1}")
        C("summed o -> LDS [br][b][ks][g][hf][4] bf16; lanes 0-15 hold branch B, lanes 16-31 branch A")
        A(f"s_lshl1_add_u32 s{s_t0}, s{s_t0}, s{s_t2}")
        A(f"s_lshl_b32 s{s_t0}, s{s_t0}, 7")
        A(f"s_add_u32 s{s_t0}, s{s_t0}, {SCR+OX}")
        A(f"v_lshl_add_u32 v{a_ow}, v{v_c}, 4, s{s_t0}")
        A(f"v_lshl_add_u32 v{a_ow}, v{T+3}, 3, v{a_ow}")
        A(f"v_bfe_u32 v{T+5}, v1, 3, 1")
        A(f"v_lshl_add_u32 v{a_ow}, v{T+5}, 6, v{a_ow}")
        A(f"v_xor_b32 v{T+4}, 1, v{T+4}")
        A(f"v_lshl_add_u32 v{a_ow}, v{T+4}, 9, v{a_ow}")
        C("hop-1 publish: row (hkv, h=w, j)")
        A(f"s_lshl2_add_u32 s{s_t0}, s{s_hkv}, s{s_w}")
        A(f"s_lshl_b32 s{s_t0}, s{s_t0}, 5")
        A(f"s_add_u32 s{s_t0}, s{s_t0}, s{s_j}")
        A(f"s_lshl_b32 s{s_t0}, s{s_t0}, 9")
        A(f"s_add_u32 s{s_h1pub}, s{s_t0}, {WS_H1}")
        C("combine: writers (lane (g,h)) and readers (head w, d4)")
        A(f"v_lshlrev_b32 v{T+3}, 9, v{v_c}")
        A(f"v_lshl_add_u32 v{T+3}, v{v_g}, 4, v{T+3}")
        A(f"s_lshl_b32 s{s_t0}, s{s_w}, 11")
        A(f"s_add_u32 s{s_t0}, s{s_t0}, {SCR+OPA}")
        A(f"v_add_u32 v{a_cwa}, s{s_t0}, v{T+3}")
        A(f"v_add_u32 v{a_cwb}, s{s_wb}, v{T+3}")
        A(f"s_lshl_b32 s{s_t0}, s{s_w}, 2")
        A(f"s_add_u32 s{s_t0}, s{s_t0}, {SCR+ML}")
        A(f"v_lshl_add_u32 v{a_cml}, v{v_c}, 4, s{s_t0}")
        A(f"v_and_b32 v{T+3}, 7, v1")
        A(f"v_lshlrev_b32 v{T+3}, 4, v{T+3}")
        A(f"v_add_u32 v{a_mlr}, {SCR+ML}, v{T+3}")
        A(f"v_and_b32 v{T+3}, 31, v1")
        A(f"s_lshl_b32 s{s_t0}, s{s_w}, 9")
        A(f"v_lshl_add_u32 v{a_crb}, v{T+3}, 4, s{s_t0}")
        A(f"v_add_u32 v{a_cra}, {SCR+OPA}, v{a_crb}")
        A(f"v_add_u32 v{a_crb2}, {2*RING}, v{a_crb}")
        C("log-sum-exp exchange among the 16 splits: lane = (br = bit4, s = n)")
        A(f"s_lshl_b32 s{s_t0}, s2, 7")
        A(f"s_add_u32 s{s_lpub}, s{s_t0}, {WS_LB}")
        A(f"s_andn2_b32 s{s_t0}, s{s_t0}, 0x7ff")
        A(f"s_lshl3_add_u32 s{s_t0}, s{s_w}, s{s_t0}")
        A(f"s_add_u32 s{s_lget}, s{s_t0}, {WS_LB}")
        A(f"v_bfe_u32 v{T+3}, v1, 4, 1")
        A(f"v_lshlrev_b32 v{T+3}, 5, v{T+3}")
        A(f"v_lshl_add_u32 v{a_lg}, v{v_n}, 7, v{T+3}")
        C("tag bit patterns and the selector operand (1.0 where element == row)")
        for e in range(4):
            A(f"s_bfe_u32 s{s_t0}, s{s_tag8}, {0x10000 + 2*e:#x}")
            A(f"s_bfe_u32 s{s_t1}, s{s_tag8}, {0x10001 + 2*e:#x}")
            A(f"s_pack_ll_b32_b16 s{s_t0}, s{s_t0}, s{s_t1}")
            A(f"v_mov_b32 v{v_pat+e}, s{s_t0}")
        A(f"v_and_b32 v{T+3}, 1, v1")
        A(f"v_lshlrev_b32 v{T+3}, 4, v{T+3}")
        A(f"v_mov_b32 v{T+4}, 0x3f80")
        A(f"v_lshlrev_b32 v{T+3}, v{T+3}, v{T+4}")
        A(f"v_lshrrev_b32 v{T+4}, 1, v{v_n}")
        for e in range(4):
            A(f"v_xor_b32 v{T+5}, {e}, v{T+4}")
            A(f"v_min_u32 v{T+5}, 1, v{T+5}")
            A(f"v_add_u32 v{T+5}, -1, v{T+5}")
            A(f"v_and_b32 v{v_sel+e}, v{T+5}, v{T+3}")

    def setup_gate():
        C("gate factor: g in lanes with bit 2 clear, 1-g in the others, with the reference's bf16 rounding points")
        X, Wt = GX, GX + 8
        for r in range(8):
            A(f"v_lshlrev_b32 v{T}, 16, v{X+r}")
            A(f"v_lshlrev_b32 v{T+1}, 16, v{Wt+r}")
            A(f"v_and_b32 v{X+r}, 0xffff0000, v{X+r}")
            A(f"v_and_b32 v{Wt+r}, 0xffff0000, v{Wt+r}")
            A(f"v_mul_f32 v{T}, v{T}, v{T+1}")
            A(f"v_mul_f32 v{X+r}, v{X+r}, v{Wt+r}")
            A(f"v_cvt_pk_bf16_f32 v{X+r}, v{T}, v{X+r}")
        for r in range(8):
            A(f"v_dot2_f32_bf16 v{T+2}, v{X+r}, v{v_one}, " + ("0" if r == 0 else f"v{T+2}"))
        A("s_nop 2")
        for d in (1, 2, 4, 8):
            A(f"v_add_f32_dpp v{T+2}, v{T+2}, v{T+2} row_ror:{d} row_mask:0xf bank_mask:0xf")
            A("s_nop 1")
        A(f"v_mov_b32 v{T+3}, v{T+2}")
        A("s_nop 1")
        A(f"v_permlane16_swap_b32 v{T+2}, v{T+3}")
        A("s_nop 0")
        A(f"v_add_f32 v{T+2}, v{T+2}, v{T+3}")
        A(f"v_cvt_pk_bf16_f32 v{T+2}, 0, v{T+2}")
        A(f"v_mul_f32 v{T+2}, {f2u(-LOG2E):#x}, v{T+2}")
        A(f"v_exp_f32 v{T+2}, v{T+2}")
        A("s_nop 0")
        A(f"v_add_f32 v{T+2}, 1.0, v{T+2}")
        A(f"v_rcp_f32 v{T+2}, v{T+2}")
        A(f"v_bfe_i32 v{T+4}, v1, 2, 1")
        A(f"v_cvt_pk_bf16_f32 v{T+2}, 0, v{T+2}")
        A(f"v_sub_f32 v{T+3}, 1.0, v{T+2}")
        A(f"v_cvt_pk_bf16_f32 v{T+3}, 0, v{T+3}")
        A(f"v_bfi_b32 v{v_gf}, v{T+4}, v{T+3}, v{T+2}")

    def spin_guard():
        A(f"s_sub_u32 s{s_spin}, s{s_spin}, 1")
        A("s_cbranch_scc1 L_end")

    def qloads(track):
        A(f"s_add_u32 s{s_t0}, s{s_qoff}, 0x8000")
        for br in range(2):
            s = f"buffer_load_dwordx4 {vr(B+4*br,4)}, v{a_q}, {srd(sWS)}, s{s_t0 if br else s_qoff} offen sc1"
            if track:
                st["q"] = g.vmem(s)
            else:
                A(s)

    def q_validate():
        C("---- validate this wave's head of q (both branches), share through LDS ----")
        g.wait_vm(st["q"])
        L("L_qcheck")
        for r in range(8):
            A(f"v_xor_b32 v{B+r}, s{s_tag8}, v{B+r}")
        A(f"v_or_b32 v{T}, v{B}, v{B+1}")
        for i in range(2, 8, 2):
            A(f"v_or3_b32 v{T}, v{T}, v{B+i}, v{B+i+1}")
        A(f"v_and_b32 v{T}, 0xff, v{T}")
        A(f"v_cmp_ne_u32 vcc, 0, v{T}")
        A("s_cbranch_vccnz L_qretry")
        for br in range(2):
            A(f"v_permlane32_swap_b32 v{B+4*br}, v{B+4*br+2}")
            A(f"v_permlane32_swap_b32 v{B+4*br+1}, v{B+4*br+3}")
        for br in range(2):
            A(f"v_add_f32 v{B+4*br}, v{B+4*br}, v{B+4*br+2}")
            A(f"v_add_f32 v{B+4*br+1}, v{B+4*br+1}, v{B+4*br+3}")
        for br in range(2):
            A(f"v_cvt_pk_bf16_f32 v{B+4*br}, v{B+4*br}, v{B+4*br+1}")
        for br in range(2):
            A(f"ds_write_b32 v{a_qw}, v{B+4*br} offset:{br*1024}")
        A("s_waitcnt lgkmcnt(0)")
        A(f"ds_write_b32 v{a_fw}, v{v_one}")

    def flag_wait(name, off):
        L(name)
        A(f"ds_read_b128 {vr(B,4)}, v{a_fr} offset:{off}")
        spin_guard()
        A("s_waitcnt lgkmcnt(0)")
        A(f"v_and_b32 v{B}, v{B}, v{B+1}")
        A(f"v_and_b32 v{B+2}, v{B+2}, v{B+3}")
        A(f"v_and_b32 v{B}, v{B}, v{B+2}")
        A(f"v_cmp_eq_u32 vcc, 0, v{B}")
        A(f"s_cbranch_vccnz {name}")

    def q_fetch():
        flag_wait("L_qflag", 0)
        for j in range(4):
            A(f"ds_read_b128 {ar(a_qop+4*j,4)}, v{a_qr} offset:{j*64}")
        if NLO:
            A(f"s_mov_b32 s{s_brk}, 0")
            A(f"s_mov_b32 s{s_gk}, 0")
        stamp("qval")
        st["qready"] = True

    def q_fetch_b():
        for j in range(4):
            A(f"ds_read_b128 {ar(a_qop+16+4*j,4)}, v{a_qr} offset:{1024+j*64}")

    def lanes_h():
        A("s_mov_b32 exec_lo, 0x000f000f")
        A("s_mov_b32 exec_hi, 0x000f000f")

    def dump_ml(br):
        A(f"ds_write_b32 v{a_cml}, v{v_m} offset:{br*64}")
        A(f"ds_write_b32 v{a_cml}, a{a_l} offset:{128+br*64}")

    def dump_o(br):
        adr, off = (a_cwa, 0) if br == 0 else (a_cwb, FSLOT * 4096)
        for cb in range(8):
            A(f"ds_write_b128 v{adr}, {ar(a_o+4*cb,4)} offset:{off+cb*64}")

    def lam_math():
        C("lane (br, h): workgroup maximum, sum, log-sum-exp and the weights of the four waves")
        A("s_waitcnt lgkmcnt(0)")
        A(f"v_max3_f32 v{T}, v{B}, v{B+1}, v{B+2}")
        A(f"v_max_f32 v{T}, v{T}, v{B+3}")
        A(f"v_mul_f32 v{T+1}, s{s_c}, v{T}")
        for w in range(4):
            A(f"v_fma_f32 v{B+w}, v{B+w}, s{s_c}, -v{T+1}")
        for w in range(4):
            A(f"v_exp_f32 v{B+w}, v{B+w}")
        A(f"v_mul_f32 v{T+2}, v{B}, v{B+4}")
        for w in range(1, 4):
            A(f"v_fmac_f32 v{T+2}, v{B+w}, v{B+4+w}")
        A(f"v_rcp_f32 v{T}, v{T+2}")
        A(f"v_log_f32 v{T+2}, v{T+2}")
        A(f"v_mov_b32 v{T+3}, s{s_tag32}")
        A(f"v_add_f32 v{T+2}, v{T+1}, v{T+2}")
        A(f"v_mul_f32 v{T}, v{T}, v{v_gf}")
        for w in range(4):
            A(f"v_mul_f32 v{v_aw+w}, v{B+w}, v{T}")
        A(f"v_lshlrev_b32 v{T+4}, 3, v1")

    def lam_store():
        A(f"s_cmp_eq_u32 s{s_w}, 0")
        A("s_cbranch_scc0 L_nolam")
        A("s_mov_b64 exec, 0xff")
        g.vmem(f"buffer_store_dwordx2 {vr(T+2,2)}, v{T+4}, {srd(sWS)}, s{s_lpub} offen sc1", optional=True)
        A("s_mov_b64 exec, -1")
        L("L_nolam")

    def lamloads(track):
        s = f"buffer_load_dwordx2 {vr(B,2)}, v{a_lg}, {srd(sWS)}, s{s_lget} offen sc1"
        if track:
            st["lam"] = g.vmem(s)
        else:
            A(s)

    def lam_validate():
        g.wait_vm(st["lam"])
        L("L_lcheck")
        A(f"v_cmp_ne_u32 vcc, s{s_tag32}, v{B+1}")
        A("s_cbranch_vccnz L_lretry")

    def wgt_math():
        C("softmax over the 16 splits -> this workgroup's share; weights of the four waves into SGPRs")
        A(f"v_max_f32_dpp v{T}, v{B}, v{B} row_ror:1 row_mask:0xf bank_mask:0xf")
        for d in (2, 4, 8):
            A("s_nop 1")
            A(f"v_max_f32_dpp v{T}, v{T}, v{T} row_ror:{d} row_mask:0xf bank_mask:0xf")
        A(f"v_sub_f32 v{T}, v{B}, v{T}")
        A(f"v_exp_f32 v{T}, v{T}")
        A("s_nop 1")
        A(f"v_add_f32_dpp v{T+1}, v{T}, v{T} row_ror:1 row_mask:0xf bank_mask:0xf")
        for d in (2, 4, 8):
            A("s_nop 1")
            A(f"v_add_f32_dpp v{T+1}, v{T+1}, v{T+1} row_ror:{d} row_mask:0xf bank_mask:0xf")
        A(f"v_rcp_f32 v{T+1}, v{T+1}")
        A(f"s_and_b32 s{s_t0}, s2, 15")
        A(f"v_mul_f32 v{T}, v{T}, v{T+1}")
        A(f"s_add_u32 s{s_t1}, s{s_t0}, 16")
        A(f"v_readlane_b32 s{s_t2}, v{T}, s{s_t0}")
        A(f"v_readlane_b32 s{s_t3}, v{T}, s{s_t1}")
        A(f"v_bfe_i32 v{T+2}, v1, 2, 1")
        A(f"s_add_u32 s{s_t1}, s{s_w}, 4")
        A(f"v_mov_b32 v{T}, s{s_t2}")
        A(f"v_mov_b32 v{T+1}, s{s_t3}")
        A(f"v_bfi_b32 v{T}, v{T+2}, v{T+1}, v{T}")
        for w in range(4):
            A(f"v_mul_f32 v{v_aw+w}, v{v_aw+w}, v{T}")
        A("s_nop 0")
        for w in range(4):
            A(f"v_readlane_b32 s{s_fw+w}, v{v_aw+w}, s{s_w}")
            A(f"v_readlane_b32 s{s_fw+4+w}, v{v_aw+w}, s{s_t1}")
        A("s_nop 1")

    def comb_read(br):
        for w in range(4):
            if br == 0:
                A(f"ds_read_b128 {vr(B+4*w,4)}, v{a_cra} offset:{w*2048}")
            else:
                A(f"ds_read_b128 {vr(B+4*w,4)}, v{a_crb if w < 2 else a_crb2} offset:{(w&1)*RING + FSLOT*4096}")

    def comb_math(br, counted):
        for w in range(4):
            if counted:
                A(f"s_waitcnt lgkmcnt({3-w})")
            elif w == 0:
                A("s_waitcnt lgkmcnt(0)")
            for e in range(4):
                if w == 0:
                    A(f"v_mul_f32 v{B+e}, s{s_fw+4*br}, v{B+e}")
                else:
                    A(f"v_fmac_f32 v{B+e}, s{s_fw+4*br+w}, v{B+4*w+e}")
        for e in range(4):
            A(f"v_add_u32 v{B+e}, 0x10000, v{B+e}")
        o = 2 - 2 * br
        for k in range(2):
            A(f"v_perm_b32 v{v_pub+o+k}, v{B+2*k+1}, v{B+2*k}, s{s_perm}")
        for k in range(2):
            A(f"v_and_or_b32 v{v_pub+o+k}, v{v_pub+o+k}, s{s_m15}, v{v_pat+o+k}")

    def h2loads(off, flags="sc1", track=False):
        for j in range(4):
            s = f"buffer_load_dwordx4 {vr(B+4*j,4)}, v{a_l16}, {srd(sWS)}, s{off} offen offset:{j*1024} {flags}"
            g.vmem(s, optional=True) if track else A(s)

    def warm2():
        C("bring the lines of the final reduction into this die's cache")
        A(f"s_cmp_ge_u32 s{s_f}, 32")
        A("s_cbranch_scc1 L_nowarm")
        A("s_mov_b32 exec_lo, 0x01010101")
        A("s_mov_b32 exec_hi, 0x01010101")
        for j in range(4):
            g.vmem(f"buffer_load_dword v{v_tw}, v{a_l16}, {srd(sWS)}, s{s_h2get} offen offset:{j*1024} {WARM2 if isinstance(WARM2, str) else 'sc1'}", optional=True)
        A("s_mov_b64 exec, -1")
        L("L_nowarm")

    def code_pre():
        C("pull the rest of this straight-line code towards the cache: four lines per wave")
        A("s_getpc_b64 s[82:83]")
        L("L_cp")
        A(f"s_lshr_b32 s{s_u}, s2, 3")
        A(f"s_lshl2_add_u32 s{s_u}, s{s_u}, s{s_w}")
        A(f"s_lshl_b32 s{s_u}, s{s_u}, 9")
        A(f"v_lshl_add_u32 v{v_tw+1}, v{v_c}, 7, s{s_u}")
        A(f"v_min_u32 v{v_tw+1}, L_end-L_cp, v{v_tw+1}")
        A("s_mov_b64 exec, 15")
        g.vmem(f"global_load_dword v{v_tw}, v{v_tw+1}, s[82:83]")
        A("s_mov_b64 exec, -1")

    def touch(k):
        def f():
            C("touch the next buffer's pages")
            A("s_mov_b64 exec, 3")
            A(f"v_lshlrev_b32 v{v_tw+1}, 22, v1")
            if k < 4:
                A(f"s_andn2_b32 s{s_u}, s{s_kvb}, 0x400000")
                g.vmem(f"buffer_load_dword v{v_tw}, v{v_tw+1}, {srd(sKV[k])}, s{s_u} offen nt")
            else:
                A("s_mov_b64 exec, 1")
                g.vmem(f"buffer_load_dword v{v_tw}, v{v_tw+1}, {srd(sWO)}, s{s_wooff} offen nt")
                g.vmem(f"buffer_load_dword v{v_tw}, v{v_tw+1}, {srd(sO)}, 0 offen nt")
            A("s_mov_b64 exec, -1")
        return f

    def ctl_load():
        st["ctl"] = g.vmem(f"buffer_load_dword v{v_ct}, v{a_pr}, {srd(sWS)}, 0 offen sc1")
        st["ctl_t"] = Z[st["p"]][1] + Z[st["p"]][2] / 4.0
        if "geval" in st and st["p"] >= st["geval"][1] + 8:
            st["pick"] = st.pop("geval")[0]
            log.append((st["p"], "pick", st["pick"]))

    def ctl_use():
        g.wait_vm(st["ctl"])
        t0 = st["ctl_t"]
        tn = Z[st["p"]][1] + 1
        x, y = v_ct, v_ct + 1
        A(f"v_xor_b32 v{x}, s{s_tagp}, v{x}")
        A(f"v_lshrrev_b32 v{y}, 8, v{x}")
        pick = st.pop("pick", None)
        if pick is not None:
            A(f"v_readlane_b32 s{s_c0}, v{x}, {32 + pick}")
            A(f"s_cmp_lt_u32 s{s_c0}, 256")
            A(f"s_cselect_b32 s{s_c0}, s{s_c0}, 128")
            A(f"s_add_i32 s{s_gb}, s{s_c0}, {tn - 128}")
            if GBRK:
                A(f"s_sub_i32 s{s_gk}, {tn + 128 - round(GBRK)}, s{s_c0}")
        A(f"v_cmp_eq_u32 s[82:83], 0, v{y}")
        A(f"v_mov_b32 v{y}, {max(0, int(t0) - round(BIAS))}")
        A("s_nop 0")
        A(f"v_cndmask_b32 v{x}, v{y}, v{x}, s[82:83]")
        for d in (1, 2, 4, 8):
            A("s_nop 1")
            A(f"v_add_u32_dpp v{x}, v{x}, v{x} row_ror:{d} row_mask:0xf bank_mask:0xf")
        A("s_nop 0")
        A(f"v_readlane_b32 s{s_c0}, v{x}, 0")
        A(f"v_readlane_b32 s{s_c1}, v{x}, 16")
        A(f"s_add_u32 s{s_c0}, s{s_c0}, s{s_c1}")
        A(f"s_sub_i32 s{s_c0}, s{s_c0}, {round(32 * (t0 - BIAS))}")
        if GR:
            A(f"s_ashr_i32 s{s_dev}, s{s_c0}, 1")
        if NLO:
            A(f"s_add_i32 s{s_c1}, s{s_c0}, {round(32 * BRK)}")
            A(f"s_mul_i32 s{s_c1}, s{s_c1}, {-round(BGAIN * 8)}")
            A(f"s_ashr_i32 s{s_c1}, s{s_c1}, 8")
            A(f"s_min_i32 s{s_c1}, s{s_c1}, {NMAXB}")
            A(f"s_add_i32 s{s_brk}, s{s_c1}, {tn}")
            if GBRK:
                A(f"s_max_i32 s{s_brk}, s{s_brk}, s{s_gk}")
        A(f"s_mul_i32 s{s_c0}, s{s_c0}, {round(GAIN * 8)}")
        A(f"s_ashr_i32 s{s_c0}, s{s_c0}, 8")
        A(f"s_min_i32 s{s_c0}, s{s_c0}, {NMAXB}")
        A(f"s_add_i32 s{s_boost}, s{s_c0}, {tn}")
        if GR:
            A(f"s_max_i32 s{s_boost}, s{s_boost}, s{s_gb}")

    def g_sample(r, k):
        def f():
            A(f"s_mov_b32 s{s_u}, {r * 8 * 4224}")
            st["gs"] = g.vmem(f"buffer_load_dword v{v_gs+k}, v{a_gs}, {srd(sWS)}, s{s_u} offen sc1")
        return f

    def g_publish(r):
        def f():
            A(f"s_bitcmp1_b32 s{s_gpo}, 30")
            A(f"s_cbranch_scc1 L_gp{r}")
            A(f"s_add_i32 s{s_c0}, s{s_dev}, 128")
            A(f"s_max_i32 s{s_c0}, s{s_c0}, 0")
            A(f"s_min_i32 s{s_c0}, s{s_c0}, 255")
            A(f"v_or_b32 v{v_tw}, s{s_c0}, v{v_pl}")
            A(f"s_add_u32 s{s_u}, s{s_gpo}, {r * 8 * 4224}")
            g.vmem(f"buffer_store_dword v{v_tw}, v{a_pw}, {srd(sWS)}, s{s_u} offen sc1", optional=True)
            L(f"L_gp{r}")
        return f

    def g_eval(r):
        def f():
            W = GWIN[0] + GWIN[1]
            g.wait_vm(st["gs"])
            A(f"s_bitcmp1_b32 s{s_gpo}, 30")
            A(f"s_cbranch_scc1 L_ge{r}")
            for k in range(W):
                A(f"v_xor_b32 v{v_gs+k}, s{s_tagp}, v{v_gs+k}")
            A(f"v_min_u32 v{v_tw}, 0x100, v{v_gs+W-1}")
            A(f"v_lshrrev_b32 v{v_tw+1}, 1, v{v_tw}")
            A(f"v_and_b32 v{v_tw+1}, 0x80, v{v_tw+1}")
            A(f"v_and_b32 v{v_tw}, 0xff, v{v_tw}")
            A(f"v_add_u32 v{v_tw}, v{v_tw}, v{v_tw+1}")
            for k in range(W):
                A(f"v_lshrrev_b32 v{v_gs+k}, 8, v{v_gs+k}")
                A(f"v_min_u32 v{v_gs+k}, 1, v{v_gs+k}")
                A(f"v_lshlrev_b32 v{v_gs+k}, 4, v{v_gs+k}")
                A(f"v_sub_u32 v{v_tw}, v{v_tw}, v{v_gs+k}")
            A(f"s_and_b32 s{s_c1}, s2, 7")
            A(f"v_readlane_b32 s{s_c0}, v{v_tw}, s{s_c1}")
            for d in ("quad_perm:[1,0,3,2]", "quad_perm:[2,3,0,1]", "row_half_mirror"):
                A("s_nop 1")
                A(f"v_add_u32_dpp v{v_tw}, v{v_tw}, v{v_tw} {d} row_mask:0xf bank_mask:0xf")
            A("s_nop 0")
            A(f"v_readlane_b32 s{s_c1}, v{v_tw}, 0")
            A(f"s_lshl_b32 s{s_c0}, s{s_c0}, 3")
            A(f"s_sub_i32 s{s_c0}, s{s_c1}, s{s_c0}")
            A(f"s_add_i32 s{s_c0}, s{s_c0}, {round(128 * GOFF)}")
            A(f"s_mul_i32 s{s_c0}, s{s_c0}, {round(GK * 8)}")
            A(f"s_add_i32 s{s_c0}, s{s_c0}, 512")
            A(f"s_ashr_i32 s{s_c0}, s{s_c0}, 10")
            A(f"s_max_i32 s{s_c0}, s{s_c0}, {-GMAX - round(GBRK)}")
            A(f"s_min_i32 s{s_c0}, s{s_c0}, {GMAX}")
            A(f"s_add_i32 s{s_c0}, s{s_c0}, 128")
            A(f"v_or_b32 v{v_tw}, s{s_c0}, v{v_pl}")
            g.vmem(f"buffer_store_dword v{v_tw}, v{a_pw}, {srd(sWS)}, s{s_bc} offen offset:{4*r}", optional=True)
            L(f"L_ge{r}")
            st["geval"] = (r, st["p"])
        return f

    kf = lambda t: a_kf + 16 * (t % R)
    def KR(t):
        for j in range(4):
            A(f"ds_read_b128 {ar(kf(t)+4*j,4)}, v{v_rk+j} offset:{slot_of(t)*4096}")
    def LW(t):
        A("s_waitcnt lgkmcnt(0)")
    def QK(t):
        A("s_waitcnt lgkmcnt(0)")
        q = a_qop + 16 * (t // 64)
        for j in range(4):
            A(f"v_mfma_f32_16x16x32_bf16 {vr(v_s,4)}, {ar(kf(t)+4*j,4)}, {ar(q+4*j,4)}, " + ("0" if j == 0 else vr(v_s, 4)))
    def SC(t):
        k = t % 32
        A("s_nop 7")
        for r in range(4):
            A(f"v_cvt_pk_bf16_f32 v{v_s+r}, 0, v{v_s+r}")
        for r in range(4):
            A(f"v_mul_f32 v{v_s+r}, s{s_rs}, v{v_s+r}")
        if k == 0:
            A(f"v_max_f32 v{v_mx}, v{v_s}, v{v_s+1}")
        else:
            A(f"v_max3_f32 v{v_mx}, v{v_mx}, v{v_s}, v{v_s+1}")
        A(f"v_cvt_pk_bf16_f32 v{v_sc+2*k}, v{v_s}, v{v_s+1}")
        A(f"v_max3_f32 v{v_mx}, v{v_mx}, v{v_s+2}, v{v_s+3}")
        A(f"v_cvt_pk_bf16_f32 v{v_sc+2*k+1}, v{v_s+2}, v{v_s+3}")
    def MX(t):
        C("true maximum of this wave's scores per head")
        assert t < 64 or st["dumpA"]
        A(f"v_mov_b32 v{v_mt}, v{v_mx}")
        A("s_nop 1")
        A(f"v_permlane32_swap_b32 v{v_mx}, v{v_mt}")
        A(f"v_max_f32 v{v_mx}, v{v_mx}, v{v_mt}")
        A(f"v_mov_b32 v{v_mt}, v{v_mx}")
        A("s_nop 1")
        A(f"v_permlane16_swap_b32 v{v_mx}, v{v_mt}")
        A(f"v_max_f32 v{v_mx}, v{v_mx}, v{v_mt}")
        A(f"v_cvt_pk_bf16_f32 v{v_m}, 0, v{v_mx}")
        A(f"v_mul_f32 v{v_nmc}, {f2u(-LOG2E):#x}, v{v_m}")
        stamp("endKA" if t < 64 else "endKB")
    def PP(t):
        k = t % 32
        A(f"v_lshlrev_b32 v{v_s}, 16, v{v_sc+2*k}")
        A(f"v_and_b32 v{v_s+1}, 0xffff0000, v{v_sc+2*k}")
        A(f"v_lshlrev_b32 v{v_s+2}, 16, v{v_sc+2*k+1}")
        A(f"v_and_b32 v{v_s+3}, 0xffff0000, v{v_sc+2*k+1}")
        for r in range(4):
            A(f"v_fma_f32 v{v_s+r}, v{v_s+r}, s{s_c}, v{v_nmc}")
        for r in range(4):
            A(f"v_exp_f32 v{v_s+r}, v{v_s+r}")
        A(f"v_cvt_pk_bf16_f32 v{v_sc+2*k}, v{v_s}, v{v_s+1}")
        A(f"v_cvt_pk_bf16_f32 v{v_sc+2*k+1}, v{v_s+2}, v{v_s+3}")
        if k & 1:
            A("s_nop 1")
            A(f"v_mfma_f32_16x16x32_bf16 {ar(a_l,4)}, {vr(v_one,4)}, {vr(v_sc+2*k-2,4)}, " + ("0" if k == 1 else ar(a_l, 4)))
    def VR(t):
        assert st["rest"]
        for cb in range(8):
            A(f"ds_read_b64_tr_b16 {ar(a_vf+4*cb+2*(t&1),2)}, v{v_rv+cb} offset:{slot_of(t)*4096}")
    def pv(t, cb):
        k = t % 32 - 1
        assert ("PP", t) in done
        A(f"v_mfma_f32_16x16x32_bf16 {ar(a_o+4*cb,4)}, {ar(a_vf+4*cb,4)}, {vr(v_sc+2*k,4)}, " + ("0" if k == 0 else ar(a_o + 4 * cb, 4)))
    def PVa(t):
        A("s_waitcnt lgkmcnt(0)")
        for cb in range(4):
            pv(t, cb)
    def PVb(t):
        for cb in range(4, 8):
            pv(t, cb)
        if t == 63:
            stamp("endVA")

    def landed(pl):
        p = pl + 1
        while p < len(Z) and p - Nguar(p) - ((Nguar(p) + 3) // 4 if PC0 - 32 <= p < pos_of(NT - 6, 0) + 16 else 0) < pl:
            p += 1
        return max(p, P0 + PX)

    main = []
    for t in range(R):
        main.append((KR, t, landed(pos_of(t, 3)), pos_of(t, 3), False))
        main.append((LW, t, landed(pos_of(t, 3)) + 1, None, False))
    for t in range(NT):
        l0 = landed(pos_of(t, 3))
        if isK(t):
            if t >= R:
                main.append((KR, t, l0, pos_of(t, 3), True))
            main += [(QK, t, l0 + 1, None, True), (SC, t, l0 + 2, None, True)]
            if t % 32 == 31:
                main.append((MX, t, l0 + 3, None, True))
        elif t % 2 == 0:
            main.append((VR, t, l0, pos_of(t, 3), True))
        else:
            main += [(VR, t, l0, pos_of(t, 3), True), (PVa, t, l0 + 1, None, True), (PVb, t, l0 + 2, None, True)]
    done = set()
    cost = {"LW": 0}
    ppq = [t for t in range(NT) if not isK(t)]

    PVAL = landed(PQ) + 1
    mark = lambda k: (lambda: st.__setitem__(k, True))
    side = []
    for f in g.split(setup_head, CH):
        side.append((P0, f, False))
    side.append((P0, mark("setup"), True))
    side.append((P0, lambda: g.wait_vm(last_gate), True))
    for f in g.split(setup_gate, CH):
        side.append((P0, f, False))
    side.append((PQ, lambda: qloads(True), True))
    side.append((PVAL, q_validate, True))
    side.append((PVAL + QLAG, q_fetch, True))
    side.append((0, q_fetch_b, False))
    for f in g.split(setup_rest, CH):
        side.append((0, f, False))
    side.append((0, mark("rest"), True))
    def dumpA():
        A("s_nop 5")
        lanes_h()
        dump_ml(0)
        dump_o(0)
        A("s_mov_b64 exec, -1")
        st["dumpA"] = True
    side.append((lambda p: ("PVb", 63) in done, dumpA, False))
    def dumpB():
        A("s_nop 5")
        lanes_h()
        dump_ml(1)
        A("s_mov_b64 exec, -1")
        A("s_waitcnt lgkmcnt(0)")
        A(f"ds_write_b32 v{a_fw}, v{v_one} offset:16")
        st["pB"] = st["p"]
    side.append((lambda p: ("PP", NT - 1) in done, dumpB, False))
    def lam_read():
        flag_wait("L_lflag", 16)
        A(f"ds_read_b128 {vr(B,4)}, v{a_mlr}")
        A(f"ds_read_b128 {vr(B+4,4)}, v{a_mlr} offset:128")
    side.append((lambda p: p >= st["pB"] + LLAG, lam_read, False))
    for f in g.split(lam_math, CH):
        side.append((0, f, False))
    side.append((0, lam_store, True))
    side.append((PWG, lambda: lamloads(True), True))
    side.append((landed(PWG) + 1, lam_validate, True))
    for f in g.split(wgt_math, 24):
        side.append((0, f, False))
    side.append((0, lambda: comb_read(0), True))
    side.append((0, lambda: comb_math(0, False), False))

    extra = []
    for t in range(C0 - 2, NT - CEND, CK):
        extra.append((pos_of(t, 2), ctl_load))
        extra.append((landed(pos_of(t, 3)), ctl_use))
    for r, tr in enumerate(GR):
        assert GWIN[0] + GWIN[1] <= 12
        for k in range(GWIN[0] + GWIN[1]):
            extra.append((pos_of(tr - GWIN[0] + k + 1, 3), g_sample(r, k)))
        extra.append((pos_of(tr, 2), g_publish(r)))
        extra.append((landed(pos_of(tr + GWIN[1] + 1, 0)), g_eval(r)))
    if CP:
        extra.append((CP, code_pre))
    if TW:
        for k in range(1, 5):
            extra.append((OFF + 128 * k - TW, touch(k)))
    if WARM2 and W2P >= 0:
        extra.append((pos[("wo", 0)] - 1 - W2P, warm2))
    extra.sort(key=lambda x: x[0])

    mi = si = ci = 0
    for p in range(P0 + PX, len(Z) - WOL - WOA):
        z = Z[p]
        st["p"] = p
        if z[0] == "kv" and z[2] == 0 and z[1] >= NSLOT:
            prev = z[1] - NSLOT
            assert (("QK", prev) in done or ("LW", prev) in done) if isK(prev) else ("PVa", prev | 1) in done, (p, z)
        issue(p)
        while ci < len(extra) and extra[ci][0] <= p:
            extra[ci][1]()
            ci += 1
        used = 0
        if ppq and ("MX", ppq[0] // 32 * 32 - 1) in done:
            t = ppq.pop(0)
            PP(t)
            done.add(("PP", t)); log.append((p, "PP", t))
        while mi < len(main):
            f, t, e, ld, nq = main[mi]
            if e > p or (nq and not st.get("qready")) or (f is PVa and ("PP", t) not in done):
                break
            c = cost.get(f.__name__, 1)
            if used + c > (3 if e < p - 1 else 1):
                break
            if ld is not None:
                assert ids[ld] not in g.vm, (f.__name__, t, p)
            f(t)
            done.add((f.__name__, t)); log.append((p, f.__name__, t))
            used += c; mi += 1
        while si < len(side) and (used == 0 or side[si][2]):
            e, f, forced = side[si]
            if not (e(p) if callable(e) else e <= p):
                break
            f()
            log.append((p, "side", si))
            si += 1
            if not forced:
                used += 1
    assert si == len(side) and not ppq and ci == len(extra), (si, len(side))
    C("---- drain ----")
    while mi < len(main):
        f, t, e, ld, nq = main[mi]
        if ld is not None:
            g.wait_vm(ids[ld])
        if t == NT - 1 and f is PVa:
            for p in range(len(Z) - WOL - WOA, len(Z) - WOA):
                issue(p, throttle=False)
        if t == NT - 1 and f is PVa:
            for cb in range(8):
                A(f"s_waitcnt lgkmcnt({7-cb})")
                pv(t, cb)
        elif not (t == NT - 1 and f is PVb):
            f(t)
        mi += 1
    stamp("drained")

    C("---- combine the four waves, publish both branches ----")
    lanes_h()
    dump_o(1)
    A("s_mov_b32 exec_lo, -1")
    A("s_mov_b32 exec_hi, 0")
    A("s_waitcnt lgkmcnt(0)")
    A("s_barrier")
    stamp("bar")
    comb_read(1)
    comb_math(1, True)
    A(f"buffer_store_dwordx4 {vr(v_pub,4)}, v{a_l16}, {srd(sWS)}, s{s_h1pub} offen sc1")
    A("s_mov_b64 exec, -1")
    stamp("pub1")
    if WARM2 and W2P < 0:
        warm2()
    for p in range(len(Z) - WOA, len(Z)):
        issue(p, throttle=False)
    C("the output-projection weights were the last loads of the stream")
    A(f"s_waitcnt vmcnt({WOK})")
    def h1loads():
        for i in range(4):
            A(f"buffer_load_dwordx4 {vr(B+4*i,4)}, v{a_g1}, {srd(sWS)}, s{s_h1get} offen offset:{i*512} sc1")
    h1loads()
    if WOK:
        A("s_waitcnt vmcnt(4)")
    stamp("wo")
    A("s_barrier")
    for k in range(8):
        for hf in range(2):
            A(f"ds_read_b64_tr_b16 {ar(a_wop+k*4+hf*2,2)}, v{a_wor} offset:{k*4096+hf*2048}")
    A("s_branch L_h1wait")
    C("---- sum the 16 partials of (dims half, batch) with a selector product ----")
    L("L_h1poll")
    if SL1:
        A(f"s_sleep {SL1}")
    h1loads()
    spin_guard()
    L("L_h1wait")
    for i in range(4):
        A(f"s_waitcnt vmcnt({3-i})")
        for e in range(4):
            A(f"v_xor_b32 v{B+4*i+e}, v{v_pat+e}, v{B+4*i+e}")
        if i == 0:
            A(f"v_or_b32 v{T}, v{B}, v{B+1}")
        else:
            A(f"v_or3_b32 v{T}, v{T}, v{B+4*i}, v{B+4*i+1}")
        A(f"v_or3_b32 v{T}, v{T}, v{B+4*i+2}, v{B+4*i+3}")
        A(f"v_mfma_f32_16x16x32_bf16 {vr(v_d,4)}, {vr(v_sel,4)}, {vr(B+4*i,4)}, " + ("0" if i == 0 else vr(v_d, 4)))
    A(f"v_and_b32 v{T}, 0x00010001, v{T}")
    A(f"v_cmp_ne_u32 vcc, 0, v{T}")
    A("s_cbranch_vccnz L_h1poll")
    stamp("h1ok")
    A("s_mov_b32 exec_hi, 0")
    A("s_nop 3")
    A(f"v_cvt_pk_bf16_f32 v{T}, v{v_d}, v{v_d+1}")
    A(f"v_cvt_pk_bf16_f32 v{T+1}, v{v_d+2}, v{v_d+3}")
    A(f"ds_write_b64 v{a_ow}, {vr(T,2)}")
    A("s_mov_b64 exec, -1")
    A("s_waitcnt lgkmcnt(0)")
    A("s_barrier")
    stamp("bar2")
    OPD = v_sc
    for k in range(8):
        A(f"ds_read_b128 {vr(OPD+4*k,4)}, v{a_or} offset:{(k>>2)*512+(k&3)*64}")
    A(f"v_mov_b32 v{T+2}, s{s_tag12}")
    A(f"s_add_u32 s{s_t2}, s{s_h2pub}, {WS_P2-WS_P1}")
    for k in range(8):
        A(f"s_waitcnt lgkmcnt({7-k})")
        A(f"v_mfma_f32_16x16x32_bf16 {vr(v_d+4,4)}, {ar(a_wop+4*k,4)}, {vr(OPD+4*k,4)}, " + ("0" if k == 0 else vr(v_d + 4, 4)))
    A("s_mov_b32 exec_lo, 0x00030003")
    A("s_mov_b32 exec_hi, 0x00030003")
    A(f"s_cmp_ge_u32 s{s_f}, 32")
    A("s_nop 4")
    for r in range(4):
        A(f"v_add_u32 v{v_d+4+r}, 0x800, v{v_d+4+r}")
    for r in range(4):
        A(f"v_and_or_b32 v{v_d+4+r}, v{v_d+4+r}, s{s_m12}, v{T+2}")
    C("once for a reader behind the same L2, once written through for any other placement")
    A(f"buffer_store_dwordx4 {vr(v_d+4,4)}, v{a_p2}, {srd(sWS)}, s{s_h2pub} offen {P1SC}")
    stamp("pub2")
    A("s_cbranch_scc0 L_final")
    A(f"buffer_store_dwordx4 {vr(v_d+4,4)}, v{a_p2}, {srd(sWS)}, s{s_t2} offen sc1")
    A("s_branch L_fin" if diag or pad else "s_endpgm")
    L("L_final")
    A("s_mov_b64 exec, -1")

    C("---- final reduction over the 32 heads ----")
    F = B
    A(f"s_lshl_b32 s{s_t0}, s{s_f}, 5")
    A(f"s_mov_b32 s{s_cnt}, {P2AFTER}")
    L("L_h2poll")
    if SL2:
        A(f"s_sleep {SL2}")
    h2loads(s_h2get)
    spin_guard()
    A(f"s_sub_u32 s{s_cnt}, s{s_cnt}, 1")
    A("s_cbranch_scc1 L_h2switch")
    L("L_h2wait")
    for j in range(4):
        A(f"s_waitcnt vmcnt({3-j})")
        for e in range(4):
            A(f"v_xor_b32 v{F+4*j+e}, s{s_tag12}, v{F+4*j+e}")
        if j == 0:
            A(f"v_or_b32 v{T}, v{F}, v{F+1}")
            A(f"v_or3_b32 v{T}, v{T}, v{F+2}, v{F+3}")
        else:
            A(f"v_or3_b32 v{T}, v{T}, v{F+4*j}, v{F+4*j+1}")
            A(f"v_or3_b32 v{T}, v{T}, v{F+4*j+2}, v{F+4*j+3}")
            for e in range(4):
                A(f"v_add_f32 v{F+e}, v{F+e}, v{F+4*j+e}")
    A(f"v_and_b32 v{T}, 0xfff, v{T}")
    A(f"v_cmp_ne_u32 vcc, 0, v{T}")
    A("s_cbranch_vccnz L_h2poll")
    A(f"v_permlane32_swap_b32 v{F}, v{F+1}")
    A(f"v_permlane32_swap_b32 v{F+2}, v{F+3}")
    A(f"v_add_f32 v{F}, v{F}, v{F+1}")
    A(f"v_add_f32 v{F+2}, v{F+2}, v{F+3}")
    A("s_nop 1")
    A(f"v_permlane16_swap_b32 v{F}, v{F+2}")
    A(f"v_add_f32 v{F}, v{F}, v{F+2}")
    A("s_nop 1")
    A(f"v_add_f32_dpp v{F}, v{F}, v{F} row_ror:8 row_mask:0xf bank_mask:0xf")
    A(f"v_cvt_pk_bf16_f32 v{F}, v{F}, v{F}")
    A("s_mov_b32 exec_lo, 0x00ff00ff")
    A("s_mov_b32 exec_hi, 0x00ff00ff")
    A(f"buffer_store_short v{F}, v{a_out}, {srd(sO)}, s{s_t0} offen")
    A(f"s_cmp_lg_u32 s{s_f}, 0")
    A("s_cbranch_scc1 L_fin")
    C("every workgroup has published, hence read, the epoch word: advance it")
    A("s_mov_b64 exec, 1")
    A(f"v_mov_b32 v{T}, s{s_tag32}")
    A(f"v_mov_b32 v{T+1}, 0")
    A(f"buffer_store_dword v{T}, v{T+1}, {srd(sWS)}, 0 offen offset:{WS_E} sc1")
    L("L_fin")
    stamp("end")
    if diag:
        A("s_mov_b64 exec, 1")
        A("s_waitcnt lgkmcnt(0)")
        if diag == 2:
            A("s_sleep 100")
        A(f"s_lshl2_add_u32 s{s_t0}, s2, s{s_w}")
        A(f"s_lshl_b32 s{s_t0}, s{s_t0}, 5")
        A(f"s_add_u32 s{s_t0}, s{s_t0}, {WS_DIAG}")
        for i in range(8):
            A(f"v_mov_b32 v{v_sc+40+i}, s{s_st+2*i}")
        A(f"v_mov_b32 v{T+3}, 0")
        A(f"buffer_store_dwordx4 {vr(v_sc+40,4)}, v{T+3}, {srd(sWS)}, s{s_t0} offen")
        A(f"buffer_store_dwordx4 {vr(v_sc+44,4)}, v{T+3}, {srd(sWS)}, s{s_t0} offen offset:16")
    L("L_end")
    A("s_endpgm")

    L("L_h2switch")
    C("not complete behind this L2: add this wave's own line to the written-through copy and read that from now on")
    A("s_waitcnt vmcnt(0)")
    A("s_mov_b32 exec_lo, 0x00030003")
    A("s_mov_b32 exec_hi, 0x00030003")
    A(f"buffer_store_dwordx4 {vr(v_d+4,4)}, v{a_p2}, {srd(sWS)}, s{s_t2} offen sc1")
    A("s_mov_b64 exec, -1")
    A(f"s_add_u32 s{s_h2get}, s{s_h2get}, {WS_P2-WS_P1}")
    A("s_branch L_h2poll")
    for label, back, loads in (("L_lretry", "L_lcheck", lambda: lamloads(False)), ("L_qretry", "L_qcheck", lambda: qloads(False))):
        L(label)
        spin_guard()
        loads()
        A("s_waitcnt vmcnt(0)")
        A(f"s_branch {back}")

    acc = (NV + 3) // 4 * 4
    g.o.append('.section .rodata,"a"')
    g.o.append(".p2align 6")
    g.o.append(f".amdhsa_kernel {KNAME}")
    g.o.append(f"  .amdhsa_next_free_vgpr {acc+NA}")
    g.o.append("  .amdhsa_next_free_sgpr 102")
    g.o.append(f"  .amdhsa_accum_offset {acc}")
    g.o.append("  .amdhsa_group_segment_fixed_size 0")
    g.o.append("  .amdhsa_kernarg_size 112")
    g.o.append("  .amdhsa_user_sgpr_count 2")
    g.o.append("  .amdhsa_user_sgpr_kernarg_segment_ptr 1")
    g.o.append("  .amdhsa_system_sgpr_workgroup_id_x 1")
    g.o.append("  .amdhsa_float_denorm_mode_32 3")
    g.o.append(".end_amdhsa_kernel")
    gen.log = log
    return "\n".join(g.o) + "\n"


if __name__ == "__main__":
    kw = {}
    for a in sys.argv[2:]:
        k, v = a.split("=")
        kw[k] = eval(v)
    src = gen(**kw)
    open(sys.argv[1], "w").write(src)
```

```python
import sys, math, struct

KNAME = "gated_mix__gqa_block_cached__gqa_block_cached__decode_kernel"

WS_E = 0x0
WS_QB = 0x1000
WS_LB = 0x30000
WS_P1 = 0x40000
WS_P2 = 0x60000
WS_PR = 0x80000
WS_GP = 0x90000
WS_H1 = 0x100000
WS_DIAG = 0x200000
WS_SIZE = 0x400000
EPOCH_INC = 0x9E3779B1

NSLOT = 7
RING = NSLOT * 4096
STG = 4 * RING
SCR = STG + 32768
QP, QX, OPA, ML, OX, FL = 0, 2048, 4096, 12288, 12544, 13568
LDS_BYTES = 163840

PATS = {
    "P1": ([[14], [15], [16], [17], [18]], [[12], [13]], [[19], [20], [21], [22]]),
    "T2": ([[14], [17], [18], [19], [20]], [[12], [13]], [[15], [16], [21], [22]]),
    "U4": ([[14], [22], [17], [18], [19]], [[12], [13]], [[15], [16], [21], [20]]),
    "U5": ([[14], [22], [17], [18], [19]], [[12, 17], [13, 18]], [[15], [16], [21, 18], [20]]),
}


def f2u(x):
    return struct.unpack("<I", struct.pack("<f", x))[0]


class Gen:
    def __init__(self):
        self.o = []
        self.fl = {"D": [], "L": [], "H": []}
        self.kind = {}
        self.nid = 0

    def A(self, s):
        self.o.append("  " + s)

    def L(self, s):
        self.o.append(s + ":")

    def C(self, s):
        self.o.append("  ; " + s)

    def vmem(self, s, optional=False, hint=False):
        self.A(s)
        self.nid += 1
        if not optional:
            k = "H" if hint or "store" in s else "D" if s.endswith(" lds") else "L"
            self.kind[self.nid] = k
            for level in {"D": "DLH", "L": "LH", "H": "H"}[k]:
                self.fl[level].append(self.nid)
        return self.nid

    def done(self, op):
        return op not in self.fl[self.kind[op]]

    def after(self, op, level="H"):
        return len(self.fl[level]) - 1 - self.fl[level].index(op)

    def _wait(self, k):
        assert k <= 63
        self.A(f"s_waitcnt vmcnt({k})")
        for level, l in self.fl.items():
            if k < len(l):
                self.fl[level] = l[len(l) - k:] if k else []

    def throttle(self, op):
        if op not in self.fl["H"]:
            return False
        self._wait(self.after(op))
        return True

    def wait_vm(self, op):
        if self.done(op):
            return False
        self._wait(self.after(op, self.kind[op]))
        return True

    def split(self, fn, n):
        keep, self.o = self.o, []
        nvm = self.nid
        fn()
        assert self.nid == nvm
        body, self.o = self.o, keep
        out, cur, k = [], [], 0
        for line in body:
            assert not line.endswith(":") and "cbranch" not in line and "s_cmp" not in line and "vcc" not in line \
                and "exec" not in line and "cselect" not in line, line
            cur.append(line)
            if not line.strip().startswith(";"):
                k += 1
            if k == n:
                out.append(cur); cur, k = [], 0
        if cur:
            out.append(cur)
        return [(lambda c=c: self.o.extend(c)) for c in out]


def gen(N=5, Npat=None, N0=8, NH=5, PH=64, NB=None, BL=16, BZ=(1, 2, 3, 4), NWO=10, R=5, PQ=36, QLAG=3, LLAG=8, PWG=484, CH=16,
        PAT="U4", XM=(0x01010101, 0), NHI=7, CK=4, C0=16, GAIN=3.0, BIAS=2.3, NMAXB=8, PT=4,
        SL1=0, SL2=0, P2AFTER=20, WARM2=True, TW=False, FWAVE=0, P1SC="", GR=(21, 41, 63, 83, 101), GWIN=(4, 6), GK=6.0, GOFF=0.5, GMAX=18,
        WOL=2, WOA=6, PX=2, NLO=None, BRK=1.0, BGAIN=3.0, GBRK=0.0, CEND=5, WOK=4, W2P=-1, CP=None, GEST=1, GACT=True, GS2=False, GPICK=8, WOH=0, WOT=32, XP=9, CP0=0,
        diag=False, SPIN=1 << 21, pad=None, smap="head"):
    g = Gen()
    A, L, C = g.A, g.L, g.C
    LOG2E = math.log2(math.e)
    Npat = Npat or [N]
    P0, OFF = 16, 8
    def Nof(p):
        if p < P0:
            return N0
        if p < PH:
            return NH
        if p >= OFF + 512 + WOH:
            return NWO
        if NB:
            for k in BZ:
                if OFF + 128 * k - BL <= p < OFF + 128 * k:
                    return NB
        return Npat[p % len(Npat)]
    PC0 = OFF + 4 * C0
    def Nguar(p):
        return max(Nof(p), NHI) if p >= PC0 else Nof(p)

    sKV = [20, 24, 28, 32]
    sWQ, sWO, sWS, sX, sG, sO = 36, 40, 44, 48, 52, 56
    srd = lambda b: f"s[{b}:{b+3}]"
    (s_w, s_b, s_hkv, s_j, s_kvb, s_kvoff, s_wb, s_stg, s_tag32, s_tag8, s_tag12, s_c, s_rs, s_t0, s_t1, s_t2, s_t3,
     s_wqoff, s_wooff, s_spin, s_colb, s_m12) = range(60, 82)
    s_qoff, s_perm, s_h1pub, s_h1get, s_h2pub, s_h2get, s_lpub, s_lget, s_m15, s_f, s_cnt = range(3, 14)
    s_boost, s_pph, s_pro, s_tagp, s_u, s_xm = range(14, 20)
    s_brk, s_bm, s_gk = s_colb, s_wqoff, s_qoff
    s_own = s_hkv
    s_c0, s_c1 = 100, 101
    s_gb, s_dev, s_gpo, s_bc = 36, 37, 38, 39
    s_fw = 48
    s_st = 84

    v_g, v_n, v_c, v_r = 2, 3, 4, 5
    a_pw, a_pr, v_pd, v_pl = 6, 7, 8, 9
    v_dv, v_rk, v_rv = 10, 12, 16
    v_mx, v_m, v_nmc, v_gf, v_mt = 24, 25, 26, 27, 28
    (a_wo, a_q, a_qw, a_qr, a_fw, a_fr, a_cwa, a_cwb, a_cml, a_cra, a_crb, a_crb2, a_mlr, a_l16, a_g1, a_ow, a_or,
     a_p2, a_lg, a_out, a_wor) = range(29, 50)
    v_ct = 50
    v_s = 52
    v_one = 56
    v_d = 60
    v_sc = 68
    T = 132
    B = 140
    v_pub = 164
    v_pat = 168
    v_sel = 172
    v_aw = 176
    v_tw = 180
    a_gs = 182
    v_gs = 184
    NV = 196
    a_qop = 0
    a_vf = 32
    a_wop = 64
    a_o = 96
    a_l = 128
    a_kf = 132
    NA = a_kf + 16 * R
    assert NA <= 256
    vr = lambda b, n: f"v[{b}:{b+n-1}]"
    ar = lambda b, n: f"a[{b}:{b+n-1}]"

    SMAPS = {"head": ["start", "qpub", "qval", "endKA", "endVA", "endKB", "drained", "end"],
             "tail": ["start", "drained", "bar", "pub1", "bar2", "h1ok", "pub2", "end"],
             "rounds": ["start"] + [f"t{t}" for t in list(GR)[:5]] + ["drained", "end"],
             "early": ["start", "p0", "p8", "p15", "qpub", "p24", "p40", "end"],
             "early2": ["start", "p20", "p28", "p36", "p48", "p64", "p96", "end"],
             "early3": ["start", "p0", "p4", "a", "b", "c", "p8", "end"],
             "late": ["start", "t100", "t110", "t116", "t121", "t125", "drained", "end"],
             "tail2": ["start", "drained", "pub1", "wo", "h1ok", "bar2", "pub2", "end"]}
    def stamp(name):
        if name not in SMAPS[smap]:
            return
        i = SMAPS[smap].index(name)
        if diag or (pad and i == 0):
            A(f"s_memrealtime s[{s_st+2*i}:{s_st+2*i+1}]")
        if pad and pad[0] == i:
            L("L_pad")
            A("s_memrealtime s[82:83]")
            A("s_waitcnt lgkmcnt(0)")
            A(f"s_sub_u32 s82, s82, s{s_st}")
            A(f"s_cmp_lt_u32 s82, {int(pad[1]*100)}")
            A("s_cbranch_scc1 L_pad")

    hdr = open("gated_mix__gqa_block_cached__gqa_block_cached__decode.s.ref").read().split("\n")
    for line in hdr:
        if line.startswith(";") and "@launch" not in line:
            g.o.append(line)
        elif not line.startswith(";"):
            break
    g.o.append(f"; @launch grid=(256,1,1) block=(256,1,1) lds={LDS_BYTES}")
    g.o.append('.amdgcn_target "amdgcn-amd-amdhsa--gfx950"')
    g.o.append(".text")
    g.o.append(f".globl {KNAME}")
    g.o.append(".p2align 8")
    g.o.append(f".type {KNAME},@function")
    L(KNAME)
    C("workgroup = (b, hkv, one of 16 key splits) for both branches; extra workgroups leave at once")
    A("s_cmp_ge_u32 s2, 256")
    A("s_cbranch_scc0 L_go")
    A("s_endpgm")
    L("L_go")
    A(f"s_lshr_b32 s{s_b}, s2, 7")
    A(f"s_mul_i32 s3, s{s_b}, 40")
    A("s_add_u32 s16, s0, s3")
    A("s_addc_u32 s17, s1, 0")
    A("s_load_dwordx2 s[14:15], s[16:17], 24")
    A("s_load_dwordx4 s[4:7], s[0:1], 8")
    A("s_load_dwordx2 s[12:13], s[0:1], 0")
    A("s_load_dwordx2 s[18:19], s[0:1], 104")
    A("s_load_dwordx4 s[8:11], s[0:1], 48")
    A("s_load_dwordx4 s[96:99], s[0:1], 80")
    stamp("start")
    if CP0:
        C("wave 0 pulls the next lines of this code into L2 while the memory system is still idle")
        A("s_getpc_b64 s[82:83]")
        A(f"v_lshlrev_b32 v{T+6}, 7, v0")
        A(f"v_cmp_gt_u32 vcc, {CP0}, v0")
        A("s_mov_b64 exec, vcc")
        A("s_cbranch_execz L_nocp0")
        g.vmem(f"global_load_dword v{T+7}, v{T+6}, s[82:83] offset:128", optional=True)
        L("L_nocp0")
        A("s_mov_b64 exec, -1")
    A(f"v_lshrrev_b32 v{T}, 6, v0")
    A("v_and_b32 v1, 63, v0")
    A(f"v_readfirstlane_b32 s{s_w}, v{T}")
    C("q slice: branch b, columns (wg>>1 & 63)*64, rows (wg&1)*256 + w*64")
    A(f"v_lshrrev_b32 v{T+2}, 3, v1")
    A(f"v_lshlrev_b32 v{T+2}, 13, v{T+2}")
    A(f"v_and_b32 v{T}, 7, v1")
    A(f"v_lshl_add_u32 v{T+2}, v{T}, 4, v{T+2}")
    A(f"s_bfe_u32 s{s_colb}, s2, 0x60001")
    A(f"s_lshl_b32 s{s_colb}, s{s_colb}, 6")
    A(f"s_and_b32 s{s_t0}, s2, 1")
    A(f"s_lshl2_add_u32 s{s_t2}, s{s_t0}, s{s_w}")
    A(f"s_lshl_b32 s{s_t0}, s{s_t2}, 19")
    A(f"s_lshl1_add_u32 s{s_wqoff}, s{s_colb}, s{s_t0}")
    A(f"s_lshl_b32 s{s_stg}, s{s_w}, 13")
    A(f"s_add_u32 s{s_stg}, s{s_stg}, {STG}")
    A(f"s_mov_b32 s{sWQ+2}, 0x400000")
    A(f"s_mov_b32 s{sWQ+3}, 0x20000")
    A("s_waitcnt lgkmcnt(0)")
    A(f"s_mov_b32 s{sWQ}, s14")
    A(f"s_and_b32 s{sWQ+1}, s15, 0xffff")
    def mksrd(d, p, size):
        A(f"s_mov_b32 s{d}, s{p}")
        A(f"s_and_b32 s{d+1}, s{p+1}, 0xffff")
        A(f"s_mov_b32 s{d+2}, {size:#x}")
        A(f"s_mov_b32 s{d+3}, 0x20000")

    S5, WM, G4 = PATS[PAT] if isinstance(PAT, str) else PAT
    msk = lambda bs: sum(1 << b for b in bs)
    basis = {}
    for v in [msk(x) for x in S5 + WM + G4]:
        while v:
            h = v.bit_length() - 1
            if h not in basis:
                basis[h] = v
                break
            v ^= basis[h]
    assert sorted(basis) == list(range(12, 23)), "pattern is not a bijection"
    def tile_off(t):
        x = 0
        for k in range(5):
            if t >> k & 1:
                x ^= msk(S5[k])
        return x
    NT = 128
    Z = [("wq", j) for j in range(8)] + [("kv", t, j) for t in range(WOT) for j in range(4)] + [("wo", j) for j in range(WOH)] + \
        [("kv", t, j) for t in range(WOT, NT) for j in range(4)] + [("wo", j) for j in range(WOH, 8)]
    pos = {z: p for p, z in enumerate(Z)}
    pos_of = lambda t, j: pos[("kv", t, j)]
    slot_of = lambda t: t % NSLOT
    isK = lambda t: (t // 32) % 2 == 0
    ids = {}
    st = {}
    log = []
    pending = []

    def cur_t():
        p = st["p"]
        while Z[p][0] != "kv":
            p -= 1
        return Z[p][1]

    def issue(p, throttle=True):
        z = Z[p]
        need_nop = False
        if z[0] == "wq":
            if z[1]:
                A(f"s_add_u32 s{s_wqoff}, s{s_wqoff}, 0x10000")
            A(f"s_add_u32 m0, s{s_stg}, {z[1]*1024}")
            need_nop = True
        elif z[0] == "wo":
            if z[1]:
                A(f"s_add_u32 s{s_wooff}, s{s_wooff}, 8192")
            A(f"s_add_u32 m0, s{s_stg}, {z[1]*1024}")
            need_nop = True
        elif z[2] == 0:
            t = z[1]
            stamp(f"t{t}")
            A(f"s_xor_b32 s{s_kvoff}, s{s_kvb}, {tile_off(t % 32):#x}")
            A(f"s_add_u32 m0, s{s_wb}, {slot_of(t)*4096}")
            need_nop = True
            if p >= PC0 and any(Nguar(q) > Nof(q) for q in range(p, p + 4)):
                if NLO:
                    A(f"s_sub_i32 s{s_bm}, {t}, s{s_brk}")
                A(f"s_cmp_gt_i32 s{s_boost}, {t}")
                A("s_cselect_b64 vcc, -1, 0")
                need_nop = False
                if XM and (XM[0] | XM[1]) >> (t % 32) & 1:
                    A(f"s_bitcmp1_b32 s{s_xm}, {t % 32}")
                    A("s_cselect_b64 vcc, -1, vcc")
        waited = False
        if throttle and p - Nguar(p) >= 0:
            waited = g.throttle(ids[p - Nguar(p)])
            if Nguar(p) > Nof(p) and ids[p - Nof(p)] in g.fl["H"]:
                A(f"s_cbranch_vccnz L_b{p}")
                A(f"s_waitcnt vmcnt({g.after(ids[p - Nof(p)])})")
                if NLO:
                    A(f"s_bitcmp0_b32 s{s_bm}, 31")
                    A(f"s_cbranch_scc1 L_b{p}")
                    A(f"s_waitcnt vmcnt({g.after(ids[p - NLO])})")
                L(f"L_b{p}")
                waited = True
        if need_nop and not waited:
            A("s_nop 0")
        stamp(f"p{p}")
        if z[0] == "wq":
            ids[p] = g.vmem(f"buffer_load_dwordx4 v{T+2}, {srd(sWQ)}, s{s_wqoff} offen nt lds")
        elif z[0] == "wo":
            ids[p] = g.vmem(f"buffer_load_dwordx4 v{a_wo}, {srd(sWO)}, s{s_wooff} offen nt lds")
        else:
            _, t, j = z
            ids[p] = g.vmem(f"buffer_load_dwordx4 v{v_dv+(j&1)}, {srd(sKV[t//32])}, s{s_kvoff} offen offset:{j*1024} nt lds")
            if j == 1 and C0 - 8 <= t < NT - 6:
                assert st["setup"]
                A(f"s_cmp_eq_u32 s{s_pph}, {t % PT}")
                A(f"s_cselect_b32 s{s_u}, s{s_pro}, {WS_SIZE:#x}")
                A(f"v_or_b32 v{v_pd}, {t}, v{v_pl}")
                g.vmem(f"buffer_store_dword v{v_pd}, v{a_pw}, {srd(sWS)}, s{s_u} offen")

    C("wq slice -> staging")
    for p in range(8):
        issue(p, throttle=False)
    stamp("a")
    A(f"s_load_dword s{s_tag32}, s[18:19], {WS_E}")
    mksrd(sKV[0], 4, 0x8000000)
    A(f"s_mul_i32 s{s_wb}, s{s_w}, {RING}")
    C("first byte of this wave's keys")
    A(f"s_lshr_b32 s{s_kvb}, s2, 4")
    A(f"s_lshl_b32 s{s_kvb}, s{s_kvb}, 23")
    for src, ms in (("s2", G4), (f"s{s_w}", WM)):
        k = 0
        while k < len(ms):
            n = 1
            while len(ms[k]) == 1 and k + n < len(ms) and list(ms[k + n]) == [ms[k][0] + n]:
                n += 1
            if len(ms[k]) == 1:
                A(f"s_bfe_u32 s{s_t0}, {src}, {(n << 16) + k:#x}")
                A(f"s_lshl_b32 s{s_t0}, s{s_t0}, {ms[k][0]}")
            else:
                A(f"s_bitcmp1_b32 {src}, {k}")
                A(f"s_cselect_b32 s{s_t0}, {msk(ms[k]):#x}, 0")
            A(f"s_xor_b32 s{s_kvb}, s{s_kvb}, s{s_t0}")
            k += n
    C("DMA voffsets: 16-byte chunk index xor 2*(key&7)")
    A(f"v_lshrrev_b32 v{v_g}, 4, v1")
    A(f"v_lshlrev_b32 v{T+3}, 1, v{v_g}")
    A(f"v_xor_b32 v{T+3}, v{T+3}, v1")
    A(f"v_lshlrev_b32 v{v_dv}, 4, v{T+3}")
    A(f"v_xor_b32 v{v_dv+1}, 0x80, v{v_dv}")
    GX = v_sc

    def pro_x():
        C("x operand of the q projection")
        mksrd(sX, 12, 2048)
        A(f"v_and_b32 v{T+1}, 1, v1")
        A(f"v_lshlrev_b32 v{T+1}, 10, v{T+1}")
        A(f"v_lshl_add_u32 v{T+1}, v{v_g}, 4, v{T+1}")
        A(f"s_lshl_b32 s{s_t2}, s{s_t2}, 7")
        for j in range(2):
            st["x"] = g.vmem(f"buffer_load_dwordx4 {vr(v_d+4*j,4)}, v{T+1}, {srd(sX)}, s{s_t2} offen offset:{j*64}")
        A(f"s_lshr_b32 s{s_t0}, s{s_w}, 1")
        A(f"s_mul_i32 s{s_t0}, s{s_t0}, 40")
        A(f"s_add_u32 s82, s0, s{s_t0}")
        A("s_addc_u32 s83, s1, 0")
        A("s_load_dwordx2 s[16:17], s[82:83], 32")

    def pro_rest():
        A(f"v_and_b32 v{v_n}, 15, v1")
        A(f"v_and_b32 v{v_c}, 3, v1")
        A(f"v_bfe_u32 v{v_r}, v1, 2, 2")
        mksrd(sG, 96, 1024)
        for k in range(1, 4):
            mksrd(sKV[k], 4 + 2 * k, 0x8000000)
        mksrd(sWS, 18, WS_SIZE)
        mksrd(sO, 98, 2048)
        A(f"s_bfe_u32 s{s_hkv}, s2, 0x30004")
        A(f"s_and_b32 s{s_j}, s2, 15")
        A(f"s_lshl4_add_u32 s{s_j}, s{s_b}, s{s_j}")
        C("clear the LDS flags")
        A(f"v_mov_b32 v{a_fr}, {SCR+FL}")
        A(f"v_lshl_add_u32 v{T}, v{v_n}, 2, v{a_fr}")
        A(f"v_mov_b32 v{T+1}, 0")
        A(f"ds_write_b32 v{T}, v{T+1}")
        C("LDS read addresses for K")
        A(f"v_lshl_add_u32 v{T+3}, v{v_n}, 8, s{s_wb}")
        A(f"v_and_b32 v{T+4}, 7, v{v_n}")
        A(f"v_lshlrev_b32 v{T+4}, 1, v{T+4}")
        A(f"v_xor_b32 v{T+4}, v{T+4}, v{v_g}")
        for j in range(4):
            A(f"v_xor_b32 v{v_rk+j}, {4*j}, v{T+4}")
            A(f"v_lshl_add_u32 v{v_rk+j}, v{v_rk+j}, 4, v{T+3}")
        C("q-proj addresses")
        A(f"v_lshl_add_u32 v{T}, v{v_g}, 3, v{v_r}")
        A(f"v_lshl_add_u32 v{T}, v{T}, 7, s{s_stg}")
        A(f"v_lshl_add_u32 v{T}, v{v_c}, 3, v{T}")
        A(f"s_lshl_b32 s{s_t0}, s{s_w}, 9")
        A(f"s_add_u32 s{s_t0}, s{s_t0}, {SCR+QP}")
        A(f"v_and_b32 v{T+1}, 1, v1")
        A(f"v_lshl_add_u32 v{T+1}, v{T+1}, 8, s{s_t0}")
        A(f"v_lshl_add_u32 v{T+1}, v{v_g}, 4, v{T+1}")
        A(f"v_and_b32 v{T+3}, 31, v1")
        A(f"v_lshlrev_b32 v{T+3}, 4, v{T+3}")
        A(f"v_add_u32 v{T+3}, {SCR+QP}, v{T+3}")
        A(f"v_bfe_u32 v{T+4}, v1, 4, 1")
        A(f"v_lshlrev_b32 v{T+4}, 14, v{T+4}")
        A(f"v_lshl_add_u32 v{T+4}, v{v_n}, 4, v{T+4}")
        A(f"s_lshl_b32 s{s_t0}, s{s_b}, 13")
        A(f"s_add_u32 s{s_t0}, s{s_t0}, s{s_colb}")
        A(f"s_lshl_b32 s{s_t0}, s{s_t0}, 2")
        A(f"s_and_b32 s{s_t1}, s2, 1")
        A(f"s_lshl_b32 s{s_t1}, s{s_t1}, 16")
        A(f"s_add_u32 s{s_t0}, s{s_t0}, s{s_t1}")
        A(f"s_add_u32 s{s_t0}, s{s_t0}, {WS_QB}")
        A(f"s_movk_i32 s{s_t1}, 0xff00")

    def gate_loads():
        C("gate inputs: lane l holds 16 elements (l&31) of batch b")
        A(f"v_and_b32 v{T}, 31, v1")
        A(f"v_lshlrev_b32 v{T}, 5, v{T}")
        A(f"s_lshl_b32 s{s_t0}, s{s_b}, 10")
        for j in range(2):
            g.vmem(f"buffer_load_dwordx4 {vr(GX+4*j,4)}, v{T}, {srd(sX)}, s{s_t0} offen offset:{j*16}")
        for j in range(2):
            st["gate"] = g.vmem(f"buffer_load_dwordx4 {vr(GX+8+4*j,4)}, v{T}, {srd(sG)}, 0 offen offset:{j*16}")

    if XP < 8:
        pro_x()
        pro_rest()
    chunks = g.split(pro_rest, 14) if XP >= 8 else []
    for p in range(8, P0):
        issue(p)
        if p == XP:
            pro_x()
        elif p > XP and chunks:
            chunks.pop(0)()
    for f in chunks:
        f()
    for p in range(P0, P0 + PX):
        issue(p, throttle=False)
    A("s_waitcnt lgkmcnt(0)")
    C("---- q projection: 64 columns, half of the rows ----")
    g.wait_vm(st["x"])
    g.wait_vm(ids[7])
    for ks in range(2):
        for cb in range(4):
            for hf in range(2):
                A(f"ds_read_b64_tr_b16 {ar(a_vf+(ks*4+cb)*4+hf*2,2)}, v{T} offset:{ks*4096 + hf*512 + cb*32}")
    mksrd(sWO, 16, 0x400000)
    A(f"s_add_u32 s{s_tag32}, s{s_tag32}, {EPOCH_INC:#x}")
    A(f"s_and_b32 s{s_tag8}, s{s_tag32}, 0xff")
    A(f"s_and_b32 s{s_tag12}, s{s_tag32}, 0xfff")
    A(f"v_mov_b32 v{T+5}, s{s_tag8}")
    for ks in range(2):
        A(f"s_waitcnt lgkmcnt({8-8*ks})")
        for cb in range(4):
            A(f"v_mfma_f32_16x16x32_bf16 {vr(B+4*cb,4)}, {ar(a_vf+(ks*4+cb)*4,4)}, {vr(v_d+4*ks,4)}, " + ("0" if ks == 0 else vr(B + 4 * cb, 4)))
    A("s_nop 4")
    for cb in range(4):
        A(f"ds_write_b128 v{T+1}, {vr(B+4*cb,4)} offset:{cb*64}")
    A(f"s_cmp_eq_u32 s{s_w}, 0")
    A("s_waitcnt lgkmcnt(0)")
    A("s_barrier")
    A("s_cbranch_scc0 L_noqstore")
    for w in range(4):
        A(f"ds_read_b128 {vr(B+4*w,4)}, v{T+3} offset:{w*512}")
    A("s_waitcnt lgkmcnt(0)")
    for e in range(4):
        A(f"v_add_f32 v{B+e}, v{B+e}, v{B+4+e}")
        A(f"v_add_f32 v{B+8+e}, v{B+8+e}, v{B+12+e}")
    for e in range(4):
        A(f"v_add_f32 v{B+e}, v{B+e}, v{B+8+e}")
    for e in range(4):
        A(f"v_add_u32 v{B+e}, 0x80, v{B+e}")
    for e in range(4):
        A(f"v_and_or_b32 v{B+e}, v{B+e}, s{s_t1}, v{T+5}")
    A("s_mov_b32 exec_hi, 0")
    g.vmem(f"buffer_store_dwordx4 {vr(B,4)}, v{T+4}, {srd(sWS)}, s{s_t0} offen sc1", optional=True)
    A("s_mov_b64 exec, -1")
    L("L_noqstore")
    stamp("qpub")

    FSLOT = slot_of(NT)

    def setup_head():
        C("constants")
        A(f"s_mov_b32 s{s_c}, {f2u(LOG2E):#x}")
        A(f"s_mov_b32 s{s_rs}, {f2u(128 ** -0.5):#x}")
        A(f"s_mov_b32 s{s_spin}, {SPIN}")
        for r in range(4):
            A(f"v_mov_b32 v{v_one+r}, 0x3f803f80")
        C("q gather: head w, lanes 0-31 half 0, lanes 32-63 half 1")
        A(f"v_lshrrev_b32 v{T}, 5, v1")
        A(f"v_and_b32 v{T+1}, 31, v1")
        A(f"v_lshlrev_b32 v{T+2}, 4, v{T+1}")
        A(f"v_lshl_add_u32 v{a_q}, v{T}, 16, v{T+2}")
        A(f"s_lshr_b32 s{s_t0}, s2, 4")
        A(f"s_lshl2_add_u32 s{s_t0}, s{s_t0}, s{s_w}")
        A(f"s_lshl_b32 s{s_t0}, s{s_t0}, 9")
        A(f"s_add_u32 s{s_qoff}, s{s_t0}, {WS_QB}")
        A(f"s_lshl_b32 s{s_t0}, s{s_w}, 8")
        A(f"s_add_u32 s{s_t0}, s{s_t0}, {SCR+QX}")
        A(f"v_lshl_add_u32 v{a_qw}, v{T+1}, 3, s{s_t0}")
        A(f"v_lshl_add_u32 v{a_qw}, v{T}, 2, v{a_qw}")
        A(f"v_lshlrev_b32 v{a_qr}, 8, v{v_c}")
        A(f"v_lshl_add_u32 v{a_qr}, v{v_g}, 4, v{a_qr}")
        A(f"v_add_u32 v{a_qr}, {SCR+QX}, v{a_qr}")
        A(f"s_lshl_b32 s{s_t0}, s{s_w}, 2")
        A(f"v_add_u32 v{a_fw}, s{s_t0}, v{a_fr}")
        C("catch-up hints (speed only): one line of tile indices per group of workgroups with equal wg&7")
        A(f"s_mov_b32 s{s_boost}, 0")
        A(f"s_and_b32 s{s_tagp}, s{s_tag32}, 0xffffff00")
        A(f"v_mov_b32 v{v_pl}, s{s_tagp}")
        A(f"v_min_u32 v{a_pw}, 1, v1")
        A(f"v_lshlrev_b32 v{a_pw}, 30, v{a_pw}")
        A(f"s_and_b32 s{s_t0}, s2, 7")
        A(f"s_mul_i32 s{s_t0}, s{s_t0}, 4352")
        A(f"s_add_u32 s{s_t0}, s{s_t0}, {WS_PR}")
        A(f"v_lshl_add_u32 v{a_pr}, v1, 2, s{s_t0}")
        if GR:
            C("wave 1 of workgroups 32..39 compares the groups a few times")
            A(f"s_add_u32 s{s_bc}, s{s_t0}, 128")
            A(f"s_mov_b32 s{s_gb}, 0")
            A(f"s_mov_b32 s{s_dev}, 0")
            A(f"s_lshr_b32 s{s_t1}, s2, 3")
            A(f"s_lshl_b32 s{s_t2}, s{s_w}, 5")
            A(f"s_add_u32 s{s_t1}, s{s_t1}, s{s_t2}")
            A(f"s_xor_b32 s{s_t1}, s{s_t1}, {32 + 4}")
            A(f"s_min_u32 s{s_t1}, s{s_t1}, 1")
            A(f"s_lshl_b32 s{s_t1}, s{s_t1}, 30")
            A(f"s_add_u32 s{s_t1}, s{s_t1}, {WS_GP}")
            A(f"v_lshrrev_b32 v{T+3}, 3, v1")
            A(f"v_min_u32 v{T+3}, 1, v{T+3}")
            A(f"v_lshlrev_b32 v{T+3}, 30, v{T+3}")
            A(f"v_mul_u32_u24 v{T+4}, 4224, v1")
            A(f"v_add3_u32 v{a_gs}, v{T+3}, v{T+4}, s{s_t1}")
            A(f"s_and_b32 s{s_t2}, s2, 7")
            A(f"s_mul_i32 s{s_t2}, s{s_t2}, 4224")
            A(f"s_add_u32 s{s_gpo}, s{s_t1}, s{s_t2}")
        A(f"s_lshr_b32 s{s_t1}, s2, 3")
        A(f"s_lshl2_add_u32 s{s_pro}, s{s_t1}, s{s_t0}")
        A(f"s_and_b32 s{s_t1}, s{s_t1}, {PT-1}")
        A(f"s_lshl4_add_u32 s{s_pph}, s{s_w}, s{s_t1}")
        if XM:
            A(f"s_getreg_b32 s{s_t0}, hwreg(HW_REG_XCC_ID)")
            A(f"s_and_b32 s{s_t0}, s{s_t0}, 1")
            A(f"s_mul_i32 s{s_t0}, s{s_t0}, {XM[0] ^ XM[1]:#x}")
            A(f"s_xor_b32 s{s_xm}, s{s_t0}, {XM[0]:#x}")

    def setup_rest():
        A(f"s_mov_b32 s{s_perm}, 0x07060302")
        A(f"s_mov_b32 s{s_m12}, 0xfffff000")
        A(f"s_mov_b32 s{s_m15}, 0xfffefffe")
        C("V transposed read addresses")
        A(f"v_lshl_add_u32 v{T+3}, v{v_g}, 2, v{v_r}")
        A(f"v_and_b32 v{T+5}, 1, v{v_c}")
        A(f"v_lshlrev_b32 v{T+5}, 3, v{T+5}")
        A(f"v_lshrrev_b32 v{T+6}, 1, v{v_c}")
        A(f"v_lshl_add_u32 v{T+4}, v{T+3}, 8, v{T+5}")
        A(f"v_add_u32 v{T+4}, s{s_wb}, v{T+4}")
        A(f"v_and_b32 v{T+7}, 7, v{T+3}")
        A(f"v_lshl_or_b32 v{T+7}, v{T+7}, 1, v{T+6}")
        for cb in range(8):
            A(f"v_xor_b32 v{v_rv+cb}, {2*cb}, v{T+7}")
            A(f"v_lshl_add_u32 v{v_rv+cb}, v{v_rv+cb}, 4, v{T+4}")
        C("wo: head hq = hkv*4 + (j>>3), columns (wg&7)*64; wave w loads rows (w&1)*64.. of branch w>>1")
        A(f"v_lshl_add_u32 v{T+4}, v{T+3}, 7, v{T+5}")
        A(f"v_add_u32 v{T+4}, {STG}, v{T+4}")
        A(f"v_and_b32 v{T+7}, 6, v{T+3}")
        A(f"v_or_b32 v{T+7}, v{T+7}, v{T+6}")
        A(f"s_lshl_b32 s{s_t0}, s{s_w}, 1")
        A(f"v_xor_b32 v{T+7}, s{s_t0}, v{T+7}")
        A(f"v_lshl_add_u32 v{a_wor}, v{T+7}, 4, v{T+4}")
        A(f"v_lshrrev_b32 v{T+3}, 3, v1")
        A(f"v_and_b32 v{T+4}, 6, v{T+3}")
        A(f"v_and_b32 v{T+5}, 7, v1")
        A(f"v_xor_b32 v{T+4}, v{T+4}, v{T+5}")
        A(f"v_lshlrev_b32 v{T+4}, 4, v{T+4}")
        A(f"v_lshl_add_u32 v{a_wo}, v{T+3}, 10, v{T+4}")
        A(f"s_lshr_b32 s{s_t0}, s{s_j}, 3")
        A(f"s_lshl2_add_u32 s{s_t3}, s{s_hkv}, s{s_t0}")
        A(f"s_and_b32 s{s_t0}, s{s_w}, 1")
        A(f"s_lshl1_add_u32 s{s_t0}, s{s_t3}, s{s_t0}")
        A(f"s_lshl_b32 s{s_t0}, s{s_t0}, 16")
        A(f"s_and_b32 s{s_t2}, s2, 7")
        A(f"s_lshl_b32 s{s_t1}, s{s_t2}, 7")
        A(f"s_add_u32 s{s_wooff}, s{s_t0}, s{s_t1}")
        C("hop-2 store: line (cg = (wg&7)*4 + w, p = hq), lane (g, n<2): b = n")
        A(f"s_lshl2_add_u32 s{s_t0}, s{s_t2}, s{s_w}")
        A(f"s_lshl_b32 s{s_t0}, s{s_t0}, 12")
        A(f"s_lshl_b32 s{s_t1}, s{s_t3}, 7")
        A(f"s_add_u32 s{s_t0}, s{s_t0}, s{s_t1}")
        A(f"s_add_u32 s{s_h2pub}, s{s_t0}, {WS_P1}")
        A(f"v_and_b32 v{T+3}, 1, v1")
        A(f"v_lshlrev_b32 v{a_p2}, 6, v{T+3}")
        A(f"v_lshl_add_u32 v{a_p2}, v{v_g}, 4, v{a_p2}")
        C("o operand reader: OX + (n&1)*256 + g*16")
        A(f"v_lshlrev_b32 v{a_or}, 8, v{T+3}")
        A(f"v_lshl_add_u32 v{a_or}, v{v_g}, 4, v{a_or}")
        A(f"v_add_u32 v{a_or}, {SCR+OX}, v{a_or}")
        C("final role f = (wg&7)*4 + w (the wave's own column group) for one workgroup per f, else >= 32")
        A(f"s_lshl2_add_u32 s{s_f}, s{s_t2}, s{s_w}")
        A(f"s_lshl_b32 s{s_t1}, s{s_f}, 12")
        A(f"s_add_u32 s{s_h2get}, s{s_t1}, {WS_P1}")
        A(f"s_lshr_b32 s{s_t0}, s2, 3")
        if FWAVE == 0:
            A(f"s_xor_b32 s{s_t0}, s{s_t0}, s{s_w}")
        A(f"s_lshl_b32 s{s_t0}, s{s_t0}, 5")
        A(f"s_or_b32 s{s_f}, s{s_f}, s{s_t0}")
        A(f"v_lshlrev_b32 v{a_l16}, 4, v1")
        A(f"v_bfe_u32 v{T+3}, v1, 2, 1")
        A(f"v_lshlrev_b32 v{a_out}, 10, v{T+3}")
        A(f"v_lshl_add_u32 v{a_out}, v{v_c}, 3, v{a_out}")
        A(f"v_bfe_u32 v{T+4}, v1, 4, 1")
        A(f"v_lshl_add_u32 v{a_out}, v{T+4}, 2, v{a_out}")
        A(f"v_lshrrev_b32 v{T+5}, 5, v1")
        A(f"v_lshl_add_u32 v{a_out}, v{T+5}, 1, v{a_out}")
        C("hop-1 gather, wave = (dims half w>>1, batch w&1): rows (hq, b*16 + 4*g + i)")
        A(f"v_lshlrev_b32 v{T+5}, 4, v{v_n}")
        A(f"v_lshl_add_u32 v{a_g1}, v{v_g}, 11, v{T+5}")
        A(f"s_and_b32 s{s_t0}, s{s_w}, 1")
        A(f"s_lshl1_add_u32 s{s_t1}, s{s_t3}, s{s_t0}")
        A(f"s_lshl_b32 s{s_t1}, s{s_t1}, 13")
        A(f"s_lshr_b32 s{s_t2}, s{s_w}, 1")
        A(f"s_lshl_b32 s{s_t3}, s{s_t2}, 8")
        A(f"s_add_u32 s{s_t1}, s{s_t1}, s{s_t3}")
        A(f"s_add_u32 s{s_h1get}, s{s_t1}, {WS_H1}")
        C("summed o -> LDS [br][b][ks][g][hf][4] bf16; lanes 0-15 hold branch B, lanes 16-31 branch A")
        A(f"s_lshl1_add_u32 s{s_t0}, s{s_t0}, s{s_t2}")
        A(f"s_lshl_b32 s{s_t0}, s{s_t0}, 7")
        A(f"s_add_u32 s{s_t0}, s{s_t0}, {SCR+OX}")
        A(f"v_lshl_add_u32 v{a_ow}, v{v_c}, 4, s{s_t0}")
        A(f"v_lshl_add_u32 v{a_ow}, v{T+3}, 3, v{a_ow}")
        A(f"v_bfe_u32 v{T+5}, v1, 3, 1")
        A(f"v_lshl_add_u32 v{a_ow}, v{T+5}, 6, v{a_ow}")
        A(f"v_xor_b32 v{T+4}, 1, v{T+4}")
        A(f"v_lshl_add_u32 v{a_ow}, v{T+4}, 9, v{a_ow}")
        C("hop-1 publish: row (hkv, h=w, j)")
        A(f"s_lshl2_add_u32 s{s_t0}, s{s_hkv}, s{s_w}")
        A(f"s_lshl_b32 s{s_t0}, s{s_t0}, 5")
        A(f"s_add_u32 s{s_t0}, s{s_t0}, s{s_j}")
        A(f"s_lshl_b32 s{s_t0}, s{s_t0}, 9")
        A(f"s_add_u32 s{s_h1pub}, s{s_t0}, {WS_H1}")
        C("combine: writers (lane (g,h)) and readers (head w, d4)")
        A(f"v_lshlrev_b32 v{T+3}, 9, v{v_c}")
        A(f"v_lshl_add_u32 v{T+3}, v{v_g}, 4, v{T+3}")
        A(f"s_lshl_b32 s{s_t0}, s{s_w}, 11")
        A(f"s_add_u32 s{s_t0}, s{s_t0}, {SCR+OPA}")
        A(f"v_add_u32 v{a_cwa}, s{s_t0}, v{T+3}")
        A(f"v_add_u32 v{a_cwb}, s{s_wb}, v{T+3}")
        A(f"s_lshl_b32 s{s_t0}, s{s_w}, 2")
        A(f"s_add_u32 s{s_t0}, s{s_t0}, {SCR+ML}")
        A(f"v_lshl_add_u32 v{a_cml}, v{v_c}, 4, s{s_t0}")
        A(f"v_and_b32 v{T+3}, 7, v1")
        A(f"v_lshlrev_b32 v{T+3}, 4, v{T+3}")
        A(f"v_add_u32 v{a_mlr}, {SCR+ML}, v{T+3}")
        A(f"v_and_b32 v{T+3}, 31, v1")
        A(f"s_lshl_b32 s{s_t0}, s{s_w}, 9")
        A(f"v_lshl_add_u32 v{a_crb}, v{T+3}, 4, s{s_t0}")
        A(f"v_add_u32 v{a_cra}, {SCR+OPA}, v{a_crb}")
        A(f"v_add_u32 v{a_crb2}, {2*RING}, v{a_crb}")
        C("log-sum-exp exchange among the 16 splits: lane = (br = bit4, s = n)")
        A(f"s_lshl_b32 s{s_t0}, s2, 7")
        A(f"s_add_u32 s{s_lpub}, s{s_t0}, {WS_LB}")
        A(f"s_andn2_b32 s{s_t0}, s{s_t0}, 0x7ff")
        A(f"s_lshl3_add_u32 s{s_t0}, s{s_w}, s{s_t0}")
        A(f"s_add_u32 s{s_lget}, s{s_t0}, {WS_LB}")
        A(f"v_bfe_u32 v{T+3}, v1, 4, 1")
        A(f"v_lshlrev_b32 v{T+3}, 5, v{T+3}")
        A(f"v_lshl_add_u32 v{a_lg}, v{v_n}, 7, v{T+3}")
        C("tag bit patterns and the selector operand (1.0 where element == row)")
        for e in range(4):
            A(f"s_and_b32 s{s_t0}, s{s_tag8}, 1")
            A(f"s_bfe_u32 s{s_t1}, s{s_tag8}, {0x10001 + e:#x}")
            A(f"s_pack_ll_b32_b16 s{s_t0}, s{s_t0}, s{s_t1}")
            A(f"v_mov_b32 v{v_pat+e}, s{s_t0}")
        A(f"v_and_b32 v{T+3}, 1, v1")
        A(f"v_lshlrev_b32 v{T+3}, 4, v{T+3}")
        A(f"v_mov_b32 v{T+4}, 0x3f80")
        A(f"v_lshlrev_b32 v{T+3}, v{T+3}, v{T+4}")
        A(f"v_lshrrev_b32 v{T+4}, 1, v{v_n}")
        for e in range(4):
            A(f"v_xor_b32 v{T+5}, {e}, v{T+4}")
            A(f"v_min_u32 v{T+5}, 1, v{T+5}")
            A(f"v_add_u32 v{T+5}, -1, v{T+5}")
            A(f"v_and_b32 v{v_sel+e}, v{T+5}, v{T+3}")

    def setup_gate():
        C("gate factor: g in lanes with bit 2 clear, 1-g in the others, with the reference's bf16 rounding points")
        X, Wt = GX, GX + 8
        for r in range(8):
            A(f"v_lshlrev_b32 v{T}, 16, v{X+r}")
            A(f"v_lshlrev_b32 v{T+1}, 16, v{Wt+r}")
            A(f"v_and_b32 v{X+r}, 0xffff0000, v{X+r}")
            A(f"v_and_b32 v{Wt+r}, 0xffff0000, v{Wt+r}")
            A(f"v_mul_f32 v{T}, v{T}, v{T+1}")
            A(f"v_mul_f32 v{X+r}, v{X+r}, v{Wt+r}")
            A(f"v_cvt_pk_bf16_f32 v{X+r}, v{T}, v{X+r}")
        for r in range(8):
            A(f"v_dot2_f32_bf16 v{T+2}, v{X+r}, v{v_one}, " + ("0" if r == 0 else f"v{T+2}"))
        A("s_nop 2")
        for d in (1, 2, 4, 8):
            A(f"v_add_f32_dpp v{T+2}, v{T+2}, v{T+2} row_ror:{d} row_mask:0xf bank_mask:0xf")
            A("s_nop 1")
        A(f"v_mov_b32 v{T+3}, v{T+2}")
        A("s_nop 1")
        A(f"v_permlane16_swap_b32 v{T+2}, v{T+3}")
        A("s_nop 0")
        A(f"v_add_f32 v{T+2}, v{T+2}, v{T+3}")
        A(f"v_cvt_pk_bf16_f32 v{T+2}, 0, v{T+2}")
        A(f"v_mul_f32 v{T+2}, {f2u(-LOG2E):#x}, v{T+2}")
        A(f"v_exp_f32 v{T+2}, v{T+2}")
        A("s_nop 0")
        A(f"v_add_f32 v{T+2}, 1.0, v{T+2}")
        A(f"v_rcp_f32 v{T+2}, v{T+2}")
        A(f"v_bfe_i32 v{T+4}, v1, 2, 1")
        A(f"v_cvt_pk_bf16_f32 v{T+2}, 0, v{T+2}")
        A(f"v_sub_f32 v{T+3}, 1.0, v{T+2}")
        A(f"v_cvt_pk_bf16_f32 v{T+3}, 0, v{T+3}")
        A(f"v_bfi_b32 v{v_gf}, v{T+4}, v{T+3}, v{T+2}")

    def spin_guard():
        A(f"s_sub_u32 s{s_spin}, s{s_spin}, 1")
        A("s_cbranch_scc1 L_end")

    def qloads(track):
        A(f"s_add_u32 s{s_t0}, s{s_qoff}, 0x8000")
        for br in range(2):
            s = f"buffer_load_dwordx4 {vr(B+4*br,4)}, v{a_q}, {srd(sWS)}, s{s_t0 if br else s_qoff} offen sc1"
            if track:
                st["q"] = g.vmem(s)
            else:
                A(s)

    def q_validate():
        C("---- validate this wave's head of q (both branches), share through LDS ----")
        g.wait_vm(st["q"])
        L("L_qcheck")
        for r in range(8):
            A(f"v_xor_b32 v{B+r}, s{s_tag8}, v{B+r}")
        A(f"v_or_b32 v{T}, v{B}, v{B+1}")
        for i in range(2, 8, 2):
            A(f"v_or3_b32 v{T}, v{T}, v{B+i}, v{B+i+1}")
        A(f"v_and_b32 v{T}, 0xff, v{T}")
        A(f"v_cmp_ne_u32 vcc, 0, v{T}")
        A("s_cbranch_vccnz L_qretry")
        for br in range(2):
            A(f"v_permlane32_swap_b32 v{B+4*br}, v{B+4*br+2}")
            A(f"v_permlane32_swap_b32 v{B+4*br+1}, v{B+4*br+3}")
        for br in range(2):
            A(f"v_add_f32 v{B+4*br}, v{B+4*br}, v{B+4*br+2}")
            A(f"v_add_f32 v{B+4*br+1}, v{B+4*br+1}, v{B+4*br+3}")
        for br in range(2):
            A(f"v_cvt_pk_bf16_f32 v{B+4*br}, v{B+4*br}, v{B+4*br+1}")
        for br in range(2):
            A(f"ds_write_b32 v{a_qw}, v{B+4*br} offset:{br*1024}")
        A("s_waitcnt lgkmcnt(0)")
        A(f"ds_write_b32 v{a_fw}, v{v_one}")

    def flag_wait(name, off):
        L(name)
        A(f"ds_read_b128 {vr(B,4)}, v{a_fr} offset:{off}")
        spin_guard()
        A("s_waitcnt lgkmcnt(0)")
        A(f"v_and_b32 v{B}, v{B}, v{B+1}")
        A(f"v_and_b32 v{B+2}, v{B+2}, v{B+3}")
        A(f"v_and_b32 v{B}, v{B}, v{B+2}")
        A(f"v_cmp_eq_u32 vcc, 0, v{B}")
        A(f"s_cbranch_vccnz {name}")

    def q_fetch():
        flag_wait("L_qflag", 0)
        for j in range(4):
            A(f"ds_read_b128 {ar(a_qop+4*j,4)}, v{a_qr} offset:{j*64}")
        if NLO:
            A(f"s_mov_b32 s{s_brk}, 0")
            A(f"s_mov_b32 s{s_gk}, 0")
        stamp("qval")
        st["qready"] = True

    def q_fetch_b():
        for j in range(4):
            A(f"ds_read_b128 {ar(a_qop+16+4*j,4)}, v{a_qr} offset:{1024+j*64}")

    def lanes_h():
        A("s_mov_b32 exec_lo, 0x000f000f")
        A("s_mov_b32 exec_hi, 0x000f000f")

    def dump_ml(br):
        A(f"ds_write_b32 v{a_cml}, v{v_m} offset:{br*64}")
        A(f"ds_write_b32 v{a_cml}, a{a_l} offset:{128+br*64}")

    def dump_o(br):
        adr, off = (a_cwa, 0) if br == 0 else (a_cwb, FSLOT * 4096)
        for cb in range(8):
            A(f"ds_write_b128 v{adr}, {ar(a_o+4*cb,4)} offset:{off+cb*64}")

    def lam_math():
        C("lane (br, h): workgroup maximum, sum, log-sum-exp and the weights of the four waves")
        A("s_waitcnt lgkmcnt(0)")
        A(f"v_max3_f32 v{T}, v{B}, v{B+1}, v{B+2}")
        A(f"v_max_f32 v{T}, v{T}, v{B+3}")
        A(f"v_mul_f32 v{T+1}, s{s_c}, v{T}")
        for w in range(4):
            A(f"v_fma_f32 v{B+w}, v{B+w}, s{s_c}, -v{T+1}")
        for w in range(4):
            A(f"v_exp_f32 v{B+w}, v{B+w}")
        A(f"v_mul_f32 v{T+2}, v{B}, v{B+4}")
        for w in range(1, 4):
            A(f"v_fmac_f32 v{T+2}, v{B+w}, v{B+4+w}")
        A(f"v_rcp_f32 v{T}, v{T+2}")
        A(f"v_log_f32 v{T+2}, v{T+2}")
        A(f"v_mov_b32 v{T+3}, s{s_tag32}")
        A(f"v_add_f32 v{T+2}, v{T+1}, v{T+2}")
        A(f"v_mul_f32 v{T}, v{T}, v{v_gf}")
        for w in range(4):
            A(f"v_mul_f32 v{v_aw+w}, v{B+w}, v{T}")
        A(f"v_lshlrev_b32 v{T+4}, 3, v1")

    def lam_store():
        A(f"s_cmp_eq_u32 s{s_w}, 0")
        A("s_cbranch_scc0 L_nolam")
        A("s_mov_b64 exec, 0xff")
        g.vmem(f"buffer_store_dwordx2 {vr(T+2,2)}, v{T+4}, {srd(sWS)}, s{s_lpub} offen sc1", optional=True)
        A("s_mov_b64 exec, -1")
        L("L_nolam")

    def lamloads(track):
        s = f"buffer_load_dwordx2 {vr(B,2)}, v{a_lg}, {srd(sWS)}, s{s_lget} offen sc1"
        if track:
            st["lam"] = g.vmem(s)
        else:
            A(s)

    def lam_validate():
        g.wait_vm(st["lam"])
        L("L_lcheck")
        A(f"v_cmp_ne_u32 vcc, s{s_tag32}, v{B+1}")
        A("s_cbranch_vccnz L_lretry")

    def wgt_math():
        C("softmax over the 16 splits -> this workgroup's share; weights of the four waves into SGPRs")
        A(f"v_max_f32_dpp v{T}, v{B}, v{B} row_ror:1 row_mask:0xf bank_mask:0xf")
        for d in (2, 4, 8):
            A("s_nop 1")
            A(f"v_max_f32_dpp v{T}, v{T}, v{T} row_ror:{d} row_mask:0xf bank_mask:0xf")
        A(f"v_sub_f32 v{T}, v{B}, v{T}")
        A(f"v_exp_f32 v{T}, v{T}")
        A("s_nop 1")
        A(f"v_add_f32_dpp v{T+1}, v{T}, v{T} row_ror:1 row_mask:0xf bank_mask:0xf")
        for d in (2, 4, 8):
            A("s_nop 1")
            A(f"v_add_f32_dpp v{T+1}, v{T+1}, v{T+1} row_ror:{d} row_mask:0xf bank_mask:0xf")
        A(f"v_rcp_f32 v{T+1}, v{T+1}")
        A(f"s_and_b32 s{s_t0}, s2, 15")
        A(f"v_mul_f32 v{T}, v{T}, v{T+1}")
        A(f"s_add_u32 s{s_t1}, s{s_t0}, 16")
        A(f"v_readlane_b32 s{s_t2}, v{T}, s{s_t0}")
        A(f"v_readlane_b32 s{s_t3}, v{T}, s{s_t1}")
        A(f"v_bfe_i32 v{T+2}, v1, 2, 1")
        A(f"s_add_u32 s{s_t1}, s{s_w}, 4")
        A(f"v_mov_b32 v{T}, s{s_t2}")
        A(f"v_mov_b32 v{T+1}, s{s_t3}")
        A(f"v_bfi_b32 v{T}, v{T+2}, v{T+1}, v{T}")
        for w in range(4):
            A(f"v_mul_f32 v{v_aw+w}, v{v_aw+w}, v{T}")
        A("s_nop 0")
        for w in range(4):
            A(f"v_readlane_b32 s{s_fw+w}, v{v_aw+w}, s{s_w}")
            A(f"v_readlane_b32 s{s_fw+4+w}, v{v_aw+w}, s{s_t1}")
        A("s_nop 1")

    def comb_read(br):
        for w in range(4):
            if br == 0:
                A(f"ds_read_b128 {vr(B+4*w,4)}, v{a_cra} offset:{w*2048}")
            else:
                A(f"ds_read_b128 {vr(B+4*w,4)}, v{a_crb if w < 2 else a_crb2} offset:{(w&1)*RING + FSLOT*4096}")

    def comb_math(br, counted):
        for w in range(4):
            if counted:
                A(f"s_waitcnt lgkmcnt({3-w})")
            elif w == 0:
                A("s_waitcnt lgkmcnt(0)")
            for e in range(4):
                if w == 0:
                    A(f"v_mul_f32 v{B+e}, s{s_fw+4*br}, v{B+e}")
                else:
                    A(f"v_fmac_f32 v{B+e}, s{s_fw+4*br+w}, v{B+4*w+e}")
        for e in range(4):
            A(f"v_add_u32 v{B+e}, 0x10000, v{B+e}")
        o = 2 - 2 * br
        for k in range(2):
            A(f"v_perm_b32 v{v_pub+o+k}, v{B+2*k+1}, v{B+2*k}, s{s_perm}")
        for k in range(2):
            A(f"v_and_or_b32 v{v_pub+o+k}, v{v_pub+o+k}, s{s_m15}, v{v_pat+o+k}")

    def h2loads(off, flags="sc1", track=False):
        for j in range(4):
            s = f"buffer_load_dwordx4 {vr(B+4*j,4)}, v{a_l16}, {srd(sWS)}, s{off} offen offset:{j*1024} {flags}"
            g.vmem(s, optional=True) if track else A(s)

    def warm2():
        C("bring the lines of the final reduction into this die's cache")
        A(f"s_cmp_ge_u32 s{s_f}, 32")
        A("s_cbranch_scc1 L_nowarm")
        A("s_mov_b32 exec_lo, 0x01010101")
        A("s_mov_b32 exec_hi, 0x01010101")
        for j in range(4):
            g.vmem(f"buffer_load_dword v{v_tw}, v{a_l16}, {srd(sWS)}, s{s_h2get} offen offset:{j*1024} {WARM2 if isinstance(WARM2, str) else 'sc1'}", optional=True)
        A("s_mov_b64 exec, -1")
        L("L_nowarm")

    def code_pre():
        C("pull the rest of this straight-line code towards the cache: four lines per wave")
        A("s_getpc_b64 s[82:83]")
        L("L_cp")
        A(f"s_lshr_b32 s{s_u}, s2, 3")
        A(f"s_lshl2_add_u32 s{s_u}, s{s_u}, s{s_w}")
        A(f"s_lshl_b32 s{s_u}, s{s_u}, 9")
        A(f"v_lshl_add_u32 v{v_tw+1}, v{v_c}, 7, s{s_u}")
        A(f"v_min_u32 v{v_tw+1}, L_end-L_cp, v{v_tw+1}")
        A("s_mov_b64 exec, 15")
        g.vmem(f"global_load_dword v{v_tw}, v{v_tw+1}, s[82:83]")
        A("s_mov_b64 exec, -1")

    def touch(k):
        def f():
            C("touch the next buffer's pages")
            A("s_mov_b64 exec, 3")
            A(f"v_lshlrev_b32 v{v_tw+1}, 22, v1")
            if k < 4:
                A(f"s_andn2_b32 s{s_u}, s{s_kvb}, 0x400000")
                g.vmem(f"buffer_load_dword v{v_tw}, v{v_tw+1}, {srd(sKV[k])}, s{s_u} offen nt")
            else:
                A("s_mov_b64 exec, 1")
                g.vmem(f"buffer_load_dword v{v_tw}, v{v_tw+1}, {srd(sWO)}, s{s_wooff} offen nt")
                g.vmem(f"buffer_load_dword v{v_tw}, v{v_tw+1}, {srd(sO)}, 0 offen nt")
            A("s_mov_b64 exec, -1")
        return f

    def ctl_load():
        st["ctl"] = g.vmem(f"buffer_load_dword v{v_ct}, v{a_pr}, {srd(sWS)}, 0 offen sc1", hint=True)
        pending.append((st["ctl"], ctl_use))
        st["ctl_t"] = cur_t() + (Z[st["p"]][2] if Z[st["p"]][0] == "kv" else 3) / 4.0
        if "geval" in st and st["p"] >= st["geval"][1] + GPICK:
            st["pick"] = st.pop("geval")[0]
            log.append((st["p"], "pick", st["pick"]))

    def ctl_use():
        g.wait_vm(st["ctl"])
        t0 = st["ctl_t"]
        tn = cur_t() + 1
        x, y = v_ct, v_ct + 1
        A(f"v_xor_b32 v{x}, s{s_tagp}, v{x}")
        A(f"v_lshrrev_b32 v{y}, 8, v{x}")
        pick = st.pop("pick", None)
        if pick is not None and GACT:
            A(f"v_readlane_b32 s{s_c0}, v{x}, {32 + pick}")
            A(f"s_cmp_lt_u32 s{s_c0}, 256")
            A(f"s_cselect_b32 s{s_c0}, s{s_c0}, 128")
            A(f"s_add_i32 s{s_gb}, s{s_c0}, {tn - 128}")
            if GBRK:
                A(f"s_sub_i32 s{s_gk}, {tn + 128 - round(GBRK)}, s{s_c0}")
        A(f"v_cmp_eq_u32 s[82:83], 0, v{y}")
        A(f"v_mov_b32 v{y}, {max(0, int(t0) - round(BIAS))}")
        A("s_nop 0")
        A(f"v_cndmask_b32 v{x}, v{y}, v{x}, s[82:83]")
        for d in (1, 2, 4, 8):
            A("s_nop 1")
            A(f"v_add_u32_dpp v{x}, v{x}, v{x} row_ror:{d} row_mask:0xf bank_mask:0xf")
        A("s_nop 0")
        A(f"v_readlane_b32 s{s_c0}, v{x}, 0")
        A(f"v_readlane_b32 s{s_c1}, v{x}, 16")
        A(f"s_add_u32 s{s_c0}, s{s_c0}, s{s_c1}")
        A(f"s_sub_i32 s{s_c0}, s{s_c0}, {round(32 * (t0 - BIAS))}")
        if GR:
            A(f"s_ashr_i32 s{s_dev}, s{s_c0}, 1")
            if GEST == 3 and int(t0) in GR:
                A(f"s_add_i32 s{s_own}, s{s_dev}, 128")
        if NLO:
            A(f"s_add_i32 s{s_c1}, s{s_c0}, {round(32 * BRK)}")
            A(f"s_mul_i32 s{s_c1}, s{s_c1}, {-round(BGAIN * 8)}")
            A(f"s_ashr_i32 s{s_c1}, s{s_c1}, 8")
            A(f"s_min_i32 s{s_c1}, s{s_c1}, {NMAXB}")
            A(f"s_add_i32 s{s_brk}, s{s_c1}, {tn}")
            if GBRK:
                A(f"s_max_i32 s{s_brk}, s{s_brk}, s{s_gk}")
        A(f"s_mul_i32 s{s_c0}, s{s_c0}, {round(GAIN * 8)}")
        A(f"s_ashr_i32 s{s_c0}, s{s_c0}, 8")
        A(f"s_min_i32 s{s_c0}, s{s_c0}, {NMAXB}")
        A(f"s_add_i32 s{s_boost}, s{s_c0}, {tn}")
        if GR:
            A(f"s_max_i32 s{s_boost}, s{s_boost}, s{s_gb}")

    def g_sample(r, k):
        def f():
            A(f"s_mov_b32 s{s_u}, {r * 8 * 4224}")
            st["gs"] = g.vmem(f"buffer_load_dword v{v_gs+k}, v{a_gs}, {srd(sWS)}, s{s_u} offen sc1", hint=True)
            if k == GWIN[0] + GWIN[1] - 1:
                pending.append((st["gs"], g_eval(r)))
        return f

    def g_publish(r):
        def f():
            assert st.get("rest")
            A(f"s_bitcmp1_b32 s{s_gpo}, 30")
            A(f"s_cbranch_scc1 L_gp{r}")
            A(f"s_add_i32 s{s_c0}, s{s_dev}, 128")
            A(f"s_max_i32 s{s_c0}, s{s_c0}, 0")
            A(f"s_min_i32 s{s_c0}, s{s_c0}, 255")
            A(f"s_mov_b32 s{s_own}, s{s_c0}")
            A(f"v_or_b32 v{v_tw}, s{s_c0}, v{v_pl}")
            A(f"s_add_u32 s{s_u}, s{s_gpo}, {r * 8 * 4224}")
            g.vmem(f"buffer_store_dword v{v_tw}, v{a_pw}, {srd(sWS)}, s{s_u} offen sc1", optional=True)
            L(f"L_gp{r}")
        return f

    def g_eval(r):
        def f():
            W = GWIN[0] + GWIN[1]
            g.wait_vm(st["gs"])
            A(f"s_bitcmp1_b32 s{s_gpo}, 30")
            A(f"s_cbranch_scc1 L_ge{r}")
            for k in range(W):
                A(f"v_xor_b32 v{v_gs+k}, s{s_tagp}, v{v_gs+k}")
            A(f"v_min_u32 v{v_tw}, 0x100, v{v_gs+W-1}")
            A(f"v_lshrrev_b32 v{v_tw+1}, 1, v{v_tw}")
            A(f"v_and_b32 v{v_tw+1}, 0x80, v{v_tw+1}")
            A(f"v_and_b32 v{v_tw}, 0xff, v{v_tw}")
            A(f"v_add_u32 v{v_tw}, v{v_tw}, v{v_tw+1}")
            for k in range(W):
                A(f"v_lshrrev_b32 v{v_gs+k}, 8, v{v_gs+k}")
                A(f"v_min_u32 v{v_gs+k}, 1, v{v_gs+k}")
                A(f"v_lshlrev_b32 v{v_gs+k}, {3 if GS2 else 4}, v{v_gs+k}")
                A(f"v_sub_u32 v{v_tw}, v{v_tw}, v{v_gs+k}")
            A(f"s_and_b32 s{s_c1}, s2, 7")
            if GEST >= 2:
                C("own group: exact position instead of the sampled arrival")
                A(f"s_sub_i32 s{s_c0}, s{s_own}, {(8 if GS2 else 16) * GWIN[0]}")
                A(f"s_mov_b32 m0, s{s_c1}")
                A(f"v_writelane_b32 v{v_tw}, s{s_c0}, m0")
                A(f"s_add_u32 m0, s{s_wb}, {slot_of(cur_t())*4096}")
            else:
                A(f"v_readlane_b32 s{s_c0}, v{v_tw}, s{s_c1}")
            for d in ("quad_perm:[1,0,3,2]", "quad_perm:[2,3,0,1]", "row_half_mirror"):
                A("s_nop 1")
                A(f"v_add_u32_dpp v{v_tw}, v{v_tw}, v{v_tw} {d} row_mask:0xf bank_mask:0xf")
            A("s_nop 0")
            A(f"v_readlane_b32 s{s_c1}, v{v_tw}, 0")
            A(f"s_lshl_b32 s{s_c0}, s{s_c0}, 3")
            A(f"s_sub_i32 s{s_c0}, s{s_c1}, s{s_c0}")
            A(f"s_add_i32 s{s_c0}, s{s_c0}, {round(128 * GOFF)}")
            A(f"s_mul_i32 s{s_c0}, s{s_c0}, {round(GK * 8)}")
            A(f"s_add_i32 s{s_c0}, s{s_c0}, 512")
            A(f"s_ashr_i32 s{s_c0}, s{s_c0}, 10")
            A(f"s_max_i32 s{s_c0}, s{s_c0}, {-GMAX - round(GBRK)}")
            A(f"s_min_i32 s{s_c0}, s{s_c0}, {GMAX}")
            A(f"s_add_i32 s{s_c0}, s{s_c0}, 128")
            A(f"v_or_b32 v{v_tw}, s{s_c0}, v{v_pl}")
            g.vmem(f"buffer_store_dword v{v_tw}, v{a_pw}, {srd(sWS)}, s{s_bc} offen offset:{4*r}", optional=True)
            L(f"L_ge{r}")
            st["geval"] = (r, st["p"])
        return f

    kf = lambda t: a_kf + 16 * (t % R)
    def KR(t):
        for j in range(4):
            A(f"ds_read_b128 {ar(kf(t)+4*j,4)}, v{v_rk+j} offset:{slot_of(t)*4096}")
    def LW(t):
        A("s_waitcnt lgkmcnt(0)")
    def QK(t):
        A("s_waitcnt lgkmcnt(0)")
        q = a_qop + 16 * (t // 64)
        for j in range(4):
            A(f"v_mfma_f32_16x16x32_bf16 {vr(v_s,4)}, {ar(kf(t)+4*j,4)}, {ar(q+4*j,4)}, " + ("0" if j == 0 else vr(v_s, 4)))
    def SC(t):
        k = t % 32
        A("s_nop 7")
        for r in range(4):
            A(f"v_cvt_pk_bf16_f32 v{v_s+r}, 0, v{v_s+r}")
        for r in range(4):
            A(f"v_mul_f32 v{v_s+r}, s{s_rs}, v{v_s+r}")
        if k == 0:
            A(f"v_max_f32 v{v_mx}, v{v_s}, v{v_s+1}")
        else:
            A(f"v_max3_f32 v{v_mx}, v{v_mx}, v{v_s}, v{v_s+1}")
        A(f"v_cvt_pk_bf16_f32 v{v_sc+2*k}, v{v_s}, v{v_s+1}")
        A(f"v_max3_f32 v{v_mx}, v{v_mx}, v{v_s+2}, v{v_s+3}")
        A(f"v_cvt_pk_bf16_f32 v{v_sc+2*k+1}, v{v_s+2}, v{v_s+3}")
    def MX(t):
        C("true maximum of this wave's scores per head")
        assert t < 64 or st["dumpA"]
        A(f"v_mov_b32 v{v_mt}, v{v_mx}")
        A("s_nop 1")
        A(f"v_permlane32_swap_b32 v{v_mx}, v{v_mt}")
        A(f"v_max_f32 v{v_mx}, v{v_mx}, v{v_mt}")
        A(f"v_mov_b32 v{v_mt}, v{v_mx}")
        A("s_nop 1")
        A(f"v_permlane16_swap_b32 v{v_mx}, v{v_mt}")
        A(f"v_max_f32 v{v_mx}, v{v_mx}, v{v_mt}")
        A(f"v_cvt_pk_bf16_f32 v{v_m}, 0, v{v_mx}")
        A(f"v_mul_f32 v{v_nmc}, {f2u(-LOG2E):#x}, v{v_m}")
        stamp("endKA" if t < 64 else "endKB")
    def PP(t):
        k = t % 32
        A(f"v_lshlrev_b32 v{v_s}, 16, v{v_sc+2*k}")
        A(f"v_and_b32 v{v_s+1}, 0xffff0000, v{v_sc+2*k}")
        A(f"v_lshlrev_b32 v{v_s+2}, 16, v{v_sc+2*k+1}")
        A(f"v_and_b32 v{v_s+3}, 0xffff0000, v{v_sc+2*k+1}")
        for r in range(4):
            A(f"v_fma_f32 v{v_s+r}, v{v_s+r}, s{s_c}, v{v_nmc}")
        for r in range(4):
            A(f"v_exp_f32 v{v_s+r}, v{v_s+r}")
        A(f"v_cvt_pk_bf16_f32 v{v_sc+2*k}, v{v_s}, v{v_s+1}")
        A(f"v_cvt_pk_bf16_f32 v{v_sc+2*k+1}, v{v_s+2}, v{v_s+3}")
        if k & 1:
            A("s_nop 1")
            A(f"v_mfma_f32_16x16x32_bf16 {ar(a_l,4)}, {vr(v_one,4)}, {vr(v_sc+2*k-2,4)}, " + ("0" if k == 1 else ar(a_l, 4)))
    def VR(t):
        assert st["rest"]
        for cb in range(8):
            A(f"ds_read_b64_tr_b16 {ar(a_vf+4*cb+2*(t&1),2)}, v{v_rv+cb} offset:{slot_of(t)*4096}")
    def pv(t, cb):
        k = t % 32 - 1
        assert ("PP", t) in done
        A(f"v_mfma_f32_16x16x32_bf16 {ar(a_o+4*cb,4)}, {ar(a_vf+4*cb,4)}, {vr(v_sc+2*k,4)}, " + ("0" if k == 0 else ar(a_o + 4 * cb, 4)))
    def PVa(t):
        A("s_waitcnt lgkmcnt(0)")
        for cb in range(4):
            pv(t, cb)
    def PVb(t):
        for cb in range(4, 8):
            pv(t, cb)
        if t == 63:
            stamp("endVA")

    main = []
    for t in range(R):
        main += [(KR, t, pos_of(t, 3), False), (LW, t, None, False)]
    for t in range(NT):
        if isK(t):
            if t >= R:
                main.append((KR, t, pos_of(t, 3), True))
            main += [(QK, t, None, True), (SC, t, None, True)]
            if t % 32 == 31:
                main.append((MX, t, None, True))
        elif t % 2 == 0:
            main.append((VR, t, pos_of(t, 3), True))
        else:
            main += [(VR, t, pos_of(t, 3), True), (PVa, t, None, True), (PVb, t, None, True)]
    is_in = lambda pl: pl in ids and g.done(ids[pl])
    done = set()
    ppq = [t for t in range(NT) if not isK(t)]

    mark = lambda k: (lambda: st.__setitem__(k, True))
    side = []
    side.append((P0, gate_loads, False))
    for f in g.split(setup_head, CH):
        side.append((P0, f, False))
    side.append((P0, mark("setup"), True))
    side.append((lambda p: g.done(st["gate"]), mark("gate_in"), True))
    for f in g.split(setup_gate, CH):
        side.append((P0, f, False))
    side.append((PQ, lambda: qloads(True), True))
    side.append((lambda p: g.done(st["q"]), lambda: (q_validate(), st.__setitem__("pV", st["p"])), True))
    side.append((lambda p: p >= st["pV"] + QLAG, q_fetch, True))
    side.append((0, q_fetch_b, False))
    for f in g.split(setup_rest, CH):
        side.append((0, f, False))
    side.append((0, mark("rest"), True))
    def dumpA():
        A("s_nop 5")
        lanes_h()
        dump_ml(0)
        dump_o(0)
        A("s_mov_b64 exec, -1")
        st["dumpA"] = True
    side.append((lambda p: ("PVb", 63) in done, dumpA, False))
    def dumpB():
        A("s_nop 5")
        lanes_h()
        dump_ml(1)
        A("s_mov_b64 exec, -1")
        A("s_waitcnt lgkmcnt(0)")
        A(f"ds_write_b32 v{a_fw}, v{v_one} offset:16")
        st["pB"] = st["p"]
    side.append((lambda p: ("PP", NT - 1) in done, dumpB, False))
    def lam_read():
        flag_wait("L_lflag", 16)
        A(f"ds_read_b128 {vr(B,4)}, v{a_mlr}")
        A(f"ds_read_b128 {vr(B+4,4)}, v{a_mlr} offset:128")
    side.append((lambda p: p >= st["pB"] + LLAG, lam_read, False))
    for f in g.split(lam_math, CH):
        side.append((0, f, False))
    side.append((0, lam_store, True))
    side.append((PWG, lambda: lamloads(True), True))
    side.append((lambda p: g.done(st["lam"]), lam_validate, True))
    for f in g.split(wgt_math, 24):
        side.append((0, f, False))
    side.append((0, lambda: comb_read(0), True))
    side.append((0, lambda: comb_math(0, False), False))

    extra = []
    for t in range(C0 - 2, NT - CEND, CK):
        extra.append((pos_of(t, 2), ctl_load))
    for r, tr in enumerate(GR):
        assert GWIN[0] + GWIN[1] <= 12
        for k in range(GWIN[0] + GWIN[1]):
            if GS2:
                extra.append((pos_of(tr, 3) + 4 + 2 * (k - GWIN[0]), g_sample(r, k)))
            else:
                extra.append((pos_of(tr - GWIN[0] + k + 1, 3), g_sample(r, k)))
        extra.append((pos_of(tr, 2), g_publish(r)))
    if CP:
        extra.append((CP, code_pre))
    if TW:
        for k in range(1, 5):
            extra.append((OFF + 128 * k - TW, touch(k)))
    if WARM2 and W2P >= 0:
        extra.append((pos_of(NT - 1, 3) - W2P, warm2))
    extra.sort(key=lambda x: x[0])

    mi = si = ci = 0
    for p in range(P0 + PX, len(Z) - WOL - WOA):
        z = Z[p]
        st["p"] = p
        if z[0] == "kv" and z[2] == 0 and z[1] >= NSLOT:
            prev = z[1] - NSLOT
            assert (("QK", prev) in done or ("LW", prev) in done) if isK(prev) else ("PVa", prev | 1) in done, (p, z)
        issue(p)
        while ci < len(extra) and extra[ci][0] <= p:
            extra[ci][1]()
            ci += 1
        for x in [x for x in pending if g.done(x[0])]:
            pending.remove(x)
            x[1]()
        used = 0
        if ppq and ("MX", ppq[0] // 32 * 32 - 1) in done:
            t = ppq.pop(0)
            PP(t)
            done.add(("PP", t)); log.append((p, "PP", t))
        while mi < len(main):
            f, t, ld, nq = main[mi]
            if (ld is not None and not is_in(ld)) or (nq and not st.get("qready")) or (f is PVa and ("PP", t) not in done):
                break
            behind = t + 1 < NT and is_in(pos_of(t + 1, 3)) and nq
            if used >= (3 if behind else 1):
                break
            f(t)
            done.add((f.__name__, t)); log.append((p, f.__name__, t))
            used += f is not LW
            mi += 1
        while si < len(side) and (used == 0 or side[si][2]):
            e, f, forced = side[si]
            if not (e(p) if callable(e) else e <= p):
                break
            f()
            log.append((p, "side", si))
            si += 1
            if not forced:
                used += 1
    assert si == len(side) and not ppq and ci == len(extra) and not pending, (si, len(side))
    C("---- drain ----")
    while mi < len(main):
        f, t, ld, nq = main[mi]
        if ld is not None:
            g.wait_vm(ids[ld])
        if t == NT - 1 and f is PVa:
            for p in range(len(Z) - WOL - WOA, len(Z) - WOA):
                issue(p, throttle=False)
        if t == NT - 1 and f is PVa:
            for cb in range(8):
                A(f"s_waitcnt lgkmcnt({7-cb})")
                pv(t, cb)
        elif not (t == NT - 1 and f is PVb):
            f(t)
        mi += 1
    stamp("drained")

    C("---- combine the four waves, publish both branches ----")
    lanes_h()
    dump_o(1)
    A("s_mov_b32 exec_lo, -1")
    A("s_mov_b32 exec_hi, 0")
    A("s_waitcnt lgkmcnt(0)")
    A("s_barrier")
    stamp("bar")
    comb_read(1)
    comb_math(1, True)
    A(f"buffer_store_dwordx4 {vr(v_pub,4)}, v{a_l16}, {srd(sWS)}, s{s_h1pub} offen sc1")
    A("s_mov_b64 exec, -1")
    stamp("pub1")
    if WARM2 and W2P < 0:
        warm2()
    for p in range(len(Z) - WOA, len(Z)):
        issue(p, throttle=False)
    C("the output-projection weights were the last loads of the stream")
    A(f"s_waitcnt vmcnt({WOK})")
    def h1loads():
        for i in range(4):
            A(f"buffer_load_dwordx4 {vr(B+4*i,4)}, v{a_g1}, {srd(sWS)}, s{s_h1get} offen offset:{i*512} sc1")
    h1loads()
    if WOK:
        A("s_waitcnt vmcnt(4)")
    stamp("wo")
    A("s_barrier")
    for k in range(8):
        for hf in range(2):
            A(f"ds_read_b64_tr_b16 {ar(a_wop+k*4+hf*2,2)}, v{a_wor} offset:{k*4096+hf*2048}")
    A("s_branch L_h1wait")
    C("---- sum the 16 partials of (dims half, batch) with a selector product ----")
    L("L_h1poll")
    if SL1:
        A(f"s_sleep {SL1}")
    h1loads()
    spin_guard()
    L("L_h1wait")
    for i in range(4):
        A(f"s_waitcnt vmcnt({3-i})")
        for e in range(4):
            A(f"v_xor_b32 v{B+4*i+e}, v{v_pat+e}, v{B+4*i+e}")
        if i == 0:
            A(f"v_or_b32 v{T}, v{B}, v{B+1}")
        else:
            A(f"v_or3_b32 v{T}, v{T}, v{B+4*i}, v{B+4*i+1}")
        A(f"v_or3_b32 v{T}, v{T}, v{B+4*i+2}, v{B+4*i+3}")
        A(f"v_mfma_f32_16x16x32_bf16 {vr(v_d,4)}, {vr(v_sel,4)}, {vr(B+4*i,4)}, " + ("0" if i == 0 else vr(v_d, 4)))
    A(f"v_and_b32 v{T}, 0x00010001, v{T}")
    A(f"v_cmp_ne_u32 vcc, 0, v{T}")
    A("s_cbranch_vccnz L_h1poll")
    stamp("h1ok")
    A("s_mov_b32 exec_hi, 0")
    A("s_nop 3")
    A(f"v_cvt_pk_bf16_f32 v{T}, v{v_d}, v{v_d+1}")
    A(f"v_cvt_pk_bf16_f32 v{T+1}, v{v_d+2}, v{v_d+3}")
    A(f"ds_write_b64 v{a_ow}, {vr(T,2)}")
    A("s_mov_b64 exec, -1")
    A("s_waitcnt lgkmcnt(0)")
    A("s_barrier")
    stamp("bar2")
    OPD = v_sc
    for k in range(8):
        A(f"ds_read_b128 {vr(OPD+4*k,4)}, v{a_or} offset:{(k>>2)*512+(k&3)*64}")
    A(f"v_mov_b32 v{T+2}, s{s_tag12}")
    A(f"s_add_u32 s{s_t2}, s{s_h2pub}, {WS_P2-WS_P1}")
    for k in range(8):
        A(f"s_waitcnt lgkmcnt({7-k})")
        A(f"v_mfma_f32_16x16x32_bf16 {vr(v_d+4,4)}, {ar(a_wop+4*k,4)}, {vr(OPD+4*k,4)}, " + ("0" if k == 0 else vr(v_d + 4, 4)))
    A("s_mov_b32 exec_lo, 0x00030003")
    A("s_mov_b32 exec_hi, 0x00030003")
    A(f"s_cmp_ge_u32 s{s_f}, 32")
    A("s_nop 4")
    for r in range(4):
        A(f"v_add_u32 v{v_d+4+r}, 0x800, v{v_d+4+r}")
    for r in range(4):
        A(f"v_and_or_b32 v{v_d+4+r}, v{v_d+4+r}, s{s_m12}, v{T+2}")
    C("once for a reader behind the same L2, once written through for any other placement")
    A(f"buffer_store_dwordx4 {vr(v_d+4,4)}, v{a_p2}, {srd(sWS)}, s{s_h2pub} offen {P1SC}")
    stamp("pub2")
    A("s_cbranch_scc0 L_final")
    A(f"buffer_store_dwordx4 {vr(v_d+4,4)}, v{a_p2}, {srd(sWS)}, s{s_t2} offen sc1")
    A("s_branch L_fin" if diag or pad else "s_endpgm")
    L("L_final")
    A("s_mov_b64 exec, -1")

    C("---- final reduction over the 32 heads ----")
    F = B
    A(f"s_lshl_b32 s{s_t0}, s{s_f}, 5")
    A(f"s_mov_b32 s{s_cnt}, {P2AFTER}")
    L("L_h2poll")
    if SL2:
        A(f"s_sleep {SL2}")
    h2loads(s_h2get)
    spin_guard()
    A(f"s_sub_u32 s{s_cnt}, s{s_cnt}, 1")
    A("s_cbranch_scc1 L_h2switch")
    L("L_h2wait")
    for j in range(4):
        A(f"s_waitcnt vmcnt({3-j})")
        for e in range(4):
            A(f"v_xor_b32 v{F+4*j+e}, s{s_tag12}, v{F+4*j+e}")
        if j == 0:
            A(f"v_or_b32 v{T}, v{F}, v{F+1}")
            A(f"v_or3_b32 v{T}, v{T}, v{F+2}, v{F+3}")
        else:
            A(f"v_or3_b32 v{T}, v{T}, v{F+4*j}, v{F+4*j+1}")
            A(f"v_or3_b32 v{T}, v{T}, v{F+4*j+2}, v{F+4*j+3}")
            for e in range(4):
                A(f"v_add_f32 v{F+e}, v{F+e}, v{F+4*j+e}")
    A(f"v_and_b32 v{T}, 0xfff, v{T}")
    A(f"v_cmp_ne_u32 vcc, 0, v{T}")
    A("s_cbranch_vccnz L_h2poll")
    A(f"v_permlane32_swap_b32 v{F}, v{F+1}")
    A(f"v_permlane32_swap_b32 v{F+2}, v{F+3}")
    A(f"v_add_f32 v{F}, v{F}, v{F+1}")
    A(f"v_add_f32 v{F+2}, v{F+2}, v{F+3}")
    A("s_nop 1")
    A(f"v_permlane16_swap_b32 v{F}, v{F+2}")
    A(f"v_add_f32 v{F}, v{F}, v{F+2}")
    A("s_nop 1")
    A(f"v_add_f32_dpp v{F}, v{F}, v{F} row_ror:8 row_mask:0xf bank_mask:0xf")
    A(f"v_cvt_pk_bf16_f32 v{F}, v{F}, v{F}")
    A("s_mov_b32 exec_lo, 0x00ff00ff")
    A("s_mov_b32 exec_hi, 0x00ff00ff")
    A(f"buffer_store_short v{F}, v{a_out}, {srd(sO)}, s{s_t0} offen")
    A(f"s_cmp_lg_u32 s{s_f}, 0")
    A("s_cbranch_scc1 L_fin")
    C("every workgroup has published, hence read, the epoch word: advance it")
    A("s_mov_b64 exec, 1")
    A(f"v_mov_b32 v{T}, s{s_tag32}")
    A(f"v_mov_b32 v{T+1}, 0")
    A(f"buffer_store_dword v{T}, v{T+1}, {srd(sWS)}, 0 offen offset:{WS_E} sc1")
    L("L_fin")
    stamp("end")
    if diag:
        A("s_mov_b64 exec, 1")
        A("s_waitcnt lgkmcnt(0)")
        if diag == 2:
            A("s_sleep 100")
        A(f"s_lshl2_add_u32 s{s_t0}, s2, s{s_w}")
        A(f"s_lshl_b32 s{s_t0}, s{s_t0}, 5")
        A(f"s_add_u32 s{s_t0}, s{s_t0}, {WS_DIAG}")
        for i in range(8):
            A(f"v_mov_b32 v{v_sc+40+i}, s{s_st+2*i}")
        A(f"v_mov_b32 v{T+3}, 0")
        A(f"buffer_store_dwordx4 {vr(v_sc+40,4)}, v{T+3}, {srd(sWS)}, s{s_t0} offen")
        A(f"buffer_store_dwordx4 {vr(v_sc+44,4)}, v{T+3}, {srd(sWS)}, s{s_t0} offen offset:16")
    L("L_end")
    A("s_endpgm")

    L("L_h2switch")
    C("not complete behind this L2: add this wave's own line to the written-through copy and read that from now on")
    A("s_waitcnt vmcnt(0)")
    A("s_mov_b32 exec_lo, 0x00030003")
    A("s_mov_b32 exec_hi, 0x00030003")
    A(f"buffer_store_dwordx4 {vr(v_d+4,4)}, v{a_p2}, {srd(sWS)}, s{s_t2} offen sc1")
    A("s_mov_b64 exec, -1")
    A(f"s_add_u32 s{s_h2get}, s{s_h2get}, {WS_P2-WS_P1}")
    A("s_branch L_h2poll")
    for label, back, loads in (("L_lretry", "L_lcheck", lambda: lamloads(False)), ("L_qretry", "L_qcheck", lambda: qloads(False))):
        L(label)
        spin_guard()
        loads()
        A("s_waitcnt vmcnt(0)")
        A(f"s_branch {back}")

    acc = (NV + 3) // 4 * 4
    g.o.append('.section .rodata,"a"')
    g.o.append(".p2align 6")
    g.o.append(f".amdhsa_kernel {KNAME}")
    g.o.append(f"  .amdhsa_next_free_vgpr {acc+NA}")
    g.o.append("  .amdhsa_next_free_sgpr 102")
    g.o.append(f"  .amdhsa_accum_offset {acc}")
    g.o.append("  .amdhsa_group_segment_fixed_size 0")
    g.o.append("  .amdhsa_kernarg_size 112")
    g.o.append("  .amdhsa_user_sgpr_count 2")
    g.o.append("  .amdhsa_user_sgpr_kernarg_segment_ptr 1")
    g.o.append("  .amdhsa_system_sgpr_workgroup_id_x 1")
    g.o.append("  .amdhsa_float_denorm_mode_32 3")
    g.o.append(".end_amdhsa_kernel")
    gen.log = log
    return "\n".join(g.o) + "\n"


if __name__ == "__main__":
    kw = {}
    for a in sys.argv[2:]:
        k, v = a.split("=")
        kw[k] = eval(v)
    src = gen(**kw)
    open(sys.argv[1], "w").write(src)
```

```python
import sys, math, struct

KNAME = "gated_mix__gqa_block_cached__gqa_block_cached__decode_kernel"

WS_E = 0x0
WS_QB = 0x1000
WS_LB = 0x30000
WS_P1 = 0x40000
WS_P2 = 0x60000
WS_PR = 0x80000
WS_GP = 0x90000
WS_H1 = 0x100000
WS_DIAG = 0x200000
WS_SIZE = 0x400000
EPOCH_INC = 0x9E3779B1

NSLOT = 7
RING = NSLOT * 4096
STG = 4 * RING
SCR = STG + 32768
QP, QX, OPA, ML, OX, FL = 0, 2048, 4096, 12288, 12544, 13568
LDS_BYTES = 163840

PATS = {
    "P1": ([[14], [15], [16], [17], [18]], [[12], [13]], [[19], [20], [21], [22]]),
    "T2": ([[14], [17], [18], [19], [20]], [[12], [13]], [[15], [16], [21], [22]]),
    "U4": ([[14], [22], [17], [18], [19]], [[12], [13]], [[15], [16], [21], [20]]),
    "U5": ([[14], [22], [17], [18], [19]], [[12, 17], [13, 18]], [[15], [16], [21, 18], [20]]),
}


def f2u(x):
    return struct.unpack("<I", struct.pack("<f", x))[0]


class Gen:
    def __init__(self):
        self.o = []
        self.fl = {"D": [], "L": [], "H": []}
        self.kind = {}
        self.nid = 0

    def A(self, s):
        self.o.append("  " + s)

    def L(self, s):
        self.o.append(s + ":")

    def C(self, s):
        self.o.append("  ; " + s)

    def vmem(self, s, optional=False, hint=False):
        self.A(s)
        self.nid += 1
        if not optional:
            k = "H" if hint or "store" in s else "D" if s.endswith(" lds") else "L"
            self.kind[self.nid] = k
            for level in {"D": "DLH", "L": "LH", "H": "H"}[k]:
                self.fl[level].append(self.nid)
        return self.nid

    def done(self, op):
        return op not in self.fl[self.kind[op]]

    def after(self, op, level="H"):
        return len(self.fl[level]) - 1 - self.fl[level].index(op)

    def _wait(self, k):
        assert k <= 63
        self.A(f"s_waitcnt vmcnt({k})")
        for level, l in self.fl.items():
            if k < len(l):
                self.fl[level] = l[len(l) - k:] if k else []

    def throttle(self, op):
        if op not in self.fl["H"]:
            return False
        self._wait(self.after(op))
        return True

    def wait_vm(self, op):
        if self.done(op):
            return False
        self._wait(self.after(op, self.kind[op]))
        return True

    def split(self, fn, n):
        keep, self.o = self.o, []
        nvm = self.nid
        fn()
        assert self.nid == nvm
        body, self.o = self.o, keep
        out, cur, k = [], [], 0
        for line in body:
            assert not line.endswith(":") and "cbranch" not in line and "s_cmp" not in line and "vcc" not in line \
                and "exec" not in line and "cselect" not in line, line
            cur.append(line)
            if not line.strip().startswith(";"):
                k += 1
            if k == n:
                out.append(cur); cur, k = [], 0
        if cur:
            out.append(cur)
        return [(lambda c=c: self.o.extend(c)) for c in out]


def gen(N=5, Npat=None, N0=8, NH=5, PH=64, NB=None, BL=16, BZ=(1, 2, 3, 4), NWO=10, R=5, PQ=36, QLAG=3, LLAG=8, PWG=484, CH=16,
        PAT="U4", XM=None, NHI=7, CK=4, C0=16, GAIN=3.0, BIAS=2.3, NMAXB=8, PT=4,
        SL1=0, SL2=0, P2AFTER=20, WARM2=True, TW=False, FWAVE=0, P1SC="", GR=(21, 41, 63, 83, 101), GWIN=(4, 6), GK=12.0, GOFF=0.4, GMAX=22,
        WOL=2, WOA=6, PX=2, NLO=None, BRK=1.0, BGAIN=3.0, GBRK=0.0, CEND=5, WOK=4, W2P=-1, CP=None, GEST=1, GACT=True, GS2=False, GPICK=8, WOH=0, WOT=32, XP=9, CP0=0, NOP2=False, skip=(), CATCH=3, Q32=True, G6=True, GATE=None, T0=0, TWK=(1, 2, 3, 4), OSC='',
        diag=False, SPIN=1 << 21, pad=None, smap="head"):
    g = Gen()
    A, L, C = g.A, g.L, g.C
    LOG2E = math.log2(math.e)
    Npat = Npat or [N]
    P0, OFF = 16, 8
    def Nof(p):
        if p < P0:
            return N0
        if p < PH:
            return NH
        if p >= OFF + 512 + WOH:
            return NWO
        if NB:
            for k in BZ:
                if OFF + 128 * k - BL <= p < OFF + 128 * k:
                    return NB
        if G6 and p >= OFF + 4 * C0:
            return N + 1
        return Npat[p % len(Npat)]
    PC0 = OFF + 4 * C0
    def Nguar(p):
        return max(Nof(p), NHI) if p >= PC0 else Nof(p)

    sKV = [20, 24, 28, 32]
    sWQ, sWO, sWS, sX, sG, sO = 36, 40, 44, 48, 52, 56
    srd = lambda b: f"s[{b}:{b+3}]"
    (s_w, s_b, s_hkv, s_j, s_kvb, s_kvoff, s_wb, s_stg, s_tag32, s_tag8, s_tag12, s_c, s_rs, s_t0, s_t1, s_t2, s_t3,
     s_wqoff, s_wooff, s_spin, s_colb, s_m12) = range(60, 82)
    s_qoff, s_perm, s_h1pub, s_h1get, s_h2pub, s_h2get, s_lpub, s_lget, s_m15, s_f, s_cnt = range(3, 14)
    s_boost, s_pph, s_pro, s_tagp, s_u, s_xm = range(14, 20)
    s_brk, s_bm, s_gk = s_colb, s_wqoff, s_qoff
    s_own = s_hkv
    s_tag16 = s_m12
    s_c0, s_c1 = 100, 101
    s_gb, s_dev, s_gpo, s_bc = 36, 37, 38, 39
    s_fw = 48
    s_st = 84

    v_g, v_n, v_c, v_r = 2, 3, 4, 5
    a_pw, a_pr, v_pd, v_pl = 6, 7, 8, 9
    v_dv, v_rk, v_rv = 10, 12, 16
    v_mx, v_m, v_nmc, v_gf, v_mt = 24, 25, 26, 27, 28
    (a_wo, a_q, a_qw, a_qr, a_fw, a_fr, a_cwa, a_cwb, a_cml, a_cra, a_crb, a_crb2, a_mlr, a_l16, a_g1, a_ow, a_or,
     a_p2, a_lg, a_out, a_wor) = range(29, 50)
    v_ct = 50
    v_s = 52
    v_one = 56
    v_d = 60
    v_sc = 68
    T = 132
    B = 140
    v_pub = 164
    v_pat = 168
    v_sel = 172
    v_aw = 176
    v_tw = 180
    a_gs = 182
    v_gs = 184
    NV = 196
    a_qop = 0
    a_vf = 32
    a_wop = 64
    a_o = 96
    a_l = 128
    a_kf = 132
    NA = a_kf + 16 * R
    assert NA <= 256
    vr = lambda b, n: f"v[{b}:{b+n-1}]"
    ar = lambda b, n: f"a[{b}:{b+n-1}]"

    SMAPS = {"head": ["start", "qpub", "qval", "endKA", "endVA", "endKB", "drained", "end"],
             "tail": ["start", "drained", "bar", "pub1", "bar2", "h1ok", "pub2", "end"],
             "rounds": ["start"] + [f"t{t}" for t in list(GR)[:5]] + ["drained", "end"],
             "early": ["start", "p0", "p8", "p15", "qpub", "p24", "p40", "end"],
             "early2": ["start", "p20", "p28", "p36", "p48", "p64", "p96", "end"],
             "early3": ["start", "p0", "p4", "a", "b", "c", "p8", "end"],
             "late": ["start", "t100", "t110", "t116", "t121", "t125", "drained", "end"],
             "tail2": ["start", "drained", "pub1", "wo", "h1ok", "bar2", "pub2", "end"]}
    def stamp(name):
        if name not in SMAPS[smap]:
            return
        i = SMAPS[smap].index(name)
        if diag or (pad and i == 0):
            A(f"s_memrealtime s[{s_st+2*i}:{s_st+2*i+1}]")
        if pad and pad[0] == i:
            L("L_pad")
            A("s_memrealtime s[82:83]")
            A("s_waitcnt lgkmcnt(0)")
            A(f"s_sub_u32 s82, s82, s{s_st}")
            A(f"s_cmp_lt_u32 s82, {int(pad[1]*100)}")
            A("s_cbranch_scc1 L_pad")

    hdr = open("gated_mix__gqa_block_cached__gqa_block_cached__decode.s.ref").read().split("\n")
    for line in hdr:
        if line.startswith(";") and "@launch" not in line:
            g.o.append(line)
        elif not line.startswith(";"):
            break
    g.o.append(f"; @launch grid=(256,1,1) block=(256,1,1) lds={LDS_BYTES}")
    g.o.append('.amdgcn_target "amdgcn-amd-amdhsa--gfx950"')
    g.o.append(".text")
    g.o.append(f".globl {KNAME}")
    g.o.append(".p2align 8")
    g.o.append(f".type {KNAME},@function")
    L(KNAME)
    C("workgroup = (b, hkv, one of 16 key splits) for both branches; extra workgroups leave at once")
    A("s_cmp_ge_u32 s2, 256")
    A("s_cbranch_scc0 L_go")
    A("s_endpgm")
    L("L_go")
    A(f"s_lshr_b32 s{s_b}, s2, 7")
    A(f"s_mul_i32 s3, s{s_b}, 40")
    A("s_add_u32 s16, s0, s3")
    A("s_addc_u32 s17, s1, 0")
    A("s_load_dwordx2 s[14:15], s[16:17], 24")
    A("s_load_dwordx4 s[4:7], s[0:1], 8")
    A("s_load_dwordx2 s[12:13], s[0:1], 0")
    A("s_load_dwordx2 s[18:19], s[0:1], 104")
    A("s_load_dwordx4 s[8:11], s[0:1], 48")
    A("s_load_dwordx4 s[96:99], s[0:1], 80")
    stamp("start")
    if CP0:
        C("wave 0 pulls the next lines of this code into L2 while the memory system is still idle")
        A("s_getpc_b64 s[82:83]")
        A(f"v_lshlrev_b32 v{T+6}, 7, v0")
        A(f"v_cmp_gt_u32 vcc, {CP0}, v0")
        A("s_mov_b64 exec, vcc")
        A("s_cbranch_execz L_nocp0")
        g.vmem(f"global_load_dword v{T+7}, v{T+6}, s[82:83] offset:128", optional=True)
        L("L_nocp0")
        A("s_mov_b64 exec, -1")
    A(f"v_lshrrev_b32 v{T}, 6, v0")
    A("v_and_b32 v1, 63, v0")
    A(f"v_readfirstlane_b32 s{s_w}, v{T}")
    if Q32:
        C("q slice: branch b, columns hkv*512 + (s&7)*64 + (s>>3)*32, rows w*128..")
        A(f"v_lshrrev_b32 v{T+2}, 2, v1")
        A(f"v_lshlrev_b32 v{T+2}, 13, v{T+2}")
        A(f"v_and_b32 v{T}, 3, v1")
        A(f"v_lshl_add_u32 v{T+2}, v{T}, 4, v{T+2}")
        A(f"s_and_b32 s{s_t0}, s2, 0x70")
        A(f"s_and_b32 s{s_t1}, s2, 7")
        A(f"s_lshl1_add_u32 s{s_t0}, s{s_t1}, s{s_t0}")
        A(f"s_bfe_u32 s{s_t1}, s2, 0x10003")
        A(f"s_add_u32 s{s_t0}, s{s_t0}, s{s_t1}")
        A(f"s_lshl_b32 s{s_colb}, s{s_t0}, 5")
        A(f"s_lshl_b32 s{s_t2}, s{s_w}, 1")
    else:
        C("q slice: branch b, columns (wg>>1 & 63)*64, rows (wg&1)*256 + w*64")
        A(f"v_lshrrev_b32 v{T+2}, 3, v1")
        A(f"v_lshlrev_b32 v{T+2}, 13, v{T+2}")
        A(f"v_and_b32 v{T}, 7, v1")
        A(f"v_lshl_add_u32 v{T+2}, v{T}, 4, v{T+2}")
        A(f"s_bfe_u32 s{s_colb}, s2, 0x60001")
        A(f"s_lshl_b32 s{s_colb}, s{s_colb}, 6")
        A(f"s_and_b32 s{s_t0}, s2, 1")
        A(f"s_lshl2_add_u32 s{s_t2}, s{s_t0}, s{s_w}")
    A(f"s_lshl_b32 s{s_t0}, s{s_t2}, 19")
    A(f"s_lshl1_add_u32 s{s_wqoff}, s{s_colb}, s{s_t0}")
    A(f"s_lshl_b32 s{s_stg}, s{s_w}, 13")
    A(f"s_add_u32 s{s_stg}, s{s_stg}, {STG}")
    A(f"s_mov_b32 s{sWQ+2}, 0x400000")
    A(f"s_mov_b32 s{sWQ+3}, 0x20000")
    A("s_waitcnt lgkmcnt(0)")
    A(f"s_mov_b32 s{sWQ}, s14")
    A(f"s_and_b32 s{sWQ+1}, s15, 0xffff")
    def mksrd(d, p, size):
        A(f"s_mov_b32 s{d}, s{p}")
        A(f"s_and_b32 s{d+1}, s{p+1}, 0xffff")
        A(f"s_mov_b32 s{d+2}, {size:#x}")
        A(f"s_mov_b32 s{d+3}, 0x20000")

    S5, WM, G4 = PATS[PAT] if isinstance(PAT, str) else PAT
    msk = lambda bs: sum(1 << b for b in bs)
    basis = {}
    for v in [msk(x) for x in S5 + WM + G4]:
        while v:
            h = v.bit_length() - 1
            if h not in basis:
                basis[h] = v
                break
            v ^= basis[h]
    assert sorted(basis) == list(range(12, 23)), "pattern is not a bijection"
    def tile_off(t):
        x = 0
        for k in range(5):
            if t >> k & 1:
                x ^= msk(S5[k])
        return x
    NT = 128
    Z = [("wq", j) for j in range(8)] + [("kv", t, j) for t in range(WOT) for j in range(4)] + [("wo", j) for j in range(WOH)] + \
        [("kv", t, j) for t in range(WOT, NT) for j in range(4)] + [("wo", j) for j in range(WOH, 8)]
    pos = {z: p for p, z in enumerate(Z)}
    pos_of = lambda t, j: pos[("kv", t, j)]
    slot_of = lambda t: t % NSLOT
    isK = lambda t: (t // 32) % 2 == 0
    ids = {}
    st = {}
    log = []
    pending = []

    def cur_t():
        p = st["p"]
        while Z[p][0] != "kv":
            p -= 1
        return Z[p][1]

    def issue(p, throttle=True):
        z = Z[p]
        need_nop = False
        if z[0] == "wq":
            if z[1]:
                A(f"s_add_u32 s{s_wqoff}, s{s_wqoff}, {0x20000 if Q32 else 0x10000:#x}")
            A(f"s_add_u32 m0, s{s_stg}, {z[1]*1024}")
            need_nop = True
        elif z[0] == "wo":
            if z[1]:
                A(f"s_add_u32 s{s_wooff}, s{s_wooff}, 8192")
            A(f"s_add_u32 m0, s{s_stg}, {z[1]*1024}")
            need_nop = True
        elif z[2] == 0:
            t = z[1]
            stamp(f"t{t}")
            A(f"s_xor_b32 s{s_kvoff}, s{s_kvb}, {tile_off(t % 32):#x}")
            A(f"s_add_u32 m0, s{s_wb}, {slot_of(t)*4096}")
            need_nop = True
            if p >= PC0 and any(Nguar(q) > Nof(q) for q in range(p, p + 4)):
                if G6:
                    A(f"s_sub_i32 s{s_bm}, s{s_gb}, {t + 1}")
                elif NLO:
                    A(f"s_sub_i32 s{s_bm}, {t}, s{s_brk}")
                A(f"s_cmp_gt_i32 s{s_boost}, {t}")
                A("s_cselect_b64 vcc, -1, 0")
                need_nop = False
                if XM and (XM[0] | XM[1]) >> (t % 32) & 1:
                    A(f"s_bitcmp1_b32 s{s_xm}, {t % 32}")
                    A("s_cselect_b64 vcc, -1, vcc")
        waited = False
        if throttle and p - Nguar(p) >= 0:
            waited = g.throttle(ids[p - Nguar(p)])
            if Nguar(p) > Nof(p) and ids[p - Nof(p)] in g.fl["H"]:
                A(f"s_cbranch_vccnz L_b{p}")
                A(f"s_waitcnt vmcnt({g.after(ids[p - Nof(p)])})")
                if NLO or G6:
                    A(f"s_bitcmp0_b32 s{s_bm}, 31")
                    A(f"s_cbranch_scc1 L_b{p}")
                    A(f"s_waitcnt vmcnt({g.after(ids[p - (NLO or N)])})")
                L(f"L_b{p}")
                waited = True
        if need_nop and not waited:
            A("s_nop 0")
        stamp(f"p{p}")
        if z[0] == "wq":
            ids[p] = g.vmem(f"buffer_load_dwordx4 v{T+2}, {srd(sWQ)}, s{s_wqoff} offen nt lds")
        elif z[0] == "wo":
            ids[p] = g.vmem(f"buffer_load_dwordx4 v{a_wo}, {srd(sWO)}, s{s_wooff} offen nt lds")
        else:
            _, t, j = z
            ids[p] = g.vmem(f"buffer_load_dwordx4 v{v_dv+(j&1)}, {srd(sKV[t//32])}, s{s_kvoff} offen offset:{j*1024} nt lds")
            if j == 1 and C0 - 8 <= t < NT - 6:
                assert st["setup"]
                A(f"s_cmp_eq_u32 s{s_pph}, {t % PT}")
                A(f"s_cselect_b32 s{s_u}, s{s_pro}, {WS_SIZE:#x}")
                A(f"v_or_b32 v{v_pd}, {t}, v{v_pl}")
                g.vmem(f"buffer_store_dword v{v_pd}, v{a_pw}, {srd(sWS)}, s{s_u} offen")

    C("wq slice -> staging")
    for p in range(8):
        issue(p, throttle=False)
    stamp("a")
    A(f"s_load_dword s{s_tag32}, s[18:19], {WS_E}")
    mksrd(sKV[0], 4, 0x8000000)
    A(f"s_mul_i32 s{s_wb}, s{s_w}, {RING}")
    C("first byte of this wave's keys")
    A(f"s_lshr_b32 s{s_kvb}, s2, 4")
    A(f"s_lshl_b32 s{s_kvb}, s{s_kvb}, 23")
    for src, ms in (("s2", G4), (f"s{s_w}", WM)):
        k = 0
        while k < len(ms):
            n = 1
            while len(ms[k]) == 1 and k + n < len(ms) and list(ms[k + n]) == [ms[k][0] + n]:
                n += 1
            if len(ms[k]) == 1:
                A(f"s_bfe_u32 s{s_t0}, {src}, {(n << 16) + k:#x}")
                A(f"s_lshl_b32 s{s_t0}, s{s_t0}, {ms[k][0]}")
            else:
                A(f"s_bitcmp1_b32 {src}, {k}")
                A(f"s_cselect_b32 s{s_t0}, {msk(ms[k]):#x}, 0")
            A(f"s_xor_b32 s{s_kvb}, s{s_kvb}, s{s_t0}")
            k += n
    C("DMA voffsets: 16-byte chunk index xor 2*(key&7)")
    A(f"v_lshrrev_b32 v{v_g}, 4, v1")
    A(f"v_lshlrev_b32 v{T+3}, 1, v{v_g}")
    A(f"v_xor_b32 v{T+3}, v{T+3}, v1")
    A(f"v_lshlrev_b32 v{v_dv}, 4, v{T+3}")
    A(f"v_xor_b32 v{v_dv+1}, 0x80, v{v_dv}")
    if T0:
        C("start the address translation of both key pages early")
        A("s_mov_b64 exec, 3")
        A(f"v_lshlrev_b32 v{v_tw+1}, 22, v1")
        A(f"s_andn2_b32 s{s_t0}, s{s_kvb}, 0x400000")
        g.vmem(f"buffer_load_dword v{v_tw}, v{v_tw+1}, {srd(sKV[0])}, s{s_t0} offen nt")
        A("s_mov_b64 exec, -1")
    GX = v_sc

    NKS, NCB = (4, 2) if Q32 else (2, 4)
    XOP = v_sc + 16
    def pro_x():
        C("x operand of the q projection")
        mksrd(sX, 12, 2048)
        A(f"v_and_b32 v{T+1}, 1, v1")
        A(f"v_lshlrev_b32 v{T+1}, 10, v{T+1}")
        A(f"v_lshl_add_u32 v{T+1}, v{v_g}, 4, v{T+1}")
        A(f"s_lshl_b32 s{s_t2}, s{s_t2}, 7")
        for j in range(NKS):
            st["x"] = g.vmem(f"buffer_load_dwordx4 {vr(XOP+4*j,4)}, v{T+1}, {srd(sX)}, s{s_t2} offen offset:{j*64}")
        A(f"s_lshr_b32 s{s_t0}, s{s_w}, 1")
        A(f"s_mul_i32 s{s_t0}, s{s_t0}, 40")
        A(f"s_add_u32 s82, s0, s{s_t0}")
        A("s_addc_u32 s83, s1, 0")
        A("s_load_dwordx2 s[16:17], s[82:83], 32")

    def pro_rest():
        A(f"v_and_b32 v{v_n}, 15, v1")
        A(f"v_and_b32 v{v_c}, 3, v1")
        A(f"v_bfe_u32 v{v_r}, v1, 2, 2")
        mksrd(sG, 96, 1024)
        for k in range(1, 4):
            mksrd(sKV[k], 4 + 2 * k, 0x8000000)
        mksrd(sWS, 18, WS_SIZE)
        mksrd(sO, 98, 2048)
        A(f"s_bfe_u32 s{s_hkv}, s2, 0x30004")
        A(f"s_and_b32 s{s_j}, s2, 15")
        A(f"s_lshl4_add_u32 s{s_j}, s{s_b}, s{s_j}")
        C("clear the LDS flags")
        A(f"v_mov_b32 v{a_fr}, {SCR+FL}")
        A(f"v_lshl_add_u32 v{T}, v{v_n}, 2, v{a_fr}")
        A(f"v_mov_b32 v{T+1}, 0")
        A(f"ds_write_b32 v{T}, v{T+1}")
        C("LDS read addresses for K")
        A(f"v_lshl_add_u32 v{T+3}, v{v_n}, 8, s{s_wb}")
        A(f"v_and_b32 v{T+4}, 7, v{v_n}")
        A(f"v_lshlrev_b32 v{T+4}, 1, v{T+4}")
        A(f"v_xor_b32 v{T+4}, v{T+4}, v{v_g}")
        for j in range(4):
            A(f"v_xor_b32 v{v_rk+j}, {4*j}, v{T+4}")
            A(f"v_lshl_add_u32 v{v_rk+j}, v{v_rk+j}, 4, v{T+3}")
        C("q-proj addresses")
        A(f"v_lshl_add_u32 v{T}, v{v_g}, 3, v{v_r}")
        A(f"v_lshl_add_u32 v{T}, v{T}, {6 if Q32 else 7}, s{s_stg}")
        A(f"v_lshl_add_u32 v{T}, v{v_c}, 3, v{T}")
        A(f"s_lshl_b32 s{s_t0}, s{s_w}, 9")
        A(f"s_add_u32 s{s_t0}, s{s_t0}, {SCR+QP}")
        A(f"v_and_b32 v{T+1}, 1, v1")
        A(f"v_lshl_add_u32 v{T+1}, v{T+1}, {7 if Q32 else 8}, s{s_t0}")
        A(f"v_lshl_add_u32 v{T+1}, v{v_g}, 4, v{T+1}")
        A(f"v_and_b32 v{T+3}, 31, v1")
        A(f"v_lshlrev_b32 v{T+3}, 4, v{T+3}")
        A(f"v_add_u32 v{T+3}, {SCR+QP}, v{T+3}")
        A(f"v_bfe_u32 v{T+4}, v1, {3 if Q32 else 4}, 1")
        A(f"v_lshlrev_b32 v{T+4}, 14, v{T+4}")
        A(f"v_and_b32 v{T+5}, {7 if Q32 else 15}, v1")
        A(f"v_lshl_add_u32 v{T+4}, v{T+5}, 4, v{T+4}")
        A(f"s_lshl_b32 s{s_t0}, s{s_b}, 13")
        A(f"s_add_u32 s{s_t0}, s{s_t0}, s{s_colb}")
        A(f"s_lshl_b32 s{s_t0}, s{s_t0}, 2")
        if not Q32:
            A(f"s_and_b32 s{s_t1}, s2, 1")
            A(f"s_lshl_b32 s{s_t1}, s{s_t1}, 16")
            A(f"s_add_u32 s{s_t0}, s{s_t0}, s{s_t1}")
        A(f"s_add_u32 s{s_t0}, s{s_t0}, {WS_QB}")
        A(f"s_movk_i32 s{s_t1}, 0xff00")

    def gate_loads():
        C("gate inputs: lane l holds 16 elements (l&31) of batch b")
        A(f"v_and_b32 v{T}, 31, v1")
        A(f"v_lshlrev_b32 v{T}, 5, v{T}")
        A(f"s_lshl_b32 s{s_t0}, s{s_b}, 10")
        for j in range(2):
            g.vmem(f"buffer_load_dwordx4 {vr(GX+4*j,4)}, v{T}, {srd(sX)}, s{s_t0} offen offset:{j*16}")
        for j in range(2):
            st["gate"] = g.vmem(f"buffer_load_dwordx4 {vr(GX+8+4*j,4)}, v{T}, {srd(sG)}, 0 offen offset:{j*16}")

    if XP < 8:
        pro_x()
        pro_rest()
    chunks = g.split(pro_rest, 14) if XP >= 8 else []
    for p in range(8, P0):
        issue(p)
        if p == XP:
            pro_x()
        elif p > XP and chunks:
            chunks.pop(0)()
    for f in chunks:
        f()
    for p in range(P0, P0 + PX):
        issue(p, throttle=False)
    A("s_waitcnt lgkmcnt(0)")
    C("---- q projection: 64 columns, half of the rows ----")
    g.wait_vm(st["x"])
    g.wait_vm(ids[7])
    RB = 64 if Q32 else 128
    for ks in range(NKS):
        for cb in range(NCB):
            for hf in range(2):
                A(f"ds_read_b64_tr_b16 {ar(a_vf+(ks*NCB+cb)*4+hf*2,2)}, v{T} offset:{ks*32*RB + hf*4*RB + cb*32}")
    mksrd(sWO, 16, 0x400000)
    A(f"s_add_u32 s{s_tag32}, s{s_tag32}, {EPOCH_INC:#x}")
    A(f"s_and_b32 s{s_tag8}, s{s_tag32}, 0xff")
    A(f"s_and_b32 s{s_tag12}, s{s_tag32}, 0xfff")
    A(f"s_and_b32 s{s_tag16}, s{s_tag32}, 0xffff")
    A(f"v_mov_b32 v{T+5}, s{s_tag8}")
    for ks in range(NKS):
        A(f"s_waitcnt lgkmcnt({16-2*NCB*(ks+1)})")
        for cb in range(NCB):
            A(f"v_mfma_f32_16x16x32_bf16 {vr(B+4*cb,4)}, {ar(a_vf+(ks*NCB+cb)*4,4)}, {vr(XOP+4*ks,4)}, " + ("0" if ks == 0 else vr(B + 4 * cb, 4)))
    A(f"s_nop {8-NCB}")
    for cb in range(NCB):
        A(f"ds_write_b128 v{T+1}, {vr(B+4*cb,4)} offset:{cb*64}")
    A(f"s_cmp_eq_u32 s{s_w}, 0")
    A("s_waitcnt lgkmcnt(0)")
    if "b1" not in skip:
        A("s_barrier")
    A("s_cbranch_scc0 L_noqstore")
    for w in range(4):
        A(f"ds_read_b128 {vr(B+4*w,4)}, v{T+3} offset:{w*512}")
    A("s_waitcnt lgkmcnt(0)")
    for e in range(4):
        A(f"v_add_f32 v{B+e}, v{B+e}, v{B+4+e}")
        A(f"v_add_f32 v{B+8+e}, v{B+8+e}, v{B+12+e}")
    for e in range(4):
        A(f"v_add_f32 v{B+e}, v{B+e}, v{B+8+e}")
    if Q32:
        for e in range(4):
            A(f"v_cvt_pk_bf16_f32 v{B+e}, 0, v{B+e}")
        for e in range(4):
            A(f"v_or_b32 v{B+e}, s{s_tag16}, v{B+e}")
        A("s_mov_b64 exec, 0xffff")
    else:
        for e in range(4):
            A(f"v_add_u32 v{B+e}, 0x80, v{B+e}")
        for e in range(4):
            A(f"v_and_or_b32 v{B+e}, v{B+e}, s{s_t1}, v{T+5}")
        A("s_mov_b32 exec_hi, 0")
    if "qstore" not in skip:
        g.vmem(f"buffer_store_dwordx4 {vr(B,4)}, v{T+4}, {srd(sWS)}, s{s_t0} offen sc1", optional=True)
    A("s_mov_b64 exec, -1")
    L("L_noqstore")
    stamp("qpub")

    FSLOT = slot_of(NT)

    def setup_head():
        C("constants")
        A(f"s_mov_b32 s{s_c}, {f2u(LOG2E):#x}")
        A(f"s_mov_b32 s{s_rs}, {f2u(128 ** -0.5):#x}")
        A(f"s_mov_b32 s{s_spin}, {SPIN}")
        for r in range(4):
            A(f"v_mov_b32 v{v_one+r}, 0x3f803f80")
        C("q gather: head w, lanes 0-31 half 0, lanes 32-63 half 1")
        A(f"v_lshrrev_b32 v{T}, 5, v1")
        A(f"v_and_b32 v{T+1}, 31, v1")
        A(f"v_lshlrev_b32 v{T+2}, 4, v{T+1}")
        A(f"v_lshl_add_u32 v{a_q}, v{T}, {15 if Q32 else 16}, v{T+2}")
        A(f"s_lshr_b32 s{s_t0}, s2, 4")
        A(f"s_lshl2_add_u32 s{s_t0}, s{s_t0}, s{s_w}")
        A(f"s_lshl_b32 s{s_t0}, s{s_t0}, 9")
        A(f"s_add_u32 s{s_qoff}, s{s_t0}, {WS_QB}")
        A(f"s_lshl_b32 s{s_t0}, s{s_w}, 8")
        A(f"s_add_u32 s{s_t0}, s{s_t0}, {SCR+QX}")
        A(f"v_lshl_add_u32 v{a_qw}, v{T+1}, 3, s{s_t0}")
        A(f"v_lshl_add_u32 v{a_qw}, v{T}, {10 if Q32 else 2}, v{a_qw}")
        A(f"v_lshlrev_b32 v{a_qr}, 8, v{v_c}")
        A(f"v_lshl_add_u32 v{a_qr}, v{v_g}, 4, v{a_qr}")
        A(f"v_add_u32 v{a_qr}, {SCR+QX}, v{a_qr}")
        A(f"s_lshl_b32 s{s_t0}, s{s_w}, 2")
        A(f"v_add_u32 v{a_fw}, s{s_t0}, v{a_fr}")
        C("catch-up hints (speed only): one line of tile indices per group of workgroups with equal wg&7")
        A(f"s_mov_b32 s{s_boost}, 0")
        A(f"s_and_b32 s{s_tagp}, s{s_tag32}, 0xffffff00")
        A(f"v_mov_b32 v{v_pl}, s{s_tagp}")
        A(f"v_min_u32 v{a_pw}, 1, v1")
        A(f"v_lshlrev_b32 v{a_pw}, 30, v{a_pw}")
        A(f"s_and_b32 s{s_t0}, s2, 7")
        A(f"s_mul_i32 s{s_t0}, s{s_t0}, 4352")
        A(f"s_add_u32 s{s_t0}, s{s_t0}, {WS_PR}")
        A(f"v_lshl_add_u32 v{a_pr}, v1, 2, s{s_t0}")
        if GR:
            C("wave 1 of workgroups 32..39 compares the groups a few times")
            A(f"s_add_u32 s{s_bc}, s{s_t0}, 128")
            A(f"s_mov_b32 s{s_gb}, 0")
            A(f"s_mov_b32 s{s_dev}, 0")
            A(f"s_lshr_b32 s{s_t1}, s2, 3")
            A(f"s_lshl_b32 s{s_t2}, s{s_w}, 5")
            A(f"s_add_u32 s{s_t1}, s{s_t1}, s{s_t2}")
            A(f"s_xor_b32 s{s_t1}, s{s_t1}, {32 + 4}")
            A(f"s_min_u32 s{s_t1}, s{s_t1}, 1")
            A(f"s_lshl_b32 s{s_t1}, s{s_t1}, 30")
            A(f"s_add_u32 s{s_t1}, s{s_t1}, {WS_GP}")
            A(f"v_lshrrev_b32 v{T+3}, 3, v1")
            A(f"v_min_u32 v{T+3}, 1, v{T+3}")
            A(f"v_lshlrev_b32 v{T+3}, 30, v{T+3}")
            A(f"v_mul_u32_u24 v{T+4}, 4224, v1")
            A(f"v_add3_u32 v{a_gs}, v{T+3}, v{T+4}, s{s_t1}")
            A(f"s_and_b32 s{s_t2}, s2, 7")
            A(f"s_mul_i32 s{s_t2}, s{s_t2}, 4224")
            A(f"s_add_u32 s{s_gpo}, s{s_t1}, s{s_t2}")
        A(f"s_lshr_b32 s{s_t1}, s2, 3")
        A(f"s_lshl2_add_u32 s{s_pro}, s{s_t1}, s{s_t0}")
        A(f"s_and_b32 s{s_t1}, s{s_t1}, {PT-1}")
        A(f"s_lshl4_add_u32 s{s_pph}, s{s_w}, s{s_t1}")
        if XM:
            A(f"s_getreg_b32 s{s_t0}, hwreg(HW_REG_XCC_ID)")
            A(f"s_and_b32 s{s_t0}, s{s_t0}, 1")
            A(f"s_mul_i32 s{s_t0}, s{s_t0}, {XM[0] ^ XM[1]:#x}")
            A(f"s_xor_b32 s{s_xm}, s{s_t0}, {XM[0]:#x}")

    def setup_rest():
        A(f"s_mov_b32 s{s_perm}, 0x07060302")
        A(f"s_mov_b32 s{s_m12}, 0xfffff000")
        A(f"s_mov_b32 s{s_m15}, 0xfffefffe")
        C("V transposed read addresses")
        A(f"v_lshl_add_u32 v{T+3}, v{v_g}, 2, v{v_r}")
        A(f"v_and_b32 v{T+5}, 1, v{v_c}")
        A(f"v_lshlrev_b32 v{T+5}, 3, v{T+5}")
        A(f"v_lshrrev_b32 v{T+6}, 1, v{v_c}")
        A(f"v_lshl_add_u32 v{T+4}, v{T+3}, 8, v{T+5}")
        A(f"v_add_u32 v{T+4}, s{s_wb}, v{T+4}")
        A(f"v_and_b32 v{T+7}, 7, v{T+3}")
        A(f"v_lshl_or_b32 v{T+7}, v{T+7}, 1, v{T+6}")
        for cb in range(8):
            A(f"v_xor_b32 v{v_rv+cb}, {2*cb}, v{T+7}")
            A(f"v_lshl_add_u32 v{v_rv+cb}, v{v_rv+cb}, 4, v{T+4}")
        C("wo: head hq = hkv*4 + (j>>3), columns (wg&7)*64; wave w loads rows (w&1)*64.. of branch w>>1")
        A(f"v_lshl_add_u32 v{T+4}, v{T+3}, 7, v{T+5}")
        A(f"v_add_u32 v{T+4}, {STG}, v{T+4}")
        A(f"v_and_b32 v{T+7}, 6, v{T+3}")
        A(f"v_or_b32 v{T+7}, v{T+7}, v{T+6}")
        A(f"s_lshl_b32 s{s_t0}, s{s_w}, 1")
        A(f"v_xor_b32 v{T+7}, s{s_t0}, v{T+7}")
        A(f"v_lshl_add_u32 v{a_wor}, v{T+7}, 4, v{T+4}")
        A(f"v_lshrrev_b32 v{T+3}, 3, v1")
        A(f"v_and_b32 v{T+4}, 6, v{T+3}")
        A(f"v_and_b32 v{T+5}, 7, v1")
        A(f"v_xor_b32 v{T+4}, v{T+4}, v{T+5}")
        A(f"v_lshlrev_b32 v{T+4}, 4, v{T+4}")
        A(f"v_lshl_add_u32 v{a_wo}, v{T+3}, 10, v{T+4}")
        A(f"s_lshr_b32 s{s_t0}, s{s_j}, 3")
        A(f"s_lshl2_add_u32 s{s_t3}, s{s_hkv}, s{s_t0}")
        A(f"s_and_b32 s{s_t0}, s{s_w}, 1")
        A(f"s_lshl1_add_u32 s{s_t0}, s{s_t3}, s{s_t0}")
        A(f"s_lshl_b32 s{s_t0}, s{s_t0}, 16")
        A(f"s_and_b32 s{s_t2}, s2, 7")
        A(f"s_lshl_b32 s{s_t1}, s{s_t2}, 7")
        A(f"s_add_u32 s{s_wooff}, s{s_t0}, s{s_t1}")
        C("hop-2 store: line (cg = (wg&7)*4 + w, p = hq), lane (g, n<2): b = n")
        A(f"s_lshl2_add_u32 s{s_t0}, s{s_t2}, s{s_w}")
        A(f"s_lshl_b32 s{s_t0}, s{s_t0}, 12")
        A(f"s_lshl_b32 s{s_t1}, s{s_t3}, 7")
        A(f"s_add_u32 s{s_t0}, s{s_t0}, s{s_t1}")
        A(f"s_add_u32 s{s_h2pub}, s{s_t0}, {WS_P1}")
        A(f"v_and_b32 v{T+3}, 1, v1")
        A(f"v_lshlrev_b32 v{a_p2}, 6, v{T+3}")
        A(f"v_lshl_add_u32 v{a_p2}, v{v_g}, 4, v{a_p2}")
        C("o operand reader: OX + (n&1)*256 + g*16")
        A(f"v_lshlrev_b32 v{a_or}, 8, v{T+3}")
        A(f"v_lshl_add_u32 v{a_or}, v{v_g}, 4, v{a_or}")
        A(f"v_add_u32 v{a_or}, {SCR+OX}, v{a_or}")
        C("final role f = (wg&7)*4 + w (the wave's own column group) for one workgroup per f, else >= 32")
        A(f"s_lshl2_add_u32 s{s_f}, s{s_t2}, s{s_w}")
        A(f"s_lshl_b32 s{s_t1}, s{s_f}, 12")
        A(f"s_add_u32 s{s_h2get}, s{s_t1}, {WS_P1}")
        A(f"s_lshr_b32 s{s_t0}, s2, 3")
        if FWAVE == 0:
            A(f"s_xor_b32 s{s_t0}, s{s_t0}, s{s_w}")
        A(f"s_lshl_b32 s{s_t0}, s{s_t0}, 5")
        A(f"s_or_b32 s{s_f}, s{s_f}, s{s_t0}")
        A(f"v_lshlrev_b32 v{a_l16}, 4, v1")
        A(f"v_bfe_u32 v{T+3}, v1, 2, 1")
        A(f"v_lshlrev_b32 v{a_out}, 10, v{T+3}")
        A(f"v_lshl_add_u32 v{a_out}, v{v_c}, 3, v{a_out}")
        A(f"v_bfe_u32 v{T+4}, v1, 4, 1")
        A(f"v_lshl_add_u32 v{a_out}, v{T+4}, 2, v{a_out}")
        A(f"v_lshrrev_b32 v{T+5}, 5, v1")
        A(f"v_lshl_add_u32 v{a_out}, v{T+5}, 1, v{a_out}")
        C("hop-1 gather, wave = (dims half w>>1, batch w&1): rows (hq, b*16 + 4*g + i)")
        A(f"v_lshlrev_b32 v{T+5}, 4, v{v_n}")
        A(f"v_lshl_add_u32 v{a_g1}, v{v_g}, 11, v{T+5}")
        A(f"s_and_b32 s{s_t0}, s{s_w}, 1")
        A(f"s_lshl1_add_u32 s{s_t1}, s{s_t3}, s{s_t0}")
        A(f"s_lshl_b32 s{s_t1}, s{s_t1}, 13")
        A(f"s_lshr_b32 s{s_t2}, s{s_w}, 1")
        A(f"s_lshl_b32 s{s_t3}, s{s_t2}, 8")
        A(f"s_add_u32 s{s_t1}, s{s_t1}, s{s_t3}")
        A(f"s_add_u32 s{s_h1get}, s{s_t1}, {WS_H1}")
        C("summed o -> LDS [br][b][ks][g][hf][4] bf16; lanes 0-15 hold branch B, lanes 16-31 branch A")
        A(f"s_lshl1_add_u32 s{s_t0}, s{s_t0}, s{s_t2}")
        A(f"s_lshl_b32 s{s_t0}, s{s_t0}, 7")
        A(f"s_add_u32 s{s_t0}, s{s_t0}, {SCR+OX}")
        A(f"v_lshl_add_u32 v{a_ow}, v{v_c}, 4, s{s_t0}")
        A(f"v_lshl_add_u32 v{a_ow}, v{T+3}, 3, v{a_ow}")
        A(f"v_bfe_u32 v{T+5}, v1, 3, 1")
        A(f"v_lshl_add_u32 v{a_ow}, v{T+5}, 6, v{a_ow}")
        A(f"v_xor_b32 v{T+4}, 1, v{T+4}")
        A(f"v_lshl_add_u32 v{a_ow}, v{T+4}, 9, v{a_ow}")
        C("hop-1 publish: row (hkv, h=w, j)")
        A(f"s_lshl2_add_u32 s{s_t0}, s{s_hkv}, s{s_w}")
        A(f"s_lshl_b32 s{s_t0}, s{s_t0}, 5")
        A(f"s_add_u32 s{s_t0}, s{s_t0}, s{s_j}")
        A(f"s_lshl_b32 s{s_t0}, s{s_t0}, 9")
        A(f"s_add_u32 s{s_h1pub}, s{s_t0}, {WS_H1}")
        C("combine: writers (lane (g,h)) and readers (head w, d4)")
        A(f"v_lshlrev_b32 v{T+3}, 9, v{v_c}")
        A(f"v_lshl_add_u32 v{T+3}, v{v_g}, 4, v{T+3}")
        A(f"s_lshl_b32 s{s_t0}, s{s_w}, 11")
        A(f"s_add_u32 s{s_t0}, s{s_t0}, {SCR+OPA}")
        A(f"v_add_u32 v{a_cwa}, s{s_t0}, v{T+3}")
        A(f"v_add_u32 v{a_cwb}, s{s_wb}, v{T+3}")
        A(f"s_lshl_b32 s{s_t0}, s{s_w}, 2")
        A(f"s_add_u32 s{s_t0}, s{s_t0}, {SCR+ML}")
        A(f"v_lshl_add_u32 v{a_cml}, v{v_c}, 4, s{s_t0}")
        A(f"v_and_b32 v{T+3}, 7, v1")
        A(f"v_lshlrev_b32 v{T+3}, 4, v{T+3}")
        A(f"v_add_u32 v{a_mlr}, {SCR+ML}, v{T+3}")
        A(f"v_and_b32 v{T+3}, 31, v1")
        A(f"s_lshl_b32 s{s_t0}, s{s_w}, 9")
        A(f"v_lshl_add_u32 v{a_crb}, v{T+3}, 4, s{s_t0}")
        A(f"v_add_u32 v{a_cra}, {SCR+OPA}, v{a_crb}")
        A(f"v_add_u32 v{a_crb2}, {2*RING}, v{a_crb}")
        C("log-sum-exp exchange among the 16 splits: lane = (br = bit4, s = n)")
        A(f"s_lshl_b32 s{s_t0}, s2, 7")
        A(f"s_add_u32 s{s_lpub}, s{s_t0}, {WS_LB}")
        A(f"s_andn2_b32 s{s_t0}, s{s_t0}, 0x7ff")
        A(f"s_lshl3_add_u32 s{s_t0}, s{s_w}, s{s_t0}")
        A(f"s_add_u32 s{s_lget}, s{s_t0}, {WS_LB}")
        A(f"v_bfe_u32 v{T+3}, v1, 4, 1")
        A(f"v_lshlrev_b32 v{T+3}, 5, v{T+3}")
        A(f"v_lshl_add_u32 v{a_lg}, v{v_n}, 7, v{T+3}")
        C("tag bit patterns and the selector operand (1.0 where element == row)")
        for e in range(4):
            A(f"s_and_b32 s{s_t0}, s{s_tag8}, 1")
            A(f"s_bfe_u32 s{s_t1}, s{s_tag8}, {0x10001 + e:#x}")
            A(f"s_pack_ll_b32_b16 s{s_t0}, s{s_t0}, s{s_t1}")
            A(f"v_mov_b32 v{v_pat+e}, s{s_t0}")
        A(f"v_and_b32 v{T+3}, 1, v1")
        A(f"v_lshlrev_b32 v{T+3}, 4, v{T+3}")
        A(f"v_mov_b32 v{T+4}, 0x3f80")
        A(f"v_lshlrev_b32 v{T+3}, v{T+3}, v{T+4}")
        A(f"v_lshrrev_b32 v{T+4}, 1, v{v_n}")
        for e in range(4):
            A(f"v_xor_b32 v{T+5}, {e}, v{T+4}")
            A(f"v_min_u32 v{T+5}, 1, v{T+5}")
            A(f"v_add_u32 v{T+5}, -1, v{T+5}")
            A(f"v_and_b32 v{v_sel+e}, v{T+5}, v{T+3}")

    def setup_gate():
        C("gate factor: g in lanes with bit 2 clear, 1-g in the others, with the reference's bf16 rounding points")
        X, Wt = GX, GX + 8
        for r in range(8):
            A(f"v_lshlrev_b32 v{T}, 16, v{X+r}")
            A(f"v_lshlrev_b32 v{T+1}, 16, v{Wt+r}")
            A(f"v_and_b32 v{X+r}, 0xffff0000, v{X+r}")
            A(f"v_and_b32 v{Wt+r}, 0xffff0000, v{Wt+r}")
            A(f"v_mul_f32 v{T}, v{T}, v{T+1}")
            A(f"v_mul_f32 v{X+r}, v{X+r}, v{Wt+r}")
            A(f"v_cvt_pk_bf16_f32 v{X+r}, v{T}, v{X+r}")
        for r in range(8):
            A(f"v_dot2_f32_bf16 v{T+2}, v{X+r}, v{v_one}, " + ("0" if r == 0 else f"v{T+2}"))
        A("s_nop 2")
        for d in (1, 2, 4, 8):
            A(f"v_add_f32_dpp v{T+2}, v{T+2}, v{T+2} row_ror:{d} row_mask:0xf bank_mask:0xf")
            A("s_nop 1")
        A(f"v_mov_b32 v{T+3}, v{T+2}")
        A("s_nop 1")
        A(f"v_permlane16_swap_b32 v{T+2}, v{T+3}")
        A("s_nop 0")
        A(f"v_add_f32 v{T+2}, v{T+2}, v{T+3}")
        A(f"v_cvt_pk_bf16_f32 v{T+2}, 0, v{T+2}")
        A(f"v_mul_f32 v{T+2}, {f2u(-LOG2E):#x}, v{T+2}")
        A(f"v_exp_f32 v{T+2}, v{T+2}")
        A("s_nop 0")
        A(f"v_add_f32 v{T+2}, 1.0, v{T+2}")
        A(f"v_rcp_f32 v{T+2}, v{T+2}")
        A(f"v_bfe_i32 v{T+4}, v1, 2, 1")
        A(f"v_cvt_pk_bf16_f32 v{T+2}, 0, v{T+2}")
        A(f"v_sub_f32 v{T+3}, 1.0, v{T+2}")
        A(f"v_cvt_pk_bf16_f32 v{T+3}, 0, v{T+3}")
        A(f"v_bfi_b32 v{v_gf}, v{T+4}, v{T+3}, v{T+2}")

    def spin_guard():
        A(f"s_sub_u32 s{s_spin}, s{s_spin}, 1")
        A("s_cbranch_scc1 L_end")

    def qloads(track):
        if not Q32:
            A(f"s_add_u32 s{s_t0}, s{s_qoff}, 0x8000")
        for br in range(1 if Q32 else 2):
            s = f"buffer_load_dwordx4 {vr(B+4*br,4)}, v{a_q}, {srd(sWS)}, s{s_t0 if br else s_qoff} offen sc1"
            if track and "qload" in skip:
                st["q"] = ids[st["p"]]
            elif track:
                st["q"] = g.vmem(s)
            else:
                A(s)

    def q_validate():
        C("---- validate this wave's head of q (both branches), share through LDS ----")
        g.wait_vm(st["q"])
        L("L_qcheck")
        if Q32:
            A(f"v_xor_b32 v{T}, s{s_tag16}, v{B}")
            for r in range(1, 4):
                A(f"v_bitop3_b32 v{T}, v{T}, v{B+r}, s{s_tag16} bitop3:0xf6")
            A(f"v_and_b32 v{T}, 0xffff, v{T}")
            A(f"v_cmp_ne_u32 vcc, 0, v{T}")
            A("s_cbranch_vccnz L_qretry")
            A(f"s_mov_b32 s{s_t0}, 0x07060302")
            A(f"v_perm_b32 v{B+4}, v{B+1}, v{B}, s{s_t0}")
            A(f"v_perm_b32 v{B+5}, v{B+3}, v{B+2}, s{s_t0}")
            A(f"ds_write_b64 v{a_qw}, {vr(B+4,2)}")
            A("s_waitcnt lgkmcnt(0)")
            A(f"ds_write_b32 v{a_fw}, v{v_one}")
            return
        for r in range(8):
            A(f"v_xor_b32 v{B+r}, s{s_tag8}, v{B+r}")
        A(f"v_or_b32 v{T}, v{B}, v{B+1}")
        for i in range(2, 8, 2):
            A(f"v_or3_b32 v{T}, v{T}, v{B+i}, v{B+i+1}")
        A(f"v_and_b32 v{T}, 0xff, v{T}")
        A(f"v_cmp_ne_u32 vcc, 0, v{T}")
        if "qstore" not in skip and "qload" not in skip:
            A("s_cbranch_vccnz L_qretry")
        for br in range(2):
            A(f"v_permlane32_swap_b32 v{B+4*br}, v{B+4*br+2}")
            A(f"v_permlane32_swap_b32 v{B+4*br+1}, v{B+4*br+3}")
        for br in range(2):
            A(f"v_add_f32 v{B+4*br}, v{B+4*br}, v{B+4*br+2}")
            A(f"v_add_f32 v{B+4*br+1}, v{B+4*br+1}, v{B+4*br+3}")
        for br in range(2):
            A(f"v_cvt_pk_bf16_f32 v{B+4*br}, v{B+4*br}, v{B+4*br+1}")
        for br in range(2):
            A(f"ds_write_b32 v{a_qw}, v{B+4*br} offset:{br*1024}")
        A("s_waitcnt lgkmcnt(0)")
        A(f"ds_write_b32 v{a_fw}, v{v_one}")

    def flag_wait(name, off):
        L(name)
        A(f"ds_read_b128 {vr(B,4)}, v{a_fr} offset:{off}")
        spin_guard()
        A("s_waitcnt lgkmcnt(0)")
        A(f"v_and_b32 v{B}, v{B}, v{B+1}")
        A(f"v_and_b32 v{B+2}, v{B+2}, v{B+3}")
        A(f"v_and_b32 v{B}, v{B}, v{B+2}")
        A(f"v_cmp_eq_u32 vcc, 0, v{B}")
        A(f"s_cbranch_vccnz {name}")

    def q_fetch():
        if "qflag" not in skip:
            flag_wait("L_qflag", 0)
        for j in range(4):
            A(f"ds_read_b128 {ar(a_qop+4*j,4)}, v{a_qr} offset:{j*64}")
        if NLO:
            A(f"s_mov_b32 s{s_brk}, 0")
            A(f"s_mov_b32 s{s_gk}, 0")
        stamp("qval")
        st["qready"] = True

    def q_fetch_b():
        for j in range(4):
            A(f"ds_read_b128 {ar(a_qop+16+4*j,4)}, v{a_qr} offset:{1024+j*64}")

    def lanes_h():
        A("s_mov_b32 exec_lo, 0x000f000f")
        A("s_mov_b32 exec_hi, 0x000f000f")

    def dump_ml(br):
        A(f"ds_write_b32 v{a_cml}, v{v_m} offset:{br*64}")
        A(f"ds_write_b32 v{a_cml}, a{a_l} offset:{128+br*64}")

    def dump_o(br):
        adr, off = (a_cwa, 0) if br == 0 else (a_cwb, FSLOT * 4096)
        for cb in range(8):
            A(f"ds_write_b128 v{adr}, {ar(a_o+4*cb,4)} offset:{off+cb*64}")

    def lam_math():
        C("lane (br, h): workgroup maximum, sum, log-sum-exp and the weights of the four waves")
        A("s_waitcnt lgkmcnt(0)")
        A(f"v_max3_f32 v{T}, v{B}, v{B+1}, v{B+2}")
        A(f"v_max_f32 v{T}, v{T}, v{B+3}")
        A(f"v_mul_f32 v{T+1}, s{s_c}, v{T}")
        for w in range(4):
            A(f"v_fma_f32 v{B+w}, v{B+w}, s{s_c}, -v{T+1}")
        for w in range(4):
            A(f"v_exp_f32 v{B+w}, v{B+w}")
        A(f"v_mul_f32 v{T+2}, v{B}, v{B+4}")
        for w in range(1, 4):
            A(f"v_fmac_f32 v{T+2}, v{B+w}, v{B+4+w}")
        A(f"v_rcp_f32 v{T}, v{T+2}")
        A(f"v_log_f32 v{T+2}, v{T+2}")
        A(f"v_mov_b32 v{T+3}, s{s_tag32}")
        A(f"v_add_f32 v{T+2}, v{T+1}, v{T+2}")
        A(f"v_mul_f32 v{T}, v{T}, v{v_gf}")
        for w in range(4):
            A(f"v_mul_f32 v{v_aw+w}, v{B+w}, v{T}")
        A(f"v_lshlrev_b32 v{T+4}, 3, v1")

    def lam_store():
        A(f"s_cmp_eq_u32 s{s_w}, 0")
        A("s_cbranch_scc0 L_nolam")
        A("s_mov_b64 exec, 0xff")
        g.vmem(f"buffer_store_dwordx2 {vr(T+2,2)}, v{T+4}, {srd(sWS)}, s{s_lpub} offen sc1", optional=True)
        A("s_mov_b64 exec, -1")
        L("L_nolam")

    def lamloads(track):
        s = f"buffer_load_dwordx2 {vr(B,2)}, v{a_lg}, {srd(sWS)}, s{s_lget} offen sc1"
        if track:
            st["lam"] = g.vmem(s)
        else:
            A(s)

    def lam_validate():
        g.wait_vm(st["lam"])
        L("L_lcheck")
        A(f"v_cmp_ne_u32 vcc, s{s_tag32}, v{B+1}")
        A("s_cbranch_vccnz L_lretry")

    def wgt_math():
        C("softmax over the 16 splits -> this workgroup's share; weights of the four waves into SGPRs")
        A(f"v_max_f32_dpp v{T}, v{B}, v{B} row_ror:1 row_mask:0xf bank_mask:0xf")
        for d in (2, 4, 8):
            A("s_nop 1")
            A(f"v_max_f32_dpp v{T}, v{T}, v{T} row_ror:{d} row_mask:0xf bank_mask:0xf")
        A(f"v_sub_f32 v{T}, v{B}, v{T}")
        A(f"v_exp_f32 v{T}, v{T}")
        A("s_nop 1")
        A(f"v_add_f32_dpp v{T+1}, v{T}, v{T} row_ror:1 row_mask:0xf bank_mask:0xf")
        for d in (2, 4, 8):
            A("s_nop 1")
            A(f"v_add_f32_dpp v{T+1}, v{T+1}, v{T+1} row_ror:{d} row_mask:0xf bank_mask:0xf")
        A(f"v_rcp_f32 v{T+1}, v{T+1}")
        A(f"s_and_b32 s{s_t0}, s2, 15")
        A(f"v_mul_f32 v{T}, v{T}, v{T+1}")
        A(f"s_add_u32 s{s_t1}, s{s_t0}, 16")
        A(f"v_readlane_b32 s{s_t2}, v{T}, s{s_t0}")
        A(f"v_readlane_b32 s{s_t3}, v{T}, s{s_t1}")
        A(f"v_bfe_i32 v{T+2}, v1, 2, 1")
        A(f"s_add_u32 s{s_t1}, s{s_w}, 4")
        A(f"v_mov_b32 v{T}, s{s_t2}")
        A(f"v_mov_b32 v{T+1}, s{s_t3}")
        A(f"v_bfi_b32 v{T}, v{T+2}, v{T+1}, v{T}")
        for w in range(4):
            A(f"v_mul_f32 v{v_aw+w}, v{v_aw+w}, v{T}")
        A("s_nop 0")
        for w in range(4):
            A(f"v_readlane_b32 s{s_fw+w}, v{v_aw+w}, s{s_w}")
            A(f"v_readlane_b32 s{s_fw+4+w}, v{v_aw+w}, s{s_t1}")
        A("s_nop 1")

    def comb_read(br):
        for w in range(4):
            if br == 0:
                A(f"ds_read_b128 {vr(B+4*w,4)}, v{a_cra} offset:{w*2048}")
            else:
                A(f"ds_read_b128 {vr(B+4*w,4)}, v{a_crb if w < 2 else a_crb2} offset:{(w&1)*RING + FSLOT*4096}")

    def comb_math(br, counted):
        for w in range(4):
            if counted:
                A(f"s_waitcnt lgkmcnt({3-w})")
            elif w == 0:
                A("s_waitcnt lgkmcnt(0)")
            for e in range(4):
                if w == 0:
                    A(f"v_mul_f32 v{B+e}, s{s_fw+4*br}, v{B+e}")
                else:
                    A(f"v_fmac_f32 v{B+e}, s{s_fw+4*br+w}, v{B+4*w+e}")
        for e in range(4):
            A(f"v_add_u32 v{B+e}, 0x10000, v{B+e}")
        o = 2 - 2 * br
        for k in range(2):
            A(f"v_perm_b32 v{v_pub+o+k}, v{B+2*k+1}, v{B+2*k}, s{s_perm}")
        for k in range(2):
            A(f"v_and_or_b32 v{v_pub+o+k}, v{v_pub+o+k}, s{s_m15}, v{v_pat+o+k}")

    def h2loads(off, flags="sc1", track=False):
        for j in range(4):
            s = f"buffer_load_dwordx4 {vr(B+4*j,4)}, v{a_l16}, {srd(sWS)}, s{off} offen offset:{j*1024} {flags}"
            g.vmem(s, optional=True) if track else A(s)

    def warm2():
        C("bring the lines of the final reduction into this die's cache")
        A(f"s_cmp_ge_u32 s{s_f}, 32")
        A("s_cbranch_scc1 L_nowarm")
        A("s_mov_b32 exec_lo, 0x01010101")
        A("s_mov_b32 exec_hi, 0x01010101")
        for j in range(4):
            g.vmem(f"buffer_load_dword v{v_tw}, v{a_l16}, {srd(sWS)}, s{s_h2get} offen offset:{j*1024} {WARM2 if isinstance(WARM2, str) else 'sc1'}", optional=True)
        A("s_mov_b64 exec, -1")
        L("L_nowarm")

    def code_pre():
        C("pull the rest of this straight-line code towards the cache: four lines per wave")
        A("s_getpc_b64 s[82:83]")
        L("L_cp")
        A(f"s_lshr_b32 s{s_u}, s2, 3")
        A(f"s_lshl2_add_u32 s{s_u}, s{s_u}, s{s_w}")
        A(f"s_lshl_b32 s{s_u}, s{s_u}, 9")
        A(f"v_lshl_add_u32 v{v_tw+1}, v{v_c}, 7, s{s_u}")
        A(f"v_min_u32 v{v_tw+1}, L_end-L_cp, v{v_tw+1}")
        A("s_mov_b64 exec, 15")
        g.vmem(f"global_load_dword v{v_tw}, v{v_tw+1}, s[82:83]")
        A("s_mov_b64 exec, -1")

    def touch(k):
        def f():
            C("touch the next buffer's pages")
            A("s_mov_b64 exec, 3")
            A(f"v_lshlrev_b32 v{v_tw+1}, 22, v1")
            if k < 4:
                A(f"s_andn2_b32 s{s_u}, s{s_kvb}, 0x400000")
                g.vmem(f"buffer_load_dword v{v_tw}, v{v_tw+1}, {srd(sKV[k])}, s{s_u} offen nt")
            else:
                A("s_mov_b64 exec, 1")
                g.vmem(f"buffer_load_dword v{v_tw}, v{v_tw+1}, {srd(sWO)}, s{s_wooff} offen nt")
            A("s_mov_b64 exec, -1")
        return f

    def ctl_load():
        st["ctl"] = g.vmem(f"buffer_load_dword v{v_ct}, v{a_pr}, {srd(sWS)}, 0 offen sc1", hint=True)
        pending.append((st["ctl"], ctl_use))
        st["ctl_t"] = cur_t() + (Z[st["p"]][2] if Z[st["p"]][0] == "kv" else 3) / 4.0
        if "geval" in st and st["p"] >= st["geval"][1] + GPICK:
            st["pick"] = st.pop("geval")[0]
            log.append((st["p"], "pick", st["pick"]))

    def ctl_use():
        g.wait_vm(st["ctl"])
        t0 = st["ctl_t"]
        tn = cur_t() + 1
        x, y = v_ct, v_ct + 1
        A(f"v_xor_b32 v{x}, s{s_tagp}, v{x}")
        A(f"v_lshrrev_b32 v{y}, 8, v{x}")
        pick = st.pop("pick", None)
        if pick is not None and GACT:
            A(f"v_readlane_b32 s{s_c0}, v{x}, {32 + pick}")
            A(f"s_cmp_lt_u32 s{s_c0}, 256")
            A(f"s_cselect_b32 s{s_c0}, s{s_c0}, 128")
            A(f"s_add_i32 s{s_gb}, s{s_c0}, {tn - 128}")
            if GBRK:
                A(f"s_sub_i32 s{s_gk}, {tn + 128 - round(GBRK)}, s{s_c0}")
        A(f"v_cmp_eq_u32 s[82:83], 0, v{y}")
        A(f"v_mov_b32 v{y}, {max(0, int(t0) - round(BIAS))}")
        A("s_nop 0")
        A(f"v_cndmask_b32 v{x}, v{y}, v{x}, s[82:83]")
        for d in (1, 2, 4, 8):
            A("s_nop 1")
            A(f"v_add_u32_dpp v{x}, v{x}, v{x} row_ror:{d} row_mask:0xf bank_mask:0xf")
        A("s_nop 0")
        A(f"v_readlane_b32 s{s_c0}, v{x}, 0")
        A(f"v_readlane_b32 s{s_c1}, v{x}, 16")
        A(f"s_add_u32 s{s_c0}, s{s_c0}, s{s_c1}")
        A(f"s_sub_i32 s{s_c0}, s{s_c0}, {round(32 * (t0 - BIAS))}")
        if GR:
            A(f"s_ashr_i32 s{s_dev}, s{s_c0}, 1")
            if GEST == 3 and int(t0) in GR:
                A(f"s_add_i32 s{s_own}, s{s_dev}, 128")
        if NLO:
            A(f"s_add_i32 s{s_c1}, s{s_c0}, {round(32 * BRK)}")
            A(f"s_mul_i32 s{s_c1}, s{s_c1}, {-round(BGAIN * 8)}")
            A(f"s_ashr_i32 s{s_c1}, s{s_c1}, 8")
            A(f"s_min_i32 s{s_c1}, s{s_c1}, {NMAXB}")
            A(f"s_add_i32 s{s_brk}, s{s_c1}, {tn}")
            if GBRK:
                A(f"s_max_i32 s{s_brk}, s{s_brk}, s{s_gk}")
        A(f"s_mul_i32 s{s_c0}, s{s_c0}, {round(GAIN * 8)}")
        A(f"s_ashr_i32 s{s_c0}, s{s_c0}, 8")
        A(f"s_min_i32 s{s_c0}, s{s_c0}, {NMAXB}")
        A(f"s_add_i32 s{s_boost}, s{s_c0}, {tn}")
        if GR and not G6:
            A(f"s_max_i32 s{s_boost}, s{s_boost}, s{s_gb}")

    def g_sample(r, k):
        def f():
            A(f"s_mov_b32 s{s_u}, {r * 8 * 4224}")
            st["gs"] = g.vmem(f"buffer_load_dword v{v_gs+k}, v{a_gs}, {srd(sWS)}, s{s_u} offen sc1", hint=True)
            if k == GWIN[0] + GWIN[1] - 1:
                pending.append((st["gs"], g_eval(r)))
        return f

    def g_publish(r):
        def f():
            assert st.get("rest")
            A(f"s_bitcmp1_b32 s{s_gpo}, 30")
            A(f"s_cbranch_scc1 L_gp{r}")
            A(f"s_add_i32 s{s_c0}, s{s_dev}, 128")
            A(f"s_max_i32 s{s_c0}, s{s_c0}, 0")
            A(f"s_min_i32 s{s_c0}, s{s_c0}, 255")
            A(f"s_mov_b32 s{s_own}, s{s_c0}")
            A(f"v_or_b32 v{v_tw}, s{s_c0}, v{v_pl}")
            A(f"s_add_u32 s{s_u}, s{s_gpo}, {r * 8 * 4224}")
            g.vmem(f"buffer_store_dword v{v_tw}, v{a_pw}, {srd(sWS)}, s{s_u} offen sc1", optional=True)
            L(f"L_gp{r}")
        return f

    def g_eval(r):
        def f():
            W = GWIN[0] + GWIN[1]
            g.wait_vm(st["gs"])
            A(f"s_bitcmp1_b32 s{s_gpo}, 30")
            A(f"s_cbranch_scc1 L_ge{r}")
            for k in range(W):
                A(f"v_xor_b32 v{v_gs+k}, s{s_tagp}, v{v_gs+k}")
            A(f"v_min_u32 v{v_tw}, 0x100, v{v_gs+W-1}")
            A(f"v_lshrrev_b32 v{v_tw+1}, 1, v{v_tw}")
            A(f"v_and_b32 v{v_tw+1}, 0x80, v{v_tw+1}")
            A(f"v_and_b32 v{v_tw}, 0xff, v{v_tw}")
            A(f"v_add_u32 v{v_tw}, v{v_tw}, v{v_tw+1}")
            for k in range(W):
                A(f"v_lshrrev_b32 v{v_gs+k}, 8, v{v_gs+k}")
                A(f"v_min_u32 v{v_gs+k}, 1, v{v_gs+k}")
                A(f"v_lshlrev_b32 v{v_gs+k}, {3 if GS2 else 4}, v{v_gs+k}")
                A(f"v_sub_u32 v{v_tw}, v{v_tw}, v{v_gs+k}")
            A(f"s_and_b32 s{s_c1}, s2, 7")
            if GEST >= 2:
                C("own group: exact position instead of the sampled arrival")
                A(f"s_sub_i32 s{s_c0}, s{s_own}, {(8 if GS2 else 16) * GWIN[0]}")
                A(f"s_mov_b32 m0, s{s_c1}")
                A(f"v_writelane_b32 v{v_tw}, s{s_c0}, m0")
                A(f"s_add_u32 m0, s{s_wb}, {slot_of(cur_t())*4096}")
            else:
                A(f"v_readlane_b32 s{s_c0}, v{v_tw}, s{s_c1}")
            for d in ("quad_perm:[1,0,3,2]", "quad_perm:[2,3,0,1]", "row_half_mirror"):
                A("s_nop 1")
                A(f"v_add_u32_dpp v{v_tw}, v{v_tw}, v{v_tw} {d} row_mask:0xf bank_mask:0xf")
            A("s_nop 0")
            A(f"v_readlane_b32 s{s_c1}, v{v_tw}, 0")
            A(f"s_lshl_b32 s{s_c0}, s{s_c0}, 3")
            A(f"s_sub_i32 s{s_c0}, s{s_c1}, s{s_c0}")
            A(f"s_add_i32 s{s_c0}, s{s_c0}, {round(128 * GOFF)}")
            A(f"s_mul_i32 s{s_c0}, s{s_c0}, {round(GK * 8)}")
            A(f"s_add_i32 s{s_c0}, s{s_c0}, 512")
            A(f"s_ashr_i32 s{s_c0}, s{s_c0}, 10")
            A(f"s_max_i32 s{s_c0}, s{s_c0}, {-GMAX - round(GBRK)}")
            A(f"s_min_i32 s{s_c0}, s{s_c0}, {GMAX}")
            A(f"s_add_i32 s{s_c0}, s{s_c0}, 128")
            A(f"v_or_b32 v{v_tw}, s{s_c0}, v{v_pl}")
            g.vmem(f"buffer_store_dword v{v_tw}, v{a_pw}, {srd(sWS)}, s{s_bc} offen offset:{4*r}", optional=True)
            L(f"L_ge{r}")
            st["geval"] = (r, st["p"])
        return f

    kf = lambda t: a_kf + 16 * (t % R)
    def KR(t):
        for j in range(4):
            A(f"ds_read_b128 {ar(kf(t)+4*j,4)}, v{v_rk+j} offset:{slot_of(t)*4096}")
    def LW(t):
        A("s_waitcnt lgkmcnt(0)")
    def QK(t):
        A("s_waitcnt lgkmcnt(0)")
        q = a_qop + 16 * (t // 64)
        for j in range(4):
            A(f"v_mfma_f32_16x16x32_bf16 {vr(v_s,4)}, {ar(kf(t)+4*j,4)}, {ar(q+4*j,4)}, " + ("0" if j == 0 else vr(v_s, 4)))
    def SC(t):
        k = t % 32
        A("s_nop 7")
        for r in range(4):
            A(f"v_cvt_pk_bf16_f32 v{v_s+r}, 0, v{v_s+r}")
        for r in range(4):
            A(f"v_mul_f32 v{v_s+r}, s{s_rs}, v{v_s+r}")
        if k == 0:
            A(f"v_max_f32 v{v_mx}, v{v_s}, v{v_s+1}")
        else:
            A(f"v_max3_f32 v{v_mx}, v{v_mx}, v{v_s}, v{v_s+1}")
        A(f"v_cvt_pk_bf16_f32 v{v_sc+2*k}, v{v_s}, v{v_s+1}")
        A(f"v_max3_f32 v{v_mx}, v{v_mx}, v{v_s+2}, v{v_s+3}")
        A(f"v_cvt_pk_bf16_f32 v{v_sc+2*k+1}, v{v_s+2}, v{v_s+3}")
    def MX(t):
        C("true maximum of this wave's scores per head")
        assert t < 64 or st["dumpA"]
        A(f"v_mov_b32 v{v_mt}, v{v_mx}")
        A("s_nop 1")
        A(f"v_permlane32_swap_b32 v{v_mx}, v{v_mt}")
        A(f"v_max_f32 v{v_mx}, v{v_mx}, v{v_mt}")
        A(f"v_mov_b32 v{v_mt}, v{v_mx}")
        A("s_nop 1")
        A(f"v_permlane16_swap_b32 v{v_mx}, v{v_mt}")
        A(f"v_max_f32 v{v_mx}, v{v_mx}, v{v_mt}")
        A(f"v_cvt_pk_bf16_f32 v{v_m}, 0, v{v_mx}")
        A(f"v_mul_f32 v{v_nmc}, {f2u(-LOG2E):#x}, v{v_m}")
        stamp("endKA" if t < 64 else "endKB")
    def PP(t):
        k = t % 32
        A(f"v_lshlrev_b32 v{v_s}, 16, v{v_sc+2*k}")
        A(f"v_and_b32 v{v_s+1}, 0xffff0000, v{v_sc+2*k}")
        A(f"v_lshlrev_b32 v{v_s+2}, 16, v{v_sc+2*k+1}")
        A(f"v_and_b32 v{v_s+3}, 0xffff0000, v{v_sc+2*k+1}")
        for r in range(4):
            A(f"v_fma_f32 v{v_s+r}, v{v_s+r}, s{s_c}, v{v_nmc}")
        for r in range(4):
            A(f"v_exp_f32 v{v_s+r}, v{v_s+r}")
        A(f"v_cvt_pk_bf16_f32 v{v_sc+2*k}, v{v_s}, v{v_s+1}")
        A(f"v_cvt_pk_bf16_f32 v{v_sc+2*k+1}, v{v_s+2}, v{v_s+3}")
        if k & 1:
            A("s_nop 1")
            A(f"v_mfma_f32_16x16x32_bf16 {ar(a_l,4)}, {vr(v_one,4)}, {vr(v_sc+2*k-2,4)}, " + ("0" if k == 1 else ar(a_l, 4)))
    def VR(t):
        assert st["rest"]
        for cb in range(8):
            A(f"ds_read_b64_tr_b16 {ar(a_vf+4*cb+2*(t&1),2)}, v{v_rv+cb} offset:{slot_of(t)*4096}")
    def pv(t, cb):
        k = t % 32 - 1
        assert ("PP", t) in done
        A(f"v_mfma_f32_16x16x32_bf16 {ar(a_o+4*cb,4)}, {ar(a_vf+4*cb,4)}, {vr(v_sc+2*k,4)}, " + ("0" if k == 0 else ar(a_o + 4 * cb, 4)))
    def PVa(t):
        A("s_waitcnt lgkmcnt(0)")
        for cb in range(4):
            pv(t, cb)
    def PVb(t):
        for cb in range(4, 8):
            pv(t, cb)
        if t == 63:
            stamp("endVA")

    main = []
    for t in range(R):
        main += [(KR, t, pos_of(t, 3), False), (LW, t, None, False)]
    for t in range(NT):
        if isK(t):
            if t >= R:
                main.append((KR, t, pos_of(t, 3), True))
            main += [(QK, t, None, True), (SC, t, None, True)]
            if t % 32 == 31:
                main.append((MX, t, None, True))
        elif t % 2 == 0:
            main.append((VR, t, pos_of(t, 3), True))
        else:
            main += [(VR, t, pos_of(t, 3), True), (PVa, t, None, True), (PVb, t, None, True)]
    is_in = lambda pl: pl in ids and g.done(ids[pl])
    done = set()
    ppq = [t for t in range(NT) if not isK(t)]

    mark = lambda k: (lambda: st.__setitem__(k, True))
    side = []
    side.append((P0, gate_loads, False))
    for f in g.split(setup_head, CH):
        side.append((P0, f, False))
    side.append((P0, mark("setup"), True))
    side.append((lambda p: g.done(st["gate"]), mark("gate_in"), True))
    for f in g.split(setup_gate, CH):
        side.append((P0, f, False))
    side.append((PQ, lambda: qloads(True), True))
    side.append((lambda p: g.done(st["q"]), lambda: (q_validate(), st.__setitem__("pV", st["p"])), True))
    side.append((lambda p: p >= st["pV"] + QLAG, q_fetch, True))
    side.append((0, q_fetch_b, False))
    for f in g.split(setup_rest, CH):
        side.append((0, f, False))
    side.append((0, mark("rest"), True))
    def dumpA():
        A("s_nop 5")
        lanes_h()
        dump_ml(0)
        dump_o(0)
        A("s_mov_b64 exec, -1")
        st["dumpA"] = True
    side.append((lambda p: ("PVb", 63) in done, dumpA, False))
    def dumpB():
        A("s_nop 5")
        lanes_h()
        dump_ml(1)
        A("s_mov_b64 exec, -1")
        A("s_waitcnt lgkmcnt(0)")
        A(f"ds_write_b32 v{a_fw}, v{v_one} offset:16")
        st["pB"] = st["p"]
    side.append((lambda p: ("PP", NT - 1) in done, dumpB, False))
    def lam_read():
        flag_wait("L_lflag", 16)
        A(f"ds_read_b128 {vr(B,4)}, v{a_mlr}")
        A(f"ds_read_b128 {vr(B+4,4)}, v{a_mlr} offset:128")
    side.append((lambda p: p >= st["pB"] + LLAG, lam_read, False))
    for f in g.split(lam_math, CH):
        side.append((0, f, False))
    side.append((0, lam_store, True))
    side.append((PWG, lambda: lamloads(True), True))
    side.append((lambda p: g.done(st["lam"]), lam_validate, True))
    for f in g.split(wgt_math, 24):
        side.append((0, f, False))
    side.append((0, lambda: comb_read(0), True))
    side.append((0, lambda: comb_math(0, False), False))

    extra = []
    for t in range(C0 - 2, NT - CEND, CK):
        extra.append((pos_of(t, 2), ctl_load))
    for r, tr in enumerate(GR):
        assert GWIN[0] + GWIN[1] <= 12
        for k in range(GWIN[0] + GWIN[1]):
            if GS2:
                extra.append((pos_of(tr, 3) + 4 + 2 * (k - GWIN[0]), g_sample(r, k)))
            else:
                extra.append((pos_of(tr - GWIN[0] + k + 1, 3), g_sample(r, k)))
        extra.append((pos_of(tr, 2), g_publish(r)))
    if CP:
        extra.append((CP, code_pre))
    if TW:
        for k in TWK:
            extra.append((OFF + 128 * k - TW, touch(k)))
    if WARM2 and W2P >= 0:
        extra.append((pos_of(NT - 1, 3) - W2P, warm2))
    extra.sort(key=lambda x: x[0])

    mi = si = ci = 0
    for p in range(P0 + PX, len(Z) - WOL - WOA):
        z = Z[p]
        st["p"] = p
        if z[0] == "kv" and z[2] == 0 and z[1] >= NSLOT:
            prev = z[1] - NSLOT
            assert (("QK", prev) in done or ("LW", prev) in done) if isK(prev) else ("PVa", prev | 1) in done, (p, z)
        issue(p)
        while ci < len(extra) and extra[ci][0] <= p:
            extra[ci][1]()
            ci += 1
        for x in [x for x in pending if g.done(x[0])]:
            pending.remove(x)
            x[1]()
        used = 0
        if ppq and ("MX", ppq[0] // 32 * 32 - 1) in done:
            t = ppq.pop(0)
            PP(t)
            done.add(("PP", t)); log.append((p, "PP", t))
        while mi < len(main):
            f, t, ld, nq = main[mi]
            if (ld is not None and not is_in(ld)) or (nq and not st.get("qready")) or (f is PVa and ("PP", t) not in done):
                break
            behind = t + 1 < NT and is_in(pos_of(t + 1, 3)) and nq
            if used >= (CATCH if behind else 1):
                break
            f(t)
            done.add((f.__name__, t)); log.append((p, f.__name__, t))
            used += f is not LW
            mi += 1
        while si < len(side) and (used == 0 or side[si][2]):
            e, f, forced = side[si]
            if not (e(p) if callable(e) else e <= p):
                break
            f()
            log.append((p, "side", si))
            si += 1
            if not forced:
                used += 1
    assert si == len(side) and not ppq and ci == len(extra) and not pending, (si, len(side))
    C("---- drain ----")
    while mi < len(main):
        f, t, ld, nq = main[mi]
        if ld is not None:
            g.wait_vm(ids[ld])
        if t == NT - 1 and f is PVa:
            for p in range(len(Z) - WOL - WOA, len(Z) - WOA):
                issue(p, throttle=False)
        if t == NT - 1 and f is PVa:
            for cb in range(8):
                A(f"s_waitcnt lgkmcnt({7-cb})")
                pv(t, cb)
        elif not (t == NT - 1 and f is PVb):
            f(t)
        mi += 1
    stamp("drained")

    C("---- combine the four waves, publish both branches ----")
    lanes_h()
    dump_o(1)
    A("s_mov_b32 exec_lo, -1")
    A("s_mov_b32 exec_hi, 0")
    A("s_waitcnt lgkmcnt(0)")
    A("s_barrier")
    stamp("bar")
    comb_read(1)
    if GATE:
        C("report the end of this workgroup's stream and look at the group's")
        A(f"s_cmp_eq_u32 s{s_w}, 0")
        A(f"s_cselect_b32 s{s_u}, s{s_pro}, {WS_SIZE:#x}")
        A(f"v_or_b32 v{v_pd}, 0x80, v{v_pl}")
        A(f"buffer_load_dword v{v_ct}, v{a_pr}, {srd(sWS)}, 0 offen sc1")
        A(f"buffer_store_dword v{v_pd}, v{a_pw}, {srd(sWS)}, s{s_u} offen")
    comb_math(1, True)
    A(f"buffer_store_dwordx4 {vr(v_pub,4)}, v{a_l16}, {srd(sWS)}, s{s_h1pub} offen sc1")
    A("s_mov_b64 exec, -1")
    stamp("pub1")
    if GATE:
        C("the weights are not urgent while much of the group still streams values: let those go first (bounded)")
        A(f"s_mov_b32 s{s_cnt}, {GATE[1]}")
        A("s_waitcnt vmcnt(2)")
        L("L_gate")
        A(f"v_cmp_eq_u32 vcc, v{v_pd}, v{v_ct}")
        A(f"s_bcnt1_i32_b32 s{s_c0}, vcc_lo")
        A(f"s_cmp_ge_u32 s{s_c0}, {GATE[0]}")
        A("s_cbranch_scc1 L_gate_ok")
        A(f"s_sub_u32 s{s_cnt}, s{s_cnt}, 1")
        A("s_cbranch_scc1 L_gate_ok")
        A(f"buffer_load_dword v{v_ct}, v{a_pr}, {srd(sWS)}, 0 offen sc1")
        A("s_waitcnt vmcnt(0)")
        A("s_branch L_gate")
        L("L_gate_ok")
    if WARM2 and W2P < 0:
        warm2()
    for p in range(len(Z) - WOA, len(Z)):
        issue(p, throttle=False)
    C("the output-projection weights were the last loads of the stream")
    A(f"s_waitcnt vmcnt({WOK})")
    def h1loads():
        for i in range(4):
            A(f"buffer_load_dwordx4 {vr(B+4*i,4)}, v{a_g1}, {srd(sWS)}, s{s_h1get} offen offset:{i*512} sc1")
    h1loads()
    if WOK:
        A("s_waitcnt vmcnt(4)")
    stamp("wo")
    A("s_barrier")
    for k in range(8):
        for hf in range(2):
            A(f"ds_read_b64_tr_b16 {ar(a_wop+k*4+hf*2,2)}, v{a_wor} offset:{k*4096+hf*2048}")
    A("s_branch L_h1wait")
    C("---- sum the 16 partials of (dims half, batch) with a selector product ----")
    L("L_h1poll")
    if SL1:
        A(f"s_sleep {SL1}")
    h1loads()
    spin_guard()
    L("L_h1wait")
    for i in range(4):
        A(f"s_waitcnt vmcnt({3-i})")
        for e in range(4):
            A(f"v_xor_b32 v{B+4*i+e}, v{v_pat+e}, v{B+4*i+e}")
        if i == 0:
            A(f"v_or_b32 v{T}, v{B}, v{B+1}")
        else:
            A(f"v_or3_b32 v{T}, v{T}, v{B+4*i}, v{B+4*i+1}")
        A(f"v_or3_b32 v{T}, v{T}, v{B+4*i+2}, v{B+4*i+3}")
        A(f"v_mfma_f32_16x16x32_bf16 {vr(v_d,4)}, {vr(v_sel,4)}, {vr(B+4*i,4)}, " + ("0" if i == 0 else vr(v_d, 4)))
    A(f"v_and_b32 v{T}, 0x00010001, v{T}")
    A(f"v_cmp_ne_u32 vcc, 0, v{T}")
    A("s_cbranch_vccnz L_h1poll")
    stamp("h1ok")
    A("s_mov_b32 exec_hi, 0")
    A("s_nop 3")
    A(f"v_cvt_pk_bf16_f32 v{T}, v{v_d}, v{v_d+1}")
    A(f"v_cvt_pk_bf16_f32 v{T+1}, v{v_d+2}, v{v_d+3}")
    A(f"ds_write_b64 v{a_ow}, {vr(T,2)}")
    A("s_mov_b64 exec, -1")
    A("s_waitcnt lgkmcnt(0)")
    A("s_barrier")
    stamp("bar2")
    OPD = v_sc
    for k in range(8):
        A(f"ds_read_b128 {vr(OPD+4*k,4)}, v{a_or} offset:{(k>>2)*512+(k&3)*64}")
    A(f"v_mov_b32 v{T+2}, s{s_tag12}")
    A(f"s_add_u32 s{s_t2}, s{s_h2pub}, {WS_P2-WS_P1}")
    for k in range(8):
        A(f"s_waitcnt lgkmcnt({7-k})")
        A(f"v_mfma_f32_16x16x32_bf16 {vr(v_d+4,4)}, {ar(a_wop+4*k,4)}, {vr(OPD+4*k,4)}, " + ("0" if k == 0 else vr(v_d + 4, 4)))
    A("s_mov_b32 exec_lo, 0x00030003")
    A("s_mov_b32 exec_hi, 0x00030003")
    A(f"s_cmp_ge_u32 s{s_f}, 32")
    A("s_nop 4")
    for r in range(4):
        A(f"v_add_u32 v{v_d+4+r}, 0x800, v{v_d+4+r}")
    for r in range(4):
        A(f"v_and_or_b32 v{v_d+4+r}, v{v_d+4+r}, s{s_m12}, v{T+2}")
    C("once for a reader behind the same L2, once written through for any other placement")
    A(f"buffer_store_dwordx4 {vr(v_d+4,4)}, v{a_p2}, {srd(sWS)}, s{s_h2pub} offen {P1SC}")
    stamp("pub2")
    A("s_cbranch_scc0 L_final")
    if not NOP2:
        A(f"buffer_store_dwordx4 {vr(v_d+4,4)}, v{a_p2}, {srd(sWS)}, s{s_t2} offen sc1")
    A("s_branch L_fin" if diag or pad else "s_endpgm")
    L("L_final")
    A("s_mov_b64 exec, -1")

    C("---- final reduction over the 32 heads ----")
    F = B
    A(f"s_lshl_b32 s{s_t0}, s{s_f}, 5")
    A(f"s_mov_b32 s{s_cnt}, {P2AFTER}")
    L("L_h2poll")
    if SL2:
        A(f"s_sleep {SL2}")
    h2loads(s_h2get)
    spin_guard()
    A(f"s_sub_u32 s{s_cnt}, s{s_cnt}, 1")
    A("s_cbranch_scc1 L_h2switch")
    L("L_h2wait")
    for j in range(4):
        A(f"s_waitcnt vmcnt({3-j})")
        for e in range(4):
            A(f"v_xor_b32 v{F+4*j+e}, s{s_tag12}, v{F+4*j+e}")
        if j == 0:
            A(f"v_or_b32 v{T}, v{F}, v{F+1}")
            A(f"v_or3_b32 v{T}, v{T}, v{F+2}, v{F+3}")
        else:
            A(f"v_or3_b32 v{T}, v{T}, v{F+4*j}, v{F+4*j+1}")
            A(f"v_or3_b32 v{T}, v{T}, v{F+4*j+2}, v{F+4*j+3}")
            for e in range(4):
                A(f"v_add_f32 v{F+e}, v{F+e}, v{F+4*j+e}")
    A(f"v_and_b32 v{T}, 0xfff, v{T}")
    A(f"v_cmp_ne_u32 vcc, 0, v{T}")
    A("s_cbranch_vccnz L_h2poll")
    A(f"v_permlane32_swap_b32 v{F}, v{F+1}")
    A(f"v_permlane32_swap_b32 v{F+2}, v{F+3}")
    A(f"v_add_f32 v{F}, v{F}, v{F+1}")
    A(f"v_add_f32 v{F+2}, v{F+2}, v{F+3}")
    A("s_nop 1")
    A(f"v_permlane16_swap_b32 v{F}, v{F+2}")
    A(f"v_add_f32 v{F}, v{F}, v{F+2}")
    A("s_nop 1")
    A(f"v_add_f32_dpp v{F}, v{F}, v{F} row_ror:8 row_mask:0xf bank_mask:0xf")
    A(f"v_cvt_pk_bf16_f32 v{F}, v{F}, v{F}")
    A("s_mov_b32 exec_lo, 0x00ff00ff")
    A("s_mov_b32 exec_hi, 0x00ff00ff")
    A(f"buffer_store_short v{F}, v{a_out}, {srd(sO)}, s{s_t0} offen {OSC}")
    A(f"s_cmp_lg_u32 s{s_f}, 0")
    A("s_cbranch_scc1 L_fin")
    C("every workgroup has published, hence read, the epoch word: advance it")
    A("s_mov_b64 exec, 1")
    A(f"v_mov_b32 v{T}, s{s_tag32}")
    A(f"v_mov_b32 v{T+1}, 0")
    A(f"buffer_store_dword v{T}, v{T+1}, {srd(sWS)}, 0 offen offset:{WS_E} sc1")
    L("L_fin")
    stamp("end")
    if diag:
        A("s_mov_b64 exec, 1")
        A("s_waitcnt lgkmcnt(0)")
        if diag == 2:
            A("s_sleep 100")
        A(f"s_lshl2_add_u32 s{s_t0}, s2, s{s_w}")
        A(f"s_lshl_b32 s{s_t0}, s{s_t0}, 5")
        A(f"s_add_u32 s{s_t0}, s{s_t0}, {WS_DIAG}")
        for i in range(8):
            A(f"v_mov_b32 v{v_sc+40+i}, s{s_st+2*i}")
        A(f"v_mov_b32 v{T+3}, 0")
        A(f"buffer_store_dwordx4 {vr(v_sc+40,4)}, v{T+3}, {srd(sWS)}, s{s_t0} offen")
        A(f"buffer_store_dwordx4 {vr(v_sc+44,4)}, v{T+3}, {srd(sWS)}, s{s_t0} offen offset:16")
    L("L_end")
    A("s_endpgm")

    L("L_h2switch")
    C("not complete behind this L2: add this wave's own line to the written-through copy and read that from now on")
    A("s_waitcnt vmcnt(0)")
    A("s_mov_b32 exec_lo, 0x00030003")
    A("s_mov_b32 exec_hi, 0x00030003")
    A(f"buffer_store_dwordx4 {vr(v_d+4,4)}, v{a_p2}, {srd(sWS)}, s{s_t2} offen sc1")
    A("s_mov_b64 exec, -1")
    A(f"s_add_u32 s{s_h2get}, s{s_h2get}, {WS_P2-WS_P1}")
    A("s_branch L_h2poll")
    for label, back, loads in (("L_lretry", "L_lcheck", lambda: lamloads(False)), ("L_qretry", "L_qcheck", lambda: qloads(False))):
        L(label)
        spin_guard()
        loads()
        A("s_waitcnt vmcnt(0)")
        A(f"s_branch {back}")

    acc = (NV + 3) // 4 * 4
    g.o.append('.section .rodata,"a"')
    g.o.append(".p2align 6")
    g.o.append(f".amdhsa_kernel {KNAME}")
    g.o.append(f"  .amdhsa_next_free_vgpr {acc+NA}")
    g.o.append("  .amdhsa_next_free_sgpr 102")
    g.o.append(f"  .amdhsa_accum_offset {acc}")
    g.o.append("  .amdhsa_group_segment_fixed_size 0")
    g.o.append("  .amdhsa_kernarg_size 112")
    g.o.append("  .amdhsa_user_sgpr_count 2")
    g.o.append("  .amdhsa_user_sgpr_kernarg_segment_ptr 1")
    g.o.append("  .amdhsa_system_sgpr_workgroup_id_x 1")
    g.o.append("  .amdhsa_float_denorm_mode_32 3")
    g.o.append(".end_amdhsa_kernel")
    gen.log = log
    return "\n".join(g.o) + "\n"


if __name__ == "__main__":
    kw = {}
    for a in sys.argv[2:]:
        k, v = a.split("=")
        kw[k] = eval(v)
    src = gen(**kw)
    open(sys.argv[1], "w").write(src)
```

```python
import sys, math, struct

KNAME = "gated_mix__gqa_block_cached__gqa_block_cached__decode_kernel"

WS_E = 0x0
WS_QB = 0x1000
WS_LB = 0x30000
WS_P1 = 0x40000
WS_P2 = 0x60000
WS_PR = 0x80000
WS_GP = 0x90000
WS_H1 = 0x100000
WS_DIAG = 0x200000
WS_SIZE = 0x400000
EPOCH_INC = 0x9E3779B1

NSLOT = 7
RING = NSLOT * 4096
STG = 4 * RING
SCR = STG + 32768
QP, QX, OPA, ML, OX, FL = 0, 2048, 4096, 12288, 12544, 13568
LDS_BYTES = 163840

PATS = {
    "P1": ([[14], [15], [16], [17], [18]], [[12], [13]], [[19], [20], [21], [22]]),
    "T2": ([[14], [17], [18], [19], [20]], [[12], [13]], [[15], [16], [21], [22]]),
    "U4": ([[14], [22], [17], [18], [19]], [[12], [13]], [[15], [16], [21], [20]]),
    "U5": ([[14], [22], [17], [18], [19]], [[12, 17], [13, 18]], [[15], [16], [21, 18], [20]]),
}


def f2u(x):
    return struct.unpack("<I", struct.pack("<f", x))[0]


class Gen:
    def __init__(self):
        self.o = []
        self.fl = {"D": [], "L": [], "H": []}
        self.kind = {}
        self.nid = 0

    def A(self, s):
        self.o.append("  " + s)

    def L(self, s):
        self.o.append(s + ":")

    def C(self, s):
        self.o.append("  ; " + s)

    def vmem(self, s, optional=False, hint=False):
        self.A(s)
        self.nid += 1
        if not optional:
            k = "H" if hint or "store" in s else "D" if s.endswith(" lds") else "L"
            self.kind[self.nid] = k
            for level in {"D": "DLH", "L": "LH", "H": "H"}[k]:
                self.fl[level].append(self.nid)
        return self.nid

    def done(self, op):
        return op not in self.fl[self.kind[op]]

    def after(self, op, level="H"):
        return len(self.fl[level]) - 1 - self.fl[level].index(op)

    def _wait(self, k):
        assert k <= 63
        self.A(f"s_waitcnt vmcnt({k})")
        for level, l in self.fl.items():
            if k < len(l):
                self.fl[level] = l[len(l) - k:] if k else []

    def throttle(self, op):
        if op not in self.fl["H"]:
            return False
        self._wait(self.after(op))
        return True

    def wait_vm(self, op):
        if self.done(op):
            return False
        self._wait(self.after(op, self.kind[op]))
        return True

    def split(self, fn, n):
        keep, self.o = self.o, []
        nvm = self.nid
        fn()
        assert self.nid == nvm
        body, self.o = self.o, keep
        out, cur, k = [], [], 0
        for line in body:
            assert not line.endswith(":") and "cbranch" not in line and "s_cmp" not in line and "vcc" not in line \
                and "exec" not in line and "cselect" not in line, line
            cur.append(line)
            if not line.strip().startswith(";"):
                k += 1
            if k == n:
                out.append(cur); cur, k = [], 0
        if cur:
            out.append(cur)
        return [(lambda c=c: self.o.extend(c)) for c in out]


def gen(N=5, Npat=None, N0=8, NH=5, PH=64, NB=None, BL=16, BZ=(1, 2, 3, 4), NWO=10, R=5, PQ=36, QLAG=3, LLAG=8, PWG=484, CH=16,
        PAT="U4", XM=None, NHI=7, CK=4, C0=16, GAIN=3.0, BIAS=2.3, NMAXB=8, PT=4,
        SL1=0, SL2=0, P2AFTER=20, WARM2=True, TW=False, FWAVE=0, P1SC="", GR=(21, 41, 63, 83, 101), GWIN=(4, 6), GK=12.0, GOFF=0.4, GMAX=22,
        WOL=2, WOA=6, PX=2, NLO=None, BRK=1.0, BGAIN=3.0, GBRK=0.0, CEND=5, WOK=4, W2P=-1, CP=20, UNT=0, UNE=False, GEST=1, GACT=True, GS2=False, GPICK=8, WOH=0, WOT=32, XP=9, CP0=24, NOP2=False, skip=(), CATCH=3, Q32=True, G6=True, CPM=1, GATE=None, T0=0, TWK=(1, 2, 3, 4), OSC='',
        diag=False, SPIN=1 << 21, pad=None, smap="head"):
    g = Gen()
    A, L, C = g.A, g.L, g.C
    LOG2E = math.log2(math.e)
    Npat = Npat or [N]
    P0, OFF = 16, 8
    def Nof(p):
        if p < P0:
            return N0
        if p < PH:
            return NH
        if p >= OFF + 512 + WOH:
            return NWO
        if NB:
            for k in BZ:
                if OFF + 128 * k - BL <= p < OFF + 128 * k:
                    return NB
        if G6 and p >= OFF + 4 * C0:
            return N + 1
        return Npat[p % len(Npat)]
    PC0 = OFF + 4 * C0
    def Nguar(p):
        return max(Nof(p), NHI) if p >= PC0 else Nof(p)

    sKV = [20, 24, 28, 32]
    sWQ, sWO, sWS, sX, sG, sO = 36, 40, 44, 48, 52, 56
    srd = lambda b: f"s[{b}:{b+3}]"
    (s_w, s_b, s_hkv, s_j, s_kvb, s_kvoff, s_wb, s_stg, s_tag32, s_tag8, s_tag12, s_c, s_rs, s_t0, s_t1, s_t2, s_t3,
     s_wqoff, s_wooff, s_spin, s_colb, s_m12) = range(60, 82)
    s_qoff, s_perm, s_h1pub, s_h1get, s_h2pub, s_h2get, s_lpub, s_lget, s_m15, s_f, s_cnt = range(3, 14)
    s_boost, s_pph, s_pro, s_tagp, s_u, s_xm = range(14, 20)
    s_brk, s_bm, s_gk = s_colb, s_wqoff, s_qoff
    s_own = s_hkv
    s_tag16 = s_m12
    s_kvb2 = s_rs if UNT else None
    s_c0, s_c1 = 100, 101
    s_gb, s_dev, s_gpo, s_bc = 36, 37, 38, 39
    s_fw = 48
    s_st = 84

    v_g, v_n, v_c, v_r = 2, 3, 4, 5
    a_pw, a_pr, v_pd, v_pl = 6, 7, 8, 9
    v_dv, v_rk, v_rv = 10, 12, 16
    v_mx, v_m, v_nmc, v_gf, v_mt = 24, 25, 26, 27, 28
    (a_wo, a_q, a_qw, a_qr, a_fw, a_fr, a_cwa, a_cwb, a_cml, a_cra, a_crb, a_crb2, a_mlr, a_l16, a_g1, a_ow, a_or,
     a_p2, a_lg, a_out, a_wor) = range(29, 50)
    v_ct = 50
    v_s = 52
    v_one = 56
    v_d = 60
    v_sc = 68
    T = 132
    B = 140
    v_pub = 164
    v_pat = 168
    v_sel = 172
    v_aw = 176
    v_tw = 180
    a_gs = 182
    v_gs = 184
    NV = 196
    a_qop = 0
    a_vf = 32
    a_wop = 64
    a_o = 96
    a_l = 128
    a_kf = 132
    NA = a_kf + 16 * R
    assert NA <= 256
    vr = lambda b, n: f"v[{b}:{b+n-1}]"
    ar = lambda b, n: f"a[{b}:{b+n-1}]"

    SMAPS = {"head": ["start", "qpub", "qval", "endKA", "endVA", "endKB", "drained", "end"],
             "tail": ["start", "drained", "bar", "pub1", "bar2", "h1ok", "pub2", "end"],
             "rounds": ["start"] + [f"t{t}" for t in list(GR)[:5]] + ["drained", "end"],
             "early": ["start", "p0", "p8", "p15", "qpub", "p24", "p40", "end"],
             "early2": ["start", "p20", "p28", "p36", "p48", "p64", "p96", "end"],
             "early3": ["start", "p0", "p4", "a", "b", "c", "p8", "end"],
             "late": ["start", "t100", "t110", "t116", "t121", "t125", "drained", "end"],
             "tail2": ["start", "drained", "pub1", "wo", "h1ok", "bar2", "pub2", "end"]}
    def stamp(name):
        if name not in SMAPS[smap]:
            return
        i = SMAPS[smap].index(name)
        if diag or (pad and i == 0):
            A(f"s_memrealtime s[{s_st+2*i}:{s_st+2*i+1}]")
        if pad and pad[0] == i:
            L("L_pad")
            A("s_memrealtime s[82:83]")
            A("s_waitcnt lgkmcnt(0)")
            A(f"s_sub_u32 s82, s82, s{s_st}")
            A(f"s_cmp_lt_u32 s82, {int(pad[1]*100)}")
            A("s_cbranch_scc1 L_pad")

    hdr = open("gated_mix__gqa_block_cached__gqa_block_cached__decode.s.ref").read().split("\n")
    for line in hdr:
        if line.startswith(";") and "@launch" not in line:
            g.o.append(line)
        elif not line.startswith(";"):
            break
    g.o.append(f"; @launch grid=(256,1,1) block=(256,1,1) lds={LDS_BYTES}")
    g.o.append('.amdgcn_target "amdgcn-amd-amdhsa--gfx950"')
    g.o.append(".text")
    g.o.append(f".globl {KNAME}")
    g.o.append(".p2align 8")
    g.o.append(f".type {KNAME},@function")
    L(KNAME)
    C("workgroup = (b, hkv, one of 16 key splits) for both branches; extra workgroups leave at once")
    A("s_cmp_ge_u32 s2, 256")
    A("s_cbranch_scc0 L_go")
    A("s_endpgm")
    L("L_go")
    A(f"s_lshr_b32 s{s_b}, s2, 7")
    A(f"s_mul_i32 s3, s{s_b}, 40")
    A("s_add_u32 s16, s0, s3")
    A("s_addc_u32 s17, s1, 0")
    A("s_load_dwordx2 s[14:15], s[16:17], 24")
    A("s_load_dwordx4 s[4:7], s[0:1], 8")
    A("s_load_dwordx2 s[12:13], s[0:1], 0")
    A("s_load_dwordx2 s[18:19], s[0:1], 104")
    A("s_load_dwordx4 s[8:11], s[0:1], 48")
    A("s_load_dwordx4 s[96:99], s[0:1], 80")
    stamp("start")
    if CP0:
        C("wave 0 pulls the next lines of this code into L2 while the memory system is still idle")
        A("s_getpc_b64 s[82:83]")
        A(f"v_lshlrev_b32 v{T+6}, 7, v0")
        A(f"v_cmp_gt_u32 vcc, {CP0}, v0")
        A("s_mov_b64 exec, vcc")
        A("s_cbranch_execz L_nocp0")
        g.vmem(f"global_load_dword v{T+7}, v{T+6}, s[82:83] offset:128", optional=True)
        L("L_nocp0")
        A("s_mov_b64 exec, -1")
    A(f"v_lshrrev_b32 v{T}, 6, v0")
    A("v_and_b32 v1, 63, v0")
    A(f"v_readfirstlane_b32 s{s_w}, v{T}")
    if Q32:
        C("q slice: branch b, columns hkv*512 + (s&7)*64 + (s>>3)*32, rows w*128..")
        A(f"v_lshrrev_b32 v{T+2}, 2, v1")
        A(f"v_lshlrev_b32 v{T+2}, 13, v{T+2}")
        A(f"v_and_b32 v{T}, 3, v1")
        A(f"v_lshl_add_u32 v{T+2}, v{T}, 4, v{T+2}")
        A(f"s_and_b32 s{s_t0}, s2, 0x70")
        A(f"s_and_b32 s{s_t1}, s2, 7")
        A(f"s_lshl1_add_u32 s{s_t0}, s{s_t1}, s{s_t0}")
        A(f"s_bfe_u32 s{s_t1}, s2, 0x10003")
        A(f"s_add_u32 s{s_t0}, s{s_t0}, s{s_t1}")
        A(f"s_lshl_b32 s{s_colb}, s{s_t0}, 5")
        A(f"s_lshl_b32 s{s_t2}, s{s_w}, 1")
    else:
        C("q slice: branch b, columns (wg>>1 & 63)*64, rows (wg&1)*256 + w*64")
        A(f"v_lshrrev_b32 v{T+2}, 3, v1")
        A(f"v_lshlrev_b32 v{T+2}, 13, v{T+2}")
        A(f"v_and_b32 v{T}, 7, v1")
        A(f"v_lshl_add_u32 v{T+2}, v{T}, 4, v{T+2}")
        A(f"s_bfe_u32 s{s_colb}, s2, 0x60001")
        A(f"s_lshl_b32 s{s_colb}, s{s_colb}, 6")
        A(f"s_and_b32 s{s_t0}, s2, 1")
        A(f"s_lshl2_add_u32 s{s_t2}, s{s_t0}, s{s_w}")
    A(f"s_lshl_b32 s{s_t0}, s{s_t2}, 19")
    A(f"s_lshl1_add_u32 s{s_wqoff}, s{s_colb}, s{s_t0}")
    A(f"s_lshl_b32 s{s_stg}, s{s_w}, 13")
    A(f"s_add_u32 s{s_stg}, s{s_stg}, {STG}")
    A(f"s_mov_b32 s{sWQ+2}, 0x400000")
    A(f"s_mov_b32 s{sWQ+3}, 0x20000")
    A("s_waitcnt lgkmcnt(0)")
    A(f"s_mov_b32 s{sWQ}, s14")
    A(f"s_and_b32 s{sWQ+1}, s15, 0xffff")
    def mksrd(d, p, size):
        A(f"s_mov_b32 s{d}, s{p}")
        A(f"s_and_b32 s{d+1}, s{p+1}, 0xffff")
        A(f"s_mov_b32 s{d+2}, {size:#x}")
        A(f"s_mov_b32 s{d+3}, 0x20000")

    S5, WM, G4 = PATS[PAT] if isinstance(PAT, str) else PAT
    msk = lambda bs: sum(1 << b for b in bs)
    basis = {}
    for v in [msk(x) for x in S5 + WM + G4]:
        while v:
            h = v.bit_length() - 1
            if h not in basis:
                basis[h] = v
                break
            v ^= basis[h]
    assert sorted(basis) == list(range(12, 23)), "pattern is not a bijection"
    def tile_off(t):
        x = 0
        for k in range(5):
            if t >> k & 1:
                x ^= msk(S5[k])
        return x
    NT = 128
    Z = [("wq", j) for j in range(8)] + [("kv", t, j) for t in range(WOT) for j in range(4)] + [("wo", j) for j in range(WOH)] + \
        [("kv", t, j) for t in range(WOT, NT) for j in range(4)] + [("wo", j) for j in range(WOH, 8)]
    pos = {z: p for p, z in enumerate(Z)}
    pos_of = lambda t, j: pos[("kv", t, j)]
    slot_of = lambda t: t % NSLOT
    isK = lambda t: (t // 32) % 2 == 0
    ids = {}
    st = {}
    log = []
    pending = []

    def cur_t():
        p = st["p"]
        while Z[p][0] != "kv":
            p -= 1
        return Z[p][1]

    def issue(p, throttle=True):
        z = Z[p]
        need_nop = False
        if z[0] == "wq":
            if z[1]:
                A(f"s_add_u32 s{s_wqoff}, s{s_wqoff}, {0x20000 if Q32 else 0x10000:#x}")
            A(f"s_add_u32 m0, s{s_stg}, {z[1]*1024}")
            need_nop = True
        elif z[0] == "wo":
            if z[1]:
                A(f"s_add_u32 s{s_wooff}, s{s_wooff}, 8192")
            A(f"s_add_u32 m0, s{s_stg}, {z[1]*1024}")
            need_nop = True
        elif z[2] == 0:
            t = z[1]
            stamp(f"t{t}")
            un = UNT and (t % 32 < (1 << UNT) or (UNE and t % 32 >= 32 - (1 << UNT)))
            A(f"s_xor_b32 s{s_kvoff}, s{s_kvb2 if un else s_kvb}, {tile_off(t % 32):#x}")
            A(f"s_add_u32 m0, s{s_wb}, {slot_of(t)*4096}")
            need_nop = True
            if p >= PC0 and any(Nguar(q) > Nof(q) for q in range(p, p + 4)):
                if G6:
                    A(f"s_sub_i32 s{s_bm}, s{s_gb}, {t + 1}")
                elif NLO:
                    A(f"s_sub_i32 s{s_bm}, {t}, s{s_brk}")
                A(f"s_cmp_gt_i32 s{s_boost}, {t}")
                A("s_cselect_b64 vcc, -1, 0")
                need_nop = False
                if XM and (XM[0] | XM[1]) >> (t % 32) & 1:
                    A(f"s_bitcmp1_b32 s{s_xm}, {t % 32}")
                    A("s_cselect_b64 vcc, -1, vcc")
        waited = False
        if throttle and p - Nguar(p) >= 0:
            waited = g.throttle(ids[p - Nguar(p)])
            if Nguar(p) > Nof(p) and ids[p - Nof(p)] in g.fl["H"]:
                A(f"s_cbranch_vccnz L_b{p}")
                A(f"s_waitcnt vmcnt({g.after(ids[p - Nof(p)])})")
                if NLO or G6:
                    A(f"s_bitcmp0_b32 s{s_bm}, 31")
                    A(f"s_cbranch_scc1 L_b{p}")
                    A(f"s_waitcnt vmcnt({g.after(ids[p - (NLO or N)])})")
                L(f"L_b{p}")
                waited = True
        if need_nop and not waited:
            A("s_nop 0")
        stamp(f"p{p}")
        if z[0] == "wq":
            ids[p] = g.vmem(f"buffer_load_dwordx4 v{T+2}, {srd(sWQ)}, s{s_wqoff} offen nt lds")
        elif z[0] == "wo":
            ids[p] = g.vmem(f"buffer_load_dwordx4 v{a_wo}, {srd(sWO)}, s{s_wooff} offen nt lds")
        else:
            _, t, j = z
            ids[p] = g.vmem(f"buffer_load_dwordx4 v{v_dv+(j&1)}, {srd(sKV[t//32])}, s{s_kvoff} offen offset:{j*1024} nt lds")
            if j == 1 and C0 - 8 <= t < NT - 6:
                assert st["setup"]
                A(f"s_cmp_eq_u32 s{s_pph}, {t % PT}")
                A(f"s_cselect_b32 s{s_u}, s{s_pro}, {WS_SIZE:#x}")
                A(f"v_or_b32 v{v_pd}, {t}, v{v_pl}")
                g.vmem(f"buffer_store_dword v{v_pd}, v{a_pw}, {srd(sWS)}, s{s_u} offen")

    C("wq slice -> staging")
    for p in range(8):
        issue(p, throttle=False)
    stamp("a")
    A(f"s_load_dword s{s_tag32}, s[18:19], {WS_E}")
    mksrd(sKV[0], 4, 0x8000000)
    A(f"s_mul_i32 s{s_wb}, s{s_w}, {RING}")
    C("first byte of this wave's keys")
    A(f"s_lshr_b32 s{s_kvb}, s2, 4")
    A(f"s_lshl_b32 s{s_kvb}, s{s_kvb}, 23")
    for src, ms in (("s2", G4), (f"s{s_w}", WM)):
        k = 0
        while k < len(ms):
            n = 1
            while len(ms[k]) == 1 and k + n < len(ms) and list(ms[k + n]) == [ms[k][0] + n]:
                n += 1
            if len(ms[k]) == 1:
                A(f"s_bfe_u32 s{s_t0}, {src}, {(n << 16) + k:#x}")
                A(f"s_lshl_b32 s{s_t0}, s{s_t0}, {ms[k][0]}")
            else:
                A(f"s_bitcmp1_b32 {src}, {k}")
                A(f"s_cselect_b32 s{s_t0}, {msk(ms[k]):#x}, 0")
            A(f"s_xor_b32 s{s_kvb}, s{s_kvb}, s{s_t0}")
            k += n
    if UNT:
        A(f"s_mov_b32 s{s_kvb2}, s{s_kvb}")
        for k in range(UNT):
            A(f"s_bitcmp1_b32 s2, {k}")
            A(f"s_cselect_b32 s{s_t0}, {msk(S5[k]):#x}, 0")
            A(f"s_xor_b32 s{s_kvb2}, s{s_kvb2}, s{s_t0}")
    C("DMA voffsets: 16-byte chunk index xor 2*(key&7)")
    A(f"v_lshrrev_b32 v{v_g}, 4, v1")
    A(f"v_lshlrev_b32 v{T+3}, 1, v{v_g}")
    A(f"v_xor_b32 v{T+3}, v{T+3}, v1")
    A(f"v_lshlrev_b32 v{v_dv}, 4, v{T+3}")
    A(f"v_xor_b32 v{v_dv+1}, 0x80, v{v_dv}")
    if T0:
        C("start the address translation of both key pages early")
        A("s_mov_b64 exec, 3")
        A(f"v_lshlrev_b32 v{v_tw+1}, 22, v1")
        A(f"s_andn2_b32 s{s_t0}, s{s_kvb}, 0x400000")
        g.vmem(f"buffer_load_dword v{v_tw}, v{v_tw+1}, {srd(sKV[0])}, s{s_t0} offen nt")
        A("s_mov_b64 exec, -1")
    GX = v_sc

    NKS, NCB = (4, 2) if Q32 else (2, 4)
    XOP = v_sc + 16
    def pro_x():
        C("x operand of the q projection")
        mksrd(sX, 12, 2048)
        A(f"v_and_b32 v{T+1}, 1, v1")
        A(f"v_lshlrev_b32 v{T+1}, 10, v{T+1}")
        A(f"v_lshl_add_u32 v{T+1}, v{v_g}, 4, v{T+1}")
        A(f"s_lshl_b32 s{s_t2}, s{s_t2}, 7")
        for j in range(NKS):
            st["x"] = g.vmem(f"buffer_load_dwordx4 {vr(XOP+4*j,4)}, v{T+1}, {srd(sX)}, s{s_t2} offen offset:{j*64}")
        A(f"s_lshr_b32 s{s_t0}, s{s_w}, 1")
        A(f"s_mul_i32 s{s_t0}, s{s_t0}, 40")
        A(f"s_add_u32 s82, s0, s{s_t0}")
        A("s_addc_u32 s83, s1, 0")
        A("s_load_dwordx2 s[16:17], s[82:83], 32")

    def pro_rest():
        A(f"v_and_b32 v{v_n}, 15, v1")
        A(f"v_and_b32 v{v_c}, 3, v1")
        A(f"v_bfe_u32 v{v_r}, v1, 2, 2")
        mksrd(sG, 96, 1024)
        for k in range(1, 4):
            mksrd(sKV[k], 4 + 2 * k, 0x8000000)
        mksrd(sWS, 18, WS_SIZE)
        mksrd(sO, 98, 2048)
        A(f"s_bfe_u32 s{s_hkv}, s2, 0x30004")
        A(f"s_and_b32 s{s_j}, s2, 15")
        A(f"s_lshl4_add_u32 s{s_j}, s{s_b}, s{s_j}")
        C("clear the LDS flags")
        A(f"v_mov_b32 v{a_fr}, {SCR+FL}")
        A(f"v_lshl_add_u32 v{T}, v{v_n}, 2, v{a_fr}")
        A(f"v_mov_b32 v{T+1}, 0")
        A(f"ds_write_b32 v{T}, v{T+1}")
        C("LDS read addresses for K")
        A(f"v_lshl_add_u32 v{T+3}, v{v_n}, 8, s{s_wb}")
        A(f"v_and_b32 v{T+4}, 7, v{v_n}")
        A(f"v_lshlrev_b32 v{T+4}, 1, v{T+4}")
        A(f"v_xor_b32 v{T+4}, v{T+4}, v{v_g}")
        for j in range(4):
            A(f"v_xor_b32 v{v_rk+j}, {4*j}, v{T+4}")
            A(f"v_lshl_add_u32 v{v_rk+j}, v{v_rk+j}, 4, v{T+3}")
        C("q-proj addresses")
        A(f"v_lshl_add_u32 v{T}, v{v_g}, 3, v{v_r}")
        A(f"v_lshl_add_u32 v{T}, v{T}, {6 if Q32 else 7}, s{s_stg}")
        A(f"v_lshl_add_u32 v{T}, v{v_c}, 3, v{T}")
        A(f"s_lshl_b32 s{s_t0}, s{s_w}, 9")
        A(f"s_add_u32 s{s_t0}, s{s_t0}, {SCR+QP}")
        A(f"v_and_b32 v{T+1}, 1, v1")
        A(f"v_lshl_add_u32 v{T+1}, v{T+1}, {7 if Q32 else 8}, s{s_t0}")
        A(f"v_lshl_add_u32 v{T+1}, v{v_g}, 4, v{T+1}")
        A(f"v_and_b32 v{T+3}, 31, v1")
        A(f"v_lshlrev_b32 v{T+3}, 4, v{T+3}")
        A(f"v_add_u32 v{T+3}, {SCR+QP}, v{T+3}")
        A(f"v_bfe_u32 v{T+4}, v1, {3 if Q32 else 4}, 1")
        A(f"v_lshlrev_b32 v{T+4}, 14, v{T+4}")
        A(f"v_and_b32 v{T+5}, {7 if Q32 else 15}, v1")
        A(f"v_lshl_add_u32 v{T+4}, v{T+5}, 4, v{T+4}")
        A(f"s_lshl_b32 s{s_t0}, s{s_b}, 13")
        A(f"s_add_u32 s{s_t0}, s{s_t0}, s{s_colb}")
        A(f"s_lshl_b32 s{s_t0}, s{s_t0}, 2")
        if not Q32:
            A(f"s_and_b32 s{s_t1}, s2, 1")
            A(f"s_lshl_b32 s{s_t1}, s{s_t1}, 16")
            A(f"s_add_u32 s{s_t0}, s{s_t0}, s{s_t1}")
        A(f"s_add_u32 s{s_t0}, s{s_t0}, {WS_QB}")
        A(f"s_movk_i32 s{s_t1}, 0xff00")

    def gate_loads():
        C("gate inputs: lane l holds 16 elements (l&31) of batch b")
        A(f"v_and_b32 v{T}, 31, v1")
        A(f"v_lshlrev_b32 v{T}, 5, v{T}")
        A(f"s_lshl_b32 s{s_t0}, s{s_b}, 10")
        for j in range(2):
            g.vmem(f"buffer_load_dwordx4 {vr(GX+4*j,4)}, v{T}, {srd(sX)}, s{s_t0} offen offset:{j*16}")
        for j in range(2):
            st["gate"] = g.vmem(f"buffer_load_dwordx4 {vr(GX+8+4*j,4)}, v{T}, {srd(sG)}, 0 offen offset:{j*16}")

    if XP < 8:
        pro_x()
        pro_rest()
    chunks = g.split(pro_rest, 14) if XP >= 8 else []
    for p in range(8, P0):
        issue(p)
        if p == XP:
            pro_x()
        elif p > XP and chunks:
            chunks.pop(0)()
    for f in chunks:
        f()
    for p in range(P0, P0 + PX):
        issue(p, throttle=False)
    A("s_waitcnt lgkmcnt(0)")
    C("---- q projection: 64 columns, half of the rows ----")
    g.wait_vm(st["x"])
    g.wait_vm(ids[7])
    RB = 64 if Q32 else 128
    for ks in range(NKS):
        for cb in range(NCB):
            for hf in range(2):
                A(f"ds_read_b64_tr_b16 {ar(a_vf+(ks*NCB+cb)*4+hf*2,2)}, v{T} offset:{ks*32*RB + hf*4*RB + cb*32}")
    mksrd(sWO, 16, 0x400000)
    A(f"s_add_u32 s{s_tag32}, s{s_tag32}, {EPOCH_INC:#x}")
    A(f"s_and_b32 s{s_tag8}, s{s_tag32}, 0xff")
    A(f"s_and_b32 s{s_tag12}, s{s_tag32}, 0xfff")
    A(f"s_and_b32 s{s_tag16}, s{s_tag32}, 0xffff")
    A(f"v_mov_b32 v{T+5}, s{s_tag8}")
    for ks in range(NKS):
        A(f"s_waitcnt lgkmcnt({16-2*NCB*(ks+1)})")
        for cb in range(NCB):
            A(f"v_mfma_f32_16x16x32_bf16 {vr(B+4*cb,4)}, {ar(a_vf+(ks*NCB+cb)*4,4)}, {vr(XOP+4*ks,4)}, " + ("0" if ks == 0 else vr(B + 4 * cb, 4)))
    A(f"s_nop {8-NCB}")
    for cb in range(NCB):
        A(f"ds_write_b128 v{T+1}, {vr(B+4*cb,4)} offset:{cb*64}")
    A(f"s_cmp_eq_u32 s{s_w}, 0")
    A("s_waitcnt lgkmcnt(0)")
    if "b1" not in skip:
        A("s_barrier")
    A("s_cbranch_scc0 L_noqstore")
    for w in range(4):
        A(f"ds_read_b128 {vr(B+4*w,4)}, v{T+3} offset:{w*512}")
    A("s_waitcnt lgkmcnt(0)")
    for e in range(4):
        A(f"v_add_f32 v{B+e}, v{B+e}, v{B+4+e}")
        A(f"v_add_f32 v{B+8+e}, v{B+8+e}, v{B+12+e}")
    for e in range(4):
        A(f"v_add_f32 v{B+e}, v{B+e}, v{B+8+e}")
    if Q32:
        for e in range(4):
            A(f"v_cvt_pk_bf16_f32 v{B+e}, 0, v{B+e}")
        for e in range(4):
            A(f"v_or_b32 v{B+e}, s{s_tag16}, v{B+e}")
        A("s_mov_b64 exec, 0xffff")
    else:
        for e in range(4):
            A(f"v_add_u32 v{B+e}, 0x80, v{B+e}")
        for e in range(4):
            A(f"v_and_or_b32 v{B+e}, v{B+e}, s{s_t1}, v{T+5}")
        A("s_mov_b32 exec_hi, 0")
    if "qstore" not in skip:
        g.vmem(f"buffer_store_dwordx4 {vr(B,4)}, v{T+4}, {srd(sWS)}, s{s_t0} offen sc1", optional=True)
    A("s_mov_b64 exec, -1")
    L("L_noqstore")
    stamp("qpub")

    FSLOT = slot_of(NT)

    def setup_head():
        C("constants")
        A(f"s_mov_b32 s{s_c}, {f2u(LOG2E):#x}")
        if not UNT:
            A(f"s_mov_b32 s{s_rs}, {f2u(128 ** -0.5):#x}")
        A(f"s_mov_b32 s{s_spin}, {SPIN}")
        for r in range(4):
            A(f"v_mov_b32 v{v_one+r}, 0x3f803f80")
        C("q gather: head w, lanes 0-31 half 0, lanes 32-63 half 1")
        A(f"v_lshrrev_b32 v{T}, 5, v1")
        A(f"v_and_b32 v{T+1}, 31, v1")
        A(f"v_lshlrev_b32 v{T+2}, 4, v{T+1}")
        A(f"v_lshl_add_u32 v{a_q}, v{T}, {15 if Q32 else 16}, v{T+2}")
        A(f"s_lshr_b32 s{s_t0}, s2, 4")
        A(f"s_lshl2_add_u32 s{s_t0}, s{s_t0}, s{s_w}")
        A(f"s_lshl_b32 s{s_t0}, s{s_t0}, 9")
        A(f"s_add_u32 s{s_qoff}, s{s_t0}, {WS_QB}")
        A(f"s_lshl_b32 s{s_t0}, s{s_w}, 8")
        A(f"s_add_u32 s{s_t0}, s{s_t0}, {SCR+QX}")
        A(f"v_lshl_add_u32 v{a_qw}, v{T+1}, 3, s{s_t0}")
        A(f"v_lshl_add_u32 v{a_qw}, v{T}, {10 if Q32 else 2}, v{a_qw}")
        A(f"v_lshlrev_b32 v{a_qr}, 8, v{v_c}")
        A(f"v_lshl_add_u32 v{a_qr}, v{v_g}, 4, v{a_qr}")
        A(f"v_add_u32 v{a_qr}, {SCR+QX}, v{a_qr}")
        A(f"s_lshl_b32 s{s_t0}, s{s_w}, 2")
        A(f"v_add_u32 v{a_fw}, s{s_t0}, v{a_fr}")
        C("catch-up hints (speed only): one line of tile indices per group of workgroups with equal wg&7")
        A(f"s_mov_b32 s{s_boost}, 0")
        A(f"s_and_b32 s{s_tagp}, s{s_tag32}, 0xffffff00")
        A(f"v_mov_b32 v{v_pl}, s{s_tagp}")
        A(f"v_min_u32 v{a_pw}, 1, v1")
        A(f"v_lshlrev_b32 v{a_pw}, 30, v{a_pw}")
        A(f"s_and_b32 s{s_t0}, s2, 7")
        A(f"s_mul_i32 s{s_t0}, s{s_t0}, 4352")
        A(f"s_add_u32 s{s_t0}, s{s_t0}, {WS_PR}")
        A(f"v_lshl_add_u32 v{a_pr}, v1, 2, s{s_t0}")
        if GR:
            C("wave 1 of workgroups 32..39 compares the groups a few times")
            A(f"s_add_u32 s{s_bc}, s{s_t0}, 128")
            A(f"s_mov_b32 s{s_gb}, 0")
            A(f"s_mov_b32 s{s_dev}, 0")
            A(f"s_lshr_b32 s{s_t1}, s2, 3")
            A(f"s_lshl_b32 s{s_t2}, s{s_w}, 5")
            A(f"s_add_u32 s{s_t1}, s{s_t1}, s{s_t2}")
            A(f"s_xor_b32 s{s_t1}, s{s_t1}, {32 + 4}")
            A(f"s_min_u32 s{s_t1}, s{s_t1}, 1")
            A(f"s_lshl_b32 s{s_t1}, s{s_t1}, 30")
            A(f"s_add_u32 s{s_t1}, s{s_t1}, {WS_GP}")
            A(f"v_lshrrev_b32 v{T+3}, 3, v1")
            A(f"v_min_u32 v{T+3}, 1, v{T+3}")
            A(f"v_lshlrev_b32 v{T+3}, 30, v{T+3}")
            A(f"v_mul_u32_u24 v{T+4}, 4224, v1")
            A(f"v_add3_u32 v{a_gs}, v{T+3}, v{T+4}, s{s_t1}")
            A(f"s_and_b32 s{s_t2}, s2, 7")
            A(f"s_mul_i32 s{s_t2}, s{s_t2}, 4224")
            A(f"s_add_u32 s{s_gpo}, s{s_t1}, s{s_t2}")
        A(f"s_lshr_b32 s{s_t1}, s2, 3")
        A(f"s_lshl2_add_u32 s{s_pro}, s{s_t1}, s{s_t0}")
        A(f"s_and_b32 s{s_t1}, s{s_t1}, {PT-1}")
        A(f"s_lshl4_add_u32 s{s_pph}, s{s_w}, s{s_t1}")
        if XM:
            A(f"s_getreg_b32 s{s_t0}, hwreg(HW_REG_XCC_ID)")
            A(f"s_and_b32 s{s_t0}, s{s_t0}, 1")
            A(f"s_mul_i32 s{s_t0}, s{s_t0}, {XM[0] ^ XM[1]:#x}")
            A(f"s_xor_b32 s{s_xm}, s{s_t0}, {XM[0]:#x}")

    def setup_rest():
        A(f"s_mov_b32 s{s_perm}, 0x07060302")
        A(f"s_mov_b32 s{s_m12}, 0xfffff000")
        A(f"s_mov_b32 s{s_m15}, 0xfffefffe")
        C("V transposed read addresses")
        A(f"v_lshl_add_u32 v{T+3}, v{v_g}, 2, v{v_r}")
        A(f"v_and_b32 v{T+5}, 1, v{v_c}")
        A(f"v_lshlrev_b32 v{T+5}, 3, v{T+5}")
        A(f"v_lshrrev_b32 v{T+6}, 1, v{v_c}")
        A(f"v_lshl_add_u32 v{T+4}, v{T+3}, 8, v{T+5}")
        A(f"v_add_u32 v{T+4}, s{s_wb}, v{T+4}")
        A(f"v_and_b32 v{T+7}, 7, v{T+3}")
        A(f"v_lshl_or_b32 v{T+7}, v{T+7}, 1, v{T+6}")
        for cb in range(8):
            A(f"v_xor_b32 v{v_rv+cb}, {2*cb}, v{T+7}")
            A(f"v_lshl_add_u32 v{v_rv+cb}, v{v_rv+cb}, 4, v{T+4}")
        C("wo: head hq = hkv*4 + (j>>3), columns (wg&7)*64; wave w loads rows (w&1)*64.. of branch w>>1")
        A(f"v_lshl_add_u32 v{T+4}, v{T+3}, 7, v{T+5}")
        A(f"v_add_u32 v{T+4}, {STG}, v{T+4}")
        A(f"v_and_b32 v{T+7}, 6, v{T+3}")
        A(f"v_or_b32 v{T+7}, v{T+7}, v{T+6}")
        A(f"s_lshl_b32 s{s_t0}, s{s_w}, 1")
        A(f"v_xor_b32 v{T+7}, s{s_t0}, v{T+7}")
        A(f"v_lshl_add_u32 v{a_wor}, v{T+7}, 4, v{T+4}")
        A(f"v_lshrrev_b32 v{T+3}, 3, v1")
        A(f"v_and_b32 v{T+4}, 6, v{T+3}")
        A(f"v_and_b32 v{T+5}, 7, v1")
        A(f"v_xor_b32 v{T+4}, v{T+4}, v{T+5}")
        A(f"v_lshlrev_b32 v{T+4}, 4, v{T+4}")
        A(f"v_lshl_add_u32 v{a_wo}, v{T+3}, 10, v{T+4}")
        A(f"s_lshr_b32 s{s_t0}, s{s_j}, 3")
        A(f"s_lshl2_add_u32 s{s_t3}, s{s_hkv}, s{s_t0}")
        A(f"s_and_b32 s{s_t0}, s{s_w}, 1")
        A(f"s_lshl1_add_u32 s{s_t0}, s{s_t3}, s{s_t0}")
        A(f"s_lshl_b32 s{s_t0}, s{s_t0}, 16")
        A(f"s_and_b32 s{s_t2}, s2, 7")
        A(f"s_lshl_b32 s{s_t1}, s{s_t2}, 7")
        A(f"s_add_u32 s{s_wooff}, s{s_t0}, s{s_t1}")
        C("hop-2 store: line (cg = (wg&7)*4 + w, p = hq), lane (g, n<2): b = n")
        A(f"s_lshl2_add_u32 s{s_t0}, s{s_t2}, s{s_w}")
        A(f"s_lshl_b32 s{s_t0}, s{s_t0}, 12")
        A(f"s_lshl_b32 s{s_t1}, s{s_t3}, 7")
        A(f"s_add_u32 s{s_t0}, s{s_t0}, s{s_t1}")
        A(f"s_add_u32 s{s_h2pub}, s{s_t0}, {WS_P1}")
        A(f"v_and_b32 v{T+3}, 1, v1")
        A(f"v_lshlrev_b32 v{a_p2}, 6, v{T+3}")
        A(f"v_lshl_add_u32 v{a_p2}, v{v_g}, 4, v{a_p2}")
        C("o operand reader: OX + (n&1)*256 + g*16")
        A(f"v_lshlrev_b32 v{a_or}, 8, v{T+3}")
        A(f"v_lshl_add_u32 v{a_or}, v{v_g}, 4, v{a_or}")
        A(f"v_add_u32 v{a_or}, {SCR+OX}, v{a_or}")
        C("final role f = (wg&7)*4 + w (the wave's own column group) for one workgroup per f, else >= 32")
        A(f"s_lshl2_add_u32 s{s_f}, s{s_t2}, s{s_w}")
        A(f"s_lshl_b32 s{s_t1}, s{s_f}, 12")
        A(f"s_add_u32 s{s_h2get}, s{s_t1}, {WS_P1}")
        A(f"s_lshr_b32 s{s_t0}, s2, 3")
        if FWAVE == 0:
            A(f"s_xor_b32 s{s_t0}, s{s_t0}, s{s_w}")
        A(f"s_lshl_b32 s{s_t0}, s{s_t0}, 5")
        A(f"s_or_b32 s{s_f}, s{s_f}, s{s_t0}")
        A(f"v_lshlrev_b32 v{a_l16}, 4, v1")
        A(f"v_bfe_u32 v{T+3}, v1, 2, 1")
        A(f"v_lshlrev_b32 v{a_out}, 10, v{T+3}")
        A(f"v_lshl_add_u32 v{a_out}, v{v_c}, 3, v{a_out}")
        A(f"v_bfe_u32 v{T+4}, v1, 4, 1")
        A(f"v_lshl_add_u32 v{a_out}, v{T+4}, 2, v{a_out}")
        A(f"v_lshrrev_b32 v{T+5}, 5, v1")
        A(f"v_lshl_add_u32 v{a_out}, v{T+5}, 1, v{a_out}")
        C("hop-1 gather, wave = (dims half w>>1, batch w&1): rows (hq, b*16 + 4*g + i)")
        A(f"v_lshlrev_b32 v{T+5}, 4, v{v_n}")
        A(f"v_lshl_add_u32 v{a_g1}, v{v_g}, 11, v{T+5}")
        A(f"s_and_b32 s{s_t0}, s{s_w}, 1")
        A(f"s_lshl1_add_u32 s{s_t1}, s{s_t3}, s{s_t0}")
        A(f"s_lshl_b32 s{s_t1}, s{s_t1}, 13")
        A(f"s_lshr_b32 s{s_t2}, s{s_w}, 1")
        A(f"s_lshl_b32 s{s_t3}, s{s_t2}, 8")
        A(f"s_add_u32 s{s_t1}, s{s_t1}, s{s_t3}")
        A(f"s_add_u32 s{s_h1get}, s{s_t1}, {WS_H1}")
        C("summed o -> LDS [br][b][ks][g][hf][4] bf16; lanes 0-15 hold branch B, lanes 16-31 branch A")
        A(f"s_lshl1_add_u32 s{s_t0}, s{s_t0}, s{s_t2}")
        A(f"s_lshl_b32 s{s_t0}, s{s_t0}, 7")
        A(f"s_add_u32 s{s_t0}, s{s_t0}, {SCR+OX}")
        A(f"v_lshl_add_u32 v{a_ow}, v{v_c}, 4, s{s_t0}")
        A(f"v_lshl_add_u32 v{a_ow}, v{T+3}, 3, v{a_ow}")
        A(f"v_bfe_u32 v{T+5}, v1, 3, 1")
        A(f"v_lshl_add_u32 v{a_ow}, v{T+5}, 6, v{a_ow}")
        A(f"v_xor_b32 v{T+4}, 1, v{T+4}")
        A(f"v_lshl_add_u32 v{a_ow}, v{T+4}, 9, v{a_ow}")
        C("hop-1 publish: row (hkv, h=w, j)")
        A(f"s_lshl2_add_u32 s{s_t0}, s{s_hkv}, s{s_w}")
        A(f"s_lshl_b32 s{s_t0}, s{s_t0}, 5")
        A(f"s_add_u32 s{s_t0}, s{s_t0}, s{s_j}")
        A(f"s_lshl_b32 s{s_t0}, s{s_t0}, 9")
        A(f"s_add_u32 s{s_h1pub}, s{s_t0}, {WS_H1}")
        C("combine: writers (lane (g,h)) and readers (head w, d4)")
        A(f"v_lshlrev_b32 v{T+3}, 9, v{v_c}")
        A(f"v_lshl_add_u32 v{T+3}, v{v_g}, 4, v{T+3}")
        A(f"s_lshl_b32 s{s_t0}, s{s_w}, 11")
        A(f"s_add_u32 s{s_t0}, s{s_t0}, {SCR+OPA}")
        A(f"v_add_u32 v{a_cwa}, s{s_t0}, v{T+3}")
        A(f"v_add_u32 v{a_cwb}, s{s_wb}, v{T+3}")
        A(f"s_lshl_b32 s{s_t0}, s{s_w}, 2")
        A(f"s_add_u32 s{s_t0}, s{s_t0}, {SCR+ML}")
        A(f"v_lshl_add_u32 v{a_cml}, v{v_c}, 4, s{s_t0}")
        A(f"v_and_b32 v{T+3}, 7, v1")
        A(f"v_lshlrev_b32 v{T+3}, 4, v{T+3}")
        A(f"v_add_u32 v{a_mlr}, {SCR+ML}, v{T+3}")
        A(f"v_and_b32 v{T+3}, 31, v1")
        A(f"s_lshl_b32 s{s_t0}, s{s_w}, 9")
        A(f"v_lshl_add_u32 v{a_crb}, v{T+3}, 4, s{s_t0}")
        A(f"v_add_u32 v{a_cra}, {SCR+OPA}, v{a_crb}")
        A(f"v_add_u32 v{a_crb2}, {2*RING}, v{a_crb}")
        C("log-sum-exp exchange among the 16 splits: lane = (br = bit4, s = n)")
        A(f"s_lshl_b32 s{s_t0}, s2, 7")
        A(f"s_add_u32 s{s_lpub}, s{s_t0}, {WS_LB}")
        A(f"s_andn2_b32 s{s_t0}, s{s_t0}, 0x7ff")
        A(f"s_lshl3_add_u32 s{s_t0}, s{s_w}, s{s_t0}")
        A(f"s_add_u32 s{s_lget}, s{s_t0}, {WS_LB}")
        A(f"v_bfe_u32 v{T+3}, v1, 4, 1")
        A(f"v_lshlrev_b32 v{T+3}, 5, v{T+3}")
        A(f"v_lshl_add_u32 v{a_lg}, v{v_n}, 7, v{T+3}")
        C("tag bit patterns and the selector operand (1.0 where element == row)")
        for e in range(4):
            A(f"s_and_b32 s{s_t0}, s{s_tag8}, 1")
            A(f"s_bfe_u32 s{s_t1}, s{s_tag8}, {0x10001 + e:#x}")
            A(f"s_pack_ll_b32_b16 s{s_t0}, s{s_t0}, s{s_t1}")
            A(f"v_mov_b32 v{v_pat+e}, s{s_t0}")
        A(f"v_and_b32 v{T+3}, 1, v1")
        A(f"v_lshlrev_b32 v{T+3}, 4, v{T+3}")
        A(f"v_mov_b32 v{T+4}, 0x3f80")
        A(f"v_lshlrev_b32 v{T+3}, v{T+3}, v{T+4}")
        A(f"v_lshrrev_b32 v{T+4}, 1, v{v_n}")
        for e in range(4):
            A(f"v_xor_b32 v{T+5}, {e}, v{T+4}")
            A(f"v_min_u32 v{T+5}, 1, v{T+5}")
            A(f"v_add_u32 v{T+5}, -1, v{T+5}")
            A(f"v_and_b32 v{v_sel+e}, v{T+5}, v{T+3}")

    def setup_gate():
        C("gate factor: g in lanes with bit 2 clear, 1-g in the others, with the reference's bf16 rounding points")
        X, Wt = GX, GX + 8
        for r in range(8):
            A(f"v_lshlrev_b32 v{T}, 16, v{X+r}")
            A(f"v_lshlrev_b32 v{T+1}, 16, v{Wt+r}")
            A(f"v_and_b32 v{X+r}, 0xffff0000, v{X+r}")
            A(f"v_and_b32 v{Wt+r}, 0xffff0000, v{Wt+r}")
            A(f"v_mul_f32 v{T}, v{T}, v{T+1}")
            A(f"v_mul_f32 v{X+r}, v{X+r}, v{Wt+r}")
            A(f"v_cvt_pk_bf16_f32 v{X+r}, v{T}, v{X+r}")
        for r in range(8):
            A(f"v_dot2_f32_bf16 v{T+2}, v{X+r}, v{v_one}, " + ("0" if r == 0 else f"v{T+2}"))
        A("s_nop 2")
        for d in (1, 2, 4, 8):
            A(f"v_add_f32_dpp v{T+2}, v{T+2}, v{T+2} row_ror:{d} row_mask:0xf bank_mask:0xf")
            A("s_nop 1")
        A(f"v_mov_b32 v{T+3}, v{T+2}")
        A("s_nop 1")
        A(f"v_permlane16_swap_b32 v{T+2}, v{T+3}")
        A("s_nop 0")
        A(f"v_add_f32 v{T+2}, v{T+2}, v{T+3}")
        A(f"v_cvt_pk_bf16_f32 v{T+2}, 0, v{T+2}")
        A(f"v_mul_f32 v{T+2}, {f2u(-LOG2E):#x}, v{T+2}")
        A(f"v_exp_f32 v{T+2}, v{T+2}")
        A("s_nop 0")
        A(f"v_add_f32 v{T+2}, 1.0, v{T+2}")
        A(f"v_rcp_f32 v{T+2}, v{T+2}")
        A(f"v_bfe_i32 v{T+4}, v1, 2, 1")
        A(f"v_cvt_pk_bf16_f32 v{T+2}, 0, v{T+2}")
        A(f"v_sub_f32 v{T+3}, 1.0, v{T+2}")
        A(f"v_cvt_pk_bf16_f32 v{T+3}, 0, v{T+3}")
        A(f"v_bfi_b32 v{v_gf}, v{T+4}, v{T+3}, v{T+2}")

    def spin_guard():
        A(f"s_sub_u32 s{s_spin}, s{s_spin}, 1")
        A("s_cbranch_scc1 L_end")

    def qloads(track):
        if not Q32:
            A(f"s_add_u32 s{s_t0}, s{s_qoff}, 0x8000")
        for br in range(1 if Q32 else 2):
            s = f"buffer_load_dwordx4 {vr(B+4*br,4)}, v{a_q}, {srd(sWS)}, s{s_t0 if br else s_qoff} offen sc1"
            if track and "qload" in skip:
                st["q"] = ids[st["p"]]
            elif track:
                st["q"] = g.vmem(s)
            else:
                A(s)

    def q_validate():
        C("---- validate this wave's head of q (both branches), share through LDS ----")
        g.wait_vm(st["q"])
        L("L_qcheck")
        if Q32:
            A(f"v_xor_b32 v{T}, s{s_tag16}, v{B}")
            for r in range(1, 4):
                A(f"v_bitop3_b32 v{T}, v{T}, v{B+r}, s{s_tag16} bitop3:0xf6")
            A(f"v_and_b32 v{T}, 0xffff, v{T}")
            A(f"v_cmp_ne_u32 vcc, 0, v{T}")
            A("s_cbranch_vccnz L_qretry")
            A(f"s_mov_b32 s{s_t0}, 0x07060302")
            A(f"v_perm_b32 v{B+4}, v{B+1}, v{B}, s{s_t0}")
            A(f"v_perm_b32 v{B+5}, v{B+3}, v{B+2}, s{s_t0}")
            A(f"ds_write_b64 v{a_qw}, {vr(B+4,2)}")
            A("s_waitcnt lgkmcnt(0)")
            A(f"ds_write_b32 v{a_fw}, v{v_one}")
            return
        for r in range(8):
            A(f"v_xor_b32 v{B+r}, s{s_tag8}, v{B+r}")
        A(f"v_or_b32 v{T}, v{B}, v{B+1}")
        for i in range(2, 8, 2):
            A(f"v_or3_b32 v{T}, v{T}, v{B+i}, v{B+i+1}")
        A(f"v_and_b32 v{T}, 0xff, v{T}")
        A(f"v_cmp_ne_u32 vcc, 0, v{T}")
        if "qstore" not in skip and "qload" not in skip:
            A("s_cbranch_vccnz L_qretry")
        for br in range(2):
            A(f"v_permlane32_swap_b32 v{B+4*br}, v{B+4*br+2}")
            A(f"v_permlane32_swap_b32 v{B+4*br+1}, v{B+4*br+3}")
        for br in range(2):
            A(f"v_add_f32 v{B+4*br}, v{B+4*br}, v{B+4*br+2}")
            A(f"v_add_f32 v{B+4*br+1}, v{B+4*br+1}, v{B+4*br+3}")
        for br in range(2):
            A(f"v_cvt_pk_bf16_f32 v{B+4*br}, v{B+4*br}, v{B+4*br+1}")
        for br in range(2):
            A(f"ds_write_b32 v{a_qw}, v{B+4*br} offset:{br*1024}")
        A("s_waitcnt lgkmcnt(0)")
        A(f"ds_write_b32 v{a_fw}, v{v_one}")

    def flag_wait(name, off):
        L(name)
        A(f"ds_read_b128 {vr(B,4)}, v{a_fr} offset:{off}")
        spin_guard()
        A("s_waitcnt lgkmcnt(0)")
        A(f"v_and_b32 v{B}, v{B}, v{B+1}")
        A(f"v_and_b32 v{B+2}, v{B+2}, v{B+3}")
        A(f"v_and_b32 v{B}, v{B}, v{B+2}")
        A(f"v_cmp_eq_u32 vcc, 0, v{B}")
        A(f"s_cbranch_vccnz {name}")

    def q_fetch():
        if "qflag" not in skip:
            flag_wait("L_qflag", 0)
        for j in range(4):
            A(f"ds_read_b128 {ar(a_qop+4*j,4)}, v{a_qr} offset:{j*64}")
        if NLO:
            A(f"s_mov_b32 s{s_brk}, 0")
            A(f"s_mov_b32 s{s_gk}, 0")
        stamp("qval")
        st["qready"] = True

    def q_fetch_b():
        for j in range(4):
            A(f"ds_read_b128 {ar(a_qop+16+4*j,4)}, v{a_qr} offset:{1024+j*64}")

    def lanes_h():
        A("s_mov_b32 exec_lo, 0x000f000f")
        A("s_mov_b32 exec_hi, 0x000f000f")

    def dump_ml(br):
        A(f"ds_write_b32 v{a_cml}, v{v_m} offset:{br*64}")
        A(f"ds_write_b32 v{a_cml}, a{a_l} offset:{128+br*64}")

    def dump_o(br):
        adr, off = (a_cwa, 0) if br == 0 else (a_cwb, FSLOT * 4096)
        for cb in range(8):
            A(f"ds_write_b128 v{adr}, {ar(a_o+4*cb,4)} offset:{off+cb*64}")

    def lam_math():
        C("lane (br, h): workgroup maximum, sum, log-sum-exp and the weights of the four waves")
        A("s_waitcnt lgkmcnt(0)")
        A(f"v_max3_f32 v{T}, v{B}, v{B+1}, v{B+2}")
        A(f"v_max_f32 v{T}, v{T}, v{B+3}")
        A(f"v_mul_f32 v{T+1}, s{s_c}, v{T}")
        for w in range(4):
            A(f"v_fma_f32 v{B+w}, v{B+w}, s{s_c}, -v{T+1}")
        for w in range(4):
            A(f"v_exp_f32 v{B+w}, v{B+w}")
        A(f"v_mul_f32 v{T+2}, v{B}, v{B+4}")
        for w in range(1, 4):
            A(f"v_fmac_f32 v{T+2}, v{B+w}, v{B+4+w}")
        A(f"v_rcp_f32 v{T}, v{T+2}")
        A(f"v_log_f32 v{T+2}, v{T+2}")
        A(f"v_mov_b32 v{T+3}, s{s_tag32}")
        A(f"v_add_f32 v{T+2}, v{T+1}, v{T+2}")
        A(f"v_mul_f32 v{T}, v{T}, v{v_gf}")
        for w in range(4):
            A(f"v_mul_f32 v{v_aw+w}, v{B+w}, v{T}")
        A(f"v_lshlrev_b32 v{T+4}, 3, v1")

    def lam_store():
        A(f"s_cmp_eq_u32 s{s_w}, 0")
        A("s_cbranch_scc0 L_nolam")
        A("s_mov_b64 exec, 0xff")
        g.vmem(f"buffer_store_dwordx2 {vr(T+2,2)}, v{T+4}, {srd(sWS)}, s{s_lpub} offen sc1", optional=True)
        A("s_mov_b64 exec, -1")
        L("L_nolam")

    def lamloads(track):
        s = f"buffer_load_dwordx2 {vr(B,2)}, v{a_lg}, {srd(sWS)}, s{s_lget} offen sc1"
        if track:
            st["lam"] = g.vmem(s)
        else:
            A(s)

    def lam_validate():
        g.wait_vm(st["lam"])
        L("L_lcheck")
        A(f"v_cmp_ne_u32 vcc, s{s_tag32}, v{B+1}")
        A("s_cbranch_vccnz L_lretry")

    def wgt_math():
        C("softmax over the 16 splits -> this workgroup's share; weights of the four waves into SGPRs")
        A(f"v_max_f32_dpp v{T}, v{B}, v{B} row_ror:1 row_mask:0xf bank_mask:0xf")
        for d in (2, 4, 8):
            A("s_nop 1")
            A(f"v_max_f32_dpp v{T}, v{T}, v{T} row_ror:{d} row_mask:0xf bank_mask:0xf")
        A(f"v_sub_f32 v{T}, v{B}, v{T}")
        A(f"v_exp_f32 v{T}, v{T}")
        A("s_nop 1")
        A(f"v_add_f32_dpp v{T+1}, v{T}, v{T} row_ror:1 row_mask:0xf bank_mask:0xf")
        for d in (2, 4, 8):
            A("s_nop 1")
            A(f"v_add_f32_dpp v{T+1}, v{T+1}, v{T+1} row_ror:{d} row_mask:0xf bank_mask:0xf")
        A(f"v_rcp_f32 v{T+1}, v{T+1}")
        A(f"s_and_b32 s{s_t0}, s2, 15")
        A(f"v_mul_f32 v{T}, v{T}, v{T+1}")
        A(f"s_add_u32 s{s_t1}, s{s_t0}, 16")
        A(f"v_readlane_b32 s{s_t2}, v{T}, s{s_t0}")
        A(f"v_readlane_b32 s{s_t3}, v{T}, s{s_t1}")
        A(f"v_bfe_i32 v{T+2}, v1, 2, 1")
        A(f"s_add_u32 s{s_t1}, s{s_w}, 4")
        A(f"v_mov_b32 v{T}, s{s_t2}")
        A(f"v_mov_b32 v{T+1}, s{s_t3}")
        A(f"v_bfi_b32 v{T}, v{T+2}, v{T+1}, v{T}")
        for w in range(4):
            A(f"v_mul_f32 v{v_aw+w}, v{v_aw+w}, v{T}")
        A("s_nop 0")
        for w in range(4):
            A(f"v_readlane_b32 s{s_fw+w}, v{v_aw+w}, s{s_w}")
            A(f"v_readlane_b32 s{s_fw+4+w}, v{v_aw+w}, s{s_t1}")
        A("s_nop 1")

    def comb_read(br):
        for w in range(4):
            if br == 0:
                A(f"ds_read_b128 {vr(B+4*w,4)}, v{a_cra} offset:{w*2048}")
            else:
                A(f"ds_read_b128 {vr(B+4*w,4)}, v{a_crb if w < 2 else a_crb2} offset:{(w&1)*RING + FSLOT*4096}")

    def comb_math(br, counted):
        for w in range(4):
            if counted:
                A(f"s_waitcnt lgkmcnt({3-w})")
            elif w == 0:
                A("s_waitcnt lgkmcnt(0)")
            for e in range(4):
                if w == 0:
                    A(f"v_mul_f32 v{B+e}, s{s_fw+4*br}, v{B+e}")
                else:
                    A(f"v_fmac_f32 v{B+e}, s{s_fw+4*br+w}, v{B+4*w+e}")
        for e in range(4):
            A(f"v_add_u32 v{B+e}, 0x10000, v{B+e}")
        o = 2 - 2 * br
        for k in range(2):
            A(f"v_perm_b32 v{v_pub+o+k}, v{B+2*k+1}, v{B+2*k}, s{s_perm}")
        for k in range(2):
            A(f"v_and_or_b32 v{v_pub+o+k}, v{v_pub+o+k}, s{s_m15}, v{v_pat+o+k}")

    def h2loads(off, flags="sc1", track=False):
        for j in range(4):
            s = f"buffer_load_dwordx4 {vr(B+4*j,4)}, v{a_l16}, {srd(sWS)}, s{off} offen offset:{j*1024} {flags}"
            g.vmem(s, optional=True) if track else A(s)

    def warm2():
        C("bring the lines of the final reduction into this die's cache")
        A(f"s_cmp_ge_u32 s{s_f}, 32")
        A("s_cbranch_scc1 L_nowarm")
        A("s_mov_b32 exec_lo, 0x01010101")
        A("s_mov_b32 exec_hi, 0x01010101")
        for j in range(4):
            g.vmem(f"buffer_load_dword v{v_tw}, v{a_l16}, {srd(sWS)}, s{s_h2get} offen offset:{j*1024} {WARM2 if isinstance(WARM2, str) else 'sc1'}", optional=True)
        A("s_mov_b64 exec, -1")
        L("L_nowarm")

    def code_pre():
        C("pull the rest of this straight-line code towards the cache: four lines per wave")
        A("s_getpc_b64 s[82:83]")
        L("L_cp")
        if CPM == 1:
            A(f"s_lshr_b32 s{s_u}, s2, 3")
            A(f"s_lshl2_add_u32 s{s_u}, s{s_u}, s{s_w}")
            A(f"s_lshl_b32 s{s_u}, s{s_u}, 9")
            A(f"v_lshl_add_u32 v{v_tw+1}, v{v_c}, 7, s{s_u}")
            A(f"v_min_u32 v{v_tw+1}, L_end-L_cp, v{v_tw+1}")
            A("s_mov_b64 exec, 15")
        else:
            A(f"s_lshl2_add_u32 s{s_u}, s2, s{s_w}")
            A(f"s_lshl_b32 s{s_u}, s{s_u}, 6")
            A(f"s_min_u32 s{s_u}, s{s_u}, L_end-L_cp")
            A(f"v_mov_b32 v{v_tw+1}, s{s_u}")
            A("s_mov_b64 exec, 1")
        g.vmem(f"global_load_dword v{v_tw}, v{v_tw+1}, s[82:83]")
        A("s_mov_b64 exec, -1")

    def touch(k):
        def f():
            C("touch the next buffer's pages")
            A("s_mov_b64 exec, 3")
            A(f"v_lshlrev_b32 v{v_tw+1}, 22, v1")
            if k < 4:
                A(f"s_andn2_b32 s{s_u}, s{s_kvb}, 0x400000")
                g.vmem(f"buffer_load_dword v{v_tw}, v{v_tw+1}, {srd(sKV[k])}, s{s_u} offen nt")
            else:
                A("s_mov_b64 exec, 1")
                g.vmem(f"buffer_load_dword v{v_tw}, v{v_tw+1}, {srd(sWO)}, s{s_wooff} offen nt")
            A("s_mov_b64 exec, -1")
        return f

    def ctl_load():
        st["ctl"] = g.vmem(f"buffer_load_dword v{v_ct}, v{a_pr}, {srd(sWS)}, 0 offen sc1", hint=True)
        pending.append((st["ctl"], ctl_use))
        st["ctl_t"] = cur_t() + (Z[st["p"]][2] if Z[st["p"]][0] == "kv" else 3) / 4.0
        if "geval" in st and st["p"] >= st["geval"][1] + GPICK:
            st["pick"] = st.pop("geval")[0]
            log.append((st["p"], "pick", st["pick"]))

    def ctl_use():
        g.wait_vm(st["ctl"])
        t0 = st["ctl_t"]
        tn = cur_t() + 1
        x, y = v_ct, v_ct + 1
        A(f"v_xor_b32 v{x}, s{s_tagp}, v{x}")
        A(f"v_lshrrev_b32 v{y}, 8, v{x}")
        pick = st.pop("pick", None)
        if pick is not None and GACT:
            A(f"v_readlane_b32 s{s_c0}, v{x}, {32 + pick}")
            A(f"s_cmp_lt_u32 s{s_c0}, 256")
            A(f"s_cselect_b32 s{s_c0}, s{s_c0}, 128")
            A(f"s_add_i32 s{s_gb}, s{s_c0}, {tn - 128}")
            if GBRK:
                A(f"s_sub_i32 s{s_gk}, {tn + 128 - round(GBRK)}, s{s_c0}")
        A(f"v_cmp_eq_u32 s[82:83], 0, v{y}")
        A(f"v_mov_b32 v{y}, {max(0, int(t0) - round(BIAS))}")
        A("s_nop 0")
        A(f"v_cndmask_b32 v{x}, v{y}, v{x}, s[82:83]")
        for d in (1, 2, 4, 8):
            A("s_nop 1")
            A(f"v_add_u32_dpp v{x}, v{x}, v{x} row_ror:{d} row_mask:0xf bank_mask:0xf")
        A("s_nop 0")
        A(f"v_readlane_b32 s{s_c0}, v{x}, 0")
        A(f"v_readlane_b32 s{s_c1}, v{x}, 16")
        A(f"s_add_u32 s{s_c0}, s{s_c0}, s{s_c1}")
        A(f"s_sub_i32 s{s_c0}, s{s_c0}, {round(32 * (t0 - BIAS))}")
        if GR:
            A(f"s_ashr_i32 s{s_dev}, s{s_c0}, 1")
            if GEST == 3 and int(t0) in GR:
                A(f"s_add_i32 s{s_own}, s{s_dev}, 128")
        if NLO:
            A(f"s_add_i32 s{s_c1}, s{s_c0}, {round(32 * BRK)}")
            A(f"s_mul_i32 s{s_c1}, s{s_c1}, {-round(BGAIN * 8)}")
            A(f"s_ashr_i32 s{s_c1}, s{s_c1}, 8")
            A(f"s_min_i32 s{s_c1}, s{s_c1}, {NMAXB}")
            A(f"s_add_i32 s{s_brk}, s{s_c1}, {tn}")
            if GBRK:
                A(f"s_max_i32 s{s_brk}, s{s_brk}, s{s_gk}")
        A(f"s_mul_i32 s{s_c0}, s{s_c0}, {round(GAIN * 8)}")
        A(f"s_ashr_i32 s{s_c0}, s{s_c0}, 8")
        A(f"s_min_i32 s{s_c0}, s{s_c0}, {NMAXB}")
        A(f"s_add_i32 s{s_boost}, s{s_c0}, {tn}")
        if GR and not G6:
            A(f"s_max_i32 s{s_boost}, s{s_boost}, s{s_gb}")

    def g_sample(r, k):
        def f():
            A(f"s_mov_b32 s{s_u}, {r * 8 * 4224}")
            st["gs"] = g.vmem(f"buffer_load_dword v{v_gs+k}, v{a_gs}, {srd(sWS)}, s{s_u} offen sc1", hint=True)
            if k == GWIN[0] + GWIN[1] - 1:
                pending.append((st["gs"], g_eval(r)))
        return f

    def g_publish(r):
        def f():
            assert st.get("rest")
            A(f"s_bitcmp1_b32 s{s_gpo}, 30")
            A(f"s_cbranch_scc1 L_gp{r}")
            A(f"s_add_i32 s{s_c0}, s{s_dev}, 128")
            A(f"s_max_i32 s{s_c0}, s{s_c0}, 0")
            A(f"s_min_i32 s{s_c0}, s{s_c0}, 255")
            A(f"s_mov_b32 s{s_own}, s{s_c0}")
            A(f"v_or_b32 v{v_tw}, s{s_c0}, v{v_pl}")
            A(f"s_add_u32 s{s_u}, s{s_gpo}, {r * 8 * 4224}")
            g.vmem(f"buffer_store_dword v{v_tw}, v{a_pw}, {srd(sWS)}, s{s_u} offen sc1", optional=True)
            L(f"L_gp{r}")
        return f

    def g_eval(r):
        def f():
            W = GWIN[0] + GWIN[1]
            g.wait_vm(st["gs"])
            A(f"s_bitcmp1_b32 s{s_gpo}, 30")
            A(f"s_cbranch_scc1 L_ge{r}")
            for k in range(W):
                A(f"v_xor_b32 v{v_gs+k}, s{s_tagp}, v{v_gs+k}")
            A(f"v_min_u32 v{v_tw}, 0x100, v{v_gs+W-1}")
            A(f"v_lshrrev_b32 v{v_tw+1}, 1, v{v_tw}")
            A(f"v_and_b32 v{v_tw+1}, 0x80, v{v_tw+1}")
            A(f"v_and_b32 v{v_tw}, 0xff, v{v_tw}")
            A(f"v_add_u32 v{v_tw}, v{v_tw}, v{v_tw+1}")
            for k in range(W):
                A(f"v_lshrrev_b32 v{v_gs+k}, 8, v{v_gs+k}")
                A(f"v_min_u32 v{v_gs+k}, 1, v{v_gs+k}")
                A(f"v_lshlrev_b32 v{v_gs+k}, {3 if GS2 else 4}, v{v_gs+k}")
                A(f"v_sub_u32 v{v_tw}, v{v_tw}, v{v_gs+k}")
            A(f"s_and_b32 s{s_c1}, s2, 7")
            if GEST >= 2:
                C("own group: exact position instead of the sampled arrival")
                A(f"s_sub_i32 s{s_c0}, s{s_own}, {(8 if GS2 else 16) * GWIN[0]}")
                A(f"s_mov_b32 m0, s{s_c1}")
                A(f"v_writelane_b32 v{v_tw}, s{s_c0}, m0")
                A(f"s_add_u32 m0, s{s_wb}, {slot_of(cur_t())*4096}")
            else:
                A(f"v_readlane_b32 s{s_c0}, v{v_tw}, s{s_c1}")
            for d in ("quad_perm:[1,0,3,2]", "quad_perm:[2,3,0,1]", "row_half_mirror"):
                A("s_nop 1")
                A(f"v_add_u32_dpp v{v_tw}, v{v_tw}, v{v_tw} {d} row_mask:0xf bank_mask:0xf")
            A("s_nop 0")
            A(f"v_readlane_b32 s{s_c1}, v{v_tw}, 0")
            A(f"s_lshl_b32 s{s_c0}, s{s_c0}, 3")
            A(f"s_sub_i32 s{s_c0}, s{s_c1}, s{s_c0}")
            A(f"s_add_i32 s{s_c0}, s{s_c0}, {round(128 * GOFF)}")
            A(f"s_mul_i32 s{s_c0}, s{s_c0}, {round(GK * 8)}")
            A(f"s_add_i32 s{s_c0}, s{s_c0}, 512")
            A(f"s_ashr_i32 s{s_c0}, s{s_c0}, 10")
            A(f"s_max_i32 s{s_c0}, s{s_c0}, {-GMAX - round(GBRK)}")
            A(f"s_min_i32 s{s_c0}, s{s_c0}, {GMAX}")
            A(f"s_add_i32 s{s_c0}, s{s_c0}, 128")
            A(f"v_or_b32 v{v_tw}, s{s_c0}, v{v_pl}")
            g.vmem(f"buffer_store_dword v{v_tw}, v{a_pw}, {srd(sWS)}, s{s_bc} offen offset:{4*r}", optional=True)
            L(f"L_ge{r}")
            st["geval"] = (r, st["p"])
        return f

    kf = lambda t: a_kf + 16 * (t % R)
    def KR(t):
        for j in range(4):
            A(f"ds_read_b128 {ar(kf(t)+4*j,4)}, v{v_rk+j} offset:{slot_of(t)*4096}")
    def LW(t):
        A("s_waitcnt lgkmcnt(0)")
    def QK(t):
        A("s_waitcnt lgkmcnt(0)")
        q = a_qop + 16 * (t // 64)
        for j in range(4):
            A(f"v_mfma_f32_16x16x32_bf16 {vr(v_s,4)}, {ar(kf(t)+4*j,4)}, {ar(q+4*j,4)}, " + ("0" if j == 0 else vr(v_s, 4)))
    def SC(t):
        k = t % 32
        A("s_nop 7")
        for r in range(4):
            A(f"v_cvt_pk_bf16_f32 v{v_s+r}, 0, v{v_s+r}")
        for r in range(4):
            A(f"v_mul_f32 v{v_s+r}, " + (f"{f2u(128 ** -0.5):#x}" if UNT else f"s{s_rs}") + f", v{v_s+r}")
        if k == 0:
            A(f"v_max_f32 v{v_mx}, v{v_s}, v{v_s+1}")
        else:
            A(f"v_max3_f32 v{v_mx}, v{v_mx}, v{v_s}, v{v_s+1}")
        A(f"v_cvt_pk_bf16_f32 v{v_sc+2*k}, v{v_s}, v{v_s+1}")
        A(f"v_max3_f32 v{v_mx}, v{v_mx}, v{v_s+2}, v{v_s+3}")
        A(f"v_cvt_pk_bf16_f32 v{v_sc+2*k+1}, v{v_s+2}, v{v_s+3}")
    def MX(t):
        C("true maximum of this wave's scores per head")
        assert t < 64 or st["dumpA"]
        A(f"v_mov_b32 v{v_mt}, v{v_mx}")
        A("s_nop 1")
        A(f"v_permlane32_swap_b32 v{v_mx}, v{v_mt}")
        A(f"v_max_f32 v{v_mx}, v{v_mx}, v{v_mt}")
        A(f"v_mov_b32 v{v_mt}, v{v_mx}")
        A("s_nop 1")
        A(f"v_permlane16_swap_b32 v{v_mx}, v{v_mt}")
        A(f"v_max_f32 v{v_mx}, v{v_mx}, v{v_mt}")
        A(f"v_cvt_pk_bf16_f32 v{v_m}, 0, v{v_mx}")
        A(f"v_mul_f32 v{v_nmc}, {f2u(-LOG2E):#x}, v{v_m}")
        stamp("endKA" if t < 64 else "endKB")
    def PP(t):
        k = t % 32
        A(f"v_lshlrev_b32 v{v_s}, 16, v{v_sc+2*k}")
        A(f"v_and_b32 v{v_s+1}, 0xffff0000, v{v_sc+2*k}")
        A(f"v_lshlrev_b32 v{v_s+2}, 16, v{v_sc+2*k+1}")
        A(f"v_and_b32 v{v_s+3}, 0xffff0000, v{v_sc+2*k+1}")
        for r in range(4):
            A(f"v_fma_f32 v{v_s+r}, v{v_s+r}, s{s_c}, v{v_nmc}")
        for r in range(4):
            A(f"v_exp_f32 v{v_s+r}, v{v_s+r}")
        A(f"v_cvt_pk_bf16_f32 v{v_sc+2*k}, v{v_s}, v{v_s+1}")
        A(f"v_cvt_pk_bf16_f32 v{v_sc+2*k+1}, v{v_s+2}, v{v_s+3}")
        if k & 1:
            A("s_nop 1")
            A(f"v_mfma_f32_16x16x32_bf16 {ar(a_l,4)}, {vr(v_one,4)}, {vr(v_sc+2*k-2,4)}, " + ("0" if k == 1 else ar(a_l, 4)))
    def VR(t):
        assert st["rest"]
        for cb in range(8):
            A(f"ds_read_b64_tr_b16 {ar(a_vf+4*cb+2*(t&1),2)}, v{v_rv+cb} offset:{slot_of(t)*4096}")
    def pv(t, cb):
        k = t % 32 - 1
        assert ("PP", t) in done
        A(f"v_mfma_f32_16x16x32_bf16 {ar(a_o+4*cb,4)}, {ar(a_vf+4*cb,4)}, {vr(v_sc+2*k,4)}, " + ("0" if k == 0 else ar(a_o + 4 * cb, 4)))
    def PVa(t):
        A("s_waitcnt lgkmcnt(0)")
        for cb in range(4):
            pv(t, cb)
    def PVb(t):
        for cb in range(4, 8):
            pv(t, cb)
        if t == 63:
            stamp("endVA")

    main = []
    for t in range(R):
        main += [(KR, t, pos_of(t, 3), False), (LW, t, None, False)]
    for t in range(NT):
        if isK(t):
            if t >= R:
                main.append((KR, t, pos_of(t, 3), True))
            main += [(QK, t, None, True), (SC, t, None, True)]
            if t % 32 == 31:
                main.append((MX, t, None, True))
        elif t % 2 == 0:
            main.append((VR, t, pos_of(t, 3), True))
        else:
            main += [(VR, t, pos_of(t, 3), True), (PVa, t, None, True), (PVb, t, None, True)]
    is_in = lambda pl: pl in ids and g.done(ids[pl])
    done = set()
    ppq = [t for t in range(NT) if not isK(t)]

    mark = lambda k: (lambda: st.__setitem__(k, True))
    side = []
    side.append((P0, gate_loads, False))
    for f in g.split(setup_head, CH):
        side.append((P0, f, False))
    side.append((P0, mark("setup"), True))
    side.append((lambda p: g.done(st["gate"]), mark("gate_in"), True))
    for f in g.split(setup_gate, CH):
        side.append((P0, f, False))
    side.append((PQ, lambda: qloads(True), True))
    side.append((lambda p: g.done(st["q"]), lambda: (q_validate(), st.__setitem__("pV", st["p"])), True))
    side.append((lambda p: p >= st["pV"] + QLAG, q_fetch, True))
    side.append((0, q_fetch_b, False))
    for f in g.split(setup_rest, CH):
        side.append((0, f, False))
    side.append((0, mark("rest"), True))
    def dumpA():
        A("s_nop 5")
        lanes_h()
        dump_ml(0)
        dump_o(0)
        A("s_mov_b64 exec, -1")
        st["dumpA"] = True
    side.append((lambda p: ("PVb", 63) in done, dumpA, False))
    def dumpB():
        A("s_nop 5")
        lanes_h()
        dump_ml(1)
        A("s_mov_b64 exec, -1")
        A("s_waitcnt lgkmcnt(0)")
        A(f"ds_write_b32 v{a_fw}, v{v_one} offset:16")
        st["pB"] = st["p"]
    side.append((lambda p: ("PP", NT - 1) in done, dumpB, False))
    def lam_read():
        flag_wait("L_lflag", 16)
        A(f"ds_read_b128 {vr(B,4)}, v{a_mlr}")
        A(f"ds_read_b128 {vr(B+4,4)}, v{a_mlr} offset:128")
    side.append((lambda p: p >= st["pB"] + LLAG, lam_read, False))
    for f in g.split(lam_math, CH):
        side.append((0, f, False))
    side.append((0, lam_store, True))
    side.append((PWG, lambda: lamloads(True), True))
    side.append((lambda p: g.done(st["lam"]), lam_validate, True))
    for f in g.split(wgt_math, 24):
        side.append((0, f, False))
    side.append((0, lambda: comb_read(0), True))
    side.append((0, lambda: comb_math(0, False), False))

    extra = []
    for t in range(C0 - 2, NT - CEND, CK):
        extra.append((pos_of(t, 2), ctl_load))
    for r, tr in enumerate(GR):
        assert GWIN[0] + GWIN[1] <= 12
        for k in range(GWIN[0] + GWIN[1]):
            if GS2:
                extra.append((pos_of(tr, 3) + 4 + 2 * (k - GWIN[0]), g_sample(r, k)))
            else:
                extra.append((pos_of(tr - GWIN[0] + k + 1, 3), g_sample(r, k)))
        extra.append((pos_of(tr, 2), g_publish(r)))
    if CP:
        extra.append((CP, code_pre))
    if TW:
        for k in TWK:
            extra.append((OFF + 128 * k - TW, touch(k)))
    if WARM2 and W2P >= 0:
        extra.append((pos_of(NT - 1, 3) - W2P, warm2))
    extra.sort(key=lambda x: x[0])

    mi = si = ci = 0
    for p in range(P0 + PX, len(Z) - WOL - WOA):
        z = Z[p]
        st["p"] = p
        if z[0] == "kv" and z[2] == 0 and z[1] >= NSLOT:
            prev = z[1] - NSLOT
            assert (("QK", prev) in done or ("LW", prev) in done) if isK(prev) else ("PVa", prev | 1) in done, (p, z)
        issue(p)
        while ci < len(extra) and extra[ci][0] <= p:
            extra[ci][1]()
            ci += 1
        for x in [x for x in pending if g.done(x[0])]:
            pending.remove(x)
            x[1]()
        used = 0
        if ppq and ("MX", ppq[0] // 32 * 32 - 1) in done:
            t = ppq.pop(0)
            PP(t)
            done.add(("PP", t)); log.append((p, "PP", t))
        while mi < len(main):
            f, t, ld, nq = main[mi]
            if (ld is not None and not is_in(ld)) or (nq and not st.get("qready")) or (f is PVa and ("PP", t) not in done):
                break
            behind = t + 1 < NT and is_in(pos_of(t + 1, 3)) and nq
            if used >= (CATCH if behind else 1):
                break
            f(t)
            done.add((f.__name__, t)); log.append((p, f.__name__, t))
            used += f is not LW
            mi += 1
        while si < len(side) and (used == 0 or side[si][2]):
            e, f, forced = side[si]
            if not (e(p) if callable(e) else e <= p):
                break
            f()
            log.append((p, "side", si))
            si += 1
            if not forced:
                used += 1
    assert si == len(side) and not ppq and ci == len(extra) and not pending, (si, len(side))
    C("---- drain ----")
    while mi < len(main):
        f, t, ld, nq = main[mi]
        if ld is not None:
            g.wait_vm(ids[ld])
        if t == NT - 1 and f is PVa:
            for p in range(len(Z) - WOL - WOA, len(Z) - WOA):
                issue(p, throttle=False)
        if t == NT - 1 and f is PVa:
            for cb in range(8):
                A(f"s_waitcnt lgkmcnt({7-cb})")
                pv(t, cb)
        elif not (t == NT - 1 and f is PVb):
            f(t)
        mi += 1
    stamp("drained")

    C("---- combine the four waves, publish both branches ----")
    lanes_h()
    dump_o(1)
    A("s_mov_b32 exec_lo, -1")
    A("s_mov_b32 exec_hi, 0")
    A("s_waitcnt lgkmcnt(0)")
    A("s_barrier")
    stamp("bar")
    comb_read(1)
    if GATE:
        C("report the end of this workgroup's stream and look at the group's")
        A(f"s_cmp_eq_u32 s{s_w}, 0")
        A(f"s_cselect_b32 s{s_u}, s{s_pro}, {WS_SIZE:#x}")
        A(f"v_or_b32 v{v_pd}, 0x80, v{v_pl}")
        A(f"buffer_load_dword v{v_ct}, v{a_pr}, {srd(sWS)}, 0 offen sc1")
        A(f"buffer_store_dword v{v_pd}, v{a_pw}, {srd(sWS)}, s{s_u} offen")
    comb_math(1, True)
    A(f"buffer_store_dwordx4 {vr(v_pub,4)}, v{a_l16}, {srd(sWS)}, s{s_h1pub} offen sc1")
    A("s_mov_b64 exec, -1")
    stamp("pub1")
    if GATE:
        C("the weights are not urgent while much of the group still streams values: let those go first (bounded)")
        A(f"s_mov_b32 s{s_cnt}, {GATE[1]}")
        A("s_waitcnt vmcnt(2)")
        L("L_gate")
        A(f"v_cmp_eq_u32 vcc, v{v_pd}, v{v_ct}")
        A(f"s_bcnt1_i32_b32 s{s_c0}, vcc_lo")
        A(f"s_cmp_ge_u32 s{s_c0}, {GATE[0]}")
        A("s_cbranch_scc1 L_gate_ok")
        A(f"s_sub_u32 s{s_cnt}, s{s_cnt}, 1")
        A("s_cbranch_scc1 L_gate_ok")
        A(f"buffer_load_dword v{v_ct}, v{a_pr}, {srd(sWS)}, 0 offen sc1")
        A("s_waitcnt vmcnt(0)")
        A("s_branch L_gate")
        L("L_gate_ok")
    if WARM2 and W2P < 0:
        warm2()
    for p in range(len(Z) - WOA, len(Z)):
        issue(p, throttle=False)
    C("the output-projection weights were the last loads of the stream")
    A(f"s_waitcnt vmcnt({WOK})")
    def h1loads():
        for i in range(4):
            A(f"buffer_load_dwordx4 {vr(B+4*i,4)}, v{a_g1}, {srd(sWS)}, s{s_h1get} offen offset:{i*512} sc1")
    h1loads()
    if WOK:
        A("s_waitcnt vmcnt(4)")
    stamp("wo")
    A("s_barrier")
    for k in range(8):
        for hf in range(2):
            A(f"ds_read_b64_tr_b16 {ar(a_wop+k*4+hf*2,2)}, v{a_wor} offset:{k*4096+hf*2048}")
    A("s_branch L_h1wait")
    C("---- sum the 16 partials of (dims half, batch) with a selector product ----")
    L("L_h1poll")
    if SL1:
        A(f"s_sleep {SL1}")
    h1loads()
    spin_guard()
    L("L_h1wait")
    for i in range(4):
        A(f"s_waitcnt vmcnt({3-i})")
        for e in range(4):
            A(f"v_xor_b32 v{B+4*i+e}, v{v_pat+e}, v{B+4*i+e}")
        if i == 0:
            A(f"v_or_b32 v{T}, v{B}, v{B+1}")
        else:
            A(f"v_or3_b32 v{T}, v{T}, v{B+4*i}, v{B+4*i+1}")
        A(f"v_or3_b32 v{T}, v{T}, v{B+4*i+2}, v{B+4*i+3}")
        A(f"v_mfma_f32_16x16x32_bf16 {vr(v_d,4)}, {vr(v_sel,4)}, {vr(B+4*i,4)}, " + ("0" if i == 0 else vr(v_d, 4)))
    A(f"v_and_b32 v{T}, 0x00010001, v{T}")
    A(f"v_cmp_ne_u32 vcc, 0, v{T}")
    A("s_cbranch_vccnz L_h1poll")
    stamp("h1ok")
    A("s_mov_b32 exec_hi, 0")
    A("s_nop 3")
    A(f"v_cvt_pk_bf16_f32 v{T}, v{v_d}, v{v_d+1}")
    A(f"v_cvt_pk_bf16_f32 v{T+1}, v{v_d+2}, v{v_d+3}")
    A(f"ds_write_b64 v{a_ow}, {vr(T,2)}")
    A("s_mov_b64 exec, -1")
    A("s_waitcnt lgkmcnt(0)")
    A("s_barrier")
    stamp("bar2")
    OPD = v_sc
    for k in range(8):
        A(f"ds_read_b128 {vr(OPD+4*k,4)}, v{a_or} offset:{(k>>2)*512+(k&3)*64}")
    A(f"v_mov_b32 v{T+2}, s{s_tag12}")
    A(f"s_add_u32 s{s_t2}, s{s_h2pub}, {WS_P2-WS_P1}")
    for k in range(8):
        A(f"s_waitcnt lgkmcnt({7-k})")
        A(f"v_mfma_f32_16x16x32_bf16 {vr(v_d+4,4)}, {ar(a_wop+4*k,4)}, {vr(OPD+4*k,4)}, " + ("0" if k == 0 else vr(v_d + 4, 4)))
    A("s_mov_b32 exec_lo, 0x00030003")
    A("s_mov_b32 exec_hi, 0x00030003")
    A(f"s_cmp_ge_u32 s{s_f}, 32")
    A("s_nop 4")
    for r in range(4):
        A(f"v_add_u32 v{v_d+4+r}, 0x800, v{v_d+4+r}")
    for r in range(4):
        A(f"v_and_or_b32 v{v_d+4+r}, v{v_d+4+r}, s{s_m12}, v{T+2}")
    C("once for a reader behind the same L2, once written through for any other placement")
    A(f"buffer_store_dwordx4 {vr(v_d+4,4)}, v{a_p2}, {srd(sWS)}, s{s_h2pub} offen {P1SC}")
    stamp("pub2")
    A("s_cbranch_scc0 L_final")
    if not NOP2:
        A(f"buffer_store_dwordx4 {vr(v_d+4,4)}, v{a_p2}, {srd(sWS)}, s{s_t2} offen sc1")
    A("s_branch L_fin" if diag or pad else "s_endpgm")
    L("L_final")
    A("s_mov_b64 exec, -1")

    C("---- final reduction over the 32 heads ----")
    F = B
    A(f"s_lshl_b32 s{s_t0}, s{s_f}, 5")
    A(f"s_mov_b32 s{s_cnt}, {P2AFTER}")
    L("L_h2poll")
    if SL2:
        A(f"s_sleep {SL2}")
    h2loads(s_h2get)
    spin_guard()
    A(f"s_sub_u32 s{s_cnt}, s{s_cnt}, 1")
    A("s_cbranch_scc1 L_h2switch")
    L("L_h2wait")
    for j in range(4):
        A(f"s_waitcnt vmcnt({3-j})")
        for e in range(4):
            A(f"v_xor_b32 v{F+4*j+e}, s{s_tag12}, v{F+4*j+e}")
        if j == 0:
            A(f"v_or_b32 v{T}, v{F}, v{F+1}")
            A(f"v_or3_b32 v{T}, v{T}, v{F+2}, v{F+3}")
        else:
            A(f"v_or3_b32 v{T}, v{T}, v{F+4*j}, v{F+4*j+1}")
            A(f"v_or3_b32 v{T}, v{T}, v{F+4*j+2}, v{F+4*j+3}")
            for e in range(4):
                A(f"v_add_f32 v{F+e}, v{F+e}, v{F+4*j+e}")
    A(f"v_and_b32 v{T}, 0xfff, v{T}")
    A(f"v_cmp_ne_u32 vcc, 0, v{T}")
    A("s_cbranch_vccnz L_h2poll")
    A(f"v_permlane32_swap_b32 v{F}, v{F+1}")
    A(f"v_permlane32_swap_b32 v{F+2}, v{F+3}")
    A(f"v_add_f32 v{F}, v{F}, v{F+1}")
    A(f"v_add_f32 v{F+2}, v{F+2}, v{F+3}")
    A("s_nop 1")
    A(f"v_permlane16_swap_b32 v{F}, v{F+2}")
    A(f"v_add_f32 v{F}, v{F}, v{F+2}")
    A("s_nop 1")
    A(f"v_add_f32_dpp v{F}, v{F}, v{F} row_ror:8 row_mask:0xf bank_mask:0xf")
    A(f"v_cvt_pk_bf16_f32 v{F}, v{F}, v{F}")
    A("s_mov_b32 exec_lo, 0x00ff00ff")
    A("s_mov_b32 exec_hi, 0x00ff00ff")
    A(f"buffer_store_short v{F}, v{a_out}, {srd(sO)}, s{s_t0} offen {OSC}")
    A(f"s_cmp_lg_u32 s{s_f}, 0")
    A("s_cbranch_scc1 L_fin")
    C("every workgroup has published, hence read, the epoch word: advance it")
    A("s_mov_b64 exec, 1")
    A(f"v_mov_b32 v{T}, s{s_tag32}")
    A(f"v_mov_b32 v{T+1}, 0")
    A(f"buffer_store_dword v{T}, v{T+1}, {srd(sWS)}, 0 offen offset:{WS_E} sc1")
    L("L_fin")
    stamp("end")
    if diag:
        A("s_mov_b64 exec, 1")
        A("s_waitcnt lgkmcnt(0)")
        if diag == 2:
            A("s_sleep 100")
        A(f"s_lshl2_add_u32 s{s_t0}, s2, s{s_w}")
        A(f"s_lshl_b32 s{s_t0}, s{s_t0}, 5")
        A(f"s_add_u32 s{s_t0}, s{s_t0}, {WS_DIAG}")
        for i in range(8):
            A(f"v_mov_b32 v{v_sc+40+i}, s{s_st+2*i}")
        A(f"v_mov_b32 v{T+3}, 0")
        A(f"buffer_store_dwordx4 {vr(v_sc+40,4)}, v{T+3}, {srd(sWS)}, s{s_t0} offen")
        A(f"buffer_store_dwordx4 {vr(v_sc+44,4)}, v{T+3}, {srd(sWS)}, s{s_t0} offen offset:16")
    L("L_end")
    A("s_endpgm")

    L("L_h2switch")
    C("not complete behind this L2: add this wave's own line to the written-through copy and read that from now on")
    A("s_waitcnt vmcnt(0)")
    A("s_mov_b32 exec_lo, 0x00030003")
    A("s_mov_b32 exec_hi, 0x00030003")
    A(f"buffer_store_dwordx4 {vr(v_d+4,4)}, v{a_p2}, {srd(sWS)}, s{s_t2} offen sc1")
    A("s_mov_b64 exec, -1")
    A(f"s_add_u32 s{s_h2get}, s{s_h2get}, {WS_P2-WS_P1}")
    A("s_branch L_h2poll")
    for label, back, loads in (("L_lretry", "L_lcheck", lambda: lamloads(False)), ("L_qretry", "L_qcheck", lambda: qloads(False))):
        L(label)
        spin_guard()
        loads()
        A("s_waitcnt vmcnt(0)")
        A(f"s_branch {back}")

    acc = (NV + 3) // 4 * 4
    g.o.append('.section .rodata,"a"')
    g.o.append(".p2align 6")
    g.o.append(f".amdhsa_kernel {KNAME}")
    g.o.append(f"  .amdhsa_next_free_vgpr {acc+NA}")
    g.o.append("  .amdhsa_next_free_sgpr 102")
    g.o.append(f"  .amdhsa_accum_offset {acc}")
    g.o.append("  .amdhsa_group_segment_fixed_size 0")
    g.o.append("  .amdhsa_kernarg_size 112")
    g.o.append("  .amdhsa_user_sgpr_count 2")
    g.o.append("  .amdhsa_user_sgpr_kernarg_segment_ptr 1")
    g.o.append("  .amdhsa_system_sgpr_workgroup_id_x 1")
    g.o.append("  .amdhsa_float_denorm_mode_32 3")
    g.o.append(".end_amdhsa_kernel")
    gen.log = log
    return "\n".join(g.o) + "\n"


if __name__ == "__main__":
    kw = {}
    for a in sys.argv[2:]:
        k, v = a.split("=")
        kw[k] = eval(v)
    src = gen(**kw)
    open(sys.argv[1], "w").write(src)
```

```python
import sys, math, struct

KNAME = "gated_mix__gqa_block_cached__gqa_block_cached__decode_kernel"

WS_E = 0x0
WS_QB = 0x1000
WS_LB = 0x30000
WS_P1 = 0x40000
WS_P2 = 0x60000
WS_PR = 0x80000
WS_GP = 0x90000
WS_H1 = 0x100000
WS_DIAG = 0x200000
WS_SIZE = 0x400000
EPOCH_INC = 0x9E3779B1

NSLOT = 7
RING = NSLOT * 4096
STG = 4 * RING
SCR = STG + 32768
QP, QX, OPA, ML, OX, FL = 0, 2048, 4096, 12288, 12544, 13568
LDS_BYTES = 163840

PATS = {
    "P1": ([[14], [15], [16], [17], [18]], [[12], [13]], [[19], [20], [21], [22]]),
    "T2": ([[14], [17], [18], [19], [20]], [[12], [13]], [[15], [16], [21], [22]]),
    "U4": ([[14], [22], [17], [18], [19]], [[12], [13]], [[15], [16], [21], [20]]),
    "U5": ([[14], [22], [17], [18], [19]], [[12, 17], [13, 18]], [[15], [16], [21, 18], [20]]),
}


DOC = """
One launch, 256 workgroups (one per CU) of 4 waves, straight-line code written by a generator script.
Workgroup = (batch b, kv head, one of 16 key splits); it serves both branches, 512 keys per wave and branch.
Stream (LDS-DMA, nt, a handful of 1-KiB loads in flight per wave): wq slice, K_A, V_A, K_B, V_B, wo slice.
  The whole chip reads one cache at a time; K tiles become bf16 scores kept in registers, the exact
  maximum of a wave's scores is taken after its K phase, V tiles are accumulated with MFMA.
Hand-offs between workgroups go through d_ws. Every dword carries tag bits of this launch's epoch
(word 0 of d_ws plus an odd constant; the last stage advances the word), so readers tell fresh data
from whatever the workspace held before, and poll (bounded) until all of it is fresh:
  q      : each workgroup projects 32 columns for both batches; write-through stores
  lambda : log-sum-exp of every split, exchanged during V_B, gives each split its softmax share
  o      : weighted partial outputs of both branches; write-through stores
  out    : projected partials per head, stored twice: plainly (seen quickly by a reader behind the same L2)
           and written through (read instead when the first copy does not complete, so any placement works)
Tile indices are also reported through d_ws; a wave that lags its neighbours keeps one or two more
loads in flight for a while. Those words only steer the load depth, never a result.
"""


def f2u(x):
    return struct.unpack("<I", struct.pack("<f", x))[0]


class Gen:
    def __init__(self):
        self.o = []
        self.fl = {"D": [], "L": [], "H": []}
        self.kind = {}
        self.nid = 0

    def A(self, s):
        self.o.append("  " + s)

    def L(self, s):
        self.o.append(s + ":")

    def C(self, s):
        self.o.append("  ; " + s)

    def vmem(self, s, optional=False, hint=False):
        self.A(s)
        self.nid += 1
        if not optional:
            k = "H" if hint or "store" in s else "D" if s.endswith(" lds") else "L"
            self.kind[self.nid] = k
            for level in {"D": "DLH", "L": "LH", "H": "H"}[k]:
                self.fl[level].append(self.nid)
        return self.nid

    def done(self, op):
        return op not in self.fl[self.kind[op]]

    def after(self, op, level="H"):
        return len(self.fl[level]) - 1 - self.fl[level].index(op)

    def _wait(self, k):
        assert k <= 63
        self.A(f"s_waitcnt vmcnt({k})")
        for level, l in self.fl.items():
            if k < len(l):
                self.fl[level] = l[len(l) - k:] if k else []

    def throttle(self, op):
        if op not in self.fl["H"]:
            return False
        self._wait(self.after(op))
        return True

    def wait_vm(self, op):
        if self.done(op):
            return False
        self._wait(self.after(op, self.kind[op]))
        return True

    def split(self, fn, n):
        keep, self.o = self.o, []
        nvm = self.nid
        fn()
        assert self.nid == nvm
        body, self.o = self.o, keep
        out, cur, k = [], [], 0
        for line in body:
            assert not line.endswith(":") and "cbranch" not in line and "s_cmp" not in line and "vcc" not in line \
                and "exec" not in line and "cselect" not in line, line
            cur.append(line)
            if not line.strip().startswith(";"):
                k += 1
            if k == n:
                out.append(cur); cur, k = [], 0
        if cur:
            out.append(cur)
        return [(lambda c=c: self.o.extend(c)) for c in out]


def gen(N=5, Npat=None, N0=8, NH=5, PH=64, NB=None, BL=16, BZ=(1, 2, 3, 4), NWO=10, R=5, PQ=36, QLAG=3, LLAG=8, PWG=484, CH=16,
        PAT="U4", XM=None, NHI=7, CK=4, C0=16, GAIN=3.0, BIAS=2.3, NMAXB=8, PT=4,
        SL1=0, SL2=0, P2AFTER=20, WARM2=True, TW=False, FWAVE=0, P1SC="", GR=(21, 41, 63, 83, 101), GWIN=(4, 6), GK=12.0, GOFF=0.4, GMAX=22,
        WOL=2, WOA=6, PX=2, NLO=None, BRK=1.0, BGAIN=3.0, GBRK=0.0, CEND=5, WOK=4, W2P=-1, CP=20, UNT=0, UNE=False, GEST=1, GACT=True, GS2=False, GPICK=8, WOH=0, WOT=32, XP=9, CP0=24, NOP2=False, skip=(), CATCH=3, Q32=True, G6=True, END=None, FD=True, CPM=1, GATE=None, T0=0, TWK=(1, 2, 3, 4), OSC='',
        diag=False, SPIN=1 << 21, pad=None, smap="head"):
    g = Gen()
    A, L, C = g.A, g.L, g.C
    LOG2E = math.log2(math.e)
    Npat = Npat or [N]
    P0, OFF = 16, 8
    def Nof(p):
        if p < P0:
            return N0
        if p < PH:
            return NH
        if p >= OFF + 512 + WOH:
            return NWO
        if NB:
            for k in BZ:
                if OFF + 128 * k - BL <= p < OFF + 128 * k:
                    return NB
        if G6 and p >= OFF + 4 * C0:
            return N + 1
        return Npat[p % len(Npat)]
    PC0 = OFF + 4 * C0
    def Nguar(p):
        if END and p >= OFF + WOH + 4 * END[0]:
            return max(Nof(p), END[1])
        return max(Nof(p), NHI) if p >= PC0 else Nof(p)

    sKV = [20, 24, 28, 32]
    sWQ, sWO, sWS, sX, sG, sO = 36, 40, 44, 48, 52, 56
    srd = lambda b: f"s[{b}:{b+3}]"
    (s_w, s_b, s_hkv, s_j, s_kvb, s_kvoff, s_wb, s_stg, s_tag32, s_tag8, s_tag12, s_c, s_rs, s_t0, s_t1, s_t2, s_t3,
     s_wqoff, s_wooff, s_spin, s_colb, s_m12) = range(60, 82)
    s_qoff, s_perm, s_h1pub, s_h1get, s_h2pub, s_h2get, s_lpub, s_lget, s_m15, s_f, s_cnt = range(3, 14)
    s_boost, s_pph, s_pro, s_tagp, s_u, s_xm = range(14, 20)
    s_brk, s_bm, s_gk = s_colb, s_wqoff, s_qoff
    s_own = s_hkv
    s_tag16 = s_m12
    s_kvb2 = s_rs if UNT else None
    s_c0, s_c1 = 100, 101
    s_gb, s_dev, s_gpo, s_bc = 36, 37, 38, 39
    s_fw = 48
    s_st = 84

    v_g, v_n, v_c, v_r = 2, 3, 4, 5
    a_pw, a_pr, v_pd, v_pl = 6, 7, 8, 9
    v_dv, v_rk, v_rv = 10, 12, 16
    v_mx, v_m, v_nmc, v_gf, v_mt = 24, 25, 26, 27, 28
    (a_wo, a_q, a_qw, a_qr, a_fw, a_fr, a_cwa, a_cwb, a_cml, a_cra, a_crb, a_crb2, a_mlr, a_l16, a_g1, a_ow, a_or,
     a_p2, a_lg, a_out, a_wor) = range(29, 50)
    v_ct = 50
    v_s = 52
    v_one = 56
    v_d = 60
    v_sc = 68
    T = 132
    B = 140
    v_pub = 164
    v_pat = 168
    v_sel = 172
    v_aw = 176
    v_tw = 180
    a_gs = 182
    v_gs = 184
    NV = 196
    a_qop = 0
    a_vf = 32
    a_wop = 64
    a_o = 96
    a_l = 128
    a_kf = 132
    NA = a_kf + 16 * R
    assert NA <= 256
    vr = lambda b, n: f"v[{b}:{b+n-1}]"
    ar = lambda b, n: f"a[{b}:{b+n-1}]"

    SMAPS = {"head": ["start", "qpub", "qval", "endKA", "endVA", "endKB", "drained", "end"],
             "tail": ["start", "drained", "bar", "pub1", "bar2", "h1ok", "pub2", "end"],
             "rounds": ["start"] + [f"t{t}" for t in list(GR)[:5]] + ["drained", "end"],
             "early": ["start", "p0", "p8", "p15", "qpub", "p24", "p40", "end"],
             "early2": ["start", "p20", "p28", "p36", "p48", "p64", "p96", "end"],
             "early3": ["start", "p0", "p4", "a", "b", "c", "p8", "end"],
             "late": ["start", "t100", "t110", "t116", "t121", "t125", "drained", "end"],
             "tail3": ["start", "vlast", "pub1", "wo", "h1ok", "bar2", "pub2", "end"],
             "tail2": ["start", "drained", "pub1", "wo", "h1ok", "bar2", "pub2", "end"]}
    def stamp(name):
        if name not in SMAPS[smap]:
            return
        i = SMAPS[smap].index(name)
        if diag or (pad and i == 0):
            A(f"s_memrealtime s[{s_st+2*i}:{s_st+2*i+1}]")
        if pad and pad[0] == i:
            L("L_pad")
            A("s_memrealtime s[82:83]")
            A("s_waitcnt lgkmcnt(0)")
            A(f"s_sub_u32 s82, s82, s{s_st}")
            A(f"s_cmp_lt_u32 s82, {int(pad[1]*100)}")
            A("s_cbranch_scc1 L_pad")

    hdr = open("gated_mix__gqa_block_cached__gqa_block_cached__decode.s.ref").read().split("\n")
    for line in hdr:
        if line.startswith(";") and "@launch" not in line:
            g.o.append(line)
        elif not line.startswith(";"):
            break
    g.o.append(f"; @launch grid=(256,1,1) block=(256,1,1) lds={LDS_BYTES}")
    g.o.append('.amdgcn_target "amdgcn-amd-amdhsa--gfx950"')
    for line in DOC.strip("\n").split("\n"):
        g.o.append(("; " + line).rstrip())
    g.o.append(".text")
    g.o.append(f".globl {KNAME}")
    g.o.append(".p2align 8")
    g.o.append(f".type {KNAME},@function")
    L(KNAME)
    C("workgroup = (b, hkv, one of 16 key splits) for both branches; extra workgroups leave at once")
    A("s_cmp_ge_u32 s2, 256")
    A("s_cbranch_scc0 L_go")
    A("s_endpgm")
    L("L_go")
    A(f"s_lshr_b32 s{s_b}, s2, 7")
    A(f"s_mul_i32 s3, s{s_b}, 40")
    A("s_add_u32 s16, s0, s3")
    A("s_addc_u32 s17, s1, 0")
    A("s_load_dwordx2 s[14:15], s[16:17], 24")
    A("s_load_dwordx4 s[4:7], s[0:1], 8")
    A("s_load_dwordx2 s[12:13], s[0:1], 0")
    A("s_load_dwordx2 s[18:19], s[0:1], 104")
    A("s_load_dwordx4 s[8:11], s[0:1], 48")
    A("s_load_dwordx4 s[96:99], s[0:1], 80")
    stamp("start")
    if CP0:
        C("wave 0 pulls the next lines of this code into L2 while the memory system is still idle")
        A("s_getpc_b64 s[82:83]")
        A(f"v_lshlrev_b32 v{T+6}, 7, v0")
        A(f"v_cmp_gt_u32 vcc, {CP0}, v0")
        A("s_mov_b64 exec, vcc")
        A("s_cbranch_execz L_nocp0")
        g.vmem(f"global_load_dword v{T+7}, v{T+6}, s[82:83] offset:128", optional=True)
        L("L_nocp0")
        A("s_mov_b64 exec, -1")
    A(f"v_lshrrev_b32 v{T}, 6, v0")
    A("v_and_b32 v1, 63, v0")
    A(f"v_readfirstlane_b32 s{s_w}, v{T}")
    if Q32:
        C("q slice: branch b, columns hkv*512 + (s&7)*64 + (s>>3)*32, rows w*128..")
        A(f"v_lshrrev_b32 v{T+2}, 2, v1")
        A(f"v_lshlrev_b32 v{T+2}, 13, v{T+2}")
        A(f"v_and_b32 v{T}, 3, v1")
        A(f"v_lshl_add_u32 v{T+2}, v{T}, 4, v{T+2}")
        A(f"s_and_b32 s{s_t0}, s2, 0x70")
        A(f"s_and_b32 s{s_t1}, s2, 7")
        A(f"s_lshl1_add_u32 s{s_t0}, s{s_t1}, s{s_t0}")
        A(f"s_bfe_u32 s{s_t1}, s2, 0x10003")
        A(f"s_add_u32 s{s_t0}, s{s_t0}, s{s_t1}")
        A(f"s_lshl_b32 s{s_colb}, s{s_t0}, 5")
        A(f"s_lshl_b32 s{s_t2}, s{s_w}, 1")
    else:
        C("q slice: branch b, columns (wg>>1 & 63)*64, rows (wg&1)*256 + w*64")
        A(f"v_lshrrev_b32 v{T+2}, 3, v1")
        A(f"v_lshlrev_b32 v{T+2}, 13, v{T+2}")
        A(f"v_and_b32 v{T}, 7, v1")
        A(f"v_lshl_add_u32 v{T+2}, v{T}, 4, v{T+2}")
        A(f"s_bfe_u32 s{s_colb}, s2, 0x60001")
        A(f"s_lshl_b32 s{s_colb}, s{s_colb}, 6")
        A(f"s_and_b32 s{s_t0}, s2, 1")
        A(f"s_lshl2_add_u32 s{s_t2}, s{s_t0}, s{s_w}")
    A(f"s_lshl_b32 s{s_t0}, s{s_t2}, 19")
    A(f"s_lshl1_add_u32 s{s_wqoff}, s{s_colb}, s{s_t0}")
    A(f"s_lshl_b32 s{s_stg}, s{s_w}, 13")
    A(f"s_add_u32 s{s_stg}, s{s_stg}, {STG}")
    A(f"s_mov_b32 s{sWQ+2}, 0x400000")
    A(f"s_mov_b32 s{sWQ+3}, 0x20000")
    A("s_waitcnt lgkmcnt(0)")
    A(f"s_mov_b32 s{sWQ}, s14")
    A(f"s_and_b32 s{sWQ+1}, s15, 0xffff")
    def mksrd(d, p, size):
        A(f"s_mov_b32 s{d}, s{p}")
        A(f"s_and_b32 s{d+1}, s{p+1}, 0xffff")
        A(f"s_mov_b32 s{d+2}, {size:#x}")
        A(f"s_mov_b32 s{d+3}, 0x20000")

    S5, WM, G4 = PATS[PAT] if isinstance(PAT, str) else PAT
    msk = lambda bs: sum(1 << b for b in bs)
    basis = {}
    for v in [msk(x) for x in S5 + WM + G4]:
        while v:
            h = v.bit_length() - 1
            if h not in basis:
                basis[h] = v
                break
            v ^= basis[h]
    assert sorted(basis) == list(range(12, 23)), "pattern is not a bijection"
    def tile_off(t):
        x = 0
        for k in range(5):
            if t >> k & 1:
                x ^= msk(S5[k])
        return x
    NT = 128
    Z = [("wq", j) for j in range(8)] + [("kv", t, j) for t in range(WOT) for j in range(4)] + [("wo", j) for j in range(WOH)] + \
        [("kv", t, j) for t in range(WOT, NT) for j in range(4)] + [("wo", j) for j in range(WOH, 8)]
    pos = {z: p for p, z in enumerate(Z)}
    pos_of = lambda t, j: pos[("kv", t, j)]
    slot_of = lambda t: t % NSLOT
    isK = lambda t: (t // 32) % 2 == 0
    ids = {}
    st = {}
    log = []
    pending = []

    def cur_t():
        p = st["p"]
        while Z[p][0] != "kv":
            p -= 1
        return Z[p][1]

    def issue(p, throttle=True):
        z = Z[p]
        need_nop = False
        if z[0] == "wq":
            if z[1]:
                A(f"s_add_u32 s{s_wqoff}, s{s_wqoff}, {0x20000 if Q32 else 0x10000:#x}")
            A(f"s_add_u32 m0, s{s_stg}, {z[1]*1024}")
            need_nop = True
        elif z[0] == "wo":
            if z[1]:
                A(f"s_add_u32 s{s_wooff}, s{s_wooff}, 8192")
            A(f"s_add_u32 m0, s{s_stg}, {z[1]*1024}")
            need_nop = True
        elif z[2] == 0:
            t = z[1]
            stamp(f"t{t}")
            un = UNT and (t % 32 < (1 << UNT) or (UNE and t % 32 >= 32 - (1 << UNT)))
            A(f"s_xor_b32 s{s_kvoff}, s{s_kvb2 if un else s_kvb}, {tile_off(t % 32):#x}")
            A(f"s_add_u32 m0, s{s_wb}, {slot_of(t)*4096}")
            need_nop = True
            if p >= PC0 and any(Nguar(q) > Nof(q) for q in range(p, p + 4)):
                if G6:
                    A(f"s_sub_i32 s{s_bm}, s{s_gb}, {t + 1}")
                elif NLO:
                    A(f"s_sub_i32 s{s_bm}, {t}, s{s_brk}")
                A(f"s_cmp_gt_i32 s{s_boost}, {t}")
                A("s_cselect_b64 vcc, -1, 0")
                need_nop = False
                if XM and (XM[0] | XM[1]) >> (t % 32) & 1:
                    A(f"s_bitcmp1_b32 s{s_xm}, {t % 32}")
                    A("s_cselect_b64 vcc, -1, vcc")
        waited = False
        if throttle and p - Nguar(p) >= 0:
            waited = g.throttle(ids[p - Nguar(p)])
            if Nguar(p) > Nof(p) and ids[p - Nof(p)] in g.fl["H"]:
                A(f"s_cbranch_vccnz L_b{p}")
                A(f"s_waitcnt vmcnt({g.after(ids[p - Nof(p)])})")
                if NLO or G6:
                    A(f"s_bitcmp0_b32 s{s_bm}, 31")
                    A(f"s_cbranch_scc1 L_b{p}")
                    A(f"s_waitcnt vmcnt({g.after(ids[p - (NLO or N)])})")
                L(f"L_b{p}")
                waited = True
        if need_nop and not waited:
            A("s_nop 0")
        stamp(f"p{p}")
        if z[0] == "wq":
            ids[p] = g.vmem(f"buffer_load_dwordx4 v{T+2}, {srd(sWQ)}, s{s_wqoff} offen nt lds")
        elif z[0] == "wo":
            ids[p] = g.vmem(f"buffer_load_dwordx4 v{a_wo}, {srd(sWO)}, s{s_wooff} offen nt lds")
        else:
            _, t, j = z
            ids[p] = g.vmem(f"buffer_load_dwordx4 v{v_dv+(j&1)}, {srd(sKV[t//32])}, s{s_kvoff} offen offset:{j*1024} nt lds")
            if j == 1 and C0 - 8 <= t < NT - 6:
                assert st["setup"]
                A(f"s_cmp_eq_u32 s{s_pph}, {t % PT}")
                A(f"s_cselect_b32 s{s_u}, s{s_pro}, {WS_SIZE:#x}")
                A(f"v_or_b32 v{v_pd}, {t}, v{v_pl}")
                g.vmem(f"buffer_store_dword v{v_pd}, v{a_pw}, {srd(sWS)}, s{s_u} offen")

    C("wq slice -> staging")
    for p in range(8):
        issue(p, throttle=False)
    stamp("a")
    A(f"s_load_dword s{s_tag32}, s[18:19], {WS_E}")
    mksrd(sKV[0], 4, 0x8000000)
    A(f"s_mul_i32 s{s_wb}, s{s_w}, {RING}")
    C("first byte of this wave's keys")
    A(f"s_lshr_b32 s{s_kvb}, s2, 4")
    A(f"s_lshl_b32 s{s_kvb}, s{s_kvb}, 23")
    for src, ms in (("s2", G4), (f"s{s_w}", WM)):
        k = 0
        while k < len(ms):
            n = 1
            while len(ms[k]) == 1 and k + n < len(ms) and list(ms[k + n]) == [ms[k][0] + n]:
                n += 1
            if len(ms[k]) == 1:
                A(f"s_bfe_u32 s{s_t0}, {src}, {(n << 16) + k:#x}")
                A(f"s_lshl_b32 s{s_t0}, s{s_t0}, {ms[k][0]}")
            else:
                A(f"s_bitcmp1_b32 {src}, {k}")
                A(f"s_cselect_b32 s{s_t0}, {msk(ms[k]):#x}, 0")
            A(f"s_xor_b32 s{s_kvb}, s{s_kvb}, s{s_t0}")
            k += n
    if UNT:
        A(f"s_mov_b32 s{s_kvb2}, s{s_kvb}")
        for k in range(UNT):
            A(f"s_bitcmp1_b32 s2, {k}")
            A(f"s_cselect_b32 s{s_t0}, {msk(S5[k]):#x}, 0")
            A(f"s_xor_b32 s{s_kvb2}, s{s_kvb2}, s{s_t0}")
    C("DMA voffsets: 16-byte chunk index xor 2*(key&7)")
    A(f"v_lshrrev_b32 v{v_g}, 4, v1")
    A(f"v_lshlrev_b32 v{T+3}, 1, v{v_g}")
    A(f"v_xor_b32 v{T+3}, v{T+3}, v1")
    A(f"v_lshlrev_b32 v{v_dv}, 4, v{T+3}")
    A(f"v_xor_b32 v{v_dv+1}, 0x80, v{v_dv}")
    if T0:
        C("start the address translation of both key pages early")
        A("s_mov_b64 exec, 3")
        A(f"v_lshlrev_b32 v{v_tw+1}, 22, v1")
        A(f"s_andn2_b32 s{s_t0}, s{s_kvb}, 0x400000")
        g.vmem(f"buffer_load_dword v{v_tw}, v{v_tw+1}, {srd(sKV[0])}, s{s_t0} offen nt")
        A("s_mov_b64 exec, -1")
    GX = v_sc

    NKS, NCB = (4, 2) if Q32 else (2, 4)
    XOP = v_sc + 16
    def pro_x():
        C("x operand of the q projection")
        mksrd(sX, 12, 2048)
        A(f"v_and_b32 v{T+1}, 1, v1")
        A(f"v_lshlrev_b32 v{T+1}, 10, v{T+1}")
        A(f"v_lshl_add_u32 v{T+1}, v{v_g}, 4, v{T+1}")
        A(f"s_lshl_b32 s{s_t2}, s{s_t2}, 7")
        for j in range(NKS):
            st["x"] = g.vmem(f"buffer_load_dwordx4 {vr(XOP+4*j,4)}, v{T+1}, {srd(sX)}, s{s_t2} offen offset:{j*64}")
        A(f"s_lshr_b32 s{s_t0}, s{s_w}, 1")
        A(f"s_mul_i32 s{s_t0}, s{s_t0}, 40")
        A(f"s_add_u32 s82, s0, s{s_t0}")
        A("s_addc_u32 s83, s1, 0")
        A("s_load_dwordx2 s[16:17], s[82:83], 32")

    def pro_rest():
        A(f"v_and_b32 v{v_n}, 15, v1")
        A(f"v_and_b32 v{v_c}, 3, v1")
        A(f"v_bfe_u32 v{v_r}, v1, 2, 2")
        mksrd(sG, 96, 1024)
        for k in range(1, 4):
            mksrd(sKV[k], 4 + 2 * k, 0x8000000)
        mksrd(sWS, 18, WS_SIZE)
        mksrd(sO, 98, 2048)
        A(f"s_bfe_u32 s{s_hkv}, s2, 0x30004")
        A(f"s_and_b32 s{s_j}, s2, 15")
        A(f"s_lshl4_add_u32 s{s_j}, s{s_b}, s{s_j}")
        C("clear the LDS flags")
        A(f"v_mov_b32 v{a_fr}, {SCR+FL}")
        A(f"v_lshl_add_u32 v{T}, v{v_n}, 2, v{a_fr}")
        A(f"v_mov_b32 v{T+1}, 0")
        A(f"ds_write_b32 v{T}, v{T+1}")
        C("LDS read addresses for K")
        A(f"v_lshl_add_u32 v{T+3}, v{v_n}, 8, s{s_wb}")
        A(f"v_and_b32 v{T+4}, 7, v{v_n}")
        A(f"v_lshlrev_b32 v{T+4}, 1, v{T+4}")
        A(f"v_xor_b32 v{T+4}, v{T+4}, v{v_g}")
        for j in range(4):
            A(f"v_xor_b32 v{v_rk+j}, {4*j}, v{T+4}")
            A(f"v_lshl_add_u32 v{v_rk+j}, v{v_rk+j}, 4, v{T+3}")
        C("q-proj addresses")
        A(f"v_lshl_add_u32 v{T}, v{v_g}, 3, v{v_r}")
        A(f"v_lshl_add_u32 v{T}, v{T}, {6 if Q32 else 7}, s{s_stg}")
        A(f"v_lshl_add_u32 v{T}, v{v_c}, 3, v{T}")
        A(f"s_lshl_b32 s{s_t0}, s{s_w}, 9")
        A(f"s_add_u32 s{s_t0}, s{s_t0}, {SCR+QP}")
        A(f"v_and_b32 v{T+1}, 1, v1")
        A(f"v_lshl_add_u32 v{T+1}, v{T+1}, {7 if Q32 else 8}, s{s_t0}")
        A(f"v_lshl_add_u32 v{T+1}, v{v_g}, 4, v{T+1}")
        A(f"v_and_b32 v{T+3}, 31, v1")
        A(f"v_lshlrev_b32 v{T+3}, 4, v{T+3}")
        A(f"v_add_u32 v{T+3}, {SCR+QP}, v{T+3}")
        A(f"v_bfe_u32 v{T+4}, v1, {3 if Q32 else 4}, 1")
        A(f"v_lshlrev_b32 v{T+4}, 14, v{T+4}")
        A(f"v_and_b32 v{T+5}, {7 if Q32 else 15}, v1")
        A(f"v_lshl_add_u32 v{T+4}, v{T+5}, 4, v{T+4}")
        A(f"s_lshl_b32 s{s_t0}, s{s_b}, 13")
        A(f"s_add_u32 s{s_t0}, s{s_t0}, s{s_colb}")
        A(f"s_lshl_b32 s{s_t0}, s{s_t0}, 2")
        if not Q32:
            A(f"s_and_b32 s{s_t1}, s2, 1")
            A(f"s_lshl_b32 s{s_t1}, s{s_t1}, 16")
            A(f"s_add_u32 s{s_t0}, s{s_t0}, s{s_t1}")
        A(f"s_add_u32 s{s_t0}, s{s_t0}, {WS_QB}")
        A(f"s_movk_i32 s{s_t1}, 0xff00")

    def gate_loads():
        C("gate inputs: lane l holds 16 elements (l&31) of batch b")
        A(f"v_and_b32 v{T}, 31, v1")
        A(f"v_lshlrev_b32 v{T}, 5, v{T}")
        A(f"s_lshl_b32 s{s_t0}, s{s_b}, 10")
        for j in range(2):
            g.vmem(f"buffer_load_dwordx4 {vr(GX+4*j,4)}, v{T}, {srd(sX)}, s{s_t0} offen offset:{j*16}")
        for j in range(2):
            st["gate"] = g.vmem(f"buffer_load_dwordx4 {vr(GX+8+4*j,4)}, v{T}, {srd(sG)}, 0 offen offset:{j*16}")

    if XP < 8:
        pro_x()
        pro_rest()
    chunks = g.split(pro_rest, 14) if XP >= 8 else []
    for p in range(8, P0):
        issue(p)
        if p == XP:
            pro_x()
        elif p > XP and chunks:
            chunks.pop(0)()
    for f in chunks:
        f()
    for p in range(P0, P0 + PX):
        issue(p, throttle=False)
    A("s_waitcnt lgkmcnt(0)")
    C("---- q projection of this workgroup's slice ----")
    g.wait_vm(st["x"])
    g.wait_vm(ids[7])
    RB = 64 if Q32 else 128
    for ks in range(NKS):
        for cb in range(NCB):
            for hf in range(2):
                A(f"ds_read_b64_tr_b16 {ar(a_vf+(ks*NCB+cb)*4+hf*2,2)}, v{T} offset:{ks*32*RB + hf*4*RB + cb*32}")
    mksrd(sWO, 16, 0x400000)
    A(f"s_add_u32 s{s_tag32}, s{s_tag32}, {EPOCH_INC:#x}")
    A(f"s_and_b32 s{s_tag8}, s{s_tag32}, 0xff")
    A(f"s_and_b32 s{s_tag12}, s{s_tag32}, 0xfff")
    A(f"s_and_b32 s{s_tag16}, s{s_tag32}, 0xffff")
    A(f"v_mov_b32 v{T+5}, s{s_tag8}")
    for ks in range(NKS):
        A(f"s_waitcnt lgkmcnt({16-2*NCB*(ks+1)})")
        for cb in range(NCB):
            A(f"v_mfma_f32_16x16x32_bf16 {vr(B+4*cb,4)}, {ar(a_vf+(ks*NCB+cb)*4,4)}, {vr(XOP+4*ks,4)}, " + ("0" if ks == 0 else vr(B + 4 * cb, 4)))
    A(f"s_nop {8-NCB}")
    for cb in range(NCB):
        A(f"ds_write_b128 v{T+1}, {vr(B+4*cb,4)} offset:{cb*64}")
    A(f"s_cmp_eq_u32 s{s_w}, 0")
    A("s_waitcnt lgkmcnt(0)")
    if "b1" not in skip:
        A("s_barrier")
    A("s_cbranch_scc0 L_noqstore")
    for w in range(4):
        A(f"ds_read_b128 {vr(B+4*w,4)}, v{T+3} offset:{w*512}")
    A("s_waitcnt lgkmcnt(0)")
    for e in range(4):
        A(f"v_add_f32 v{B+e}, v{B+e}, v{B+4+e}")
        A(f"v_add_f32 v{B+8+e}, v{B+8+e}, v{B+12+e}")
    for e in range(4):
        A(f"v_add_f32 v{B+e}, v{B+e}, v{B+8+e}")
    if Q32:
        for e in range(4):
            A(f"v_cvt_pk_bf16_f32 v{B+e}, 0, v{B+e}")
        for e in range(4):
            A(f"v_or_b32 v{B+e}, s{s_tag16}, v{B+e}")
        A("s_mov_b64 exec, 0xffff")
    else:
        for e in range(4):
            A(f"v_add_u32 v{B+e}, 0x80, v{B+e}")
        for e in range(4):
            A(f"v_and_or_b32 v{B+e}, v{B+e}, s{s_t1}, v{T+5}")
        A("s_mov_b32 exec_hi, 0")
    if "qstore" not in skip:
        g.vmem(f"buffer_store_dwordx4 {vr(B,4)}, v{T+4}, {srd(sWS)}, s{s_t0} offen sc1", optional=True)
    A("s_mov_b64 exec, -1")
    L("L_noqstore")
    stamp("qpub")

    FSLOT = slot_of(NT)

    def setup_head():
        C("constants")
        A(f"s_mov_b32 s{s_c}, {f2u(LOG2E):#x}")
        if not UNT:
            A(f"s_mov_b32 s{s_rs}, {f2u(128 ** -0.5):#x}")
        A(f"s_mov_b32 s{s_spin}, {SPIN}")
        for r in range(4):
            A(f"v_mov_b32 v{v_one+r}, 0x3f803f80")
        C("q gather: head w, lanes 0-31 " + ("branch A, lanes 32-63 branch B" if Q32 else "half 0, lanes 32-63 half 1"))
        A(f"v_lshrrev_b32 v{T}, 5, v1")
        A(f"v_and_b32 v{T+1}, 31, v1")
        A(f"v_lshlrev_b32 v{T+2}, 4, v{T+1}")
        A(f"v_lshl_add_u32 v{a_q}, v{T}, {15 if Q32 else 16}, v{T+2}")
        A(f"s_lshr_b32 s{s_t0}, s2, 4")
        A(f"s_lshl2_add_u32 s{s_t0}, s{s_t0}, s{s_w}")
        A(f"s_lshl_b32 s{s_t0}, s{s_t0}, 9")
        A(f"s_add_u32 s{s_qoff}, s{s_t0}, {WS_QB}")
        A(f"s_lshl_b32 s{s_t0}, s{s_w}, 8")
        A(f"s_add_u32 s{s_t0}, s{s_t0}, {SCR+QX}")
        A(f"v_lshl_add_u32 v{a_qw}, v{T+1}, 3, s{s_t0}")
        A(f"v_lshl_add_u32 v{a_qw}, v{T}, {10 if Q32 else 2}, v{a_qw}")
        A(f"v_lshlrev_b32 v{a_qr}, 8, v{v_c}")
        A(f"v_lshl_add_u32 v{a_qr}, v{v_g}, 4, v{a_qr}")
        A(f"v_add_u32 v{a_qr}, {SCR+QX}, v{a_qr}")
        A(f"s_lshl_b32 s{s_t0}, s{s_w}, 2")
        A(f"v_add_u32 v{a_fw}, s{s_t0}, v{a_fr}")
        C("catch-up hints (speed only): one line of tile indices per group of workgroups with equal wg&7")
        A(f"s_mov_b32 s{s_boost}, 0")
        A(f"s_and_b32 s{s_tagp}, s{s_tag32}, 0xffffff00")
        A(f"v_mov_b32 v{v_pl}, s{s_tagp}")
        A(f"v_min_u32 v{a_pw}, 1, v1")
        A(f"v_lshlrev_b32 v{a_pw}, 30, v{a_pw}")
        A(f"s_and_b32 s{s_t0}, s2, 7")
        A(f"s_mul_i32 s{s_t0}, s{s_t0}, 4352")
        A(f"s_add_u32 s{s_t0}, s{s_t0}, {WS_PR}")
        A(f"v_lshl_add_u32 v{a_pr}, v1, 2, s{s_t0}")
        if GR:
            C("wave 1 of workgroups 32..39 compares the groups a few times")
            A(f"s_add_u32 s{s_bc}, s{s_t0}, 128")
            A(f"s_mov_b32 s{s_gb}, 0")
            A(f"s_mov_b32 s{s_dev}, 0")
            A(f"s_lshr_b32 s{s_t1}, s2, 3")
            A(f"s_lshl_b32 s{s_t2}, s{s_w}, 5")
            A(f"s_add_u32 s{s_t1}, s{s_t1}, s{s_t2}")
            A(f"s_xor_b32 s{s_t1}, s{s_t1}, {32 + 4}")
            A(f"s_min_u32 s{s_t1}, s{s_t1}, 1")
            A(f"s_lshl_b32 s{s_t1}, s{s_t1}, 30")
            A(f"s_add_u32 s{s_t1}, s{s_t1}, {WS_GP}")
            A(f"v_lshrrev_b32 v{T+3}, 3, v1")
            A(f"v_min_u32 v{T+3}, 1, v{T+3}")
            A(f"v_lshlrev_b32 v{T+3}, 30, v{T+3}")
            A(f"v_mul_u32_u24 v{T+4}, 4224, v1")
            A(f"v_add3_u32 v{a_gs}, v{T+3}, v{T+4}, s{s_t1}")
            A(f"s_and_b32 s{s_t2}, s2, 7")
            A(f"s_mul_i32 s{s_t2}, s{s_t2}, 4224")
            A(f"s_add_u32 s{s_gpo}, s{s_t1}, s{s_t2}")
        A(f"s_lshr_b32 s{s_t1}, s2, 3")
        A(f"s_lshl2_add_u32 s{s_pro}, s{s_t1}, s{s_t0}")
        A(f"s_and_b32 s{s_t1}, s{s_t1}, {PT-1}")
        A(f"s_lshl4_add_u32 s{s_pph}, s{s_w}, s{s_t1}")
        if XM:
            A(f"s_getreg_b32 s{s_t0}, hwreg(HW_REG_XCC_ID)")
            A(f"s_and_b32 s{s_t0}, s{s_t0}, 1")
            A(f"s_mul_i32 s{s_t0}, s{s_t0}, {XM[0] ^ XM[1]:#x}")
            A(f"s_xor_b32 s{s_xm}, s{s_t0}, {XM[0]:#x}")

    def setup_rest():
        A(f"s_mov_b32 s{s_perm}, 0x07060302")
        A(f"s_mov_b32 s{s_m12}, 0xfffff000")
        A(f"s_mov_b32 s{s_m15}, 0xfffefffe")
        C("V transposed read addresses")
        A(f"v_lshl_add_u32 v{T+3}, v{v_g}, 2, v{v_r}")
        A(f"v_and_b32 v{T+5}, 1, v{v_c}")
        A(f"v_lshlrev_b32 v{T+5}, 3, v{T+5}")
        A(f"v_lshrrev_b32 v{T+6}, 1, v{v_c}")
        A(f"v_lshl_add_u32 v{T+4}, v{T+3}, 8, v{T+5}")
        A(f"v_add_u32 v{T+4}, s{s_wb}, v{T+4}")
        A(f"v_and_b32 v{T+7}, 7, v{T+3}")
        A(f"v_lshl_or_b32 v{T+7}, v{T+7}, 1, v{T+6}")
        for cb in range(8):
            A(f"v_xor_b32 v{v_rv+cb}, {2*cb}, v{T+7}")
            A(f"v_lshl_add_u32 v{v_rv+cb}, v{v_rv+cb}, 4, v{T+4}")
        C("wo: head hq = hkv*4 + (j>>3), columns (wg&7)*64; wave w loads rows (w&1)*64.. of branch w>>1")
        A(f"v_lshl_add_u32 v{T+4}, v{T+3}, 7, v{T+5}")
        A(f"v_add_u32 v{T+4}, {STG}, v{T+4}")
        A(f"v_and_b32 v{T+7}, 6, v{T+3}")
        A(f"v_or_b32 v{T+7}, v{T+7}, v{T+6}")
        A(f"s_lshl_b32 s{s_t0}, s{s_w}, 1")
        A(f"v_xor_b32 v{T+7}, s{s_t0}, v{T+7}")
        A(f"v_lshl_add_u32 v{a_wor}, v{T+7}, 4, v{T+4}")
        A(f"v_lshrrev_b32 v{T+3}, 3, v1")
        A(f"v_and_b32 v{T+4}, 6, v{T+3}")
        A(f"v_and_b32 v{T+5}, 7, v1")
        A(f"v_xor_b32 v{T+4}, v{T+4}, v{T+5}")
        A(f"v_lshlrev_b32 v{T+4}, 4, v{T+4}")
        A(f"v_lshl_add_u32 v{a_wo}, v{T+3}, 10, v{T+4}")
        A(f"s_lshr_b32 s{s_t0}, s{s_j}, 3")
        A(f"s_lshl2_add_u32 s{s_t3}, s{s_hkv}, s{s_t0}")
        A(f"s_and_b32 s{s_t0}, s{s_w}, 1")
        A(f"s_lshl1_add_u32 s{s_t0}, s{s_t3}, s{s_t0}")
        A(f"s_lshl_b32 s{s_t0}, s{s_t0}, 16")
        A(f"s_and_b32 s{s_t2}, s2, 7")
        A(f"s_lshl_b32 s{s_t1}, s{s_t2}, 7")
        A(f"s_add_u32 s{s_wooff}, s{s_t0}, s{s_t1}")
        C("hop-2 store: line (cg = (wg&7)*4 + w, p = hq), lane (g, n<2): b = n")
        A(f"s_lshl2_add_u32 s{s_t0}, s{s_t2}, s{s_w}")
        A(f"s_lshl_b32 s{s_t0}, s{s_t0}, 12")
        A(f"s_lshl_b32 s{s_t1}, s{s_t3}, 7")
        A(f"s_add_u32 s{s_t0}, s{s_t0}, s{s_t1}")
        A(f"s_add_u32 s{s_h2pub}, s{s_t0}, {WS_P1}")
        A(f"v_and_b32 v{T+3}, 1, v1")
        A(f"v_lshlrev_b32 v{a_p2}, 6, v{T+3}")
        A(f"v_lshl_add_u32 v{a_p2}, v{v_g}, 4, v{a_p2}")
        C("o operand reader: OX + (n&1)*256 + g*16")
        A(f"v_lshlrev_b32 v{a_or}, 8, v{T+3}")
        A(f"v_lshl_add_u32 v{a_or}, v{v_g}, 4, v{a_or}")
        A(f"v_add_u32 v{a_or}, {SCR+OX}, v{a_or}")
        C("final role f = (wg&7)*4 + w (the wave's own column group) for one workgroup per f, else >= 32")
        A(f"s_lshl2_add_u32 s{s_f}, s{s_t2}, s{s_w}")
        A(f"s_lshl_b32 s{s_t1}, s{s_f}, 12")
        A(f"s_add_u32 s{s_h2get}, s{s_t1}, {WS_P1}")
        A(f"s_lshr_b32 s{s_t0}, s2, 3")
        if FWAVE == 0:
            A(f"s_xor_b32 s{s_t0}, s{s_t0}, s{s_w}")
        A(f"s_lshl_b32 s{s_t0}, s{s_t0}, 5")
        A(f"s_or_b32 s{s_f}, s{s_f}, s{s_t0}")
        A(f"v_lshlrev_b32 v{a_l16}, 4, v1")
        A(f"v_bfe_u32 v{T+3}, v1, 2, 1")
        A(f"v_lshlrev_b32 v{a_out}, 10, v{T+3}")
        A(f"v_lshl_add_u32 v{a_out}, v{v_c}, 3, v{a_out}")
        A(f"v_bfe_u32 v{T+4}, v1, 4, 1")
        A(f"v_lshl_add_u32 v{a_out}, v{T+4}, 2, v{a_out}")
        A(f"v_lshrrev_b32 v{T+5}, 5, v1")
        A(f"v_lshl_add_u32 v{a_out}, v{T+5}, 1, v{a_out}")
        C("hop-1 gather, wave = (dims half w>>1, batch w&1): rows (hq, b*16 + 4*g + i)")
        A(f"v_lshlrev_b32 v{T+5}, 4, v{v_n}")
        A(f"v_lshl_add_u32 v{a_g1}, v{v_g}, 11, v{T+5}")
        A(f"s_and_b32 s{s_t0}, s{s_w}, 1")
        A(f"s_lshl1_add_u32 s{s_t1}, s{s_t3}, s{s_t0}")
        A(f"s_lshl_b32 s{s_t1}, s{s_t1}, 13")
        A(f"s_lshr_b32 s{s_t2}, s{s_w}, 1")
        A(f"s_lshl_b32 s{s_t3}, s{s_t2}, 8")
        A(f"s_add_u32 s{s_t1}, s{s_t1}, s{s_t3}")
        A(f"s_add_u32 s{s_h1get}, s{s_t1}, {WS_H1}")
        C("summed o -> LDS [br][b][ks][g][hf][4] bf16; lanes 0-15 hold branch B, lanes 16-31 branch A")
        A(f"s_lshl1_add_u32 s{s_t0}, s{s_t0}, s{s_t2}")
        A(f"s_lshl_b32 s{s_t0}, s{s_t0}, 7")
        A(f"s_add_u32 s{s_t0}, s{s_t0}, {SCR+OX}")
        A(f"v_lshl_add_u32 v{a_ow}, v{v_c}, 4, s{s_t0}")
        A(f"v_lshl_add_u32 v{a_ow}, v{T+3}, 3, v{a_ow}")
        A(f"v_bfe_u32 v{T+5}, v1, 3, 1")
        A(f"v_lshl_add_u32 v{a_ow}, v{T+5}, 6, v{a_ow}")
        A(f"v_xor_b32 v{T+4}, 1, v{T+4}")
        A(f"v_lshl_add_u32 v{a_ow}, v{T+4}, 9, v{a_ow}")
        C("hop-1 publish: row (hkv, h=w, j)")
        A(f"s_lshl2_add_u32 s{s_t0}, s{s_hkv}, s{s_w}")
        A(f"s_lshl_b32 s{s_t0}, s{s_t0}, 5")
        A(f"s_add_u32 s{s_t0}, s{s_t0}, s{s_j}")
        A(f"s_lshl_b32 s{s_t0}, s{s_t0}, 9")
        A(f"s_add_u32 s{s_h1pub}, s{s_t0}, {WS_H1}")
        C("combine: writers (lane (g,h)) and readers (head w, d4)")
        A(f"v_lshlrev_b32 v{T+3}, 9, v{v_c}")
        A(f"v_lshl_add_u32 v{T+3}, v{v_g}, 4, v{T+3}")
        A(f"s_lshl_b32 s{s_t0}, s{s_w}, 11")
        A(f"s_add_u32 s{s_t0}, s{s_t0}, {SCR+OPA}")
        A(f"v_add_u32 v{a_cwa}, s{s_t0}, v{T+3}")
        A(f"v_add_u32 v{a_cwb}, s{s_wb}, v{T+3}")
        if FD:
            A(f"v_lshl_add_u32 v{a_cwb}, v{v_c}, 4, v{a_cwb}")
        A(f"s_lshl_b32 s{s_t0}, s{s_w}, 2")
        A(f"s_add_u32 s{s_t0}, s{s_t0}, {SCR+ML}")
        A(f"v_lshl_add_u32 v{a_cml}, v{v_c}, 4, s{s_t0}")
        A(f"v_and_b32 v{T+3}, 7, v1")
        A(f"v_lshlrev_b32 v{T+3}, 4, v{T+3}")
        A(f"v_add_u32 v{a_mlr}, {SCR+ML}, v{T+3}")
        A(f"v_and_b32 v{T+3}, 31, v1")
        A(f"s_lshl_b32 s{s_t0}, s{s_w}, 9")
        A(f"v_lshl_add_u32 v{a_crb}, v{T+3}, 4, s{s_t0}")
        A(f"v_add_u32 v{a_cra}, {SCR+OPA}, v{a_crb}")
        if FD:
            A(f"s_lshl_b32 s{s_t0}, s{s_w}, 4")
            A(f"v_add_u32 v{a_crb}, s{s_t0}, v{a_crb}")
        A(f"v_add_u32 v{a_crb2}, {2*RING}, v{a_crb}")
        C("log-sum-exp exchange among the 16 splits: lane = (br = bit4, s = n)")
        A(f"s_lshl_b32 s{s_t0}, s2, 7")
        A(f"s_add_u32 s{s_lpub}, s{s_t0}, {WS_LB}")
        A(f"s_andn2_b32 s{s_t0}, s{s_t0}, 0x7ff")
        A(f"s_lshl3_add_u32 s{s_t0}, s{s_w}, s{s_t0}")
        A(f"s_add_u32 s{s_lget}, s{s_t0}, {WS_LB}")
        A(f"v_bfe_u32 v{T+3}, v1, 4, 1")
        A(f"v_lshlrev_b32 v{T+3}, 5, v{T+3}")
        A(f"v_lshl_add_u32 v{a_lg}, v{v_n}, 7, v{T+3}")
        C("tag bit patterns and the selector operand (1.0 where element == row)")
        for e in range(4):
            A(f"s_and_b32 s{s_t0}, s{s_tag8}, 1")
            A(f"s_bfe_u32 s{s_t1}, s{s_tag8}, {0x10001 + e:#x}")
            A(f"s_pack_ll_b32_b16 s{s_t0}, s{s_t0}, s{s_t1}")
            A(f"v_mov_b32 v{v_pat+e}, s{s_t0}")
        A(f"v_and_b32 v{T+3}, 1, v1")
        A(f"v_lshlrev_b32 v{T+3}, 4, v{T+3}")
        A(f"v_mov_b32 v{T+4}, 0x3f80")
        A(f"v_lshlrev_b32 v{T+3}, v{T+3}, v{T+4}")
        A(f"v_lshrrev_b32 v{T+4}, 1, v{v_n}")
        for e in range(4):
            A(f"v_xor_b32 v{T+5}, {e}, v{T+4}")
            A(f"v_min_u32 v{T+5}, 1, v{T+5}")
            A(f"v_add_u32 v{T+5}, -1, v{T+5}")
            A(f"v_and_b32 v{v_sel+e}, v{T+5}, v{T+3}")

    def setup_gate():
        C("gate factor: g in lanes with bit 2 clear, 1-g in the others, with the reference's bf16 rounding points")
        X, Wt = GX, GX + 8
        for r in range(8):
            A(f"v_lshlrev_b32 v{T}, 16, v{X+r}")
            A(f"v_lshlrev_b32 v{T+1}, 16, v{Wt+r}")
            A(f"v_and_b32 v{X+r}, 0xffff0000, v{X+r}")
            A(f"v_and_b32 v{Wt+r}, 0xffff0000, v{Wt+r}")
            A(f"v_mul_f32 v{T}, v{T}, v{T+1}")
            A(f"v_mul_f32 v{X+r}, v{X+r}, v{Wt+r}")
            A(f"v_cvt_pk_bf16_f32 v{X+r}, v{T}, v{X+r}")
        for r in range(8):
            A(f"v_dot2_f32_bf16 v{T+2}, v{X+r}, v{v_one}, " + ("0" if r == 0 else f"v{T+2}"))
        A("s_nop 2")
        for d in (1, 2, 4, 8):
            A(f"v_add_f32_dpp v{T+2}, v{T+2}, v{T+2} row_ror:{d} row_mask:0xf bank_mask:0xf")
            A("s_nop 1")
        A(f"v_mov_b32 v{T+3}, v{T+2}")
        A("s_nop 1")
        A(f"v_permlane16_swap_b32 v{T+2}, v{T+3}")
        A("s_nop 0")
        A(f"v_add_f32 v{T+2}, v{T+2}, v{T+3}")
        A(f"v_cvt_pk_bf16_f32 v{T+2}, 0, v{T+2}")
        A(f"v_mul_f32 v{T+2}, {f2u(-LOG2E):#x}, v{T+2}")
        A(f"v_exp_f32 v{T+2}, v{T+2}")
        A("s_nop 0")
        A(f"v_add_f32 v{T+2}, 1.0, v{T+2}")
        A(f"v_rcp_f32 v{T+2}, v{T+2}")
        A(f"v_bfe_i32 v{T+4}, v1, 2, 1")
        A(f"v_cvt_pk_bf16_f32 v{T+2}, 0, v{T+2}")
        A(f"v_sub_f32 v{T+3}, 1.0, v{T+2}")
        A(f"v_cvt_pk_bf16_f32 v{T+3}, 0, v{T+3}")
        A(f"v_bfi_b32 v{v_gf}, v{T+4}, v{T+3}, v{T+2}")

    def spin_guard():
        A(f"s_sub_u32 s{s_spin}, s{s_spin}, 1")
        A("s_cbranch_scc1 L_end")

    def qloads(track):
        if not Q32:
            A(f"s_add_u32 s{s_t0}, s{s_qoff}, 0x8000")
        for br in range(1 if Q32 else 2):
            s = f"buffer_load_dwordx4 {vr(B+4*br,4)}, v{a_q}, {srd(sWS)}, s{s_t0 if br else s_qoff} offen sc1"
            if track and "qload" in skip:
                st["q"] = ids[st["p"]]
            elif track:
                st["q"] = g.vmem(s)
            else:
                A(s)

    def q_validate():
        C("---- validate this wave's head of q (both branches), share through LDS ----")
        g.wait_vm(st["q"])
        L("L_qcheck")
        if Q32:
            A(f"v_xor_b32 v{T}, s{s_tag16}, v{B}")
            for r in range(1, 4):
                A(f"v_bitop3_b32 v{T}, v{T}, v{B+r}, s{s_tag16} bitop3:0xf6")
            A(f"v_and_b32 v{T}, 0xffff, v{T}")
            A(f"v_cmp_ne_u32 vcc, 0, v{T}")
            A("s_cbranch_vccnz L_qretry")
            A(f"s_mov_b32 s{s_t0}, 0x07060302")
            A(f"v_perm_b32 v{B+4}, v{B+1}, v{B}, s{s_t0}")
            A(f"v_perm_b32 v{B+5}, v{B+3}, v{B+2}, s{s_t0}")
            A(f"ds_write_b64 v{a_qw}, {vr(B+4,2)}")
            A("s_waitcnt lgkmcnt(0)")
            A(f"ds_write_b32 v{a_fw}, v{v_one}")
            return
        for r in range(8):
            A(f"v_xor_b32 v{B+r}, s{s_tag8}, v{B+r}")
        A(f"v_or_b32 v{T}, v{B}, v{B+1}")
        for i in range(2, 8, 2):
            A(f"v_or3_b32 v{T}, v{T}, v{B+i}, v{B+i+1}")
        A(f"v_and_b32 v{T}, 0xff, v{T}")
        A(f"v_cmp_ne_u32 vcc, 0, v{T}")
        if "qstore" not in skip and "qload" not in skip:
            A("s_cbranch_vccnz L_qretry")
        for br in range(2):
            A(f"v_permlane32_swap_b32 v{B+4*br}, v{B+4*br+2}")
            A(f"v_permlane32_swap_b32 v{B+4*br+1}, v{B+4*br+3}")
        for br in range(2):
            A(f"v_add_f32 v{B+4*br}, v{B+4*br}, v{B+4*br+2}")
            A(f"v_add_f32 v{B+4*br+1}, v{B+4*br+1}, v{B+4*br+3}")
        for br in range(2):
            A(f"v_cvt_pk_bf16_f32 v{B+4*br}, v{B+4*br}, v{B+4*br+1}")
        for br in range(2):
            A(f"ds_write_b32 v{a_qw}, v{B+4*br} offset:{br*1024}")
        A("s_waitcnt lgkmcnt(0)")
        A(f"ds_write_b32 v{a_fw}, v{v_one}")

    def flag_wait(name, off):
        L(name)
        A(f"ds_read_b128 {vr(B,4)}, v{a_fr} offset:{off}")
        spin_guard()
        A("s_waitcnt lgkmcnt(0)")
        A(f"v_and_b32 v{B}, v{B}, v{B+1}")
        A(f"v_and_b32 v{B+2}, v{B+2}, v{B+3}")
        A(f"v_and_b32 v{B}, v{B}, v{B+2}")
        A(f"v_cmp_eq_u32 vcc, 0, v{B}")
        A(f"s_cbranch_vccnz {name}")

    def q_fetch():
        if "qflag" not in skip:
            flag_wait("L_qflag", 0)
        for j in range(4):
            A(f"ds_read_b128 {ar(a_qop+4*j,4)}, v{a_qr} offset:{j*64}")
        if NLO:
            A(f"s_mov_b32 s{s_brk}, 0")
            A(f"s_mov_b32 s{s_gk}, 0")
        stamp("qval")
        st["qready"] = True

    def q_fetch_b():
        for j in range(4):
            A(f"ds_read_b128 {ar(a_qop+16+4*j,4)}, v{a_qr} offset:{1024+j*64}")

    def lanes_h():
        A("s_mov_b32 exec_lo, 0x000f000f")
        A("s_mov_b32 exec_hi, 0x000f000f")

    def dump_ml(br):
        A(f"ds_write_b32 v{a_cml}, v{v_m} offset:{br*64}")
        A(f"ds_write_b32 v{a_cml}, a{a_l} offset:{128+br*64}")

    def dump_o(br):
        adr, off = (a_cwa, 0) if br == 0 else (a_cwb, FSLOT * 4096)
        for cb in range(8):
            A(f"ds_write_b128 v{adr}, {ar(a_o+4*cb,4)} offset:{off+cb*64}")

    def lam_math():
        C("lane (br, h): workgroup maximum, sum, log-sum-exp and the weights of the four waves")
        A("s_waitcnt lgkmcnt(0)")
        A(f"v_max3_f32 v{T}, v{B}, v{B+1}, v{B+2}")
        A(f"v_max_f32 v{T}, v{T}, v{B+3}")
        A(f"v_mul_f32 v{T+1}, s{s_c}, v{T}")
        for w in range(4):
            A(f"v_fma_f32 v{B+w}, v{B+w}, s{s_c}, -v{T+1}")
        for w in range(4):
            A(f"v_exp_f32 v{B+w}, v{B+w}")
        A(f"v_mul_f32 v{T+2}, v{B}, v{B+4}")
        for w in range(1, 4):
            A(f"v_fmac_f32 v{T+2}, v{B+w}, v{B+4+w}")
        A(f"v_rcp_f32 v{T}, v{T+2}")
        A(f"v_log_f32 v{T+2}, v{T+2}")
        A(f"v_mov_b32 v{T+3}, s{s_tag32}")
        A(f"v_add_f32 v{T+2}, v{T+1}, v{T+2}")
        A(f"v_mul_f32 v{T}, v{T}, v{v_gf}")
        for w in range(4):
            A(f"v_mul_f32 v{v_aw+w}, v{B+w}, v{T}")
        A(f"v_lshlrev_b32 v{T+4}, 3, v1")

    def lam_store():
        A(f"s_cmp_eq_u32 s{s_w}, 0")
        A("s_cbranch_scc0 L_nolam")
        A("s_mov_b64 exec, 0xff")
        g.vmem(f"buffer_store_dwordx2 {vr(T+2,2)}, v{T+4}, {srd(sWS)}, s{s_lpub} offen sc1", optional=True)
        A("s_mov_b64 exec, -1")
        L("L_nolam")

    def lamloads(track):
        s = f"buffer_load_dwordx2 {vr(B,2)}, v{a_lg}, {srd(sWS)}, s{s_lget} offen sc1"
        if track:
            st["lam"] = g.vmem(s)
        else:
            A(s)

    def lam_validate():
        g.wait_vm(st["lam"])
        L("L_lcheck")
        A(f"v_cmp_ne_u32 vcc, s{s_tag32}, v{B+1}")
        A("s_cbranch_vccnz L_lretry")

    def wgt_math():
        C("softmax over the 16 splits -> this workgroup's share; weights of the four waves into SGPRs")
        A(f"v_max_f32_dpp v{T}, v{B}, v{B} row_ror:1 row_mask:0xf bank_mask:0xf")
        for d in (2, 4, 8):
            A("s_nop 1")
            A(f"v_max_f32_dpp v{T}, v{T}, v{T} row_ror:{d} row_mask:0xf bank_mask:0xf")
        A(f"v_sub_f32 v{T}, v{B}, v{T}")
        A(f"v_exp_f32 v{T}, v{T}")
        A("s_nop 1")
        A(f"v_add_f32_dpp v{T+1}, v{T}, v{T} row_ror:1 row_mask:0xf bank_mask:0xf")
        for d in (2, 4, 8):
            A("s_nop 1")
            A(f"v_add_f32_dpp v{T+1}, v{T+1}, v{T+1} row_ror:{d} row_mask:0xf bank_mask:0xf")
        A(f"v_rcp_f32 v{T+1}, v{T+1}")
        A(f"s_and_b32 s{s_t0}, s2, 15")
        A(f"v_mul_f32 v{T}, v{T}, v{T+1}")
        A(f"s_add_u32 s{s_t1}, s{s_t0}, 16")
        A(f"v_readlane_b32 s{s_t2}, v{T}, s{s_t0}")
        A(f"v_readlane_b32 s{s_t3}, v{T}, s{s_t1}")
        A(f"v_bfe_i32 v{T+2}, v1, 2, 1")
        A(f"s_add_u32 s{s_t1}, s{s_w}, 4")
        A(f"v_mov_b32 v{T}, s{s_t2}")
        A(f"v_mov_b32 v{T+1}, s{s_t3}")
        A(f"v_bfi_b32 v{T}, v{T+2}, v{T+1}, v{T}")
        for w in range(4):
            A(f"v_mul_f32 v{v_aw+w}, v{v_aw+w}, v{T}")
        A("s_nop 0")
        for w in range(4):
            A(f"v_readlane_b32 s{s_fw+w}, v{v_aw+w}, s{s_w}")
            A(f"v_readlane_b32 s{s_fw+4+w}, v{v_aw+w}, s{s_t1}")
        A("s_nop 1")

    def comb_read(br):
        for w in range(4):
            if br == 0:
                A(f"ds_read_b128 {vr(B+4*w,4)}, v{a_cra} offset:{w*2048}")
            else:
                A(f"ds_read_b128 {vr(B+4*w,4)}, v{a_crb if w < 2 else a_crb2} offset:{(w&1)*RING + FSLOT*4096}")

    def comb_math(br, counted):
        for w in range(4):
            if counted:
                A(f"s_waitcnt lgkmcnt({3-w})")
            elif w == 0:
                A("s_waitcnt lgkmcnt(0)")
            for e in range(4):
                if w == 0:
                    A(f"v_mul_f32 v{B+e}, s{s_fw+4*br}, v{B+e}")
                else:
                    A(f"v_fmac_f32 v{B+e}, s{s_fw+4*br+w}, v{B+4*w+e}")
        for e in range(4):
            A(f"v_add_u32 v{B+e}, 0x10000, v{B+e}")
        o = 2 - 2 * br
        for k in range(2):
            A(f"v_perm_b32 v{v_pub+o+k}, v{B+2*k+1}, v{B+2*k}, s{s_perm}")
        for k in range(2):
            A(f"v_and_or_b32 v{v_pub+o+k}, v{v_pub+o+k}, s{s_m15}, v{v_pat+o+k}")

    def h2loads(off, flags="sc1", track=False):
        for j in range(4):
            s = f"buffer_load_dwordx4 {vr(B+4*j,4)}, v{a_l16}, {srd(sWS)}, s{off} offen offset:{j*1024} {flags}"
            g.vmem(s, optional=True) if track else A(s)

    def warm2():
        C("bring the lines of the final reduction into this die's cache")
        A(f"s_cmp_ge_u32 s{s_f}, 32")
        A("s_cbranch_scc1 L_nowarm")
        A("s_mov_b32 exec_lo, 0x01010101")
        A("s_mov_b32 exec_hi, 0x01010101")
        for j in range(4):
            g.vmem(f"buffer_load_dword v{v_tw}, v{a_l16}, {srd(sWS)}, s{s_h2get} offen offset:{j*1024} {WARM2 if isinstance(WARM2, str) else 'sc1'}", optional=True)
        A("s_mov_b64 exec, -1")
        L("L_nowarm")

    def code_pre():
        C("pull the rest of this straight-line code towards the cache: four lines per wave")
        A("s_getpc_b64 s[82:83]")
        L("L_cp")
        if CPM == 1:
            A(f"s_lshr_b32 s{s_u}, s2, 3")
            A(f"s_lshl2_add_u32 s{s_u}, s{s_u}, s{s_w}")
            A(f"s_lshl_b32 s{s_u}, s{s_u}, 9")
            A(f"v_lshl_add_u32 v{v_tw+1}, v{v_c}, 7, s{s_u}")
            A(f"v_min_u32 v{v_tw+1}, L_end-L_cp, v{v_tw+1}")
            A("s_mov_b64 exec, 15")
        else:
            A(f"s_lshl2_add_u32 s{s_u}, s2, s{s_w}")
            A(f"s_lshl_b32 s{s_u}, s{s_u}, 6")
            A(f"s_min_u32 s{s_u}, s{s_u}, L_end-L_cp")
            A(f"v_mov_b32 v{v_tw+1}, s{s_u}")
            A("s_mov_b64 exec, 1")
        g.vmem(f"global_load_dword v{v_tw}, v{v_tw+1}, s[82:83]")
        A("s_mov_b64 exec, -1")

    def touch(k):
        def f():
            C("touch the next buffer's pages")
            A("s_mov_b64 exec, 3")
            A(f"v_lshlrev_b32 v{v_tw+1}, 22, v1")
            if k < 4:
                A(f"s_andn2_b32 s{s_u}, s{s_kvb}, 0x400000")
                g.vmem(f"buffer_load_dword v{v_tw}, v{v_tw+1}, {srd(sKV[k])}, s{s_u} offen nt")
            else:
                A("s_mov_b64 exec, 1")
                g.vmem(f"buffer_load_dword v{v_tw}, v{v_tw+1}, {srd(sWO)}, s{s_wooff} offen nt")
            A("s_mov_b64 exec, -1")
        return f

    BIAS_, GAIN_ = BIAS, GAIN
    def ctl_load():
        st["ctl"] = g.vmem(f"buffer_load_dword v{v_ct}, v{a_pr}, {srd(sWS)}, 0 offen sc1", hint=True)
        pending.append((st["ctl"], ctl_use))
        st["ctl_t"] = cur_t() + (Z[st["p"]][2] if Z[st["p"]][0] == "kv" else 3) / 4.0
        if "geval" in st and st["p"] >= st["geval"][1] + GPICK:
            st["pick"] = st.pop("geval")[0]
            log.append((st["p"], "pick", st["pick"]))

    def ctl_use():
        g.wait_vm(st["ctl"])
        t0 = st["ctl_t"]
        BIAS, GAIN = (END[2], END[3]) if END and t0 >= END[0] - 3 else (BIAS_, GAIN_)
        tn = cur_t() + 1
        x, y = v_ct, v_ct + 1
        A(f"v_xor_b32 v{x}, s{s_tagp}, v{x}")
        A(f"v_lshrrev_b32 v{y}, 8, v{x}")
        pick = st.pop("pick", None)
        if pick is not None and GACT:
            A(f"v_readlane_b32 s{s_c0}, v{x}, {32 + pick}")
            A(f"s_cmp_lt_u32 s{s_c0}, 256")
            A(f"s_cselect_b32 s{s_c0}, s{s_c0}, 128")
            A(f"s_add_i32 s{s_gb}, s{s_c0}, {tn - 128}")
            if GBRK:
                A(f"s_sub_i32 s{s_gk}, {tn + 128 - round(GBRK)}, s{s_c0}")
        A(f"v_cmp_eq_u32 s[82:83], 0, v{y}")
        A(f"v_mov_b32 v{y}, {max(0, int(t0) - round(BIAS))}")
        A("s_nop 0")
        A(f"v_cndmask_b32 v{x}, v{y}, v{x}, s[82:83]")
        for d in (1, 2, 4, 8):
            A("s_nop 1")
            A(f"v_add_u32_dpp v{x}, v{x}, v{x} row_ror:{d} row_mask:0xf bank_mask:0xf")
        A("s_nop 0")
        A(f"v_readlane_b32 s{s_c0}, v{x}, 0")
        A(f"v_readlane_b32 s{s_c1}, v{x}, 16")
        A(f"s_add_u32 s{s_c0}, s{s_c0}, s{s_c1}")
        A(f"s_sub_i32 s{s_c0}, s{s_c0}, {round(32 * (t0 - BIAS))}")
        if GR:
            A(f"s_ashr_i32 s{s_dev}, s{s_c0}, 1")
            if GEST == 3 and int(t0) in GR:
                A(f"s_add_i32 s{s_own}, s{s_dev}, 128")
        if NLO:
            A(f"s_add_i32 s{s_c1}, s{s_c0}, {round(32 * BRK)}")
            A(f"s_mul_i32 s{s_c1}, s{s_c1}, {-round(BGAIN * 8)}")
            A(f"s_ashr_i32 s{s_c1}, s{s_c1}, 8")
            A(f"s_min_i32 s{s_c1}, s{s_c1}, {NMAXB}")
            A(f"s_add_i32 s{s_brk}, s{s_c1}, {tn}")
            if GBRK:
                A(f"s_max_i32 s{s_brk}, s{s_brk}, s{s_gk}")
        A(f"s_mul_i32 s{s_c0}, s{s_c0}, {round(GAIN * 8)}")
        A(f"s_ashr_i32 s{s_c0}, s{s_c0}, 8")
        A(f"s_min_i32 s{s_c0}, s{s_c0}, {NMAXB}")
        A(f"s_add_i32 s{s_boost}, s{s_c0}, {tn}")
        if GR and not G6:
            A(f"s_max_i32 s{s_boost}, s{s_boost}, s{s_gb}")

    def g_sample(r, k):
        def f():
            A(f"s_mov_b32 s{s_u}, {r * 8 * 4224}")
            st["gs"] = g.vmem(f"buffer_load_dword v{v_gs+k}, v{a_gs}, {srd(sWS)}, s{s_u} offen sc1", hint=True)
            if k == GWIN[0] + GWIN[1] - 1:
                pending.append((st["gs"], g_eval(r)))
        return f

    def g_publish(r):
        def f():
            assert st.get("rest")
            A(f"s_bitcmp1_b32 s{s_gpo}, 30")
            A(f"s_cbranch_scc1 L_gp{r}")
            A(f"s_add_i32 s{s_c0}, s{s_dev}, 128")
            A(f"s_max_i32 s{s_c0}, s{s_c0}, 0")
            A(f"s_min_i32 s{s_c0}, s{s_c0}, 255")
            A(f"s_mov_b32 s{s_own}, s{s_c0}")
            A(f"v_or_b32 v{v_tw}, s{s_c0}, v{v_pl}")
            A(f"s_add_u32 s{s_u}, s{s_gpo}, {r * 8 * 4224}")
            g.vmem(f"buffer_store_dword v{v_tw}, v{a_pw}, {srd(sWS)}, s{s_u} offen sc1", optional=True)
            L(f"L_gp{r}")
        return f

    def g_eval(r):
        def f():
            W = GWIN[0] + GWIN[1]
            g.wait_vm(st["gs"])
            A(f"s_bitcmp1_b32 s{s_gpo}, 30")
            A(f"s_cbranch_scc1 L_ge{r}")
            for k in range(W):
                A(f"v_xor_b32 v{v_gs+k}, s{s_tagp}, v{v_gs+k}")
            A(f"v_min_u32 v{v_tw}, 0x100, v{v_gs+W-1}")
            A(f"v_lshrrev_b32 v{v_tw+1}, 1, v{v_tw}")
            A(f"v_and_b32 v{v_tw+1}, 0x80, v{v_tw+1}")
            A(f"v_and_b32 v{v_tw}, 0xff, v{v_tw}")
            A(f"v_add_u32 v{v_tw}, v{v_tw}, v{v_tw+1}")
            for k in range(W):
                A(f"v_lshrrev_b32 v{v_gs+k}, 8, v{v_gs+k}")
                A(f"v_min_u32 v{v_gs+k}, 1, v{v_gs+k}")
                A(f"v_lshlrev_b32 v{v_gs+k}, {3 if GS2 else 4}, v{v_gs+k}")
                A(f"v_sub_u32 v{v_tw}, v{v_tw}, v{v_gs+k}")
            A(f"s_and_b32 s{s_c1}, s2, 7")
            if GEST >= 2:
                C("own group: exact position instead of the sampled arrival")
                A(f"s_sub_i32 s{s_c0}, s{s_own}, {(8 if GS2 else 16) * GWIN[0]}")
                A(f"s_mov_b32 m0, s{s_c1}")
                A(f"v_writelane_b32 v{v_tw}, s{s_c0}, m0")
                A(f"s_add_u32 m0, s{s_wb}, {slot_of(cur_t())*4096}")
            else:
                A(f"v_readlane_b32 s{s_c0}, v{v_tw}, s{s_c1}")
            for d in ("quad_perm:[1,0,3,2]", "quad_perm:[2,3,0,1]", "row_half_mirror"):
                A("s_nop 1")
                A(f"v_add_u32_dpp v{v_tw}, v{v_tw}, v{v_tw} {d} row_mask:0xf bank_mask:0xf")
            A("s_nop 0")
            A(f"v_readlane_b32 s{s_c1}, v{v_tw}, 0")
            A(f"s_lshl_b32 s{s_c0}, s{s_c0}, 3")
            A(f"s_sub_i32 s{s_c0}, s{s_c1}, s{s_c0}")
            A(f"s_add_i32 s{s_c0}, s{s_c0}, {round(128 * GOFF)}")
            A(f"s_mul_i32 s{s_c0}, s{s_c0}, {round(GK * 8)}")
            A(f"s_add_i32 s{s_c0}, s{s_c0}, 512")
            A(f"s_ashr_i32 s{s_c0}, s{s_c0}, 10")
            A(f"s_max_i32 s{s_c0}, s{s_c0}, {-GMAX - round(GBRK)}")
            A(f"s_min_i32 s{s_c0}, s{s_c0}, {GMAX}")
            A(f"s_add_i32 s{s_c0}, s{s_c0}, 128")
            A(f"v_or_b32 v{v_tw}, s{s_c0}, v{v_pl}")
            g.vmem(f"buffer_store_dword v{v_tw}, v{a_pw}, {srd(sWS)}, s{s_bc} offen offset:{4*r}", optional=True)
            L(f"L_ge{r}")
            st["geval"] = (r, st["p"])
        return f

    kf = lambda t: a_kf + 16 * (t % R)
    def KR(t):
        for j in range(4):
            A(f"ds_read_b128 {ar(kf(t)+4*j,4)}, v{v_rk+j} offset:{slot_of(t)*4096}")
    def LW(t):
        A("s_waitcnt lgkmcnt(0)")
    def QK(t):
        A("s_waitcnt lgkmcnt(0)")
        q = a_qop + 16 * (t // 64)
        for j in range(4):
            A(f"v_mfma_f32_16x16x32_bf16 {vr(v_s,4)}, {ar(kf(t)+4*j,4)}, {ar(q+4*j,4)}, " + ("0" if j == 0 else vr(v_s, 4)))
    def SC(t):
        k = t % 32
        A("s_nop 7")
        for r in range(4):
            A(f"v_cvt_pk_bf16_f32 v{v_s+r}, 0, v{v_s+r}")
        for r in range(4):
            A(f"v_mul_f32 v{v_s+r}, " + (f"{f2u(128 ** -0.5):#x}" if UNT else f"s{s_rs}") + f", v{v_s+r}")
        if k == 0:
            A(f"v_max_f32 v{v_mx}, v{v_s}, v{v_s+1}")
        else:
            A(f"v_max3_f32 v{v_mx}, v{v_mx}, v{v_s}, v{v_s+1}")
        A(f"v_cvt_pk_bf16_f32 v{v_sc+2*k}, v{v_s}, v{v_s+1}")
        A(f"v_max3_f32 v{v_mx}, v{v_mx}, v{v_s+2}, v{v_s+3}")
        A(f"v_cvt_pk_bf16_f32 v{v_sc+2*k+1}, v{v_s+2}, v{v_s+3}")
    def MX(t):
        C("true maximum of this wave's scores per head")
        assert t < 64 or st["dumpA"]
        A(f"v_mov_b32 v{v_mt}, v{v_mx}")
        A("s_nop 1")
        A(f"v_permlane32_swap_b32 v{v_mx}, v{v_mt}")
        A(f"v_max_f32 v{v_mx}, v{v_mx}, v{v_mt}")
        A(f"v_mov_b32 v{v_mt}, v{v_mx}")
        A("s_nop 1")
        A(f"v_permlane16_swap_b32 v{v_mx}, v{v_mt}")
        A(f"v_max_f32 v{v_mx}, v{v_mx}, v{v_mt}")
        A(f"v_cvt_pk_bf16_f32 v{v_m}, 0, v{v_mx}")
        A(f"v_mul_f32 v{v_nmc}, {f2u(-LOG2E):#x}, v{v_m}")
        stamp("endKA" if t < 64 else "endKB")
    def PP(t):
        k = t % 32
        A(f"v_lshlrev_b32 v{v_s}, 16, v{v_sc+2*k}")
        A(f"v_and_b32 v{v_s+1}, 0xffff0000, v{v_sc+2*k}")
        A(f"v_lshlrev_b32 v{v_s+2}, 16, v{v_sc+2*k+1}")
        A(f"v_and_b32 v{v_s+3}, 0xffff0000, v{v_sc+2*k+1}")
        for r in range(4):
            A(f"v_fma_f32 v{v_s+r}, v{v_s+r}, s{s_c}, v{v_nmc}")
        for r in range(4):
            A(f"v_exp_f32 v{v_s+r}, v{v_s+r}")
        A(f"v_cvt_pk_bf16_f32 v{v_sc+2*k}, v{v_s}, v{v_s+1}")
        A(f"v_cvt_pk_bf16_f32 v{v_sc+2*k+1}, v{v_s+2}, v{v_s+3}")
        if k & 1:
            A("s_nop 1")
            A(f"v_mfma_f32_16x16x32_bf16 {ar(a_l,4)}, {vr(v_one,4)}, {vr(v_sc+2*k-2,4)}, " + ("0" if k == 1 else ar(a_l, 4)))
    def VR(t):
        assert st["rest"]
        for cb in range(8):
            A(f"ds_read_b64_tr_b16 {ar(a_vf+4*cb+2*(t&1),2)}, v{v_rv+cb} offset:{slot_of(t)*4096}")
    def pv(t, cb):
        k = t % 32 - 1
        assert ("PP", t) in done
        A(f"v_mfma_f32_16x16x32_bf16 {ar(a_o+4*cb,4)}, {ar(a_vf+4*cb,4)}, {vr(v_sc+2*k,4)}, " + ("0" if k == 0 else ar(a_o + 4 * cb, 4)))
    def PVa(t):
        A("s_waitcnt lgkmcnt(0)")
        for cb in range(4):
            pv(t, cb)
    def PVb(t):
        for cb in range(4, 8):
            pv(t, cb)
        if t == 63:
            stamp("endVA")

    main = []
    for t in range(R):
        main += [(KR, t, pos_of(t, 3), False), (LW, t, None, False)]
    for t in range(NT):
        if isK(t):
            if t >= R:
                main.append((KR, t, pos_of(t, 3), True))
            main += [(QK, t, None, True), (SC, t, None, True)]
            if t % 32 == 31:
                main.append((MX, t, None, True))
        elif t % 2 == 0:
            main.append((VR, t, pos_of(t, 3), True))
        else:
            main += [(VR, t, pos_of(t, 3), True), (PVa, t, None, True), (PVb, t, None, True)]
    is_in = lambda pl: pl in ids and g.done(ids[pl])
    done = set()
    ppq = [t for t in range(NT) if not isK(t)]

    mark = lambda k: (lambda: st.__setitem__(k, True))
    side = []
    side.append((P0, gate_loads, False))
    for f in g.split(setup_head, CH):
        side.append((P0, f, False))
    side.append((P0, mark("setup"), True))
    side.append((lambda p: g.done(st["gate"]), mark("gate_in"), True))
    for f in g.split(setup_gate, CH):
        side.append((P0, f, False))
    side.append((PQ, lambda: qloads(True), True))
    side.append((lambda p: g.done(st["q"]), lambda: (q_validate(), st.__setitem__("pV", st["p"])), True))
    side.append((lambda p: p >= st["pV"] + QLAG, q_fetch, True))
    side.append((0, q_fetch_b, False))
    for f in g.split(setup_rest, CH):
        side.append((0, f, False))
    side.append((0, mark("rest"), True))
    def dumpA():
        A("s_nop 5")
        lanes_h()
        dump_ml(0)
        dump_o(0)
        A("s_mov_b64 exec, -1")
        st["dumpA"] = True
    side.append((lambda p: ("PVb", 63) in done, dumpA, False))
    def dumpB():
        A("s_nop 5")
        lanes_h()
        dump_ml(1)
        A("s_mov_b64 exec, -1")
        A("s_waitcnt lgkmcnt(0)")
        A(f"ds_write_b32 v{a_fw}, v{v_one} offset:16")
        st["pB"] = st["p"]
    side.append((lambda p: ("PP", NT - 1) in done, dumpB, False))
    def lam_read():
        flag_wait("L_lflag", 16)
        A(f"ds_read_b128 {vr(B,4)}, v{a_mlr}")
        A(f"ds_read_b128 {vr(B+4,4)}, v{a_mlr} offset:128")
    side.append((lambda p: p >= st["pB"] + LLAG, lam_read, False))
    for f in g.split(lam_math, CH):
        side.append((0, f, False))
    side.append((0, lam_store, True))
    side.append((PWG, lambda: lamloads(True), True))
    side.append((lambda p: g.done(st["lam"]), lam_validate, True))
    for f in g.split(wgt_math, 24):
        side.append((0, f, False))
    side.append((0, lambda: comb_read(0), True))
    side.append((0, lambda: comb_math(0, False), False))

    extra = []
    for t in range(C0 - 2, NT - CEND, CK):
        extra.append((pos_of(t, 2), ctl_load))
    for r, tr in enumerate(GR):
        assert GWIN[0] + GWIN[1] <= 12
        for k in range(GWIN[0] + GWIN[1]):
            if GS2:
                extra.append((pos_of(tr, 3) + 4 + 2 * (k - GWIN[0]), g_sample(r, k)))
            else:
                extra.append((pos_of(tr - GWIN[0] + k + 1, 3), g_sample(r, k)))
        extra.append((pos_of(tr, 2), g_publish(r)))
    if CP:
        extra.append((CP, code_pre))
    if TW:
        for k in TWK:
            extra.append((OFF + 128 * k - TW, touch(k)))
    if WARM2 and W2P >= 0:
        extra.append((pos_of(NT - 1, 3) - W2P, warm2))
    extra.sort(key=lambda x: x[0])

    mi = si = ci = 0
    for p in range(P0 + PX, len(Z) - WOL - WOA):
        z = Z[p]
        st["p"] = p
        if z[0] == "kv" and z[2] == 0 and z[1] >= NSLOT:
            prev = z[1] - NSLOT
            assert (("QK", prev) in done or ("LW", prev) in done) if isK(prev) else ("PVa", prev | 1) in done, (p, z)
        issue(p)
        while ci < len(extra) and extra[ci][0] <= p:
            extra[ci][1]()
            ci += 1
        for x in [x for x in pending if g.done(x[0])]:
            pending.remove(x)
            x[1]()
        used = 0
        if ppq and ("MX", ppq[0] // 32 * 32 - 1) in done:
            t = ppq.pop(0)
            PP(t)
            done.add(("PP", t)); log.append((p, "PP", t))
        while mi < len(main):
            f, t, ld, nq = main[mi]
            if (ld is not None and not is_in(ld)) or (nq and not st.get("qready")) or (f is PVa and ("PP", t) not in done):
                break
            behind = t + 1 < NT and is_in(pos_of(t + 1, 3)) and nq
            if used >= (CATCH if behind else 1):
                break
            f(t)
            done.add((f.__name__, t)); log.append((p, f.__name__, t))
            used += f is not LW
            mi += 1
        while si < len(side) and (used == 0 or side[si][2]):
            e, f, forced = side[si]
            if not (e(p) if callable(e) else e <= p):
                break
            f()
            log.append((p, "side", si))
            si += 1
            if not forced:
                used += 1
    assert si == len(side) and not ppq and ci == len(extra) and not pending, (si, len(side))
    C("---- drain ----")
    while mi < len(main):
        f, t, ld, nq = main[mi]
        if ld is not None:
            g.wait_vm(ids[ld])
            if t == NT - 1:
                stamp("vlast")
        if t == NT - 1 and f is PVa:
            for p in range(len(Z) - WOL - WOA, len(Z) - WOA):
                issue(p, throttle=False)
        if t == NT - 1 and f is PVa and FD:
            wr = lambda cb: A(f"ds_write_b128 v{a_cwb}, {ar(a_o+4*cb,4)} offset:{FSLOT*4096+cb*64}")
            lanes_h()
            for cb in range(8):
                A(f"s_waitcnt lgkmcnt({7 - cb + max(0, cb - 4)})")
                pv(t, cb)
                if cb >= 4:
                    wr(cb - 4)
            wr(4); wr(5)
            A("s_nop 1")
            wr(6)
            A("s_nop 1")
            wr(7)
        elif t == NT - 1 and f is PVa:
            for cb in range(8):
                A(f"s_waitcnt lgkmcnt({7-cb})")
                pv(t, cb)
        elif not (t == NT - 1 and f is PVb):
            f(t)
        mi += 1
    stamp("drained")

    C("---- combine the four waves, publish both branches ----")
    if not FD:
        lanes_h()
        dump_o(1)
    A("s_mov_b32 exec_lo, -1")
    A("s_mov_b32 exec_hi, 0")
    A("s_waitcnt lgkmcnt(0)")
    A("s_barrier")
    stamp("bar")
    comb_read(1)
    if GATE:
        C("report the end of this workgroup's stream and look at the group's")
        A(f"s_cmp_eq_u32 s{s_w}, 0")
        A(f"s_cselect_b32 s{s_u}, s{s_pro}, {WS_SIZE:#x}")
        A(f"v_or_b32 v{v_pd}, 0x80, v{v_pl}")
        A(f"buffer_load_dword v{v_ct}, v{a_pr}, {srd(sWS)}, 0 offen sc1")
        A(f"buffer_store_dword v{v_pd}, v{a_pw}, {srd(sWS)}, s{s_u} offen")
    comb_math(1, True)
    def gate(k):
        C("nothing below is urgent while much of the group still streams values: let those go first (bounded)")
        A(f"s_mov_b32 s{s_cnt}, {GATE[1]}")
        A(f"s_waitcnt vmcnt({k})")
        L("L_gate")
        A(f"v_cmp_eq_u32 vcc, v{v_pd}, v{v_ct}")
        A(f"s_bcnt1_i32_b32 s{s_c0}, vcc_lo")
        A(f"s_cmp_ge_u32 s{s_c0}, {GATE[0]}")
        A("s_cbranch_scc1 L_gate_ok")
        A(f"s_sub_u32 s{s_cnt}, s{s_cnt}, 1")
        A("s_cbranch_scc1 L_gate_ok")
        A(f"buffer_load_dword v{v_ct}, v{a_pr}, {srd(sWS)}, 0 offen sc1")
        A("s_waitcnt vmcnt(0)")
        A("s_branch L_gate")
        L("L_gate_ok")
    if GATE and GATE[2] == 2:
        gate(1)
    A(f"buffer_store_dwordx4 {vr(v_pub,4)}, v{a_l16}, {srd(sWS)}, s{s_h1pub} offen sc1")
    A("s_mov_b64 exec, -1")
    stamp("pub1")
    if GATE and GATE[2] == 1:
        gate(2)
    if WARM2 and W2P < 0:
        warm2()
    for p in range(len(Z) - WOA, len(Z)):
        issue(p, throttle=False)
    C("the output-projection weights were the last loads of the stream")
    A(f"s_waitcnt vmcnt({WOK})")
    def h1loads():
        for i in range(4):
            A(f"buffer_load_dwordx4 {vr(B+4*i,4)}, v{a_g1}, {srd(sWS)}, s{s_h1get} offen offset:{i*512} sc1")
    h1loads()
    if WOK:
        A("s_waitcnt vmcnt(4)")
    stamp("wo")
    A("s_barrier")
    for k in range(8):
        for hf in range(2):
            A(f"ds_read_b64_tr_b16 {ar(a_wop+k*4+hf*2,2)}, v{a_wor} offset:{k*4096+hf*2048}")
    A("s_branch L_h1wait")
    C("---- sum the 16 partials of (dims half, batch) with a selector product ----")
    L("L_h1poll")
    if SL1:
        A(f"s_sleep {SL1}")
    h1loads()
    spin_guard()
    L("L_h1wait")
    for i in range(4):
        A(f"s_waitcnt vmcnt({3-i})")
        for e in range(4):
            A(f"v_xor_b32 v{B+4*i+e}, v{v_pat+e}, v{B+4*i+e}")
        if i == 0:
            A(f"v_or_b32 v{T}, v{B}, v{B+1}")
        else:
            A(f"v_or3_b32 v{T}, v{T}, v{B+4*i}, v{B+4*i+1}")
        A(f"v_or3_b32 v{T}, v{T}, v{B+4*i+2}, v{B+4*i+3}")
        A(f"v_mfma_f32_16x16x32_bf16 {vr(v_d,4)}, {vr(v_sel,4)}, {vr(B+4*i,4)}, " + ("0" if i == 0 else vr(v_d, 4)))
    A(f"v_and_b32 v{T}, 0x00010001, v{T}")
    A(f"v_cmp_ne_u32 vcc, 0, v{T}")
    A("s_cbranch_vccnz L_h1poll")
    stamp("h1ok")
    A("s_mov_b32 exec_hi, 0")
    A("s_nop 3")
    A(f"v_cvt_pk_bf16_f32 v{T}, v{v_d}, v{v_d+1}")
    A(f"v_cvt_pk_bf16_f32 v{T+1}, v{v_d+2}, v{v_d+3}")
    A(f"ds_write_b64 v{a_ow}, {vr(T,2)}")
    A("s_mov_b64 exec, -1")
    A("s_waitcnt lgkmcnt(0)")
    A("s_barrier")
    stamp("bar2")
    OPD = v_sc
    for k in range(8):
        A(f"ds_read_b128 {vr(OPD+4*k,4)}, v{a_or} offset:{(k>>2)*512+(k&3)*64}")
    A(f"v_mov_b32 v{T+2}, s{s_tag12}")
    A(f"s_add_u32 s{s_t2}, s{s_h2pub}, {WS_P2-WS_P1}")
    for k in range(8):
        A(f"s_waitcnt lgkmcnt({7-k})")
        A(f"v_mfma_f32_16x16x32_bf16 {vr(v_d+4,4)}, {ar(a_wop+4*k,4)}, {vr(OPD+4*k,4)}, " + ("0" if k == 0 else vr(v_d + 4, 4)))
    A("s_mov_b32 exec_lo, 0x00030003")
    A("s_mov_b32 exec_hi, 0x00030003")
    A(f"s_cmp_ge_u32 s{s_f}, 32")
    A("s_nop 4")
    for r in range(4):
        A(f"v_add_u32 v{v_d+4+r}, 0x800, v{v_d+4+r}")
    for r in range(4):
        A(f"v_and_or_b32 v{v_d+4+r}, v{v_d+4+r}, s{s_m12}, v{T+2}")
    C("once for a reader behind the same L2, once written through for any other placement")
    A(f"buffer_store_dwordx4 {vr(v_d+4,4)}, v{a_p2}, {srd(sWS)}, s{s_h2pub} offen {P1SC}")
    stamp("pub2")
    A("s_cbranch_scc0 L_final")
    if not NOP2:
        A(f"buffer_store_dwordx4 {vr(v_d+4,4)}, v{a_p2}, {srd(sWS)}, s{s_t2} offen sc1")
    A("s_branch L_fin" if diag or pad else "s_endpgm")
    L("L_final")
    A("s_mov_b64 exec, -1")

    C("---- final reduction over the 32 heads ----")
    F = B
    A(f"s_lshl_b32 s{s_t0}, s{s_f}, 5")
    A(f"s_mov_b32 s{s_cnt}, {P2AFTER}")
    L("L_h2poll")
    if SL2:
        A(f"s_sleep {SL2}")
    h2loads(s_h2get)
    spin_guard()
    A(f"s_sub_u32 s{s_cnt}, s{s_cnt}, 1")
    A("s_cbranch_scc1 L_h2switch")
    L("L_h2wait")
    for j in range(4):
        A(f"s_waitcnt vmcnt({3-j})")
        for e in range(4):
            A(f"v_xor_b32 v{F+4*j+e}, s{s_tag12}, v{F+4*j+e}")
        if j == 0:
            A(f"v_or_b32 v{T}, v{F}, v{F+1}")
            A(f"v_or3_b32 v{T}, v{T}, v{F+2}, v{F+3}")
        else:
            A(f"v_or3_b32 v{T}, v{T}, v{F+4*j}, v{F+4*j+1}")
            A(f"v_or3_b32 v{T}, v{T}, v{F+4*j+2}, v{F+4*j+3}")
            for e in range(4):
                A(f"v_add_f32 v{F+e}, v{F+e}, v{F+4*j+e}")
    A(f"v_and_b32 v{T}, 0xfff, v{T}")
    A(f"v_cmp_ne_u32 vcc, 0, v{T}")
    A("s_cbranch_vccnz L_h2poll")
    A(f"v_permlane32_swap_b32 v{F}, v{F+1}")
    A(f"v_permlane32_swap_b32 v{F+2}, v{F+3}")
    A(f"v_add_f32 v{F}, v{F}, v{F+1}")
    A(f"v_add_f32 v{F+2}, v{F+2}, v{F+3}")
    A("s_nop 1")
    A(f"v_permlane16_swap_b32 v{F}, v{F+2}")
    A(f"v_add_f32 v{F}, v{F}, v{F+2}")
    A("s_nop 1")
    A(f"v_add_f32_dpp v{F}, v{F}, v{F} row_ror:8 row_mask:0xf bank_mask:0xf")
    A(f"v_cvt_pk_bf16_f32 v{F}, v{F}, v{F}")
    A("s_mov_b32 exec_lo, 0x00ff00ff")
    A("s_mov_b32 exec_hi, 0x00ff00ff")
    A(f"buffer_store_short v{F}, v{a_out}, {srd(sO)}, s{s_t0} offen {OSC}")
    A(f"s_cmp_lg_u32 s{s_f}, 0")
    A("s_cbranch_scc1 L_fin")
    C("every workgroup has published, hence read, the epoch word: advance it")
    A("s_mov_b64 exec, 1")
    A(f"v_mov_b32 v{T}, s{s_tag32}")
    A(f"v_mov_b32 v{T+1}, 0")
    A(f"buffer_store_dword v{T}, v{T+1}, {srd(sWS)}, 0 offen offset:{WS_E} sc1")
    L("L_fin")
    stamp("end")
    if diag:
        A("s_mov_b64 exec, 1")
        A("s_waitcnt lgkmcnt(0)")
        if diag == 2:
            A("s_sleep 100")
        A(f"s_lshl2_add_u32 s{s_t0}, s2, s{s_w}")
        A(f"s_lshl_b32 s{s_t0}, s{s_t0}, 5")
        A(f"s_add_u32 s{s_t0}, s{s_t0}, {WS_DIAG}")
        for i in range(8):
            A(f"v_mov_b32 v{v_sc+40+i}, s{s_st+2*i}")
        A(f"v_mov_b32 v{T+3}, 0")
        A(f"buffer_store_dwordx4 {vr(v_sc+40,4)}, v{T+3}, {srd(sWS)}, s{s_t0} offen")
        A(f"buffer_store_dwordx4 {vr(v_sc+44,4)}, v{T+3}, {srd(sWS)}, s{s_t0} offen offset:16")
    L("L_end")
    A("s_endpgm")

    L("L_h2switch")
    C("not complete behind this L2: add this wave's own line to the written-through copy and read that from now on")
    A("s_waitcnt vmcnt(0)")
    A("s_mov_b32 exec_lo, 0x00030003")
    A("s_mov_b32 exec_hi, 0x00030003")
    A(f"buffer_store_dwordx4 {vr(v_d+4,4)}, v{a_p2}, {srd(sWS)}, s{s_t2} offen sc1")
    A("s_mov_b64 exec, -1")
    A(f"s_add_u32 s{s_h2get}, s{s_h2get}, {WS_P2-WS_P1}")
    A("s_waitcnt vmcnt(0)")
    A("s_branch L_h2poll")
    for label, back, loads in (("L_lretry", "L_lcheck", lambda: lamloads(False)), ("L_qretry", "L_qcheck", lambda: qloads(False))):
        L(label)
        spin_guard()
        loads()
        A("s_waitcnt vmcnt(0)")
        A(f"s_branch {back}")

    acc = (NV + 3) // 4 * 4
    g.o.append('.section .rodata,"a"')
    g.o.append(".p2align 6")
    g.o.append(f".amdhsa_kernel {KNAME}")
    g.o.append(f"  .amdhsa_next_free_vgpr {acc+NA}")
    g.o.append("  .amdhsa_next_free_sgpr 102")
    g.o.append(f"  .amdhsa_accum_offset {acc}")
    g.o.append("  .amdhsa_group_segment_fixed_size 0")
    g.o.append("  .amdhsa_kernarg_size 112")
    g.o.append("  .amdhsa_user_sgpr_count 2")
    g.o.append("  .amdhsa_user_sgpr_kernarg_segment_ptr 1")
    g.o.append("  .amdhsa_system_sgpr_workgroup_id_x 1")
    g.o.append("  .amdhsa_float_denorm_mode_32 3")
    g.o.append(".end_amdhsa_kernel")
    gen.log = log
    return "\n".join(g.o) + "\n"


if __name__ == "__main__":
    kw = {}
    for a in sys.argv[2:]:
        k, v = a.split("=")
        kw[k] = eval(v)
    src = gen(**kw)
    open(sys.argv[1], "w").write(src)
```

```python
import sys, math, struct

KNAME = "gated_mix__gqa_block_cached__gqa_block_cached__decode_kernel"

WS_E = 0x0
WS_QB = 0x1000
WS_LB = 0x30000
WS_P1 = 0x40000
WS_P2 = 0x60000
WS_PR = 0x80000
WS_GP = 0x90000
WS_H1 = 0x100000
WS_DIAG = 0x200000
WS_SIZE = 0x400000
EPOCH_INC = 0x9E3779B1

NSLOT = 7
RING = NSLOT * 4096
STG = 4 * RING
SCR = STG + 32768
QP, QX, OPA, ML, OX, FL = 0, 2048, 4096, 12288, 12544, 13568
LDS_BYTES = 163840

PATS = {
    "P1": ([[14], [15], [16], [17], [18]], [[12], [13]], [[19], [20], [21], [22]]),
    "T2": ([[14], [17], [18], [19], [20]], [[12], [13]], [[15], [16], [21], [22]]),
    "U4": ([[14], [22], [17], [18], [19]], [[12], [13]], [[15], [16], [21], [20]]),
    "L1": ([[22], [17], [18], [19], [20]], [[12], [14]], [[15], [16], [13], [21, 13]]),
    "L2": ([[21, 13], [22], [17], [18], [19]], [[12], [14]], [[15], [16], [13], [20]]),
    "U5": ([[14], [22], [17], [18], [19]], [[12, 17], [13, 18]], [[15], [16], [21, 18], [20]]),
}


DOC = """
One launch, 256 workgroups (one per CU) of 4 waves, straight-line code written by a generator script.
Workgroup = (batch b, kv head, one of 16 key splits); it serves both branches, 512 keys per wave and branch.
Stream (LDS-DMA, nt, a handful of 1-KiB loads in flight per wave): wq slice, K_A, V_A, K_B, V_B, wo slice.
  The whole chip reads one cache at a time; K tiles become bf16 scores kept in registers, the exact
  maximum of a wave's scores is taken after its K phase, V tiles are accumulated with MFMA.
Hand-offs between workgroups go through d_ws. Every dword carries tag bits of this launch's epoch
(word 0 of d_ws plus an odd constant; the last stage advances the word), so readers tell fresh data
from whatever the workspace held before, and poll (bounded) until all of it is fresh:
  q      : each workgroup projects 32 columns for both batches; write-through stores
  lambda : log-sum-exp of every split, exchanged during V_B, gives each split its softmax share
  o      : weighted partial outputs of both branches; write-through stores
  out    : projected partials per head, stored twice: plainly (seen quickly by a reader behind the same L2)
           and written through (read instead when the first copy does not complete, so any placement works)
Tile indices are also reported through d_ws; a wave that lags its neighbours keeps one or two more
loads in flight for a while. Those words only steer the load depth, never a result.
"""


def f2u(x):
    return struct.unpack("<I", struct.pack("<f", x))[0]


class Gen:
    def __init__(self):
        self.o = []
        self.fl = {"D": [], "L": [], "H": []}
        self.kind = {}
        self.nid = 0

    def A(self, s):
        self.o.append("  " + s)

    def L(self, s):
        self.o.append(s + ":")

    def C(self, s):
        self.o.append("  ; " + s)

    def vmem(self, s, optional=False, hint=False):
        self.A(s)
        self.nid += 1
        if not optional:
            k = "H" if hint or "store" in s else "D" if s.endswith(" lds") else "L"
            self.kind[self.nid] = k
            for level in {"D": "DLH", "L": "LH", "H": "H"}[k]:
                self.fl[level].append(self.nid)
        return self.nid

    def done(self, op):
        return op not in self.fl[self.kind[op]]

    def after(self, op, level="H"):
        return len(self.fl[level]) - 1 - self.fl[level].index(op)

    def _wait(self, k):
        assert k <= 63
        self.A(f"s_waitcnt vmcnt({k})")
        for level, l in self.fl.items():
            if k < len(l):
                self.fl[level] = l[len(l) - k:] if k else []

    def throttle(self, op):
        if op not in self.fl["H"]:
            return False
        self._wait(self.after(op))
        return True

    def wait_vm(self, op):
        if self.done(op):
            return False
        self._wait(self.after(op, self.kind[op]))
        return True

    def split(self, fn, n):
        keep, self.o = self.o, []
        nvm = self.nid
        fn()
        assert self.nid == nvm
        body, self.o = self.o, keep
        out, cur, k = [], [], 0
        for line in body:
            assert not line.endswith(":") and "cbranch" not in line and "s_cmp" not in line and "vcc" not in line \
                and "exec" not in line and "cselect" not in line, line
            cur.append(line)
            if not line.strip().startswith(";"):
                k += 1
            if k == n:
                out.append(cur); cur, k = [], 0
        if cur:
            out.append(cur)
        return [(lambda c=c: self.o.extend(c)) for c in out]


def gen(N=5, Npat=None, N0=8, NH=5, PH=64, NB=None, BL=16, BZ=(1, 2, 3, 4), NWO=10, R=5, PQ=36, QLAG=3, LLAG=8, PWG=484, CH=16,
        PAT="U4", XM=None, NHI=7, CK=4, C0=16, GAIN=3.0, BIAS=2.3, NMAXB=8, PT=4,
        SL1=0, SL2=0, P2AFTER=20, WARM2=True, TW=False, FWAVE=0, P1SC="", GR=(21, 41, 63, 83, 101), GWIN=(4, 6), GK=12.0, GOFF=0.4, GMAX=22,
        WOL=2, WOA=6, PX=2, NLO=None, BRK=1.0, BGAIN=3.0, GBRK=0.0, CEND=5, WOK=4, W2P=-1, CP=20, UNT=0, UNE=False, GEST=1, GACT=True, GS2=False, GPICK=8, WOH=0, WOT=32, XP=0, CP0=24, NOP2=False, skip=(), CATCH=3, Q32=True, G6=True, EUP=0, PMX=(0, 0, 0, 0), END=None, FD=True, CPM=1, GATE=None, T0=0, TWK=(1, 2, 3, 4), OSC='',
        diag=False, SPIN=1 << 21, pad=None, smap="head"):
    g = Gen()
    A, L, C = g.A, g.L, g.C
    LOG2E = math.log2(math.e)
    Npat = Npat or [N]
    P0, OFF = 16, 8
    def Nof(p):
        if p < P0:
            return N0
        if p < PH:
            return NH
        if p >= OFF + 512 + WOH:
            return NWO
        if NB:
            for k in BZ:
                if OFF + 128 * k - BL <= p < OFF + 128 * k:
                    return NB
        if G6 and p >= OFF + 4 * C0:
            return N + 1
        return Npat[p % len(Npat)]
    PC0 = OFF + 4 * C0
    def Nguar(p):
        if END and p >= OFF + WOH + 4 * END[0]:
            return max(Nof(p), END[1])
        return max(Nof(p), NHI) if p >= PC0 else Nof(p)

    sKV = [20, 24, 28, 32]
    sWQ, sWO, sWS, sX, sG, sO = 36, 40, 44, 48, 52, 56
    srd = lambda b: f"s[{b}:{b+3}]"
    (s_w, s_b, s_hkv, s_j, s_kvb, s_kvoff, s_wb, s_stg, s_tag32, s_tag8, s_tag12, s_c, s_rs, s_t0, s_t1, s_t2, s_t3,
     s_wqoff, s_wooff, s_spin, s_colb, s_m12) = range(60, 82)
    s_qoff, s_perm, s_h1pub, s_h1get, s_h2pub, s_h2get, s_lpub, s_lget, s_m15, s_f, s_cnt = range(3, 14)
    s_boost, s_pph, s_pro, s_tagp, s_u, s_xm = range(14, 20)
    s_brk, s_bm, s_gk = s_colb, s_wqoff, s_qoff
    s_own = s_hkv
    s_tag16 = s_m12
    s_kvb2 = s_rs if UNT else None
    s_c0, s_c1 = 100, 101
    s_gb, s_dev, s_gpo, s_bc = 36, 37, 38, 39
    s_fw = 48
    s_st = 84

    v_g, v_n, v_c, v_r = 2, 3, 4, 5
    a_pw, a_pr, v_pd, v_pl = 6, 7, 8, 9
    v_dv, v_rk, v_rv = 10, 12, 16
    v_mx, v_m, v_nmc, v_gf, v_mt = 24, 25, 26, 27, 28
    (a_wo, a_q, a_qw, a_qr, a_fw, a_fr, a_cwa, a_cwb, a_cml, a_cra, a_crb, a_crb2, a_mlr, a_l16, a_g1, a_ow, a_or,
     a_p2, a_lg, a_out, a_wor) = range(29, 50)
    v_ct = 50
    v_s = 52
    v_one = 56
    v_d = 60
    v_sc = 68
    T = 132
    B = 140
    v_pub = 164
    v_pat = 168
    v_sel = 172
    v_aw = 176
    v_tw = 180
    a_gs = 182
    v_gs = 184
    NV = 196
    a_qop = 0
    a_vf = 32
    a_wop = 64
    a_o = 96
    a_l = 128
    a_kf = 132
    NA = a_kf + 16 * R
    assert NA <= 256
    vr = lambda b, n: f"v[{b}:{b+n-1}]"
    ar = lambda b, n: f"a[{b}:{b+n-1}]"

    SMAPS = {"head": ["start", "qpub", "qval", "endKA", "endVA", "endKB", "drained", "end"],
             "tail": ["start", "drained", "bar", "pub1", "bar2", "h1ok", "pub2", "end"],
             "rounds": ["start"] + [f"t{t}" for t in list(GR)[:5]] + ["drained", "end"],
             "early": ["start", "p0", "p8", "p15", "qpub", "p24", "p40", "end"],
             "early2": ["start", "p20", "p28", "p36", "p48", "p64", "p96", "end"],
             "early3": ["start", "p0", "p4", "a", "b", "c", "p8", "end"],
             "late": ["start", "t100", "t110", "t116", "t121", "t125", "drained", "end"],
             "tail3": ["start", "vlast", "pub1", "wo", "h1ok", "bar2", "pub2", "end"],
             "tail2": ["start", "drained", "pub1", "wo", "h1ok", "bar2", "pub2", "end"]}
    def stamp(name):
        if name not in SMAPS[smap]:
            return
        i = SMAPS[smap].index(name)
        if diag or (pad and i == 0):
            A(f"s_memrealtime s[{s_st+2*i}:{s_st+2*i+1}]")
        if pad and pad[0] == i:
            L("L_pad")
            A("s_memrealtime s[82:83]")
            A("s_waitcnt lgkmcnt(0)")
            A(f"s_sub_u32 s82, s82, s{s_st}")
            A(f"s_cmp_lt_u32 s82, {int(pad[1]*100)}")
            A("s_cbranch_scc1 L_pad")

    hdr = open("gated_mix__gqa_block_cached__gqa_block_cached__decode.s.ref").read().split("\n")
    for line in hdr:
        if line.startswith(";") and "@launch" not in line:
            g.o.append(line)
        elif not line.startswith(";"):
            break
    g.o.append(f"; @launch grid=(256,1,1) block=(256,1,1) lds={LDS_BYTES}")
    g.o.append('.amdgcn_target "amdgcn-amd-amdhsa--gfx950"')
    for line in DOC.strip("\n").split("\n"):
        g.o.append(("; " + line).rstrip())
    g.o.append(".text")
    g.o.append(f".globl {KNAME}")
    g.o.append(".p2align 8")
    g.o.append(f".type {KNAME},@function")
    L(KNAME)
    C("workgroup = (b, hkv, one of 16 key splits) for both branches; extra workgroups leave at once")
    A("s_cmp_ge_u32 s2, 256")
    A("s_cbranch_scc0 L_go")
    A("s_endpgm")
    L("L_go")
    A(f"s_lshr_b32 s{s_b}, s2, 7")
    A(f"s_mul_i32 s3, s{s_b}, 40")
    A("s_add_u32 s16, s0, s3")
    A("s_addc_u32 s17, s1, 0")
    A("s_load_dwordx2 s[14:15], s[16:17], 24")
    A("s_load_dwordx4 s[4:7], s[0:1], 8")
    A("s_load_dwordx2 s[12:13], s[0:1], 0")
    A("s_load_dwordx2 s[18:19], s[0:1], 104")
    A("s_load_dwordx4 s[8:11], s[0:1], 48")
    A("s_load_dwordx4 s[96:99], s[0:1], 80")
    stamp("start")
    if CP0:
        C("wave 0 pulls the next lines of this code into L2 while the memory system is still idle")
        A("s_getpc_b64 s[82:83]")
        A(f"v_lshlrev_b32 v{T+6}, 7, v0")
        A(f"v_cmp_gt_u32 vcc, {CP0}, v0")
        A("s_mov_b64 exec, vcc")
        A("s_cbranch_execz L_nocp0")
        g.vmem(f"global_load_dword v{T+7}, v{T+6}, s[82:83] offset:128", optional=True)
        L("L_nocp0")
        A("s_mov_b64 exec, -1")
    A(f"v_lshrrev_b32 v{T}, 6, v0")
    A("v_and_b32 v1, 63, v0")
    A(f"v_readfirstlane_b32 s{s_w}, v{T}")
    if Q32:
        C("q slice: branch b, columns hkv*512 + (s&7)*64 + (s>>3)*32, rows w*128..")
        A(f"v_lshrrev_b32 v{T+2}, 2, v1")
        A(f"v_lshlrev_b32 v{T+2}, 13, v{T+2}")
        A(f"v_and_b32 v{T}, 3, v1")
        A(f"v_lshl_add_u32 v{T+2}, v{T}, 4, v{T+2}")
        A(f"s_and_b32 s{s_t0}, s2, 0x70")
        A(f"s_and_b32 s{s_t1}, s2, 7")
        A(f"s_lshl1_add_u32 s{s_t0}, s{s_t1}, s{s_t0}")
        A(f"s_bfe_u32 s{s_t1}, s2, 0x10003")
        A(f"s_add_u32 s{s_t0}, s{s_t0}, s{s_t1}")
        A(f"s_lshl_b32 s{s_colb}, s{s_t0}, 5")
        A(f"s_lshl_b32 s{s_t2}, s{s_w}, 1")
    else:
        C("q slice: branch b, columns (wg>>1 & 63)*64, rows (wg&1)*256 + w*64")
        A(f"v_lshrrev_b32 v{T+2}, 3, v1")
        A(f"v_lshlrev_b32 v{T+2}, 13, v{T+2}")
        A(f"v_and_b32 v{T}, 7, v1")
        A(f"v_lshl_add_u32 v{T+2}, v{T}, 4, v{T+2}")
        A(f"s_bfe_u32 s{s_colb}, s2, 0x60001")
        A(f"s_lshl_b32 s{s_colb}, s{s_colb}, 6")
        A(f"s_and_b32 s{s_t0}, s2, 1")
        A(f"s_lshl2_add_u32 s{s_t2}, s{s_t0}, s{s_w}")
    A(f"s_lshl_b32 s{s_t0}, s{s_t2}, 19")
    A(f"s_lshl1_add_u32 s{s_wqoff}, s{s_colb}, s{s_t0}")
    A(f"s_lshl_b32 s{s_stg}, s{s_w}, 13")
    A(f"s_add_u32 s{s_stg}, s{s_stg}, {STG}")
    A(f"s_mov_b32 s{sWQ+2}, 0x400000")
    A(f"s_mov_b32 s{sWQ+3}, 0x20000")
    A("s_waitcnt lgkmcnt(0)")
    A(f"s_mov_b32 s{sWQ}, s14")
    A(f"s_and_b32 s{sWQ+1}, s15, 0xffff")
    def mksrd(d, p, size):
        A(f"s_mov_b32 s{d}, s{p}")
        A(f"s_and_b32 s{d+1}, s{p+1}, 0xffff")
        A(f"s_mov_b32 s{d+2}, {size:#x}")
        A(f"s_mov_b32 s{d+3}, 0x20000")

    S5, WM, G4 = PATS[PAT] if isinstance(PAT, str) else PAT
    msk = lambda bs: sum(1 << b for b in bs)
    basis = {}
    for v in [msk(x) for x in S5 + WM + G4]:
        while v:
            h = v.bit_length() - 1
            if h not in basis:
                basis[h] = v
                break
            v ^= basis[h]
    assert sorted(basis) == list(range(12, 23)), "pattern is not a bijection"
    def tile_off(t):
        x = 0
        for k in range(5):
            if t >> k & 1:
                x ^= msk(S5[k])
        return x
    NT = 128
    Z = [("wq", j) for j in range(8)] + [("kv", t, j) for t in range(WOT) for j in range(4)] + [("wo", j) for j in range(WOH)] + \
        [("kv", t, j) for t in range(WOT, NT) for j in range(4)] + [("wo", j) for j in range(WOH, 8)]
    pos = {z: p for p, z in enumerate(Z)}
    pos_of = lambda t, j: pos[("kv", t, j)]
    slot_of = lambda t: t % NSLOT
    isK = lambda t: (t // 32) % 2 == 0
    ids = {}
    st = {}
    log = []
    pending = []

    def cur_t():
        p = st["p"]
        while Z[p][0] != "kv":
            p -= 1
        return Z[p][1]

    def issue(p, throttle=True):
        z = Z[p]
        need_nop = False
        if z[0] == "wq":
            if z[1]:
                A(f"s_add_u32 s{s_wqoff}, s{s_wqoff}, {0x20000 if Q32 else 0x10000:#x}")
            A(f"s_add_u32 m0, s{s_stg}, {z[1]*1024}")
            need_nop = True
        elif z[0] == "wo":
            if z[1]:
                A(f"s_add_u32 s{s_wooff}, s{s_wooff}, 8192")
            A(f"s_add_u32 m0, s{s_stg}, {z[1]*1024}")
            need_nop = True
        elif z[2] == 0:
            t = z[1]
            stamp(f"t{t}")
            un = UNT and (t % 32 < (1 << UNT) or (UNE and t % 32 >= 32 - (1 << UNT)))
            A(f"s_xor_b32 s{s_kvoff}, s{s_kvb2 if un else s_kvb}, {tile_off(t % 32) ^ PMX[t // 32]:#x}")
            A(f"s_add_u32 m0, s{s_wb}, {slot_of(t)*4096}")
            need_nop = True
            if p >= PC0 and any(Nguar(q) > Nof(q) for q in range(p, p + 4)):
                if G6:
                    A(f"s_sub_i32 s{s_bm}, s{s_gb}, {t + 1}")
                elif NLO:
                    A(f"s_sub_i32 s{s_bm}, {t}, s{s_brk}")
                A(f"s_cmp_gt_i32 s{s_boost}, {t}")
                A("s_cselect_b64 vcc, -1, 0")
                need_nop = False
                if XM and (XM[0] | XM[1]) >> (t % 32) & 1:
                    A(f"s_bitcmp1_b32 s{s_xm}, {t % 32}")
                    A("s_cselect_b64 vcc, -1, vcc")
        waited = False
        if throttle and p - Nguar(p) >= 0:
            waited = g.throttle(ids[p - Nguar(p)])
            if Nguar(p) > Nof(p) and ids[p - Nof(p)] in g.fl["H"]:
                A(f"s_cbranch_vccnz L_b{p}")
                A(f"s_waitcnt vmcnt({g.after(ids[p - Nof(p)])})")
                if NLO or G6:
                    A(f"s_bitcmp0_b32 s{s_bm}, 31")
                    A(f"s_cbranch_scc1 L_b{p}")
                    A(f"s_waitcnt vmcnt({g.after(ids[p - (NLO or N)])})")
                L(f"L_b{p}")
                waited = True
        if need_nop and not waited:
            A("s_nop 0")
        stamp(f"p{p}")
        if z[0] == "wq":
            ids[p] = g.vmem(f"buffer_load_dwordx4 v{T+2}, {srd(sWQ)}, s{s_wqoff} offen nt lds")
        elif z[0] == "wo":
            ids[p] = g.vmem(f"buffer_load_dwordx4 v{a_wo}, {srd(sWO)}, s{s_wooff} offen nt lds")
        else:
            _, t, j = z
            ids[p] = g.vmem(f"buffer_load_dwordx4 v{v_dv+(j&1)}, {srd(sKV[t//32])}, s{s_kvoff} offen offset:{j*1024} nt lds")
            if j == 1 and C0 - 8 <= t < NT - 6:
                assert st["setup"]
                A(f"s_cmp_eq_u32 s{s_pph}, {t % PT}")
                A(f"s_cselect_b32 s{s_u}, s{s_pro}, {WS_SIZE:#x}")
                A(f"v_or_b32 v{v_pd}, {t}, v{v_pl}")
                g.vmem(f"buffer_store_dword v{v_pd}, v{a_pw}, {srd(sWS)}, s{s_u} offen")

    C("wq slice -> staging")
    for p in range(8):
        issue(p, throttle=False)
    stamp("a")
    A(f"s_load_dword s{s_tag32}, s[18:19], {WS_E}" + ("" if EUP == 2 else ""))
    mksrd(sKV[0], 4, 0x8000000)
    A(f"s_mul_i32 s{s_wb}, s{s_w}, {RING}")
    C("first byte of this wave's keys")
    A(f"s_lshr_b32 s{s_kvb}, s2, 4")
    A(f"s_lshl_b32 s{s_kvb}, s{s_kvb}, 23")
    for src, ms in (("s2", G4), (f"s{s_w}", WM)):
        k = 0
        while k < len(ms):
            n = 1
            while len(ms[k]) == 1 and k + n < len(ms) and list(ms[k + n]) == [ms[k][0] + n]:
                n += 1
            if len(ms[k]) == 1:
                A(f"s_bfe_u32 s{s_t0}, {src}, {(n << 16) + k:#x}")
                A(f"s_lshl_b32 s{s_t0}, s{s_t0}, {ms[k][0]}")
            else:
                A(f"s_bitcmp1_b32 {src}, {k}")
                A(f"s_cselect_b32 s{s_t0}, {msk(ms[k]):#x}, 0")
            A(f"s_xor_b32 s{s_kvb}, s{s_kvb}, s{s_t0}")
            k += n
    if UNT:
        A(f"s_mov_b32 s{s_kvb2}, s{s_kvb}")
        for k in range(UNT):
            A(f"s_bitcmp1_b32 s2, {k}")
            A(f"s_cselect_b32 s{s_t0}, {msk(S5[k]):#x}, 0")
            A(f"s_xor_b32 s{s_kvb2}, s{s_kvb2}, s{s_t0}")
    C("DMA voffsets: 16-byte chunk index xor 2*(key&7)")
    A(f"v_lshrrev_b32 v{v_g}, 4, v1")
    A(f"v_lshlrev_b32 v{T+3}, 1, v{v_g}")
    A(f"v_xor_b32 v{T+3}, v{T+3}, v1")
    A(f"v_lshlrev_b32 v{v_dv}, 4, v{T+3}")
    A(f"v_xor_b32 v{v_dv+1}, 0x80, v{v_dv}")
    if T0:
        C("start the address translation of both key pages early")
        A("s_mov_b64 exec, 3")
        A(f"v_lshlrev_b32 v{v_tw+1}, 22, v1")
        A(f"s_andn2_b32 s{s_t0}, s{s_kvb}, 0x400000")
        g.vmem(f"buffer_load_dword v{v_tw}, v{v_tw+1}, {srd(sKV[0])}, s{s_t0} offen nt")
        A("s_mov_b64 exec, -1")
    GX = v_sc

    NKS, NCB = (4, 2) if Q32 else (2, 4)
    XOP = v_sc + 16
    def pro_x():
        C("x operand of the q projection")
        mksrd(sX, 12, 2048)
        A(f"v_and_b32 v{T+1}, 1, v1")
        A(f"v_lshlrev_b32 v{T+1}, 10, v{T+1}")
        A(f"v_lshl_add_u32 v{T+1}, v{v_g}, 4, v{T+1}")
        A(f"s_lshl_b32 s{s_t2}, s{s_t2}, 7")
        for j in range(NKS):
            st["x"] = g.vmem(f"buffer_load_dwordx4 {vr(XOP+4*j,4)}, v{T+1}, {srd(sX)}, s{s_t2} offen offset:{j*64}")
        A(f"s_lshr_b32 s{s_t0}, s{s_w}, 1")
        A(f"s_mul_i32 s{s_t0}, s{s_t0}, 40")
        A(f"s_add_u32 s82, s0, s{s_t0}")
        A("s_addc_u32 s83, s1, 0")
        A("s_load_dwordx2 s[16:17], s[82:83], 32")
        if EUP == 2:
            A("s_load_dwordx2 s[14:15], s[0:1], 96")

    def pro_rest():
        A(f"v_and_b32 v{v_n}, 15, v1")
        A(f"v_and_b32 v{v_c}, 3, v1")
        A(f"v_bfe_u32 v{v_r}, v1, 2, 2")
        mksrd(sG, 96, 1024)
        for k in range(1, 4):
            mksrd(sKV[k], 4 + 2 * k, 0x8000000)
        mksrd(sWS, 18, WS_SIZE)
        mksrd(sO, 98, 2048)
        A(f"s_bfe_u32 s{s_hkv}, s2, 0x30004")
        A(f"s_and_b32 s{s_j}, s2, 15")
        A(f"s_lshl4_add_u32 s{s_j}, s{s_b}, s{s_j}")
        C("clear the LDS flags")
        A(f"v_mov_b32 v{a_fr}, {SCR+FL}")
        A(f"v_lshl_add_u32 v{T}, v{v_n}, 2, v{a_fr}")
        A(f"v_mov_b32 v{T+1}, 0")
        A(f"ds_write_b32 v{T}, v{T+1}")
        C("LDS read addresses for K")
        A(f"v_lshl_add_u32 v{T+3}, v{v_n}, 8, s{s_wb}")
        A(f"v_and_b32 v{T+4}, 7, v{v_n}")
        A(f"v_lshlrev_b32 v{T+4}, 1, v{T+4}")
        A(f"v_xor_b32 v{T+4}, v{T+4}, v{v_g}")
        for j in range(4):
            A(f"v_xor_b32 v{v_rk+j}, {4*j}, v{T+4}")
            A(f"v_lshl_add_u32 v{v_rk+j}, v{v_rk+j}, 4, v{T+3}")
        C("q-proj addresses")
        A(f"v_lshl_add_u32 v{T}, v{v_g}, 3, v{v_r}")
        A(f"v_lshl_add_u32 v{T}, v{T}, {6 if Q32 else 7}, s{s_stg}")
        A(f"v_lshl_add_u32 v{T}, v{v_c}, 3, v{T}")
        A(f"s_lshl_b32 s{s_t0}, s{s_w}, 9")
        A(f"s_add_u32 s{s_t0}, s{s_t0}, {SCR+QP}")
        A(f"v_and_b32 v{T+1}, 1, v1")
        A(f"v_lshl_add_u32 v{T+1}, v{T+1}, {7 if Q32 else 8}, s{s_t0}")
        A(f"v_lshl_add_u32 v{T+1}, v{v_g}, 4, v{T+1}")
        A(f"v_and_b32 v{T+3}, 31, v1")
        A(f"v_lshlrev_b32 v{T+3}, 4, v{T+3}")
        A(f"v_add_u32 v{T+3}, {SCR+QP}, v{T+3}")
        A(f"v_bfe_u32 v{T+4}, v1, {3 if Q32 else 4}, 1")
        A(f"v_lshlrev_b32 v{T+4}, 14, v{T+4}")
        A(f"v_and_b32 v{T+5}, {7 if Q32 else 15}, v1")
        A(f"v_lshl_add_u32 v{T+4}, v{T+5}, 4, v{T+4}")
        A(f"s_lshl_b32 s{s_t0}, s{s_b}, 13")
        A(f"s_add_u32 s{s_t0}, s{s_t0}, s{s_colb}")
        A(f"s_lshl_b32 s{s_t0}, s{s_t0}, 2")
        if not Q32:
            A(f"s_and_b32 s{s_t1}, s2, 1")
            A(f"s_lshl_b32 s{s_t1}, s{s_t1}, 16")
            A(f"s_add_u32 s{s_t0}, s{s_t0}, s{s_t1}")
        A(f"s_add_u32 s{s_t0}, s{s_t0}, {WS_QB}")
        A(f"s_movk_i32 s{s_t1}, 0xff00")

    def gate_loads():
        C("gate inputs: lane l holds 16 elements (l&31) of batch b")
        A(f"v_and_b32 v{T}, 31, v1")
        A(f"v_lshlrev_b32 v{T}, 5, v{T}")
        A(f"s_lshl_b32 s{s_t0}, s{s_b}, 10")
        for j in range(2):
            g.vmem(f"buffer_load_dwordx4 {vr(GX+4*j,4)}, v{T}, {srd(sX)}, s{s_t0} offen offset:{j*16}")
        for j in range(2):
            st["gate"] = g.vmem(f"buffer_load_dwordx4 {vr(GX+8+4*j,4)}, v{T}, {srd(sG)}, 0 offen offset:{j*16}")

    if XP < 8:
        pro_x()
        pro_rest()
    chunks = g.split(pro_rest, 14) if XP >= 8 else []
    for p in range(8, P0):
        issue(p)
        if p == XP:
            pro_x()
        elif p > XP and chunks:
            chunks.pop(0)()
        if EUP == 2 and p == max(XP, 8) + 2:
            C("read after the epoch word has arrived: {tag, 1} if the word may already have been advanced")
            A("s_waitcnt lgkmcnt(0)")
            A("s_load_dwordx2 s[100:101], s[14:15], 0")
    for f in chunks:
        f()
    for p in range(P0, P0 + PX):
        issue(p, throttle=False)
    A("s_waitcnt lgkmcnt(0)")
    C("---- q projection of this workgroup's slice ----")
    g.wait_vm(st["x"])
    g.wait_vm(ids[7])
    RB = 64 if Q32 else 128
    for ks in range(NKS):
        for cb in range(NCB):
            for hf in range(2):
                A(f"ds_read_b64_tr_b16 {ar(a_vf+(ks*NCB+cb)*4+hf*2,2)}, v{T} offset:{ks*32*RB + hf*4*RB + cb*32}")
    mksrd(sWO, 16, 0x400000)
    A(f"s_add_u32 s{s_tag32}, s{s_tag32}, {EPOCH_INC:#x}")
    if EUP == 2:
        A("s_cmp_lg_u32 s101, 0")
        A(f"s_cselect_b32 s{s_tag32}, s100, s{s_tag32}")
    A(f"s_and_b32 s{s_tag8}, s{s_tag32}, 0xff")
    A(f"s_and_b32 s{s_tag12}, s{s_tag32}, 0xfff")
    A(f"s_and_b32 s{s_tag16}, s{s_tag32}, 0xffff")
    A(f"v_mov_b32 v{T+5}, s{s_tag8}")
    for ks in range(NKS):
        A(f"s_waitcnt lgkmcnt({16-2*NCB*(ks+1)})")
        for cb in range(NCB):
            A(f"v_mfma_f32_16x16x32_bf16 {vr(B+4*cb,4)}, {ar(a_vf+(ks*NCB+cb)*4,4)}, {vr(XOP+4*ks,4)}, " + ("0" if ks == 0 else vr(B + 4 * cb, 4)))
    A(f"s_nop {8-NCB}")
    for cb in range(NCB):
        A(f"ds_write_b128 v{T+1}, {vr(B+4*cb,4)} offset:{cb*64}")
    A(f"s_cmp_eq_u32 s{s_w}, 0")
    A("s_waitcnt lgkmcnt(0)")
    if "b1" not in skip:
        A("s_barrier")
    A("s_cbranch_scc0 L_noqstore")
    for w in range(4):
        A(f"ds_read_b128 {vr(B+4*w,4)}, v{T+3} offset:{w*512}")
    A("s_waitcnt lgkmcnt(0)")
    for e in range(4):
        A(f"v_add_f32 v{B+e}, v{B+e}, v{B+4+e}")
        A(f"v_add_f32 v{B+8+e}, v{B+8+e}, v{B+12+e}")
    for e in range(4):
        A(f"v_add_f32 v{B+e}, v{B+e}, v{B+8+e}")
    if Q32:
        for e in range(4):
            A(f"v_cvt_pk_bf16_f32 v{B+e}, 0, v{B+e}")
        for e in range(4):
            A(f"v_or_b32 v{B+e}, s{s_tag16}, v{B+e}")
        A("s_mov_b64 exec, 0xffff")
    else:
        for e in range(4):
            A(f"v_add_u32 v{B+e}, 0x80, v{B+e}")
        for e in range(4):
            A(f"v_and_or_b32 v{B+e}, v{B+e}, s{s_t1}, v{T+5}")
        A("s_mov_b32 exec_hi, 0")
    if "qstore" not in skip:
        g.vmem(f"buffer_store_dwordx4 {vr(B,4)}, v{T+4}, {srd(sWS)}, s{s_t0} offen sc1", optional=True)
    A("s_mov_b64 exec, -1")
    L("L_noqstore")
    stamp("qpub")

    FSLOT = slot_of(NT)

    def setup_head():
        C("constants")
        A(f"s_mov_b32 s{s_c}, {f2u(LOG2E):#x}")
        if not UNT:
            A(f"s_mov_b32 s{s_rs}, {f2u(128 ** -0.5):#x}")
        A(f"s_mov_b32 s{s_spin}, {SPIN}")
        for r in range(4):
            A(f"v_mov_b32 v{v_one+r}, 0x3f803f80")
        C("q gather: head w, lanes 0-31 " + ("branch A, lanes 32-63 branch B" if Q32 else "half 0, lanes 32-63 half 1"))
        A(f"v_lshrrev_b32 v{T}, 5, v1")
        A(f"v_and_b32 v{T+1}, 31, v1")
        A(f"v_lshlrev_b32 v{T+2}, 4, v{T+1}")
        A(f"v_lshl_add_u32 v{a_q}, v{T}, {15 if Q32 else 16}, v{T+2}")
        A(f"s_lshr_b32 s{s_t0}, s2, 4")
        A(f"s_lshl2_add_u32 s{s_t0}, s{s_t0}, s{s_w}")
        A(f"s_lshl_b32 s{s_t0}, s{s_t0}, 9")
        A(f"s_add_u32 s{s_qoff}, s{s_t0}, {WS_QB}")
        A(f"s_lshl_b32 s{s_t0}, s{s_w}, 8")
        A(f"s_add_u32 s{s_t0}, s{s_t0}, {SCR+QX}")
        A(f"v_lshl_add_u32 v{a_qw}, v{T+1}, 3, s{s_t0}")
        A(f"v_lshl_add_u32 v{a_qw}, v{T}, {10 if Q32 else 2}, v{a_qw}")
        A(f"v_lshlrev_b32 v{a_qr}, 8, v{v_c}")
        A(f"v_lshl_add_u32 v{a_qr}, v{v_g}, 4, v{a_qr}")
        A(f"v_add_u32 v{a_qr}, {SCR+QX}, v{a_qr}")
        A(f"s_lshl_b32 s{s_t0}, s{s_w}, 2")
        A(f"v_add_u32 v{a_fw}, s{s_t0}, v{a_fr}")
        C("catch-up hints (speed only): one line of tile indices per group of workgroups with equal wg&7")
        A(f"s_mov_b32 s{s_boost}, 0")
        A(f"s_and_b32 s{s_tagp}, s{s_tag32}, 0xffffff00")
        A(f"v_mov_b32 v{v_pl}, s{s_tagp}")
        A(f"v_min_u32 v{a_pw}, 1, v1")
        A(f"v_lshlrev_b32 v{a_pw}, 30, v{a_pw}")
        A(f"s_and_b32 s{s_t0}, s2, 7")
        A(f"s_mul_i32 s{s_t0}, s{s_t0}, 4352")
        A(f"s_add_u32 s{s_t0}, s{s_t0}, {WS_PR}")
        A(f"v_lshl_add_u32 v{a_pr}, v1, 2, s{s_t0}")
        if GR:
            C("wave 1 of workgroups 32..39 compares the groups a few times")
            A(f"s_add_u32 s{s_bc}, s{s_t0}, 128")
            A(f"s_mov_b32 s{s_gb}, 0")
            A(f"s_mov_b32 s{s_dev}, 0")
            A(f"s_lshr_b32 s{s_t1}, s2, 3")
            A(f"s_lshl_b32 s{s_t2}, s{s_w}, 5")
            A(f"s_add_u32 s{s_t1}, s{s_t1}, s{s_t2}")
            A(f"s_xor_b32 s{s_t1}, s{s_t1}, {32 + 4}")
            A(f"s_min_u32 s{s_t1}, s{s_t1}, 1")
            A(f"s_lshl_b32 s{s_t1}, s{s_t1}, 30")
            A(f"s_add_u32 s{s_t1}, s{s_t1}, {WS_GP}")
            A(f"v_lshrrev_b32 v{T+3}, 3, v1")
            A(f"v_min_u32 v{T+3}, 1, v{T+3}")
            A(f"v_lshlrev_b32 v{T+3}, 30, v{T+3}")
            A(f"v_mul_u32_u24 v{T+4}, 4224, v1")
            A(f"v_add3_u32 v{a_gs}, v{T+3}, v{T+4}, s{s_t1}")
            A(f"s_and_b32 s{s_t2}, s2, 7")
            A(f"s_mul_i32 s{s_t2}, s{s_t2}, 4224")
            A(f"s_add_u32 s{s_gpo}, s{s_t1}, s{s_t2}")
        A(f"s_lshr_b32 s{s_t1}, s2, 3")
        A(f"s_lshl2_add_u32 s{s_pro}, s{s_t1}, s{s_t0}")
        A(f"s_and_b32 s{s_t1}, s{s_t1}, {PT-1}")
        A(f"s_lshl4_add_u32 s{s_pph}, s{s_w}, s{s_t1}")
        if XM:
            A(f"s_getreg_b32 s{s_t0}, hwreg(HW_REG_XCC_ID)")
            A(f"s_and_b32 s{s_t0}, s{s_t0}, 1")
            A(f"s_mul_i32 s{s_t0}, s{s_t0}, {XM[0] ^ XM[1]:#x}")
            A(f"s_xor_b32 s{s_xm}, s{s_t0}, {XM[0]:#x}")

    def setup_rest():
        A(f"s_mov_b32 s{s_perm}, 0x07060302")
        A(f"s_mov_b32 s{s_m12}, 0xfffff000")
        A(f"s_mov_b32 s{s_m15}, 0xfffefffe")
        C("V transposed read addresses")
        A(f"v_lshl_add_u32 v{T+3}, v{v_g}, 2, v{v_r}")
        A(f"v_and_b32 v{T+5}, 1, v{v_c}")
        A(f"v_lshlrev_b32 v{T+5}, 3, v{T+5}")
        A(f"v_lshrrev_b32 v{T+6}, 1, v{v_c}")
        A(f"v_lshl_add_u32 v{T+4}, v{T+3}, 8, v{T+5}")
        A(f"v_add_u32 v{T+4}, s{s_wb}, v{T+4}")
        A(f"v_and_b32 v{T+7}, 7, v{T+3}")
        A(f"v_lshl_or_b32 v{T+7}, v{T+7}, 1, v{T+6}")
        for cb in range(8):
            A(f"v_xor_b32 v{v_rv+cb}, {2*cb}, v{T+7}")
            A(f"v_lshl_add_u32 v{v_rv+cb}, v{v_rv+cb}, 4, v{T+4}")
        C("wo: head hq = hkv*4 + (j>>3), columns (wg&7)*64; wave w loads rows (w&1)*64.. of branch w>>1")
        A(f"v_lshl_add_u32 v{T+4}, v{T+3}, 7, v{T+5}")
        A(f"v_add_u32 v{T+4}, {STG}, v{T+4}")
        A(f"v_and_b32 v{T+7}, 6, v{T+3}")
        A(f"v_or_b32 v{T+7}, v{T+7}, v{T+6}")
        A(f"s_lshl_b32 s{s_t0}, s{s_w}, 1")
        A(f"v_xor_b32 v{T+7}, s{s_t0}, v{T+7}")
        A(f"v_lshl_add_u32 v{a_wor}, v{T+7}, 4, v{T+4}")
        A(f"v_lshrrev_b32 v{T+3}, 3, v1")
        A(f"v_and_b32 v{T+4}, 6, v{T+3}")
        A(f"v_and_b32 v{T+5}, 7, v1")
        A(f"v_xor_b32 v{T+4}, v{T+4}, v{T+5}")
        A(f"v_lshlrev_b32 v{T+4}, 4, v{T+4}")
        A(f"v_lshl_add_u32 v{a_wo}, v{T+3}, 10, v{T+4}")
        A(f"s_lshr_b32 s{s_t0}, s{s_j}, 3")
        A(f"s_lshl2_add_u32 s{s_t3}, s{s_hkv}, s{s_t0}")
        A(f"s_and_b32 s{s_t0}, s{s_w}, 1")
        A(f"s_lshl1_add_u32 s{s_t0}, s{s_t3}, s{s_t0}")
        A(f"s_lshl_b32 s{s_t0}, s{s_t0}, 16")
        A(f"s_and_b32 s{s_t2}, s2, 7")
        A(f"s_lshl_b32 s{s_t1}, s{s_t2}, 7")
        A(f"s_add_u32 s{s_wooff}, s{s_t0}, s{s_t1}")
        C("hop-2 store: line (cg = (wg&7)*4 + w, p = hq), lane (g, n<2): b = n")
        A(f"s_lshl2_add_u32 s{s_t0}, s{s_t2}, s{s_w}")
        A(f"s_lshl_b32 s{s_t0}, s{s_t0}, 12")
        A(f"s_lshl_b32 s{s_t1}, s{s_t3}, 7")
        A(f"s_add_u32 s{s_t0}, s{s_t0}, s{s_t1}")
        A(f"s_add_u32 s{s_h2pub}, s{s_t0}, {WS_P1}")
        A(f"v_and_b32 v{T+3}, 1, v1")
        A(f"v_lshlrev_b32 v{a_p2}, 6, v{T+3}")
        A(f"v_lshl_add_u32 v{a_p2}, v{v_g}, 4, v{a_p2}")
        C("o operand reader: OX + (n&1)*256 + g*16")
        A(f"v_lshlrev_b32 v{a_or}, 8, v{T+3}")
        A(f"v_lshl_add_u32 v{a_or}, v{v_g}, 4, v{a_or}")
        A(f"v_add_u32 v{a_or}, {SCR+OX}, v{a_or}")
        C("final role f = (wg&7)*4 + w (the wave's own column group) for one workgroup per f, else >= 32")
        A(f"s_lshl2_add_u32 s{s_f}, s{s_t2}, s{s_w}")
        A(f"s_lshl_b32 s{s_t1}, s{s_f}, 12")
        A(f"s_add_u32 s{s_h2get}, s{s_t1}, {WS_P1}")
        A(f"s_lshr_b32 s{s_t0}, s2, 3")
        if FWAVE == 0:
            A(f"s_xor_b32 s{s_t0}, s{s_t0}, s{s_w}")
        A(f"s_lshl_b32 s{s_t0}, s{s_t0}, 5")
        A(f"s_or_b32 s{s_f}, s{s_f}, s{s_t0}")
        A(f"v_lshlrev_b32 v{a_l16}, 4, v1")
        A(f"v_bfe_u32 v{T+3}, v1, 2, 1")
        A(f"v_lshlrev_b32 v{a_out}, 10, v{T+3}")
        A(f"v_lshl_add_u32 v{a_out}, v{v_c}, 3, v{a_out}")
        A(f"v_bfe_u32 v{T+4}, v1, 4, 1")
        A(f"v_lshl_add_u32 v{a_out}, v{T+4}, 2, v{a_out}")
        A(f"v_lshrrev_b32 v{T+5}, 5, v1")
        A(f"v_lshl_add_u32 v{a_out}, v{T+5}, 1, v{a_out}")
        C("hop-1 gather, wave = (dims half w>>1, batch w&1): rows (hq, b*16 + 4*g + i)")
        A(f"v_lshlrev_b32 v{T+5}, 4, v{v_n}")
        A(f"v_lshl_add_u32 v{a_g1}, v{v_g}, 11, v{T+5}")
        A(f"s_and_b32 s{s_t0}, s{s_w}, 1")
        A(f"s_lshl1_add_u32 s{s_t1}, s{s_t3}, s{s_t0}")
        A(f"s_lshl_b32 s{s_t1}, s{s_t1}, 13")
        A(f"s_lshr_b32 s{s_t2}, s{s_w}, 1")
        A(f"s_lshl_b32 s{s_t3}, s{s_t2}, 8")
        A(f"s_add_u32 s{s_t1}, s{s_t1}, s{s_t3}")
        A(f"s_add_u32 s{s_h1get}, s{s_t1}, {WS_H1}")
        C("summed o -> LDS [br][b][ks][g][hf][4] bf16; lanes 0-15 hold branch B, lanes 16-31 branch A")
        A(f"s_lshl1_add_u32 s{s_t0}, s{s_t0}, s{s_t2}")
        A(f"s_lshl_b32 s{s_t0}, s{s_t0}, 7")
        A(f"s_add_u32 s{s_t0}, s{s_t0}, {SCR+OX}")
        A(f"v_lshl_add_u32 v{a_ow}, v{v_c}, 4, s{s_t0}")
        A(f"v_lshl_add_u32 v{a_ow}, v{T+3}, 3, v{a_ow}")
        A(f"v_bfe_u32 v{T+5}, v1, 3, 1")
        A(f"v_lshl_add_u32 v{a_ow}, v{T+5}, 6, v{a_ow}")
        A(f"v_xor_b32 v{T+4}, 1, v{T+4}")
        A(f"v_lshl_add_u32 v{a_ow}, v{T+4}, 9, v{a_ow}")
        C("hop-1 publish: row (hkv, h=w, j)")
        A(f"s_lshl2_add_u32 s{s_t0}, s{s_hkv}, s{s_w}")
        A(f"s_lshl_b32 s{s_t0}, s{s_t0}, 5")
        A(f"s_add_u32 s{s_t0}, s{s_t0}, s{s_j}")
        A(f"s_lshl_b32 s{s_t0}, s{s_t0}, 9")
        A(f"s_add_u32 s{s_h1pub}, s{s_t0}, {WS_H1}")
        C("combine: writers (lane (g,h)) and readers (head w, d4)")
        A(f"v_lshlrev_b32 v{T+3}, 9, v{v_c}")
        A(f"v_lshl_add_u32 v{T+3}, v{v_g}, 4, v{T+3}")
        A(f"s_lshl_b32 s{s_t0}, s{s_w}, 11")
        A(f"s_add_u32 s{s_t0}, s{s_t0}, {SCR+OPA}")
        A(f"v_add_u32 v{a_cwa}, s{s_t0}, v{T+3}")
        A(f"v_add_u32 v{a_cwb}, s{s_wb}, v{T+3}")
        if FD:
            A(f"v_lshl_add_u32 v{a_cwb}, v{v_c}, 4, v{a_cwb}")
        A(f"s_lshl_b32 s{s_t0}, s{s_w}, 2")
        A(f"s_add_u32 s{s_t0}, s{s_t0}, {SCR+ML}")
        A(f"v_lshl_add_u32 v{a_cml}, v{v_c}, 4, s{s_t0}")
        A(f"v_and_b32 v{T+3}, 7, v1")
        A(f"v_lshlrev_b32 v{T+3}, 4, v{T+3}")
        A(f"v_add_u32 v{a_mlr}, {SCR+ML}, v{T+3}")
        A(f"v_and_b32 v{T+3}, 31, v1")
        A(f"s_lshl_b32 s{s_t0}, s{s_w}, 9")
        A(f"v_lshl_add_u32 v{a_crb}, v{T+3}, 4, s{s_t0}")
        A(f"v_add_u32 v{a_cra}, {SCR+OPA}, v{a_crb}")
        if FD:
            A(f"s_lshl_b32 s{s_t0}, s{s_w}, 4")
            A(f"v_add_u32 v{a_crb}, s{s_t0}, v{a_crb}")
        A(f"v_add_u32 v{a_crb2}, {2*RING}, v{a_crb}")
        C("log-sum-exp exchange among the 16 splits: lane = (br = bit4, s = n)")
        A(f"s_lshl_b32 s{s_t0}, s2, 7")
        A(f"s_add_u32 s{s_lpub}, s{s_t0}, {WS_LB}")
        A(f"s_andn2_b32 s{s_t0}, s{s_t0}, 0x7ff")
        A(f"s_lshl3_add_u32 s{s_t0}, s{s_w}, s{s_t0}")
        A(f"s_add_u32 s{s_lget}, s{s_t0}, {WS_LB}")
        A(f"v_bfe_u32 v{T+3}, v1, 4, 1")
        A(f"v_lshlrev_b32 v{T+3}, 5, v{T+3}")
        A(f"v_lshl_add_u32 v{a_lg}, v{v_n}, 7, v{T+3}")
        C("tag bit patterns and the selector operand (1.0 where element == row)")
        for e in range(4):
            A(f"s_and_b32 s{s_t0}, s{s_tag8}, 1")
            A(f"s_bfe_u32 s{s_t1}, s{s_tag8}, {0x10001 + e:#x}")
            A(f"s_pack_ll_b32_b16 s{s_t0}, s{s_t0}, s{s_t1}")
            A(f"v_mov_b32 v{v_pat+e}, s{s_t0}")
        A(f"v_and_b32 v{T+3}, 1, v1")
        A(f"v_lshlrev_b32 v{T+3}, 4, v{T+3}")
        A(f"v_mov_b32 v{T+4}, 0x3f80")
        A(f"v_lshlrev_b32 v{T+3}, v{T+3}, v{T+4}")
        A(f"v_lshrrev_b32 v{T+4}, 1, v{v_n}")
        for e in range(4):
            A(f"v_xor_b32 v{T+5}, {e}, v{T+4}")
            A(f"v_min_u32 v{T+5}, 1, v{T+5}")
            A(f"v_add_u32 v{T+5}, -1, v{T+5}")
            A(f"v_and_b32 v{v_sel+e}, v{T+5}, v{T+3}")

    def setup_gate():
        C("gate factor: g in lanes with bit 2 clear, 1-g in the others, with the reference's bf16 rounding points")
        X, Wt = GX, GX + 8
        for r in range(8):
            A(f"v_lshlrev_b32 v{T}, 16, v{X+r}")
            A(f"v_lshlrev_b32 v{T+1}, 16, v{Wt+r}")
            A(f"v_and_b32 v{X+r}, 0xffff0000, v{X+r}")
            A(f"v_and_b32 v{Wt+r}, 0xffff0000, v{Wt+r}")
            A(f"v_mul_f32 v{T}, v{T}, v{T+1}")
            A(f"v_mul_f32 v{X+r}, v{X+r}, v{Wt+r}")
            A(f"v_cvt_pk_bf16_f32 v{X+r}, v{T}, v{X+r}")
        for r in range(8):
            A(f"v_dot2_f32_bf16 v{T+2}, v{X+r}, v{v_one}, " + ("0" if r == 0 else f"v{T+2}"))
        A("s_nop 2")
        for d in (1, 2, 4, 8):
            A(f"v_add_f32_dpp v{T+2}, v{T+2}, v{T+2} row_ror:{d} row_mask:0xf bank_mask:0xf")
            A("s_nop 1")
        A(f"v_mov_b32 v{T+3}, v{T+2}")
        A("s_nop 1")
        A(f"v_permlane16_swap_b32 v{T+2}, v{T+3}")
        A("s_nop 0")
        A(f"v_add_f32 v{T+2}, v{T+2}, v{T+3}")
        A(f"v_cvt_pk_bf16_f32 v{T+2}, 0, v{T+2}")
        A(f"v_mul_f32 v{T+2}, {f2u(-LOG2E):#x}, v{T+2}")
        A(f"v_exp_f32 v{T+2}, v{T+2}")
        A("s_nop 0")
        A(f"v_add_f32 v{T+2}, 1.0, v{T+2}")
        A(f"v_rcp_f32 v{T+2}, v{T+2}")
        A(f"v_bfe_i32 v{T+4}, v1, 2, 1")
        A(f"v_cvt_pk_bf16_f32 v{T+2}, 0, v{T+2}")
        A(f"v_sub_f32 v{T+3}, 1.0, v{T+2}")
        A(f"v_cvt_pk_bf16_f32 v{T+3}, 0, v{T+3}")
        A(f"v_bfi_b32 v{v_gf}, v{T+4}, v{T+3}, v{T+2}")

    def spin_guard():
        A(f"s_sub_u32 s{s_spin}, s{s_spin}, 1")
        A("s_cbranch_scc1 L_end")

    def qloads(track):
        if not Q32:
            A(f"s_add_u32 s{s_t0}, s{s_qoff}, 0x8000")
        for br in range(1 if Q32 else 2):
            s = f"buffer_load_dwordx4 {vr(B+4*br,4)}, v{a_q}, {srd(sWS)}, s{s_t0 if br else s_qoff} offen sc1"
            if track and "qload" in skip:
                st["q"] = ids[st["p"]]
            elif track:
                st["q"] = g.vmem(s)
            else:
                A(s)

    def q_validate():
        C("---- validate this wave's head of q (both branches), share through LDS ----")
        g.wait_vm(st["q"])
        L("L_qcheck")
        if Q32:
            A(f"v_xor_b32 v{T}, s{s_tag16}, v{B}")
            for r in range(1, 4):
                A(f"v_bitop3_b32 v{T}, v{T}, v{B+r}, s{s_tag16} bitop3:0xf6")
            A(f"v_and_b32 v{T}, 0xffff, v{T}")
            A(f"v_cmp_ne_u32 vcc, 0, v{T}")
            A("s_cbranch_vccnz L_qretry")
            A(f"s_mov_b32 s{s_t0}, 0x07060302")
            A(f"v_perm_b32 v{B+4}, v{B+1}, v{B}, s{s_t0}")
            A(f"v_perm_b32 v{B+5}, v{B+3}, v{B+2}, s{s_t0}")
            A(f"ds_write_b64 v{a_qw}, {vr(B+4,2)}")
            A("s_waitcnt lgkmcnt(0)")
            A(f"ds_write_b32 v{a_fw}, v{v_one}")
            return
        for r in range(8):
            A(f"v_xor_b32 v{B+r}, s{s_tag8}, v{B+r}")
        A(f"v_or_b32 v{T}, v{B}, v{B+1}")
        for i in range(2, 8, 2):
            A(f"v_or3_b32 v{T}, v{T}, v{B+i}, v{B+i+1}")
        A(f"v_and_b32 v{T}, 0xff, v{T}")
        A(f"v_cmp_ne_u32 vcc, 0, v{T}")
        if "qstore" not in skip and "qload" not in skip:
            A("s_cbranch_vccnz L_qretry")
        for br in range(2):
            A(f"v_permlane32_swap_b32 v{B+4*br}, v{B+4*br+2}")
            A(f"v_permlane32_swap_b32 v{B+4*br+1}, v{B+4*br+3}")
        for br in range(2):
            A(f"v_add_f32 v{B+4*br}, v{B+4*br}, v{B+4*br+2}")
            A(f"v_add_f32 v{B+4*br+1}, v{B+4*br+1}, v{B+4*br+3}")
        for br in range(2):
            A(f"v_cvt_pk_bf16_f32 v{B+4*br}, v{B+4*br}, v{B+4*br+1}")
        for br in range(2):
            A(f"ds_write_b32 v{a_qw}, v{B+4*br} offset:{br*1024}")
        A("s_waitcnt lgkmcnt(0)")
        A(f"ds_write_b32 v{a_fw}, v{v_one}")

    def flag_wait(name, off):
        L(name)
        A(f"ds_read_b128 {vr(B,4)}, v{a_fr} offset:{off}")
        spin_guard()
        A("s_waitcnt lgkmcnt(0)")
        A(f"v_and_b32 v{B}, v{B}, v{B+1}")
        A(f"v_and_b32 v{B+2}, v{B+2}, v{B+3}")
        A(f"v_and_b32 v{B}, v{B}, v{B+2}")
        A(f"v_cmp_eq_u32 vcc, 0, v{B}")
        A(f"s_cbranch_vccnz {name}")

    def q_fetch():
        if "qflag" not in skip:
            flag_wait("L_qflag", 0)
        for j in range(4):
            A(f"ds_read_b128 {ar(a_qop+4*j,4)}, v{a_qr} offset:{j*64}")
        if NLO:
            A(f"s_mov_b32 s{s_brk}, 0")
            A(f"s_mov_b32 s{s_gk}, 0")
        stamp("qval")
        st["qready"] = True

    def q_fetch_b():
        for j in range(4):
            A(f"ds_read_b128 {ar(a_qop+16+4*j,4)}, v{a_qr} offset:{1024+j*64}")

    def lanes_h():
        A("s_mov_b32 exec_lo, 0x000f000f")
        A("s_mov_b32 exec_hi, 0x000f000f")

    def dump_ml(br):
        A(f"ds_write_b32 v{a_cml}, v{v_m} offset:{br*64}")
        A(f"ds_write_b32 v{a_cml}, a{a_l} offset:{128+br*64}")

    def dump_o(br):
        adr, off = (a_cwa, 0) if br == 0 else (a_cwb, FSLOT * 4096)
        for cb in range(8):
            A(f"ds_write_b128 v{adr}, {ar(a_o+4*cb,4)} offset:{off+cb*64}")

    def lam_math():
        C("lane (br, h): workgroup maximum, sum, log-sum-exp and the weights of the four waves")
        A("s_waitcnt lgkmcnt(0)")
        A(f"v_max3_f32 v{T}, v{B}, v{B+1}, v{B+2}")
        A(f"v_max_f32 v{T}, v{T}, v{B+3}")
        A(f"v_mul_f32 v{T+1}, s{s_c}, v{T}")
        for w in range(4):
            A(f"v_fma_f32 v{B+w}, v{B+w}, s{s_c}, -v{T+1}")
        for w in range(4):
            A(f"v_exp_f32 v{B+w}, v{B+w}")
        A(f"v_mul_f32 v{T+2}, v{B}, v{B+4}")
        for w in range(1, 4):
            A(f"v_fmac_f32 v{T+2}, v{B+w}, v{B+4+w}")
        A(f"v_rcp_f32 v{T}, v{T+2}")
        A(f"v_log_f32 v{T+2}, v{T+2}")
        A(f"v_mov_b32 v{T+3}, s{s_tag32}")
        A(f"v_add_f32 v{T+2}, v{T+1}, v{T+2}")
        A(f"v_mul_f32 v{T}, v{T}, v{v_gf}")
        for w in range(4):
            A(f"v_mul_f32 v{v_aw+w}, v{B+w}, v{T}")
        A(f"v_lshlrev_b32 v{T+4}, 3, v1")

    def lam_store():
        A(f"s_cmp_eq_u32 s{s_w}, 0")
        A("s_cbranch_scc0 L_nolam")
        A("s_mov_b64 exec, 0xff")
        g.vmem(f"buffer_store_dwordx2 {vr(T+2,2)}, v{T+4}, {srd(sWS)}, s{s_lpub} offen sc1", optional=True)
        A("s_mov_b64 exec, -1")
        L("L_nolam")

    def lamloads(track):
        s = f"buffer_load_dwordx2 {vr(B,2)}, v{a_lg}, {srd(sWS)}, s{s_lget} offen sc1"
        if track:
            st["lam"] = g.vmem(s)
        else:
            A(s)

    def lam_validate():
        g.wait_vm(st["lam"])
        L("L_lcheck")
        A(f"v_cmp_ne_u32 vcc, s{s_tag32}, v{B+1}")
        A("s_cbranch_vccnz L_lretry")

    def wgt_math():
        C("softmax over the 16 splits -> this workgroup's share; weights of the four waves into SGPRs")
        A(f"v_max_f32_dpp v{T}, v{B}, v{B} row_ror:1 row_mask:0xf bank_mask:0xf")
        for d in (2, 4, 8):
            A("s_nop 1")
            A(f"v_max_f32_dpp v{T}, v{T}, v{T} row_ror:{d} row_mask:0xf bank_mask:0xf")
        A(f"v_sub_f32 v{T}, v{B}, v{T}")
        A(f"v_exp_f32 v{T}, v{T}")
        A("s_nop 1")
        A(f"v_add_f32_dpp v{T+1}, v{T}, v{T} row_ror:1 row_mask:0xf bank_mask:0xf")
        for d in (2, 4, 8):
            A("s_nop 1")
            A(f"v_add_f32_dpp v{T+1}, v{T+1}, v{T+1} row_ror:{d} row_mask:0xf bank_mask:0xf")
        A(f"v_rcp_f32 v{T+1}, v{T+1}")
        A(f"s_and_b32 s{s_t0}, s2, 15")
        A(f"v_mul_f32 v{T}, v{T}, v{T+1}")
        A(f"s_add_u32 s{s_t1}, s{s_t0}, 16")
        A(f"v_readlane_b32 s{s_t2}, v{T}, s{s_t0}")
        A(f"v_readlane_b32 s{s_t3}, v{T}, s{s_t1}")
        A(f"v_bfe_i32 v{T+2}, v1, 2, 1")
        A(f"s_add_u32 s{s_t1}, s{s_w}, 4")
        A(f"v_mov_b32 v{T}, s{s_t2}")
        A(f"v_mov_b32 v{T+1}, s{s_t3}")
        A(f"v_bfi_b32 v{T}, v{T+2}, v{T+1}, v{T}")
        for w in range(4):
            A(f"v_mul_f32 v{v_aw+w}, v{v_aw+w}, v{T}")
        A("s_nop 0")
        for w in range(4):
            A(f"v_readlane_b32 s{s_fw+w}, v{v_aw+w}, s{s_w}")
            A(f"v_readlane_b32 s{s_fw+4+w}, v{v_aw+w}, s{s_t1}")
        A("s_nop 1")

    def comb_read(br):
        for w in range(4):
            if br == 0:
                A(f"ds_read_b128 {vr(B+4*w,4)}, v{a_cra} offset:{w*2048}")
            else:
                A(f"ds_read_b128 {vr(B+4*w,4)}, v{a_crb if w < 2 else a_crb2} offset:{(w&1)*RING + FSLOT*4096}")

    def comb_math(br, counted):
        for w in range(4):
            if counted:
                A(f"s_waitcnt lgkmcnt({3-w})")
            elif w == 0:
                A("s_waitcnt lgkmcnt(0)")
            for e in range(4):
                if w == 0:
                    A(f"v_mul_f32 v{B+e}, s{s_fw+4*br}, v{B+e}")
                else:
                    A(f"v_fmac_f32 v{B+e}, s{s_fw+4*br+w}, v{B+4*w+e}")
        for e in range(4):
            A(f"v_add_u32 v{B+e}, 0x10000, v{B+e}")
        o = 2 - 2 * br
        for k in range(2):
            A(f"v_perm_b32 v{v_pub+o+k}, v{B+2*k+1}, v{B+2*k}, s{s_perm}")
        for k in range(2):
            A(f"v_and_or_b32 v{v_pub+o+k}, v{v_pub+o+k}, s{s_m15}, v{v_pat+o+k}")

    def h2loads(off, flags="sc1", track=False):
        for j in range(4):
            s = f"buffer_load_dwordx4 {vr(B+4*j,4)}, v{a_l16}, {srd(sWS)}, s{off} offen offset:{j*1024} {flags}"
            g.vmem(s, optional=True) if track else A(s)

    def warm2():
        C("bring the lines of the final reduction into this die's cache")
        A(f"s_cmp_ge_u32 s{s_f}, 32")
        A("s_cbranch_scc1 L_nowarm")
        A("s_mov_b32 exec_lo, 0x01010101")
        A("s_mov_b32 exec_hi, 0x01010101")
        for j in range(4):
            g.vmem(f"buffer_load_dword v{v_tw}, v{a_l16}, {srd(sWS)}, s{s_h2get} offen offset:{j*1024} {WARM2 if isinstance(WARM2, str) else 'sc1'}", optional=True)
        A("s_mov_b64 exec, -1")
        L("L_nowarm")

    def epoch_up():
        C("advance the epoch word; the old value goes to d_debug first for workgroups that have not read it yet")
        A(f"s_cmp_lg_u32 s{s_f}, 0")
        A("s_cbranch_scc1 L_noeup")
        A("s_load_dwordx2 s[82:83], s[0:1], 96")
        A("s_mov_b64 exec, 1")
        A(f"v_mov_b32 v{v_gs}, s{s_tag32}")
        A(f"v_mov_b32 v{v_gs+1}, 1")
        A(f"v_mov_b32 v{v_gs+2}, 0")
        A("s_waitcnt lgkmcnt(0)")
        g.vmem(f"global_store_dwordx2 v{v_gs+2}, {vr(v_gs,2)}, s[82:83] sc1", optional=True)
        A("s_waitcnt vmcnt(0)")
        g.vmem(f"buffer_store_dword v{v_gs}, v{v_gs+2}, {srd(sWS)}, 0 offen offset:{WS_E} sc1", optional=True)
        A("s_mov_b64 exec, -1")
        L("L_noeup")

    def code_pre():
        C("pull the rest of this straight-line code towards the cache: four lines per wave")
        A("s_getpc_b64 s[82:83]")
        L("L_cp")
        if CPM == 1:
            A(f"s_lshr_b32 s{s_u}, s2, 3")
            A(f"s_lshl2_add_u32 s{s_u}, s{s_u}, s{s_w}")
            A(f"s_lshl_b32 s{s_u}, s{s_u}, 9")
            A(f"v_lshl_add_u32 v{v_tw+1}, v{v_c}, 7, s{s_u}")
            A(f"v_min_u32 v{v_tw+1}, L_end-L_cp, v{v_tw+1}")
            A("s_mov_b64 exec, 15")
        else:
            A(f"s_lshl2_add_u32 s{s_u}, s2, s{s_w}")
            A(f"s_lshl_b32 s{s_u}, s{s_u}, 6")
            A(f"s_min_u32 s{s_u}, s{s_u}, L_end-L_cp")
            A(f"v_mov_b32 v{v_tw+1}, s{s_u}")
            A("s_mov_b64 exec, 1")
        g.vmem(f"global_load_dword v{v_tw}, v{v_tw+1}, s[82:83]")
        A("s_mov_b64 exec, -1")

    def touch(k):
        def f():
            C("touch the next buffer's pages")
            A("s_mov_b64 exec, 3")
            A(f"v_lshlrev_b32 v{v_tw+1}, 22, v1")
            if k < 4:
                A(f"s_andn2_b32 s{s_u}, s{s_kvb}, 0x400000")
                g.vmem(f"buffer_load_dword v{v_tw}, v{v_tw+1}, {srd(sKV[k])}, s{s_u} offen nt")
            else:
                A("s_mov_b64 exec, 1")
                g.vmem(f"buffer_load_dword v{v_tw}, v{v_tw+1}, {srd(sWO)}, s{s_wooff} offen nt")
            A("s_mov_b64 exec, -1")
        return f

    BIAS_, GAIN_ = BIAS, GAIN
    def ctl_load():
        st["ctl"] = g.vmem(f"buffer_load_dword v{v_ct}, v{a_pr}, {srd(sWS)}, 0 offen sc1", hint=True)
        pending.append((st["ctl"], ctl_use))
        st["ctl_t"] = cur_t() + (Z[st["p"]][2] if Z[st["p"]][0] == "kv" else 3) / 4.0
        if "geval" in st and st["p"] >= st["geval"][1] + GPICK:
            st["pick"] = st.pop("geval")[0]
            log.append((st["p"], "pick", st["pick"]))

    def ctl_use():
        g.wait_vm(st["ctl"])
        t0 = st["ctl_t"]
        BIAS, GAIN = (END[2], END[3]) if END and t0 >= END[0] - 3 else (BIAS_, GAIN_)
        tn = cur_t() + 1
        x, y = v_ct, v_ct + 1
        A(f"v_xor_b32 v{x}, s{s_tagp}, v{x}")
        A(f"v_lshrrev_b32 v{y}, 8, v{x}")
        pick = st.pop("pick", None)
        if pick is not None and GACT:
            A(f"v_readlane_b32 s{s_c0}, v{x}, {32 + pick}")
            A(f"s_cmp_lt_u32 s{s_c0}, 256")
            A(f"s_cselect_b32 s{s_c0}, s{s_c0}, 128")
            A(f"s_add_i32 s{s_gb}, s{s_c0}, {tn - 128}")
            if GBRK:
                A(f"s_sub_i32 s{s_gk}, {tn + 128 - round(GBRK)}, s{s_c0}")
        A(f"v_cmp_eq_u32 s[82:83], 0, v{y}")
        A(f"v_mov_b32 v{y}, {max(0, int(t0) - round(BIAS))}")
        A("s_nop 0")
        A(f"v_cndmask_b32 v{x}, v{y}, v{x}, s[82:83]")
        for d in (1, 2, 4, 8):
            A("s_nop 1")
            A(f"v_add_u32_dpp v{x}, v{x}, v{x} row_ror:{d} row_mask:0xf bank_mask:0xf")
        A("s_nop 0")
        A(f"v_readlane_b32 s{s_c0}, v{x}, 0")
        A(f"v_readlane_b32 s{s_c1}, v{x}, 16")
        A(f"s_add_u32 s{s_c0}, s{s_c0}, s{s_c1}")
        A(f"s_sub_i32 s{s_c0}, s{s_c0}, {round(32 * (t0 - BIAS))}")
        if GR:
            A(f"s_ashr_i32 s{s_dev}, s{s_c0}, 1")
            if GEST == 3 and int(t0) in GR:
                A(f"s_add_i32 s{s_own}, s{s_dev}, 128")
        if NLO:
            A(f"s_add_i32 s{s_c1}, s{s_c0}, {round(32 * BRK)}")
            A(f"s_mul_i32 s{s_c1}, s{s_c1}, {-round(BGAIN * 8)}")
            A(f"s_ashr_i32 s{s_c1}, s{s_c1}, 8")
            A(f"s_min_i32 s{s_c1}, s{s_c1}, {NMAXB}")
            A(f"s_add_i32 s{s_brk}, s{s_c1}, {tn}")
            if GBRK:
                A(f"s_max_i32 s{s_brk}, s{s_brk}, s{s_gk}")
        A(f"s_mul_i32 s{s_c0}, s{s_c0}, {round(GAIN * 8)}")
        A(f"s_ashr_i32 s{s_c0}, s{s_c0}, 8")
        A(f"s_min_i32 s{s_c0}, s{s_c0}, {NMAXB}")
        A(f"s_add_i32 s{s_boost}, s{s_c0}, {tn}")
        if GR and not G6:
            A(f"s_max_i32 s{s_boost}, s{s_boost}, s{s_gb}")

    def g_sample(r, k):
        def f():
            A(f"s_mov_b32 s{s_u}, {r * 8 * 4224}")
            st["gs"] = g.vmem(f"buffer_load_dword v{v_gs+k}, v{a_gs}, {srd(sWS)}, s{s_u} offen sc1", hint=True)
            if k == GWIN[0] + GWIN[1] - 1:
                pending.append((st["gs"], g_eval(r)))
        return f

    def g_publish(r):
        def f():
            assert GEST == 1 or st.get("rest")
            A(f"s_bitcmp1_b32 s{s_gpo}, 30")
            A(f"s_cbranch_scc1 L_gp{r}")
            A(f"s_add_i32 s{s_c0}, s{s_dev}, 128")
            A(f"s_max_i32 s{s_c0}, s{s_c0}, 0")
            A(f"s_min_i32 s{s_c0}, s{s_c0}, 255")
            if GEST > 1:
                A(f"s_mov_b32 s{s_own}, s{s_c0}")
            A(f"v_or_b32 v{v_tw}, s{s_c0}, v{v_pl}")
            A(f"s_add_u32 s{s_u}, s{s_gpo}, {r * 8 * 4224}")
            g.vmem(f"buffer_store_dword v{v_tw}, v{a_pw}, {srd(sWS)}, s{s_u} offen sc1", optional=True)
            L(f"L_gp{r}")
        return f

    def g_eval(r):
        def f():
            W = GWIN[0] + GWIN[1]
            g.wait_vm(st["gs"])
            A(f"s_bitcmp1_b32 s{s_gpo}, 30")
            A(f"s_cbranch_scc1 L_ge{r}")
            for k in range(W):
                A(f"v_xor_b32 v{v_gs+k}, s{s_tagp}, v{v_gs+k}")
            A(f"v_min_u32 v{v_tw}, 0x100, v{v_gs+W-1}")
            A(f"v_lshrrev_b32 v{v_tw+1}, 1, v{v_tw}")
            A(f"v_and_b32 v{v_tw+1}, 0x80, v{v_tw+1}")
            A(f"v_and_b32 v{v_tw}, 0xff, v{v_tw}")
            A(f"v_add_u32 v{v_tw}, v{v_tw}, v{v_tw+1}")
            for k in range(W):
                A(f"v_lshrrev_b32 v{v_gs+k}, 8, v{v_gs+k}")
                A(f"v_min_u32 v{v_gs+k}, 1, v{v_gs+k}")
                A(f"v_lshlrev_b32 v{v_gs+k}, {3 if GS2 else 4}, v{v_gs+k}")
                A(f"v_sub_u32 v{v_tw}, v{v_tw}, v{v_gs+k}")
            A(f"s_and_b32 s{s_c1}, s2, 7")
            if GEST >= 2:
                C("own group: exact position instead of the sampled arrival")
                A(f"s_sub_i32 s{s_c0}, s{s_own}, {(8 if GS2 else 16) * GWIN[0]}")
                A(f"s_mov_b32 m0, s{s_c1}")
                A(f"v_writelane_b32 v{v_tw}, s{s_c0}, m0")
                A(f"s_add_u32 m0, s{s_wb}, {slot_of(cur_t())*4096}")
            else:
                A(f"v_readlane_b32 s{s_c0}, v{v_tw}, s{s_c1}")
            for d in ("quad_perm:[1,0,3,2]", "quad_perm:[2,3,0,1]", "row_half_mirror"):
                A("s_nop 1")
                A(f"v_add_u32_dpp v{v_tw}, v{v_tw}, v{v_tw} {d} row_mask:0xf bank_mask:0xf")
            A("s_nop 0")
            A(f"v_readlane_b32 s{s_c1}, v{v_tw}, 0")
            A(f"s_lshl_b32 s{s_c0}, s{s_c0}, 3")
            A(f"s_sub_i32 s{s_c0}, s{s_c1}, s{s_c0}")
            A(f"s_add_i32 s{s_c0}, s{s_c0}, {round(128 * GOFF)}")
            A(f"s_mul_i32 s{s_c0}, s{s_c0}, {round(GK * 8)}")
            A(f"s_add_i32 s{s_c0}, s{s_c0}, 512")
            A(f"s_ashr_i32 s{s_c0}, s{s_c0}, 10")
            A(f"s_max_i32 s{s_c0}, s{s_c0}, {-GMAX - round(GBRK)}")
            A(f"s_min_i32 s{s_c0}, s{s_c0}, {GMAX}")
            A(f"s_add_i32 s{s_c0}, s{s_c0}, 128")
            A(f"v_or_b32 v{v_tw}, s{s_c0}, v{v_pl}")
            g.vmem(f"buffer_store_dword v{v_tw}, v{a_pw}, {srd(sWS)}, s{s_bc} offen offset:{4*r}", optional=True)
            L(f"L_ge{r}")
            st["geval"] = (r, st["p"])
        return f

    kf = lambda t: a_kf + 16 * (t % R)
    def KR(t):
        for j in range(4):
            A(f"ds_read_b128 {ar(kf(t)+4*j,4)}, v{v_rk+j} offset:{slot_of(t)*4096}")
    def LW(t):
        A("s_waitcnt lgkmcnt(0)")
    def QK(t):
        A("s_waitcnt lgkmcnt(0)")
        q = a_qop + 16 * (t // 64)
        for j in range(4):
            A(f"v_mfma_f32_16x16x32_bf16 {vr(v_s,4)}, {ar(kf(t)+4*j,4)}, {ar(q+4*j,4)}, " + ("0" if j == 0 else vr(v_s, 4)))
    def SC(t):
        k = t % 32
        A("s_nop 7")
        for r in range(4):
            A(f"v_cvt_pk_bf16_f32 v{v_s+r}, 0, v{v_s+r}")
        for r in range(4):
            A(f"v_mul_f32 v{v_s+r}, " + (f"{f2u(128 ** -0.5):#x}" if UNT else f"s{s_rs}") + f", v{v_s+r}")
        if k == 0:
            A(f"v_max_f32 v{v_mx}, v{v_s}, v{v_s+1}")
        else:
            A(f"v_max3_f32 v{v_mx}, v{v_mx}, v{v_s}, v{v_s+1}")
        A(f"v_cvt_pk_bf16_f32 v{v_sc+2*k}, v{v_s}, v{v_s+1}")
        A(f"v_max3_f32 v{v_mx}, v{v_mx}, v{v_s+2}, v{v_s+3}")
        A(f"v_cvt_pk_bf16_f32 v{v_sc+2*k+1}, v{v_s+2}, v{v_s+3}")
    def MX(t):
        C("true maximum of this wave's scores per head")
        assert t < 64 or st["dumpA"]
        A(f"v_mov_b32 v{v_mt}, v{v_mx}")
        A("s_nop 1")
        A(f"v_permlane32_swap_b32 v{v_mx}, v{v_mt}")
        A(f"v_max_f32 v{v_mx}, v{v_mx}, v{v_mt}")
        A(f"v_mov_b32 v{v_mt}, v{v_mx}")
        A("s_nop 1")
        A(f"v_permlane16_swap_b32 v{v_mx}, v{v_mt}")
        A(f"v_max_f32 v{v_mx}, v{v_mx}, v{v_mt}")
        A(f"v_cvt_pk_bf16_f32 v{v_m}, 0, v{v_mx}")
        A(f"v_mul_f32 v{v_nmc}, {f2u(-LOG2E):#x}, v{v_m}")
        stamp("endKA" if t < 64 else "endKB")
    def PP(t):
        k = t % 32
        A(f"v_lshlrev_b32 v{v_s}, 16, v{v_sc+2*k}")
        A(f"v_and_b32 v{v_s+1}, 0xffff0000, v{v_sc+2*k}")
        A(f"v_lshlrev_b32 v{v_s+2}, 16, v{v_sc+2*k+1}")
        A(f"v_and_b32 v{v_s+3}, 0xffff0000, v{v_sc+2*k+1}")
        for r in range(4):
            A(f"v_fma_f32 v{v_s+r}, v{v_s+r}, s{s_c}, v{v_nmc}")
        for r in range(4):
            A(f"v_exp_f32 v{v_s+r}, v{v_s+r}")
        A(f"v_cvt_pk_bf16_f32 v{v_sc+2*k}, v{v_s}, v{v_s+1}")
        A(f"v_cvt_pk_bf16_f32 v{v_sc+2*k+1}, v{v_s+2}, v{v_s+3}")
        if k & 1:
            A("s_nop 1")
            A(f"v_mfma_f32_16x16x32_bf16 {ar(a_l,4)}, {vr(v_one,4)}, {vr(v_sc+2*k-2,4)}, " + ("0" if k == 1 else ar(a_l, 4)))
    def VR(t):
        assert st["rest"]
        for cb in range(8):
            A(f"ds_read_b64_tr_b16 {ar(a_vf+4*cb+2*(t&1),2)}, v{v_rv+cb} offset:{slot_of(t)*4096}")
    def pv(t, cb):
        k = t % 32 - 1
        assert ("PP", t) in done
        A(f"v_mfma_f32_16x16x32_bf16 {ar(a_o+4*cb,4)}, {ar(a_vf+4*cb,4)}, {vr(v_sc+2*k,4)}, " + ("0" if k == 0 else ar(a_o + 4 * cb, 4)))
    def PVa(t):
        A("s_waitcnt lgkmcnt(0)")
        for cb in range(4):
            pv(t, cb)
    def PVb(t):
        for cb in range(4, 8):
            pv(t, cb)
        if t == 63:
            stamp("endVA")

    main = []
    for t in range(R):
        main += [(KR, t, pos_of(t, 3), False), (LW, t, None, False)]
    for t in range(NT):
        if isK(t):
            if t >= R:
                main.append((KR, t, pos_of(t, 3), True))
            main += [(QK, t, None, True), (SC, t, None, True)]
            if t % 32 == 31:
                main.append((MX, t, None, True))
        elif t % 2 == 0:
            main.append((VR, t, pos_of(t, 3), True))
        else:
            main += [(VR, t, pos_of(t, 3), True), (PVa, t, None, True), (PVb, t, None, True)]
    is_in = lambda pl: pl in ids and g.done(ids[pl])
    done = set()
    ppq = [t for t in range(NT) if not isK(t)]

    mark = lambda k: (lambda: st.__setitem__(k, True))
    side = []
    side.append((P0, gate_loads, False))
    for f in g.split(setup_head, CH):
        side.append((P0, f, False))
    side.append((P0, mark("setup"), True))
    side.append((lambda p: g.done(st["gate"]), mark("gate_in"), True))
    for f in g.split(setup_gate, CH):
        side.append((P0, f, False))
    side.append((PQ, lambda: qloads(True), True))
    side.append((lambda p: g.done(st["q"]), lambda: (q_validate(), st.__setitem__("pV", st["p"])), True))
    side.append((lambda p: p >= st["pV"] + QLAG, q_fetch, True))
    side.append((0, q_fetch_b, False))
    for f in g.split(setup_rest, CH):
        side.append((0, f, False))
    side.append((0, mark("rest"), True))
    def dumpA():
        A("s_nop 5")
        lanes_h()
        dump_ml(0)
        dump_o(0)
        A("s_mov_b64 exec, -1")
        st["dumpA"] = True
    side.append((lambda p: ("PVb", 63) in done, dumpA, False))
    def dumpB():
        A("s_nop 5")
        lanes_h()
        dump_ml(1)
        A("s_mov_b64 exec, -1")
        A("s_waitcnt lgkmcnt(0)")
        A(f"ds_write_b32 v{a_fw}, v{v_one} offset:16")
        st["pB"] = st["p"]
    side.append((lambda p: ("PP", NT - 1) in done, dumpB, False))
    def lam_read():
        flag_wait("L_lflag", 16)
        A(f"ds_read_b128 {vr(B,4)}, v{a_mlr}")
        A(f"ds_read_b128 {vr(B+4,4)}, v{a_mlr} offset:128")
    side.append((lambda p: p >= st["pB"] + LLAG, lam_read, False))
    for f in g.split(lam_math, CH):
        side.append((0, f, False))
    side.append((0, lam_store, True))
    side.append((PWG, lambda: lamloads(True), True))
    side.append((lambda p: g.done(st["lam"]), lam_validate, True))
    for f in g.split(wgt_math, 24):
        side.append((0, f, False))
    side.append((0, lambda: comb_read(0), True))
    side.append((0, lambda: comb_math(0, False), False))

    extra = []
    for t in range(C0 - 2, NT - CEND, CK):
        extra.append((pos_of(t, 2), ctl_load))
    for r, tr in enumerate(GR):
        assert GWIN[0] + GWIN[1] <= 12
        for k in range(GWIN[0] + GWIN[1]):
            if GS2:
                extra.append((pos_of(tr, 3) + 4 + 2 * (k - GWIN[0]), g_sample(r, k)))
            else:
                extra.append((pos_of(tr - GWIN[0] + k + 1, 3), g_sample(r, k)))
        extra.append((pos_of(tr, 2), g_publish(r)))
    if EUP == 2:
        extra.append((pos_of(33, 0), epoch_up))
    if CP:
        extra.append((CP, code_pre))
    if TW:
        for k in TWK:
            extra.append((OFF + 128 * k - TW, touch(k)))
    if WARM2 and W2P >= 0:
        extra.append((pos_of(NT - 1, 3) - W2P, warm2))
    extra.sort(key=lambda x: x[0])

    mi = si = ci = 0
    for p in range(P0 + PX, len(Z) - WOL - WOA):
        z = Z[p]
        st["p"] = p
        if z[0] == "kv" and z[2] == 0 and z[1] >= NSLOT:
            prev = z[1] - NSLOT
            assert (("QK", prev) in done or ("LW", prev) in done) if isK(prev) else ("PVa", prev | 1) in done, (p, z)
        issue(p)
        while ci < len(extra) and extra[ci][0] <= p:
            extra[ci][1]()
            ci += 1
        for x in [x for x in pending if g.done(x[0])]:
            pending.remove(x)
            x[1]()
        used = 0
        if ppq and ("MX", ppq[0] // 32 * 32 - 1) in done:
            t = ppq.pop(0)
            PP(t)
            done.add(("PP", t)); log.append((p, "PP", t))
        while mi < len(main):
            f, t, ld, nq = main[mi]
            if (ld is not None and not is_in(ld)) or (nq and not st.get("qready")) or (f is PVa and ("PP", t) not in done):
                break
            behind = t + 1 < NT and is_in(pos_of(t + 1, 3)) and nq
            if used >= (CATCH if behind else 1):
                break
            f(t)
            done.add((f.__name__, t)); log.append((p, f.__name__, t))
            used += f is not LW
            mi += 1
        while si < len(side) and (used == 0 or side[si][2]):
            e, f, forced = side[si]
            if not (e(p) if callable(e) else e <= p):
                break
            f()
            log.append((p, "side", si))
            si += 1
            if not forced:
                used += 1
    assert si == len(side) and not ppq and ci == len(extra) and not pending, (si, len(side))
    C("---- drain ----")
    while mi < len(main):
        f, t, ld, nq = main[mi]
        if ld is not None:
            g.wait_vm(ids[ld])
            if t == NT - 1:
                stamp("vlast")
        if t == NT - 1 and f is PVa:
            for p in range(len(Z) - WOL - WOA, len(Z) - WOA):
                issue(p, throttle=False)
        if t == NT - 1 and f is PVa and FD:
            wr = lambda cb: A(f"ds_write_b128 v{a_cwb}, {ar(a_o+4*cb,4)} offset:{FSLOT*4096+cb*64}")
            lanes_h()
            for cb in range(8):
                A(f"s_waitcnt lgkmcnt({7 - cb + max(0, cb - 4)})")
                pv(t, cb)
                if cb >= 4:
                    wr(cb - 4)
            wr(4); wr(5)
            A("s_nop 1")
            wr(6)
            A("s_nop 1")
            wr(7)
        elif t == NT - 1 and f is PVa:
            for cb in range(8):
                A(f"s_waitcnt lgkmcnt({7-cb})")
                pv(t, cb)
        elif not (t == NT - 1 and f is PVb):
            f(t)
        mi += 1
    stamp("drained")

    C("---- combine the four waves, publish both branches ----")
    if not FD:
        lanes_h()
        dump_o(1)
    A("s_mov_b32 exec_lo, -1")
    A("s_mov_b32 exec_hi, 0")
    A("s_waitcnt lgkmcnt(0)")
    A("s_barrier")
    stamp("bar")
    comb_read(1)
    if GATE:
        C("report the end of this workgroup's stream and look at the group's")
        A(f"s_cmp_eq_u32 s{s_w}, 0")
        A(f"s_cselect_b32 s{s_u}, s{s_pro}, {WS_SIZE:#x}")
        A(f"v_or_b32 v{v_pd}, 0x80, v{v_pl}")
        A(f"buffer_load_dword v{v_ct}, v{a_pr}, {srd(sWS)}, 0 offen sc1")
        A(f"buffer_store_dword v{v_pd}, v{a_pw}, {srd(sWS)}, s{s_u} offen")
    comb_math(1, True)
    def gate(k):
        C("nothing below is urgent while much of the group still streams values: let those go first (bounded)")
        A(f"s_mov_b32 s{s_cnt}, {GATE[1]}")
        A(f"s_waitcnt vmcnt({k})")
        L("L_gate")
        A(f"v_cmp_eq_u32 vcc, v{v_pd}, v{v_ct}")
        A(f"s_bcnt1_i32_b32 s{s_c0}, vcc_lo")
        A(f"s_cmp_ge_u32 s{s_c0}, {GATE[0]}")
        A("s_cbranch_scc1 L_gate_ok")
        A(f"s_sub_u32 s{s_cnt}, s{s_cnt}, 1")
        A("s_cbranch_scc1 L_gate_ok")
        A(f"buffer_load_dword v{v_ct}, v{a_pr}, {srd(sWS)}, 0 offen sc1")
        A("s_waitcnt vmcnt(0)")
        A("s_branch L_gate")
        L("L_gate_ok")
    if GATE and GATE[2] == 2:
        gate(1)
    A(f"buffer_store_dwordx4 {vr(v_pub,4)}, v{a_l16}, {srd(sWS)}, s{s_h1pub} offen sc1")
    A("s_mov_b64 exec, -1")
    stamp("pub1")
    if GATE and GATE[2] == 1:
        gate(2)
    if WARM2 and W2P < 0:
        warm2()
    for p in range(len(Z) - WOA, len(Z)):
        issue(p, throttle=False)
    C("the output-projection weights were the last loads of the stream")
    A(f"s_waitcnt vmcnt({WOK})")
    def h1loads():
        for i in range(4):
            A(f"buffer_load_dwordx4 {vr(B+4*i,4)}, v{a_g1}, {srd(sWS)}, s{s_h1get} offen offset:{i*512} sc1")
    h1loads()
    if WOK:
        A("s_waitcnt vmcnt(4)")
    stamp("wo")
    A("s_barrier")
    for k in range(8):
        for hf in range(2):
            A(f"ds_read_b64_tr_b16 {ar(a_wop+k*4+hf*2,2)}, v{a_wor} offset:{k*4096+hf*2048}")
    A("s_branch L_h1wait")
    C("---- sum the 16 partials of (dims half, batch) with a selector product ----")
    L("L_h1poll")
    if SL1:
        A(f"s_sleep {SL1}")
    h1loads()
    spin_guard()
    L("L_h1wait")
    for i in range(4):
        A(f"s_waitcnt vmcnt({3-i})")
        for e in range(4):
            A(f"v_xor_b32 v{B+4*i+e}, v{v_pat+e}, v{B+4*i+e}")
        if i == 0:
            A(f"v_or_b32 v{T}, v{B}, v{B+1}")
        else:
            A(f"v_or3_b32 v{T}, v{T}, v{B+4*i}, v{B+4*i+1}")
        A(f"v_or3_b32 v{T}, v{T}, v{B+4*i+2}, v{B+4*i+3}")
        A(f"v_mfma_f32_16x16x32_bf16 {vr(v_d,4)}, {vr(v_sel,4)}, {vr(B+4*i,4)}, " + ("0" if i == 0 else vr(v_d, 4)))
    A(f"v_and_b32 v{T}, 0x00010001, v{T}")
    A(f"v_cmp_ne_u32 vcc, 0, v{T}")
    A("s_cbranch_vccnz L_h1poll")
    stamp("h1ok")
    A("s_mov_b32 exec_hi, 0")
    A("s_nop 3")
    A(f"v_cvt_pk_bf16_f32 v{T}, v{v_d}, v{v_d+1}")
    A(f"v_cvt_pk_bf16_f32 v{T+1}, v{v_d+2}, v{v_d+3}")
    A(f"ds_write_b64 v{a_ow}, {vr(T,2)}")
    A("s_mov_b64 exec, -1")
    A("s_waitcnt lgkmcnt(0)")
    A("s_barrier")
    stamp("bar2")
    OPD = v_sc
    for k in range(8):
        A(f"ds_read_b128 {vr(OPD+4*k,4)}, v{a_or} offset:{(k>>2)*512+(k&3)*64}")
    A(f"v_mov_b32 v{T+2}, s{s_tag12}")
    A(f"s_add_u32 s{s_t2}, s{s_h2pub}, {WS_P2-WS_P1}")
    for k in range(8):
        A(f"s_waitcnt lgkmcnt({7-k})")
        A(f"v_mfma_f32_16x16x32_bf16 {vr(v_d+4,4)}, {ar(a_wop+4*k,4)}, {vr(OPD+4*k,4)}, " + ("0" if k == 0 else vr(v_d + 4, 4)))
    A("s_mov_b32 exec_lo, 0x00030003")
    A("s_mov_b32 exec_hi, 0x00030003")
    A(f"s_cmp_ge_u32 s{s_f}, 32")
    A("s_nop 4")
    for r in range(4):
        A(f"v_add_u32 v{v_d+4+r}, 0x800, v{v_d+4+r}")
    for r in range(4):
        A(f"v_and_or_b32 v{v_d+4+r}, v{v_d+4+r}, s{s_m12}, v{T+2}")
    C("once for a reader behind the same L2, once written through for any other placement")
    A(f"buffer_store_dwordx4 {vr(v_d+4,4)}, v{a_p2}, {srd(sWS)}, s{s_h2pub} offen {P1SC}")
    stamp("pub2")
    A("s_cbranch_scc0 L_final")
    if not NOP2:
        A(f"buffer_store_dwordx4 {vr(v_d+4,4)}, v{a_p2}, {srd(sWS)}, s{s_t2} offen sc1")
    A("s_branch L_fin" if diag or pad else "s_endpgm")
    L("L_final")
    A("s_mov_b64 exec, -1")

    C("---- final reduction over the 32 heads ----")
    F = B
    A(f"s_lshl_b32 s{s_t0}, s{s_f}, 5")
    A(f"s_mov_b32 s{s_cnt}, {P2AFTER}")
    L("L_h2poll")
    if SL2:
        A(f"s_sleep {SL2}")
    h2loads(s_h2get)
    spin_guard()
    A(f"s_sub_u32 s{s_cnt}, s{s_cnt}, 1")
    A("s_cbranch_scc1 L_h2switch")
    L("L_h2wait")
    for j in range(4):
        A(f"s_waitcnt vmcnt({3-j})")
        for e in range(4):
            A(f"v_xor_b32 v{F+4*j+e}, s{s_tag12}, v{F+4*j+e}")
        if j == 0:
            A(f"v_or_b32 v{T}, v{F}, v{F+1}")
            A(f"v_or3_b32 v{T}, v{T}, v{F+2}, v{F+3}")
        else:
            A(f"v_or3_b32 v{T}, v{T}, v{F+4*j}, v{F+4*j+1}")
            A(f"v_or3_b32 v{T}, v{T}, v{F+4*j+2}, v{F+4*j+3}")
            for e in range(4):
                A(f"v_add_f32 v{F+e}, v{F+e}, v{F+4*j+e}")
    A(f"v_and_b32 v{T}, 0xfff, v{T}")
    A(f"v_cmp_ne_u32 vcc, 0, v{T}")
    A("s_cbranch_vccnz L_h2poll")
    A(f"v_permlane32_swap_b32 v{F}, v{F+1}")
    A(f"v_permlane32_swap_b32 v{F+2}, v{F+3}")
    A(f"v_add_f32 v{F}, v{F}, v{F+1}")
    A(f"v_add_f32 v{F+2}, v{F+2}, v{F+3}")
    A("s_nop 1")
    A(f"v_permlane16_swap_b32 v{F}, v{F+2}")
    A(f"v_add_f32 v{F}, v{F}, v{F+2}")
    A("s_nop 1")
    A(f"v_add_f32_dpp v{F}, v{F}, v{F} row_ror:8 row_mask:0xf bank_mask:0xf")
    A(f"v_cvt_pk_bf16_f32 v{F}, v{F}, v{F}")
    A("s_mov_b32 exec_lo, 0x00ff00ff")
    A("s_mov_b32 exec_hi, 0x00ff00ff")
    A(f"buffer_store_short v{F}, v{a_out}, {srd(sO)}, s{s_t0} offen {OSC}")
    if EUP in (0, 1):
        A(f"s_cmp_lg_u32 s{s_f}, 0")
        A("s_cbranch_scc1 L_fin")
        C("every workgroup has published, hence read, the epoch word: advance it")
        A("s_mov_b64 exec, 1")
        A(f"v_mov_b32 v{T}, s{s_tag32}")
        A(f"v_mov_b32 v{T+1}, 0")
        A(f"buffer_store_dword v{T}, v{T+1}, {srd(sWS)}, 0 offen offset:{WS_E}" + (" sc1" if EUP == 0 else ""))
    L("L_fin")
    stamp("end")
    if diag:
        A("s_mov_b64 exec, 1")
        A("s_waitcnt lgkmcnt(0)")
        if diag == 2:
            A("s_sleep 100")
        A(f"s_lshl2_add_u32 s{s_t0}, s2, s{s_w}")
        A(f"s_lshl_b32 s{s_t0}, s{s_t0}, 5")
        A(f"s_add_u32 s{s_t0}, s{s_t0}, {WS_DIAG}")
        for i in range(8):
            A(f"v_mov_b32 v{v_sc+40+i}, s{s_st+2*i}")
        A(f"v_mov_b32 v{T+3}, 0")
        A(f"buffer_store_dwordx4 {vr(v_sc+40,4)}, v{T+3}, {srd(sWS)}, s{s_t0} offen")
        A(f"buffer_store_dwordx4 {vr(v_sc+44,4)}, v{T+3}, {srd(sWS)}, s{s_t0} offen offset:16")
    L("L_end")
    A("s_endpgm")

    L("L_h2switch")
    C("not complete behind this L2: add this wave's own line to the written-through copy and read that from now on")
    A("s_waitcnt vmcnt(0)")
    A("s_mov_b32 exec_lo, 0x00030003")
    A("s_mov_b32 exec_hi, 0x00030003")
    A(f"buffer_store_dwordx4 {vr(v_d+4,4)}, v{a_p2}, {srd(sWS)}, s{s_t2} offen sc1")
    A("s_mov_b64 exec, -1")
    A(f"s_add_u32 s{s_h2get}, s{s_h2get}, {WS_P2-WS_P1}")
    A("s_waitcnt vmcnt(0)")
    A("s_branch L_h2poll")
    for label, back, loads in (("L_lretry", "L_lcheck", lambda: lamloads(False)), ("L_qretry", "L_qcheck", lambda: qloads(False))):
        L(label)
        spin_guard()
        loads()
        A("s_waitcnt vmcnt(0)")
        A(f"s_branch {back}")

    acc = (NV + 3) // 4 * 4
    g.o.append('.section .rodata,"a"')
    g.o.append(".p2align 6")
    g.o.append(f".amdhsa_kernel {KNAME}")
    g.o.append(f"  .amdhsa_next_free_vgpr {acc+NA}")
    g.o.append("  .amdhsa_next_free_sgpr 102")
    g.o.append(f"  .amdhsa_accum_offset {acc}")
    g.o.append("  .amdhsa_group_segment_fixed_size 0")
    g.o.append("  .amdhsa_kernarg_size 112")
    g.o.append("  .amdhsa_user_sgpr_count 2")
    g.o.append("  .amdhsa_user_sgpr_kernarg_segment_ptr 1")
    g.o.append("  .amdhsa_system_sgpr_workgroup_id_x 1")
    g.o.append("  .amdhsa_float_denorm_mode_32 3")
    g.o.append(".end_amdhsa_kernel")
    gen.log = log
    return "\n".join(g.o) + "\n"


if __name__ == "__main__":
    kw = {}
    for a in sys.argv[2:]:
        k, v = a.split("=")
        kw[k] = eval(v)
    src = gen(**kw)
    open(sys.argv[1], "w").write(src)
```

```python
import sys, math, struct

KNAME = "gated_mix__gqa_block_cached__gqa_block_cached__decode_kernel"

WS_E = 0x0
WS_QB = 0x1000
WS_LB = 0x30000
WS_P1 = 0x40000
WS_P2 = 0x60000
WS_PR = 0x80000
WS_GP = 0x90000
WS_H1 = 0x100000
WS_DIAG = 0x200000
WS_SIZE = 0x400000
EPOCH_INC = 0x9E3779B1

NSLOT = 7
RING = NSLOT * 4096
STG = 4 * RING
SCR = STG + 32768
QP, QX, OPA, ML, OX, FL = 0, 2048, 4096, 12288, 12544, 13568
LDS_BYTES = 163840

PATS = {
    "P1": ([[14], [15], [16], [17], [18]], [[12], [13]], [[19], [20], [21], [22]]),
    "T2": ([[14], [17], [18], [19], [20]], [[12], [13]], [[15], [16], [21], [22]]),
    "U4": ([[14], [22], [17], [18], [19]], [[12], [13]], [[15], [16], [21], [20]]),
    "L1": ([[22], [17], [18], [19], [20]], [[12], [14]], [[15], [16], [13], [21, 13]]),
    "L2": ([[21, 13], [22], [17], [18], [19]], [[12], [14]], [[15], [16], [13], [20]]),
    "U5": ([[14], [22], [17], [18], [19]], [[12, 17], [13, 18]], [[15], [16], [21, 18], [20]]),
}


DOC = """
One launch, 256 workgroups (one per CU) of 4 waves, straight-line code written by a generator script.
Workgroup = (batch b, kv head, one of 16 key splits); it serves both branches, 512 keys per wave and branch.
Stream (LDS-DMA, nt, a handful of 1-KiB loads in flight per wave): wq slice, K_A, V_A, K_B, V_B, wo slice.
  The whole chip reads one cache at a time; K tiles become bf16 scores kept in registers, the exact
  maximum of a wave's scores is taken after its K phase, V tiles are accumulated with MFMA.
Hand-offs between workgroups go through d_ws. Every dword carries tag bits of this launch's epoch
(word 0 of d_ws plus an odd constant; the last stage advances the word), so readers tell fresh data
from whatever the workspace held before, and poll (bounded) until all of it is fresh:
  q      : each workgroup projects 32 columns for both batches; write-through stores
  lambda : log-sum-exp of every split, exchanged during V_B, gives each split its softmax share
  o      : weighted partial outputs of both branches; write-through stores
  out    : projected partials per head, stored twice: plainly (seen quickly by a reader behind the same L2)
           and written through (read instead when the first copy does not complete, so any placement works)
Tile indices are also reported through d_ws; a wave that lags its neighbours keeps one or two more
loads in flight for a while, one that leads keeps one fewer. Those words only steer the load depth,
never a result.
"""


def f2u(x):
    return struct.unpack("<I", struct.pack("<f", x))[0]


class Gen:
    def __init__(self):
        self.o = []
        self.fl = {"D": [], "L": [], "H": []}
        self.kind = {}
        self.nid = 0

    def A(self, s):
        self.o.append("  " + s)

    def L(self, s):
        self.o.append(s + ":")

    def C(self, s):
        self.o.append("  ; " + s)

    def vmem(self, s, optional=False, hint=False):
        self.A(s)
        self.nid += 1
        if not optional:
            k = "H" if hint or "store" in s else "D" if s.endswith(" lds") else "L"
            self.kind[self.nid] = k
            for level in {"D": "DLH", "L": "LH", "H": "H"}[k]:
                self.fl[level].append(self.nid)
        return self.nid

    def done(self, op):
        return op not in self.fl[self.kind[op]]

    def after(self, op, level="H"):
        return len(self.fl[level]) - 1 - self.fl[level].index(op)

    def _wait(self, k):
        assert k <= 63
        self.A(f"s_waitcnt vmcnt({k})")
        for level, l in self.fl.items():
            if k < len(l):
                self.fl[level] = l[len(l) - k:] if k else []

    def throttle(self, op):
        if op not in self.fl["H"]:
            return False
        self._wait(self.after(op))
        return True

    def wait_vm(self, op):
        if self.done(op):
            return False
        self._wait(self.after(op, self.kind[op]))
        return True

    def split(self, fn, n):
        keep, self.o = self.o, []
        nvm = self.nid
        fn()
        assert self.nid == nvm
        body, self.o = self.o, keep
        out, cur, k = [], [], 0
        for line in body:
            assert not line.endswith(":") and "cbranch" not in line and "s_cmp" not in line and "vcc" not in line \
                and "exec" not in line and "cselect" not in line, line
            cur.append(line)
            if not line.strip().startswith(";"):
                k += 1
            if k == n:
                out.append(cur); cur, k = [], 0
        if cur:
            out.append(cur)
        return [(lambda c=c: self.o.extend(c)) for c in out]


def gen(N=5, Npat=None, N0=8, NH=5, PH=64, NB=None, BL=16, BZ=(1, 2, 3, 4), NWO=10, R=5, PQ=36, QLAG=3, LLAG=8, PWG=484, CH=16,
        PAT="U4", XM=None, NHI=7, CK=4, C0=16, GAIN=3.0, BIAS=2.4, NMAXB=8, PT=4,
        SL1=0, SL2=0, P2AFTER=20, WARM2=True, TW=False, FWAVE=0, P1SC="", GR=(22, 38, 54, 70, 86, 102), GWIN=(4, 4), GK=12.0, GOFF=-0.25, GMAX=16,
        WOL=2, WOA=6, PX=2, NLO=None, BRK=1.0, BGAIN=3.0, GBRK=0.0, CEND=5, WOK=4, W2P=-1, CP=20, UNT=0, UNE=False, GEST=3, GACT=True, GS2=False, GPICK=5, WOH=0, WOT=32, XP=0, CP0=24, NOP2=False, skip=(), CATCH=3, Q32=True, G6=True, QX_=False, B4=(6, 2), LB=(1.0, 2.5), TRK=None, XM6=False, PERT=(), EUP=0, PMX=(0, 0, 0, 0), END=None, FD=True, CPM=1, GATE=None, T0=0, TWK=(1, 2, 3, 4), OSC='',
        diag=False, SPIN=1 << 21, pad=None, smap="head"):
    g = Gen()
    A, L, C = g.A, g.L, g.C
    LOG2E = math.log2(math.e)
    Npat = Npat or [N]
    P0, OFF = 16, 8
    def Nof(p):
        if p < P0:
            return N0
        if p < PH:
            return NH
        if p >= OFF + 512 + WOH:
            return NWO
        if NB:
            for k in BZ:
                if OFF + 128 * k - BL <= p < OFF + 128 * k:
                    return NB
        if G6 and p >= OFF + 4 * C0:
            return N + 1
        return Npat[p % len(Npat)]
    PC0 = OFF + 4 * C0
    def Nguar(p):
        if END and p >= OFF + WOH + 4 * END[0]:
            return max(Nof(p), END[1])
        return max(Nof(p), NHI) if p >= PC0 else Nof(p)

    sKV = [20, 24, 28, 32]
    sWQ, sWO, sWS, sX, sG, sO = 36, 40, 44, 48, 52, 56
    srd = lambda b: f"s[{b}:{b+3}]"
    (s_w, s_b, s_hkv, s_j, s_kvb, s_kvoff, s_wb, s_stg, s_tag32, s_tag8, s_tag12, s_c, s_rs, s_t0, s_t1, s_t2, s_t3,
     s_wqoff, s_wooff, s_spin, s_colb, s_m12) = range(60, 82)
    s_qoff, s_perm, s_h1pub, s_h1get, s_h2pub, s_h2get, s_lpub, s_lget, s_m15, s_f, s_cnt = range(3, 14)
    s_boost, s_pph, s_pro, s_tagp, s_u, s_xm = range(14, 20)
    s_brk, s_bm, s_gk = s_colb, s_wqoff, s_qoff
    s_own = s_hkv
    s_tag16 = s_m12
    s_kvb2 = s_rs if UNT else None
    s_c0, s_c1 = 100, 101
    s_gb, s_dev, s_gpo, s_bc = 36, 37, 38, 39
    s_fw = 48
    s_st = 84

    v_g, v_n, v_c, v_r = 2, 3, 4, 5
    a_pw, a_pr, v_pd, v_pl = 6, 7, 8, 9
    v_dv, v_rk, v_rv = 10, 12, 16
    v_mx, v_m, v_nmc, v_gf, v_mt = 24, 25, 26, 27, 28
    (a_wo, a_q, a_qw, a_qr, a_fw, a_fr, a_cwa, a_cwb, a_cml, a_cra, a_crb, a_crb2, a_mlr, a_l16, a_g1, a_ow, a_or,
     a_p2, a_lg, a_out, a_wor) = range(29, 50)
    v_ct = 50
    v_s = 52
    v_one = 56
    v_d = 60
    v_sc = 68
    T = 132
    B = 140
    v_pub = 164
    v_pat = 168
    v_sel = 172
    v_aw = 176
    v_tw = 180
    a_gs = 182
    v_gs = 184
    NV = 196
    a_qop = 0
    a_vf = 32
    a_wop = 64
    a_o = 96
    a_l = 128
    a_kf = 132
    NA = a_kf + 16 * R
    assert NA <= 256
    vr = lambda b, n: f"v[{b}:{b+n-1}]"
    ar = lambda b, n: f"a[{b}:{b+n-1}]"

    SMAPS = {"head": ["start", "qpub", "qval", "endKA", "endVA", "endKB", "drained", "end"],
             "tail": ["start", "drained", "bar", "pub1", "bar2", "h1ok", "pub2", "end"],
             "rounds": ["start"] + [f"t{t}" for t in list(GR)[:5]] + ["drained", "end"],
             "early": ["start", "p0", "p8", "p15", "qpub", "p24", "p40", "end"],
             "early2": ["start", "p20", "p28", "p36", "p48", "p64", "p96", "end"],
             "early3": ["start", "p0", "p4", "a", "b", "c", "p8", "end"],
             "late": ["start", "t100", "t110", "t116", "t121", "t125", "drained", "end"],
             "tail3": ["start", "vlast", "pub1", "wo", "h1ok", "bar2", "pub2", "end"],
             "tail2": ["start", "drained", "pub1", "wo", "h1ok", "bar2", "pub2", "end"]}
    def stamp(name):
        if name not in SMAPS[smap]:
            return
        i = SMAPS[smap].index(name)
        if diag or (pad and i == 0):
            A(f"s_memrealtime s[{s_st+2*i}:{s_st+2*i+1}]")
        if pad and pad[0] == i:
            L("L_pad")
            A("s_memrealtime s[82:83]")
            A("s_waitcnt lgkmcnt(0)")
            A(f"s_sub_u32 s82, s82, s{s_st}")
            A(f"s_cmp_lt_u32 s82, {int(pad[1]*100)}")
            A("s_cbranch_scc1 L_pad")

    hdr = open("gated_mix__gqa_block_cached__gqa_block_cached__decode.s.ref").read().split("\n")
    for line in hdr:
        if line.startswith(";") and "@launch" not in line:
            g.o.append(line)
        elif not line.startswith(";"):
            break
    g.o.append(f"; @launch grid=(256,1,1) block=(256,1,1) lds={LDS_BYTES}")
    g.o.append('.amdgcn_target "amdgcn-amd-amdhsa--gfx950"')
    for line in DOC.strip("\n").split("\n"):
        g.o.append(("; " + line).rstrip())
    g.o.append(".text")
    g.o.append(f".globl {KNAME}")
    g.o.append(".p2align 8")
    g.o.append(f".type {KNAME},@function")
    L(KNAME)
    C("workgroup = (b, hkv, one of 16 key splits) for both branches; extra workgroups leave at once")
    A("s_cmp_ge_u32 s2, 256")
    A("s_cbranch_scc0 L_go")
    A("s_endpgm")
    L("L_go")
    A(f"s_lshr_b32 s{s_b}, s2, 7")
    A(f"s_mul_i32 s3, s{s_b}, 40")
    A("s_add_u32 s16, s0, s3")
    A("s_addc_u32 s17, s1, 0")
    A("s_load_dwordx2 s[14:15], s[16:17], 24")
    A("s_load_dwordx4 s[4:7], s[0:1], 8")
    A("s_load_dwordx2 s[12:13], s[0:1], 0")
    A("s_load_dwordx2 s[18:19], s[0:1], 104")
    A("s_load_dwordx4 s[8:11], s[0:1], 48")
    A("s_load_dwordx4 s[96:99], s[0:1], 80")
    stamp("start")
    if CP0:
        C("wave 0 pulls the next lines of this code into L2 while the memory system is still idle")
        A("s_getpc_b64 s[82:83]")
        A(f"v_lshlrev_b32 v{T+6}, 7, v0")
        A(f"v_cmp_gt_u32 vcc, {CP0}, v0")
        A("s_mov_b64 exec, vcc")
        A("s_cbranch_execz L_nocp0")
        g.vmem(f"global_load_dword v{T+7}, v{T+6}, s[82:83] offset:128", optional=True)
        L("L_nocp0")
        A("s_mov_b64 exec, -1")
    A(f"v_lshrrev_b32 v{T}, 6, v0")
    A("v_and_b32 v1, 63, v0")
    A(f"v_readfirstlane_b32 s{s_w}, v{T}")
    if Q32:
        C("q slice: branch b, columns hkv*512 + (s&7)*64 + (s>>3)*32, rows w*128..")
        A(f"v_lshrrev_b32 v{T+2}, 2, v1")
        A(f"v_lshlrev_b32 v{T+2}, 13, v{T+2}")
        A(f"v_and_b32 v{T}, 3, v1")
        A(f"v_lshl_add_u32 v{T+2}, v{T}, 4, v{T+2}")
        A(f"s_and_b32 s{s_t0}, s2, 0x70")
        if QX_:
            A(f"s_lshr_b32 s{s_t1}, s2, 4")
            A(f"s_xor_b32 s{s_t1}, s{s_t1}, s2")
            A(f"s_and_b32 s{s_t1}, s{s_t1}, 7")
        else:
            A(f"s_and_b32 s{s_t1}, s2, 7")
        A(f"s_lshl1_add_u32 s{s_t0}, s{s_t1}, s{s_t0}")
        A(f"s_bfe_u32 s{s_t1}, s2, 0x10003")
        A(f"s_add_u32 s{s_t0}, s{s_t0}, s{s_t1}")
        A(f"s_lshl_b32 s{s_colb}, s{s_t0}, 5")
        A(f"s_lshl_b32 s{s_t2}, s{s_w}, 1")
    else:
        C("q slice: branch b, columns (wg>>1 & 63)*64, rows (wg&1)*256 + w*64")
        A(f"v_lshrrev_b32 v{T+2}, 3, v1")
        A(f"v_lshlrev_b32 v{T+2}, 13, v{T+2}")
        A(f"v_and_b32 v{T}, 7, v1")
        A(f"v_lshl_add_u32 v{T+2}, v{T}, 4, v{T+2}")
        A(f"s_bfe_u32 s{s_colb}, s2, 0x60001")
        A(f"s_lshl_b32 s{s_colb}, s{s_colb}, 6")
        A(f"s_and_b32 s{s_t0}, s2, 1")
        A(f"s_lshl2_add_u32 s{s_t2}, s{s_t0}, s{s_w}")
    A(f"s_lshl_b32 s{s_t0}, s{s_t2}, 19")
    A(f"s_lshl1_add_u32 s{s_wqoff}, s{s_colb}, s{s_t0}")
    A(f"s_lshl_b32 s{s_stg}, s{s_w}, 13")
    A(f"s_add_u32 s{s_stg}, s{s_stg}, {STG}")
    A(f"s_mov_b32 s{sWQ+2}, 0x400000")
    A(f"s_mov_b32 s{sWQ+3}, 0x20000")
    A("s_waitcnt lgkmcnt(0)")
    A(f"s_mov_b32 s{sWQ}, s14")
    A(f"s_and_b32 s{sWQ+1}, s15, 0xffff")
    def mksrd(d, p, size):
        A(f"s_mov_b32 s{d}, s{p}")
        A(f"s_and_b32 s{d+1}, s{p+1}, 0xffff")
        A(f"s_mov_b32 s{d+2}, {size:#x}")
        A(f"s_mov_b32 s{d+3}, 0x20000")

    S5, WM, G4 = PATS[PAT] if isinstance(PAT, str) else PAT
    msk = lambda bs: sum(1 << b for b in bs)
    basis = {}
    for v in [msk(x) for x in S5 + WM + G4]:
        while v:
            h = v.bit_length() - 1
            if h not in basis:
                basis[h] = v
                break
            v ^= basis[h]
    assert sorted(basis) == list(range(12, 23)), "pattern is not a bijection"
    def tile_off(t):
        x = 0
        for k in range(5):
            if t >> k & 1:
                x ^= msk(S5[k])
        return x
    NT = 128
    Z = [("wq", j) for j in range(8)] + [("kv", t, j) for t in range(WOT) for j in range(4)] + [("wo", j) for j in range(WOH)] + \
        [("kv", t, j) for t in range(WOT, NT) for j in range(4)] + [("wo", j) for j in range(WOH, 8)]
    pos = {z: p for p, z in enumerate(Z)}
    pos_of = lambda t, j: pos[("kv", t, j)]
    slot_of = lambda t: t % NSLOT
    isK = lambda t: (t // 32) % 2 == 0
    ids = {}
    st = {}
    log = []
    pending = []

    def cur_t():
        p = st["p"]
        while Z[p][0] != "kv":
            p -= 1
        return Z[p][1]

    def issue(p, throttle=True):
        z = Z[p]
        for k, (pp, mask, val, n) in enumerate(PERT):
            if pp == p:
                A(f"s_lshl2_add_u32 s83, s2, s{s_w}")
                A(f"s_and_b32 s83, s83, {mask}")
                A(f"s_cmp_eq_u32 s83, {val}")
                A(f"s_cbranch_scc0 L_pert{k}")
                for _ in range(n):
                    A("s_sleep 127")
                L(f"L_pert{k}")
        need_nop = False
        if z[0] == "wq":
            if z[1]:
                A(f"s_add_u32 s{s_wqoff}, s{s_wqoff}, {0x20000 if Q32 else 0x10000:#x}")
            A(f"s_add_u32 m0, s{s_stg}, {z[1]*1024}")
            need_nop = True
        elif z[0] == "wo":
            if z[1]:
                A(f"s_add_u32 s{s_wooff}, s{s_wooff}, 8192")
            A(f"s_add_u32 m0, s{s_stg}, {z[1]*1024}")
            need_nop = True
        elif z[2] == 0:
            t = z[1]
            stamp(f"t{t}")
            un = UNT and (t % 32 < (1 << UNT) or (UNE and t % 32 >= 32 - (1 << UNT)))
            A(f"s_xor_b32 s{s_kvoff}, s{s_kvb2 if un else s_kvb}, {tile_off(t % 32) ^ PMX[t // 32]:#x}")
            A(f"s_add_u32 m0, s{s_wb}, {slot_of(t)*4096}")
            need_nop = True
            if p >= PC0 and any(Nguar(q) > Nof(q) for q in range(p, p + 4)):
                if G6:
                    A(f"s_sub_i32 s{s_bm}, s{s_gb}, {t + 1}")
                elif NLO:
                    A(f"s_sub_i32 s{s_bm}, {t}, s{s_brk}")
                A(f"s_cmp_gt_i32 s{s_boost}, {t}")
                A("s_cselect_b64 vcc, -1, 0")
                need_nop = False
                if XM and (XM[0] | XM[1]) >> (t % 32) & 1:
                    A(f"s_bitcmp1_b32 s{s_xm}, {t % 32}")
                    A(f"s_cselect_b32 s{s_bm}, 0, s{s_bm}" if XM6 else "s_cselect_b64 vcc, -1, vcc")
        waited = False
        if throttle and p - Nguar(p) >= 0:
            waited = g.throttle(ids[p - Nguar(p)])
            if Nguar(p) > Nof(p) and ids[p - Nof(p)] in g.fl["H"]:
                A(f"s_cbranch_vccnz L_b{p}")
                A(f"s_waitcnt vmcnt({g.after(ids[p - Nof(p)])})")
                if NLO or G6:
                    A(f"s_bitcmp0_b32 s{s_bm}, 31")
                    A(f"s_cbranch_scc1 L_b{p}")
                    if B4 and z[0] == "kv" and st.get("picked"):
                        A(f"s_cmp_gt_i32 s{s_brk}, {z[1]}")
                        A(f"s_cbranch_scc0 L_n{p}")
                        A(f"s_waitcnt vmcnt({g.after(ids[p - N + 1])})")
                        L(f"L_n{p}")
                    A(f"s_waitcnt vmcnt({g.after(ids[p - (NLO or N)])})")
                L(f"L_b{p}")
                waited = True
        if need_nop and not waited:
            A("s_nop 0")
        stamp(f"p{p}")
        if z[0] == "wq":
            ids[p] = g.vmem(f"buffer_load_dwordx4 v{T+2}, {srd(sWQ)}, s{s_wqoff} offen nt lds")
        elif z[0] == "wo":
            ids[p] = g.vmem(f"buffer_load_dwordx4 v{a_wo}, {srd(sWO)}, s{s_wooff} offen nt lds")
        else:
            _, t, j = z
            ids[p] = g.vmem(f"buffer_load_dwordx4 v{v_dv+(j&1)}, {srd(sKV[t//32])}, s{s_kvoff} offen offset:{j*1024} nt lds")
            if j == 1 and C0 - 8 <= t < NT - 6:
                assert st["setup"]
                A(f"s_cmp_eq_u32 s{s_pph}, {t % PT}")
                A(f"s_cselect_b32 s{s_u}, s{s_pro}, {WS_SIZE:#x}")
                A(f"v_or_b32 v{v_pd}, {t}, v{v_pl}")
                g.vmem(f"buffer_store_dword v{v_pd}, v{a_pw}, {srd(sWS)}, s{s_u} offen")

    C("wq slice -> staging")
    for p in range(8):
        issue(p, throttle=False)
    stamp("a")
    A(f"s_load_dword s{s_tag32}, s[18:19], {WS_E}" + ("" if EUP == 2 else ""))
    mksrd(sKV[0], 4, 0x8000000)
    A(f"s_mul_i32 s{s_wb}, s{s_w}, {RING}")
    C("first byte of this wave's keys")
    A(f"s_lshr_b32 s{s_kvb}, s2, 4")
    A(f"s_lshl_b32 s{s_kvb}, s{s_kvb}, 23")
    for src, ms in (("s2", G4), (f"s{s_w}", WM)):
        k = 0
        while k < len(ms):
            n = 1
            while len(ms[k]) == 1 and k + n < len(ms) and list(ms[k + n]) == [ms[k][0] + n]:
                n += 1
            if len(ms[k]) == 1:
                A(f"s_bfe_u32 s{s_t0}, {src}, {(n << 16) + k:#x}")
                A(f"s_lshl_b32 s{s_t0}, s{s_t0}, {ms[k][0]}")
            else:
                A(f"s_bitcmp1_b32 {src}, {k}")
                A(f"s_cselect_b32 s{s_t0}, {msk(ms[k]):#x}, 0")
            A(f"s_xor_b32 s{s_kvb}, s{s_kvb}, s{s_t0}")
            k += n
    if UNT:
        A(f"s_mov_b32 s{s_kvb2}, s{s_kvb}")
        for k in range(UNT):
            A(f"s_bitcmp1_b32 s2, {k}")
            A(f"s_cselect_b32 s{s_t0}, {msk(S5[k]):#x}, 0")
            A(f"s_xor_b32 s{s_kvb2}, s{s_kvb2}, s{s_t0}")
    C("DMA voffsets: 16-byte chunk index xor 2*(key&7)")
    A(f"v_lshrrev_b32 v{v_g}, 4, v1")
    A(f"v_lshlrev_b32 v{T+3}, 1, v{v_g}")
    A(f"v_xor_b32 v{T+3}, v{T+3}, v1")
    A(f"v_lshlrev_b32 v{v_dv}, 4, v{T+3}")
    A(f"v_xor_b32 v{v_dv+1}, 0x80, v{v_dv}")
    if T0:
        C("start the address translation of both key pages early")
        A("s_mov_b64 exec, 3")
        A(f"v_lshlrev_b32 v{v_tw+1}, 22, v1")
        A(f"s_andn2_b32 s{s_t0}, s{s_kvb}, 0x400000")
        g.vmem(f"buffer_load_dword v{v_tw}, v{v_tw+1}, {srd(sKV[0])}, s{s_t0} offen nt")
        A("s_mov_b64 exec, -1")
    GX = v_sc

    NKS, NCB = (4, 2) if Q32 else (2, 4)
    XOP = v_sc + 16
    def pro_x():
        C("x operand of the q projection")
        mksrd(sX, 12, 2048)
        A(f"v_and_b32 v{T+1}, 1, v1")
        A(f"v_lshlrev_b32 v{T+1}, 10, v{T+1}")
        A(f"v_lshl_add_u32 v{T+1}, v{v_g}, 4, v{T+1}")
        A(f"s_lshl_b32 s{s_t2}, s{s_t2}, 7")
        for j in range(NKS):
            st["x"] = g.vmem(f"buffer_load_dwordx4 {vr(XOP+4*j,4)}, v{T+1}, {srd(sX)}, s{s_t2} offen offset:{j*64}")
        A(f"s_lshr_b32 s{s_t0}, s{s_w}, 1")
        A(f"s_mul_i32 s{s_t0}, s{s_t0}, 40")
        A(f"s_add_u32 s82, s0, s{s_t0}")
        A("s_addc_u32 s83, s1, 0")
        A("s_load_dwordx2 s[16:17], s[82:83], 32")
        if EUP == 2:
            A("s_load_dwordx2 s[14:15], s[0:1], 96")

    def pro_rest():
        A(f"v_and_b32 v{v_n}, 15, v1")
        A(f"v_and_b32 v{v_c}, 3, v1")
        A(f"v_bfe_u32 v{v_r}, v1, 2, 2")
        mksrd(sG, 96, 1024)
        for k in range(1, 4):
            mksrd(sKV[k], 4 + 2 * k, 0x8000000)
        mksrd(sWS, 18, WS_SIZE)
        mksrd(sO, 98, 2048)
        A(f"s_bfe_u32 s{s_hkv}, s2, 0x30004")
        A(f"s_and_b32 s{s_j}, s2, 15")
        A(f"s_lshl4_add_u32 s{s_j}, s{s_b}, s{s_j}")
        C("clear the LDS flags")
        A(f"v_mov_b32 v{a_fr}, {SCR+FL}")
        A(f"v_lshl_add_u32 v{T}, v{v_n}, 2, v{a_fr}")
        A(f"v_mov_b32 v{T+1}, 0")
        A(f"ds_write_b32 v{T}, v{T+1}")
        C("LDS read addresses for K")
        A(f"v_lshl_add_u32 v{T+3}, v{v_n}, 8, s{s_wb}")
        A(f"v_and_b32 v{T+4}, 7, v{v_n}")
        A(f"v_lshlrev_b32 v{T+4}, 1, v{T+4}")
        A(f"v_xor_b32 v{T+4}, v{T+4}, v{v_g}")
        for j in range(4):
            A(f"v_xor_b32 v{v_rk+j}, {4*j}, v{T+4}")
            A(f"v_lshl_add_u32 v{v_rk+j}, v{v_rk+j}, 4, v{T+3}")
        C("q-proj addresses")
        A(f"v_lshl_add_u32 v{T}, v{v_g}, 3, v{v_r}")
        A(f"v_lshl_add_u32 v{T}, v{T}, {6 if Q32 else 7}, s{s_stg}")
        A(f"v_lshl_add_u32 v{T}, v{v_c}, 3, v{T}")
        A(f"s_lshl_b32 s{s_t0}, s{s_w}, 9")
        A(f"s_add_u32 s{s_t0}, s{s_t0}, {SCR+QP}")
        A(f"v_and_b32 v{T+1}, 1, v1")
        A(f"v_lshl_add_u32 v{T+1}, v{T+1}, {7 if Q32 else 8}, s{s_t0}")
        A(f"v_lshl_add_u32 v{T+1}, v{v_g}, 4, v{T+1}")
        A(f"v_and_b32 v{T+3}, 31, v1")
        A(f"v_lshlrev_b32 v{T+3}, 4, v{T+3}")
        A(f"v_add_u32 v{T+3}, {SCR+QP}, v{T+3}")
        A(f"v_bfe_u32 v{T+4}, v1, {3 if Q32 else 4}, 1")
        A(f"v_lshlrev_b32 v{T+4}, 14, v{T+4}")
        A(f"v_and_b32 v{T+5}, {7 if Q32 else 15}, v1")
        A(f"v_lshl_add_u32 v{T+4}, v{T+5}, 4, v{T+4}")
        A(f"s_lshl_b32 s{s_t0}, s{s_b}, 13")
        A(f"s_add_u32 s{s_t0}, s{s_t0}, s{s_colb}")
        A(f"s_lshl_b32 s{s_t0}, s{s_t0}, 2")
        if not Q32:
            A(f"s_and_b32 s{s_t1}, s2, 1")
            A(f"s_lshl_b32 s{s_t1}, s{s_t1}, 16")
            A(f"s_add_u32 s{s_t0}, s{s_t0}, s{s_t1}")
        A(f"s_add_u32 s{s_t0}, s{s_t0}, {WS_QB}")
        A(f"s_movk_i32 s{s_t1}, 0xff00")

    def gate_loads():
        C("gate inputs: lane l holds 16 elements (l&31) of batch b")
        A(f"v_and_b32 v{T}, 31, v1")
        A(f"v_lshlrev_b32 v{T}, 5, v{T}")
        A(f"s_lshl_b32 s{s_t0}, s{s_b}, 10")
        for j in range(2):
            g.vmem(f"buffer_load_dwordx4 {vr(GX+4*j,4)}, v{T}, {srd(sX)}, s{s_t0} offen offset:{j*16}")
        for j in range(2):
            st["gate"] = g.vmem(f"buffer_load_dwordx4 {vr(GX+8+4*j,4)}, v{T}, {srd(sG)}, 0 offen offset:{j*16}")

    if XP < 8:
        pro_x()
        pro_rest()
    chunks = g.split(pro_rest, 14) if XP >= 8 else []
    for p in range(8, P0):
        issue(p)
        if p == XP:
            pro_x()
        elif p > XP and chunks:
            chunks.pop(0)()
        if EUP == 2 and p == max(XP, 8) + 2:
            C("read after the epoch word has arrived: {tag, 1} if the word may already have been advanced")
            A("s_waitcnt lgkmcnt(0)")
            A("s_load_dwordx2 s[100:101], s[14:15], 0")
    for f in chunks:
        f()
    for p in range(P0, P0 + PX):
        issue(p, throttle=False)
    A("s_waitcnt lgkmcnt(0)")
    C("---- q projection of this workgroup's slice ----")
    g.wait_vm(st["x"])
    g.wait_vm(ids[7])
    RB = 64 if Q32 else 128
    for ks in range(NKS):
        for cb in range(NCB):
            for hf in range(2):
                A(f"ds_read_b64_tr_b16 {ar(a_vf+(ks*NCB+cb)*4+hf*2,2)}, v{T} offset:{ks*32*RB + hf*4*RB + cb*32}")
    mksrd(sWO, 16, 0x400000)
    A(f"s_add_u32 s{s_tag32}, s{s_tag32}, {EPOCH_INC:#x}")
    if EUP == 2:
        A("s_cmp_lg_u32 s101, 0")
        A(f"s_cselect_b32 s{s_tag32}, s100, s{s_tag32}")
    A(f"s_and_b32 s{s_tag8}, s{s_tag32}, 0xff")
    A(f"s_and_b32 s{s_tag12}, s{s_tag32}, 0xfff")
    A(f"s_and_b32 s{s_tag16}, s{s_tag32}, 0xffff")
    A(f"v_mov_b32 v{T+5}, s{s_tag8}")
    for ks in range(NKS):
        A(f"s_waitcnt lgkmcnt({16-2*NCB*(ks+1)})")
        for cb in range(NCB):
            A(f"v_mfma_f32_16x16x32_bf16 {vr(B+4*cb,4)}, {ar(a_vf+(ks*NCB+cb)*4,4)}, {vr(XOP+4*ks,4)}, " + ("0" if ks == 0 else vr(B + 4 * cb, 4)))
    A(f"s_nop {8-NCB}")
    for cb in range(NCB):
        A(f"ds_write_b128 v{T+1}, {vr(B+4*cb,4)} offset:{cb*64}")
    A(f"s_cmp_eq_u32 s{s_w}, 0")
    A("s_waitcnt lgkmcnt(0)")
    if "b1" not in skip:
        A("s_barrier")
    A("s_cbranch_scc0 L_noqstore")
    for w in range(4):
        A(f"ds_read_b128 {vr(B+4*w,4)}, v{T+3} offset:{w*512}")
    A("s_waitcnt lgkmcnt(0)")
    for e in range(4):
        A(f"v_add_f32 v{B+e}, v{B+e}, v{B+4+e}")
        A(f"v_add_f32 v{B+8+e}, v{B+8+e}, v{B+12+e}")
    for e in range(4):
        A(f"v_add_f32 v{B+e}, v{B+e}, v{B+8+e}")
    if Q32:
        for e in range(4):
            A(f"v_cvt_pk_bf16_f32 v{B+e}, 0, v{B+e}")
        for e in range(4):
            A(f"v_or_b32 v{B+e}, s{s_tag16}, v{B+e}")
        A("s_mov_b64 exec, 0xffff")
    else:
        for e in range(4):
            A(f"v_add_u32 v{B+e}, 0x80, v{B+e}")
        for e in range(4):
            A(f"v_and_or_b32 v{B+e}, v{B+e}, s{s_t1}, v{T+5}")
        A("s_mov_b32 exec_hi, 0")
    if "qstore" not in skip:
        g.vmem(f"buffer_store_dwordx4 {vr(B,4)}, v{T+4}, {srd(sWS)}, s{s_t0} offen sc1", optional=True)
    A("s_mov_b64 exec, -1")
    L("L_noqstore")
    stamp("qpub")

    FSLOT = slot_of(NT)

    def setup_head():
        C("constants")
        A(f"s_mov_b32 s{s_c}, {f2u(LOG2E):#x}")
        if not UNT:
            A(f"s_mov_b32 s{s_rs}, {f2u(128 ** -0.5):#x}")
        A(f"s_mov_b32 s{s_spin}, {SPIN}")
        for r in range(4):
            A(f"v_mov_b32 v{v_one+r}, 0x3f803f80")
        C("q gather: head w, lanes 0-31 " + ("branch A, lanes 32-63 branch B" if Q32 else "half 0, lanes 32-63 half 1"))
        A(f"v_lshrrev_b32 v{T}, 5, v1")
        A(f"v_and_b32 v{T+1}, 31, v1")
        A(f"v_lshlrev_b32 v{T+2}, 4, v{T+1}")
        A(f"v_lshl_add_u32 v{a_q}, v{T}, {15 if Q32 else 16}, v{T+2}")
        A(f"s_lshr_b32 s{s_t0}, s2, 4")
        A(f"s_lshl2_add_u32 s{s_t0}, s{s_t0}, s{s_w}")
        A(f"s_lshl_b32 s{s_t0}, s{s_t0}, 9")
        A(f"s_add_u32 s{s_qoff}, s{s_t0}, {WS_QB}")
        A(f"s_lshl_b32 s{s_t0}, s{s_w}, 8")
        A(f"s_add_u32 s{s_t0}, s{s_t0}, {SCR+QX}")
        A(f"v_lshl_add_u32 v{a_qw}, v{T+1}, 3, s{s_t0}")
        A(f"v_lshl_add_u32 v{a_qw}, v{T}, {10 if Q32 else 2}, v{a_qw}")
        A(f"v_lshlrev_b32 v{a_qr}, 8, v{v_c}")
        A(f"v_lshl_add_u32 v{a_qr}, v{v_g}, 4, v{a_qr}")
        A(f"v_add_u32 v{a_qr}, {SCR+QX}, v{a_qr}")
        A(f"s_lshl_b32 s{s_t0}, s{s_w}, 2")
        A(f"v_add_u32 v{a_fw}, s{s_t0}, v{a_fr}")
        C("catch-up hints (speed only): one line of tile indices per group of workgroups with equal wg&7")
        A(f"s_mov_b32 s{s_boost}, 0")
        A(f"s_and_b32 s{s_tagp}, s{s_tag32}, 0xffffff00")
        A(f"v_mov_b32 v{v_pl}, s{s_tagp}")
        A(f"v_min_u32 v{a_pw}, 1, v1")
        A(f"v_lshlrev_b32 v{a_pw}, 30, v{a_pw}")
        A(f"s_and_b32 s{s_t0}, s2, 7")
        A(f"s_mul_i32 s{s_t0}, s{s_t0}, 4352")
        A(f"s_add_u32 s{s_t0}, s{s_t0}, {WS_PR}")
        A(f"v_lshl_add_u32 v{a_pr}, v1, 2, s{s_t0}")
        if GR:
            C("wave 1 of workgroups 32..39 compares the groups a few times")
            A(f"s_add_u32 s{s_bc}, s{s_t0}, 128")
            A(f"s_mov_b32 s{s_gb}, 0")
            A(f"s_mov_b32 s{s_dev}, 0")
            A(f"s_lshr_b32 s{s_t1}, s2, 3")
            A(f"s_lshl_b32 s{s_t2}, s{s_w}, 5")
            A(f"s_add_u32 s{s_t1}, s{s_t1}, s{s_t2}")
            A(f"s_xor_b32 s{s_t1}, s{s_t1}, {32 + 4}")
            A(f"s_min_u32 s{s_t1}, s{s_t1}, 1")
            A(f"s_lshl_b32 s{s_t1}, s{s_t1}, 30")
            A(f"s_add_u32 s{s_t1}, s{s_t1}, {WS_GP}")
            A(f"v_lshrrev_b32 v{T+3}, 3, v1")
            A(f"v_min_u32 v{T+3}, 1, v{T+3}")
            A(f"v_lshlrev_b32 v{T+3}, 30, v{T+3}")
            A(f"v_mul_u32_u24 v{T+4}, 4224, v1")
            A(f"v_add3_u32 v{a_gs}, v{T+3}, v{T+4}, s{s_t1}")
            A(f"s_and_b32 s{s_t2}, s2, 7")
            A(f"s_mul_i32 s{s_t2}, s{s_t2}, 4224")
            A(f"s_add_u32 s{s_gpo}, s{s_t1}, s{s_t2}")
        A(f"s_lshr_b32 s{s_t1}, s2, 3")
        A(f"s_lshl2_add_u32 s{s_pro}, s{s_t1}, s{s_t0}")
        A(f"s_and_b32 s{s_t1}, s{s_t1}, {PT-1}")
        A(f"s_lshl4_add_u32 s{s_pph}, s{s_w}, s{s_t1}")
        if XM:
            A(f"s_getreg_b32 s{s_t0}, hwreg(HW_REG_XCC_ID)")
            A(f"s_and_b32 s{s_t0}, s{s_t0}, 1")
            A(f"s_mul_i32 s{s_t0}, s{s_t0}, {XM[0] ^ XM[1]:#x}")
            A(f"s_xor_b32 s{s_xm}, s{s_t0}, {XM[0]:#x}")

    def setup_rest():
        A(f"s_mov_b32 s{s_perm}, 0x07060302")
        A(f"s_mov_b32 s{s_m12}, 0xfffff000")
        A(f"s_mov_b32 s{s_m15}, 0xfffefffe")
        C("V transposed read addresses")
        A(f"v_lshl_add_u32 v{T+3}, v{v_g}, 2, v{v_r}")
        A(f"v_and_b32 v{T+5}, 1, v{v_c}")
        A(f"v_lshlrev_b32 v{T+5}, 3, v{T+5}")
        A(f"v_lshrrev_b32 v{T+6}, 1, v{v_c}")
        A(f"v_lshl_add_u32 v{T+4}, v{T+3}, 8, v{T+5}")
        A(f"v_add_u32 v{T+4}, s{s_wb}, v{T+4}")
        A(f"v_and_b32 v{T+7}, 7, v{T+3}")
        A(f"v_lshl_or_b32 v{T+7}, v{T+7}, 1, v{T+6}")
        for cb in range(8):
            A(f"v_xor_b32 v{v_rv+cb}, {2*cb}, v{T+7}")
            A(f"v_lshl_add_u32 v{v_rv+cb}, v{v_rv+cb}, 4, v{T+4}")
        C("wo: head hq = hkv*4 + (j>>3), columns (wg&7)*64; wave w loads rows (w&1)*64.. of branch w>>1")
        A(f"v_lshl_add_u32 v{T+4}, v{T+3}, 7, v{T+5}")
        A(f"v_add_u32 v{T+4}, {STG}, v{T+4}")
        A(f"v_and_b32 v{T+7}, 6, v{T+3}")
        A(f"v_or_b32 v{T+7}, v{T+7}, v{T+6}")
        A(f"s_lshl_b32 s{s_t0}, s{s_w}, 1")
        A(f"v_xor_b32 v{T+7}, s{s_t0}, v{T+7}")
        A(f"v_lshl_add_u32 v{a_wor}, v{T+7}, 4, v{T+4}")
        A(f"v_lshrrev_b32 v{T+3}, 3, v1")
        A(f"v_and_b32 v{T+4}, 6, v{T+3}")
        A(f"v_and_b32 v{T+5}, 7, v1")
        A(f"v_xor_b32 v{T+4}, v{T+4}, v{T+5}")
        A(f"v_lshlrev_b32 v{T+4}, 4, v{T+4}")
        A(f"v_lshl_add_u32 v{a_wo}, v{T+3}, 10, v{T+4}")
        A(f"s_lshr_b32 s{s_t0}, s{s_j}, 3")
        A(f"s_lshl2_add_u32 s{s_t3}, s{s_hkv}, s{s_t0}")
        A(f"s_and_b32 s{s_t0}, s{s_w}, 1")
        A(f"s_lshl1_add_u32 s{s_t0}, s{s_t3}, s{s_t0}")
        A(f"s_lshl_b32 s{s_t0}, s{s_t0}, 16")
        A(f"s_and_b32 s{s_t2}, s2, 7")
        A(f"s_lshl_b32 s{s_t1}, s{s_t2}, 7")
        A(f"s_add_u32 s{s_wooff}, s{s_t0}, s{s_t1}")
        C("hop-2 store: line (cg = (wg&7)*4 + w, p = hq), lane (g, n<2): b = n")
        A(f"s_lshl2_add_u32 s{s_t0}, s{s_t2}, s{s_w}")
        A(f"s_lshl_b32 s{s_t0}, s{s_t0}, 12")
        A(f"s_lshl_b32 s{s_t1}, s{s_t3}, 7")
        A(f"s_add_u32 s{s_t0}, s{s_t0}, s{s_t1}")
        A(f"s_add_u32 s{s_h2pub}, s{s_t0}, {WS_P1}")
        A(f"v_and_b32 v{T+3}, 1, v1")
        A(f"v_lshlrev_b32 v{a_p2}, 6, v{T+3}")
        A(f"v_lshl_add_u32 v{a_p2}, v{v_g}, 4, v{a_p2}")
        C("o operand reader: OX + (n&1)*256 + g*16")
        A(f"v_lshlrev_b32 v{a_or}, 8, v{T+3}")
        A(f"v_lshl_add_u32 v{a_or}, v{v_g}, 4, v{a_or}")
        A(f"v_add_u32 v{a_or}, {SCR+OX}, v{a_or}")
        C("final role f = (wg&7)*4 + w (the wave's own column group) for one workgroup per f, else >= 32")
        A(f"s_lshl2_add_u32 s{s_f}, s{s_t2}, s{s_w}")
        A(f"s_lshl_b32 s{s_t1}, s{s_f}, 12")
        A(f"s_add_u32 s{s_h2get}, s{s_t1}, {WS_P1}")
        A(f"s_lshr_b32 s{s_t0}, s2, 3")
        if FWAVE == 0:
            A(f"s_xor_b32 s{s_t0}, s{s_t0}, s{s_w}")
        A(f"s_lshl_b32 s{s_t0}, s{s_t0}, 5")
        A(f"s_or_b32 s{s_f}, s{s_f}, s{s_t0}")
        A(f"v_lshlrev_b32 v{a_l16}, 4, v1")
        A(f"v_bfe_u32 v{T+3}, v1, 2, 1")
        A(f"v_lshlrev_b32 v{a_out}, 10, v{T+3}")
        A(f"v_lshl_add_u32 v{a_out}, v{v_c}, 3, v{a_out}")
        A(f"v_bfe_u32 v{T+4}, v1, 4, 1")
        A(f"v_lshl_add_u32 v{a_out}, v{T+4}, 2, v{a_out}")
        A(f"v_lshrrev_b32 v{T+5}, 5, v1")
        A(f"v_lshl_add_u32 v{a_out}, v{T+5}, 1, v{a_out}")
        C("hop-1 gather, wave = (dims half w>>1, batch w&1): rows (hq, b*16 + 4*g + i)")
        A(f"v_lshlrev_b32 v{T+5}, 4, v{v_n}")
        A(f"v_lshl_add_u32 v{a_g1}, v{v_g}, 11, v{T+5}")
        A(f"s_and_b32 s{s_t0}, s{s_w}, 1")
        A(f"s_lshl1_add_u32 s{s_t1}, s{s_t3}, s{s_t0}")
        A(f"s_lshl_b32 s{s_t1}, s{s_t1}, 13")
        A(f"s_lshr_b32 s{s_t2}, s{s_w}, 1")
        A(f"s_lshl_b32 s{s_t3}, s{s_t2}, 8")
        A(f"s_add_u32 s{s_t1}, s{s_t1}, s{s_t3}")
        A(f"s_add_u32 s{s_h1get}, s{s_t1}, {WS_H1}")
        C("summed o -> LDS [br][b][ks][g][hf][4] bf16; lanes 0-15 hold branch B, lanes 16-31 branch A")
        A(f"s_lshl1_add_u32 s{s_t0}, s{s_t0}, s{s_t2}")
        A(f"s_lshl_b32 s{s_t0}, s{s_t0}, 7")
        A(f"s_add_u32 s{s_t0}, s{s_t0}, {SCR+OX}")
        A(f"v_lshl_add_u32 v{a_ow}, v{v_c}, 4, s{s_t0}")
        A(f"v_lshl_add_u32 v{a_ow}, v{T+3}, 3, v{a_ow}")
        A(f"v_bfe_u32 v{T+5}, v1, 3, 1")
        A(f"v_lshl_add_u32 v{a_ow}, v{T+5}, 6, v{a_ow}")
        A(f"v_xor_b32 v{T+4}, 1, v{T+4}")
        A(f"v_lshl_add_u32 v{a_ow}, v{T+4}, 9, v{a_ow}")
        C("hop-1 publish: row (hkv, h=w, j)")
        A(f"s_lshl2_add_u32 s{s_t0}, s{s_hkv}, s{s_w}")
        A(f"s_lshl_b32 s{s_t0}, s{s_t0}, 5")
        A(f"s_add_u32 s{s_t0}, s{s_t0}, s{s_j}")
        A(f"s_lshl_b32 s{s_t0}, s{s_t0}, 9")
        A(f"s_add_u32 s{s_h1pub}, s{s_t0}, {WS_H1}")
        C("combine: writers (lane (g,h)) and readers (head w, d4)")
        A(f"v_lshlrev_b32 v{T+3}, 9, v{v_c}")
        A(f"v_lshl_add_u32 v{T+3}, v{v_g}, 4, v{T+3}")
        A(f"s_lshl_b32 s{s_t0}, s{s_w}, 11")
        A(f"s_add_u32 s{s_t0}, s{s_t0}, {SCR+OPA}")
        A(f"v_add_u32 v{a_cwa}, s{s_t0}, v{T+3}")
        A(f"v_add_u32 v{a_cwb}, s{s_wb}, v{T+3}")
        if FD:
            A(f"v_lshl_add_u32 v{a_cwb}, v{v_c}, 4, v{a_cwb}")
        A(f"s_lshl_b32 s{s_t0}, s{s_w}, 2")
        A(f"s_add_u32 s{s_t0}, s{s_t0}, {SCR+ML}")
        A(f"v_lshl_add_u32 v{a_cml}, v{v_c}, 4, s{s_t0}")
        A(f"v_and_b32 v{T+3}, 7, v1")
        A(f"v_lshlrev_b32 v{T+3}, 4, v{T+3}")
        A(f"v_add_u32 v{a_mlr}, {SCR+ML}, v{T+3}")
        A(f"v_and_b32 v{T+3}, 31, v1")
        A(f"s_lshl_b32 s{s_t0}, s{s_w}, 9")
        A(f"v_lshl_add_u32 v{a_crb}, v{T+3}, 4, s{s_t0}")
        A(f"v_add_u32 v{a_cra}, {SCR+OPA}, v{a_crb}")
        if FD:
            A(f"s_lshl_b32 s{s_t0}, s{s_w}, 4")
            A(f"v_add_u32 v{a_crb}, s{s_t0}, v{a_crb}")
        A(f"v_add_u32 v{a_crb2}, {2*RING}, v{a_crb}")
        C("log-sum-exp exchange among the 16 splits: lane = (br = bit4, s = n)")
        A(f"s_lshl_b32 s{s_t0}, s2, 7")
        A(f"s_add_u32 s{s_lpub}, s{s_t0}, {WS_LB}")
        A(f"s_andn2_b32 s{s_t0}, s{s_t0}, 0x7ff")
        A(f"s_lshl3_add_u32 s{s_t0}, s{s_w}, s{s_t0}")
        A(f"s_add_u32 s{s_lget}, s{s_t0}, {WS_LB}")
        A(f"v_bfe_u32 v{T+3}, v1, 4, 1")
        A(f"v_lshlrev_b32 v{T+3}, 5, v{T+3}")
        A(f"v_lshl_add_u32 v{a_lg}, v{v_n}, 7, v{T+3}")
        C("tag bit patterns and the selector operand (1.0 where element == row)")
        for e in range(4):
            A(f"s_and_b32 s{s_t0}, s{s_tag8}, 1")
            A(f"s_bfe_u32 s{s_t1}, s{s_tag8}, {0x10001 + e:#x}")
            A(f"s_pack_ll_b32_b16 s{s_t0}, s{s_t0}, s{s_t1}")
            A(f"v_mov_b32 v{v_pat+e}, s{s_t0}")
        A(f"v_and_b32 v{T+3}, 1, v1")
        A(f"v_lshlrev_b32 v{T+3}, 4, v{T+3}")
        A(f"v_mov_b32 v{T+4}, 0x3f80")
        A(f"v_lshlrev_b32 v{T+3}, v{T+3}, v{T+4}")
        A(f"v_lshrrev_b32 v{T+4}, 1, v{v_n}")
        for e in range(4):
            A(f"v_xor_b32 v{T+5}, {e}, v{T+4}")
            A(f"v_min_u32 v{T+5}, 1, v{T+5}")
            A(f"v_add_u32 v{T+5}, -1, v{T+5}")
            A(f"v_and_b32 v{v_sel+e}, v{T+5}, v{T+3}")

    def setup_gate():
        C("gate factor: g in lanes with bit 2 clear, 1-g in the others, with the reference's bf16 rounding points")
        X, Wt = GX, GX + 8
        for r in range(8):
            A(f"v_lshlrev_b32 v{T}, 16, v{X+r}")
            A(f"v_lshlrev_b32 v{T+1}, 16, v{Wt+r}")
            A(f"v_and_b32 v{X+r}, 0xffff0000, v{X+r}")
            A(f"v_and_b32 v{Wt+r}, 0xffff0000, v{Wt+r}")
            A(f"v_mul_f32 v{T}, v{T}, v{T+1}")
            A(f"v_mul_f32 v{X+r}, v{X+r}, v{Wt+r}")
            A(f"v_cvt_pk_bf16_f32 v{X+r}, v{T}, v{X+r}")
        for r in range(8):
            A(f"v_dot2_f32_bf16 v{T+2}, v{X+r}, v{v_one}, " + ("0" if r == 0 else f"v{T+2}"))
        A("s_nop 2")
        for d in (1, 2, 4, 8):
            A(f"v_add_f32_dpp v{T+2}, v{T+2}, v{T+2} row_ror:{d} row_mask:0xf bank_mask:0xf")
            A("s_nop 1")
        A(f"v_mov_b32 v{T+3}, v{T+2}")
        A("s_nop 1")
        A(f"v_permlane16_swap_b32 v{T+2}, v{T+3}")
        A("s_nop 0")
        A(f"v_add_f32 v{T+2}, v{T+2}, v{T+3}")
        A(f"v_cvt_pk_bf16_f32 v{T+2}, 0, v{T+2}")
        A(f"v_mul_f32 v{T+2}, {f2u(-LOG2E):#x}, v{T+2}")
        A(f"v_exp_f32 v{T+2}, v{T+2}")
        A("s_nop 0")
        A(f"v_add_f32 v{T+2}, 1.0, v{T+2}")
        A(f"v_rcp_f32 v{T+2}, v{T+2}")
        A(f"v_bfe_i32 v{T+4}, v1, 2, 1")
        A(f"v_cvt_pk_bf16_f32 v{T+2}, 0, v{T+2}")
        A(f"v_sub_f32 v{T+3}, 1.0, v{T+2}")
        A(f"v_cvt_pk_bf16_f32 v{T+3}, 0, v{T+3}")
        A(f"v_bfi_b32 v{v_gf}, v{T+4}, v{T+3}, v{T+2}")

    def spin_guard():
        A(f"s_sub_u32 s{s_spin}, s{s_spin}, 1")
        A("s_cbranch_scc1 L_end")

    def qloads(track):
        if not Q32:
            A(f"s_add_u32 s{s_t0}, s{s_qoff}, 0x8000")
        for br in range(1 if Q32 else 2):
            s = f"buffer_load_dwordx4 {vr(B+4*br,4)}, v{a_q}, {srd(sWS)}, s{s_t0 if br else s_qoff} offen sc1"
            if track and "qload" in skip:
                st["q"] = ids[st["p"]]
            elif track:
                st["q"] = g.vmem(s)
            else:
                A(s)

    def q_validate():
        C("---- validate this wave's head of q (both branches), share through LDS ----")
        g.wait_vm(st["q"])
        L("L_qcheck")
        if Q32:
            A(f"v_xor_b32 v{T}, s{s_tag16}, v{B}")
            for r in range(1, 4):
                A(f"v_bitop3_b32 v{T}, v{T}, v{B+r}, s{s_tag16} bitop3:0xf6")
            A(f"v_and_b32 v{T}, 0xffff, v{T}")
            A(f"v_cmp_ne_u32 vcc, 0, v{T}")
            A("s_cbranch_vccnz L_qretry")
            A(f"s_mov_b32 s{s_t0}, 0x07060302")
            A(f"v_perm_b32 v{B+4}, v{B+1}, v{B}, s{s_t0}")
            A(f"v_perm_b32 v{B+5}, v{B+3}, v{B+2}, s{s_t0}")
            A(f"ds_write_b64 v{a_qw}, {vr(B+4,2)}")
            A("s_waitcnt lgkmcnt(0)")
            A(f"ds_write_b32 v{a_fw}, v{v_one}")
            return
        for r in range(8):
            A(f"v_xor_b32 v{B+r}, s{s_tag8}, v{B+r}")
        A(f"v_or_b32 v{T}, v{B}, v{B+1}")
        for i in range(2, 8, 2):
            A(f"v_or3_b32 v{T}, v{T}, v{B+i}, v{B+i+1}")
        A(f"v_and_b32 v{T}, 0xff, v{T}")
        A(f"v_cmp_ne_u32 vcc, 0, v{T}")
        if "qstore" not in skip and "qload" not in skip:
            A("s_cbranch_vccnz L_qretry")
        for br in range(2):
            A(f"v_permlane32_swap_b32 v{B+4*br}, v{B+4*br+2}")
            A(f"v_permlane32_swap_b32 v{B+4*br+1}, v{B+4*br+3}")
        for br in range(2):
            A(f"v_add_f32 v{B+4*br}, v{B+4*br}, v{B+4*br+2}")
            A(f"v_add_f32 v{B+4*br+1}, v{B+4*br+1}, v{B+4*br+3}")
        for br in range(2):
            A(f"v_cvt_pk_bf16_f32 v{B+4*br}, v{B+4*br}, v{B+4*br+1}")
        for br in range(2):
            A(f"ds_write_b32 v{a_qw}, v{B+4*br} offset:{br*1024}")
        A("s_waitcnt lgkmcnt(0)")
        A(f"ds_write_b32 v{a_fw}, v{v_one}")

    def flag_wait(name, off):
        L(name)
        A(f"ds_read_b128 {vr(B,4)}, v{a_fr} offset:{off}")
        spin_guard()
        A("s_waitcnt lgkmcnt(0)")
        A(f"v_and_b32 v{B}, v{B}, v{B+1}")
        A(f"v_and_b32 v{B+2}, v{B+2}, v{B+3}")
        A(f"v_and_b32 v{B}, v{B}, v{B+2}")
        A(f"v_cmp_eq_u32 vcc, 0, v{B}")
        A(f"s_cbranch_vccnz {name}")

    def q_fetch():
        if "qflag" not in skip:
            flag_wait("L_qflag", 0)
        for j in range(4):
            A(f"ds_read_b128 {ar(a_qop+4*j,4)}, v{a_qr} offset:{j*64}")
        if NLO or B4:
            A(f"s_mov_b32 s{s_brk}, 0")
            A(f"s_mov_b32 s{s_gk}, 0")
        stamp("qval")
        st["qready"] = True

    def q_fetch_b():
        for j in range(4):
            A(f"ds_read_b128 {ar(a_qop+16+4*j,4)}, v{a_qr} offset:{1024+j*64}")

    def lanes_h():
        A("s_mov_b32 exec_lo, 0x000f000f")
        A("s_mov_b32 exec_hi, 0x000f000f")

    def dump_ml(br):
        A(f"ds_write_b32 v{a_cml}, v{v_m} offset:{br*64}")
        A(f"ds_write_b32 v{a_cml}, a{a_l} offset:{128+br*64}")

    def dump_o(br):
        adr, off = (a_cwa, 0) if br == 0 else (a_cwb, FSLOT * 4096)
        for cb in range(8):
            A(f"ds_write_b128 v{adr}, {ar(a_o+4*cb,4)} offset:{off+cb*64}")

    def lam_math():
        C("lane (br, h): workgroup maximum, sum, log-sum-exp and the weights of the four waves")
        A("s_waitcnt lgkmcnt(0)")
        A(f"v_max3_f32 v{T}, v{B}, v{B+1}, v{B+2}")
        A(f"v_max_f32 v{T}, v{T}, v{B+3}")
        A(f"v_mul_f32 v{T+1}, s{s_c}, v{T}")
        for w in range(4):
            A(f"v_fma_f32 v{B+w}, v{B+w}, s{s_c}, -v{T+1}")
        for w in range(4):
            A(f"v_exp_f32 v{B+w}, v{B+w}")
        A(f"v_mul_f32 v{T+2}, v{B}, v{B+4}")
        for w in range(1, 4):
            A(f"v_fmac_f32 v{T+2}, v{B+w}, v{B+4+w}")
        A(f"v_rcp_f32 v{T}, v{T+2}")
        A(f"v_log_f32 v{T+2}, v{T+2}")
        A(f"v_mov_b32 v{T+3}, s{s_tag32}")
        A(f"v_add_f32 v{T+2}, v{T+1}, v{T+2}")
        A(f"v_mul_f32 v{T}, v{T}, v{v_gf}")
        for w in range(4):
            A(f"v_mul_f32 v{v_aw+w}, v{B+w}, v{T}")
        A(f"v_lshlrev_b32 v{T+4}, 3, v1")

    def lam_store():
        A(f"s_cmp_eq_u32 s{s_w}, 0")
        A("s_cbranch_scc0 L_nolam")
        A("s_mov_b64 exec, 0xff")
        g.vmem(f"buffer_store_dwordx2 {vr(T+2,2)}, v{T+4}, {srd(sWS)}, s{s_lpub} offen sc1", optional=True)
        A("s_mov_b64 exec, -1")
        L("L_nolam")

    def lamloads(track):
        s = f"buffer_load_dwordx2 {vr(B,2)}, v{a_lg}, {srd(sWS)}, s{s_lget} offen sc1"
        if track:
            st["lam"] = g.vmem(s)
        else:
            A(s)

    def lam_validate():
        g.wait_vm(st["lam"])
        L("L_lcheck")
        A(f"v_cmp_ne_u32 vcc, s{s_tag32}, v{B+1}")
        A("s_cbranch_vccnz L_lretry")

    def wgt_math():
        C("softmax over the 16 splits -> this workgroup's share; weights of the four waves into SGPRs")
        A(f"v_max_f32_dpp v{T}, v{B}, v{B} row_ror:1 row_mask:0xf bank_mask:0xf")
        for d in (2, 4, 8):
            A("s_nop 1")
            A(f"v_max_f32_dpp v{T}, v{T}, v{T} row_ror:{d} row_mask:0xf bank_mask:0xf")
        A(f"v_sub_f32 v{T}, v{B}, v{T}")
        A(f"v_exp_f32 v{T}, v{T}")
        A("s_nop 1")
        A(f"v_add_f32_dpp v{T+1}, v{T}, v{T} row_ror:1 row_mask:0xf bank_mask:0xf")
        for d in (2, 4, 8):
            A("s_nop 1")
            A(f"v_add_f32_dpp v{T+1}, v{T+1}, v{T+1} row_ror:{d} row_mask:0xf bank_mask:0xf")
        A(f"v_rcp_f32 v{T+1}, v{T+1}")
        A(f"s_and_b32 s{s_t0}, s2, 15")
        A(f"v_mul_f32 v{T}, v{T}, v{T+1}")
        A(f"s_add_u32 s{s_t1}, s{s_t0}, 16")
        A(f"v_readlane_b32 s{s_t2}, v{T}, s{s_t0}")
        A(f"v_readlane_b32 s{s_t3}, v{T}, s{s_t1}")
        A(f"v_bfe_i32 v{T+2}, v1, 2, 1")
        A(f"s_add_u32 s{s_t1}, s{s_w}, 4")
        A(f"v_mov_b32 v{T}, s{s_t2}")
        A(f"v_mov_b32 v{T+1}, s{s_t3}")
        A(f"v_bfi_b32 v{T}, v{T+2}, v{T+1}, v{T}")
        for w in range(4):
            A(f"v_mul_f32 v{v_aw+w}, v{v_aw+w}, v{T}")
        A("s_nop 0")
        for w in range(4):
            A(f"v_readlane_b32 s{s_fw+w}, v{v_aw+w}, s{s_w}")
            A(f"v_readlane_b32 s{s_fw+4+w}, v{v_aw+w}, s{s_t1}")
        A("s_nop 1")

    def comb_read(br):
        for w in range(4):
            if br == 0:
                A(f"ds_read_b128 {vr(B+4*w,4)}, v{a_cra} offset:{w*2048}")
            else:
                A(f"ds_read_b128 {vr(B+4*w,4)}, v{a_crb if w < 2 else a_crb2} offset:{(w&1)*RING + FSLOT*4096}")

    def comb_math(br, counted):
        for w in range(4):
            if counted:
                A(f"s_waitcnt lgkmcnt({3-w})")
            elif w == 0:
                A("s_waitcnt lgkmcnt(0)")
            for e in range(4):
                if w == 0:
                    A(f"v_mul_f32 v{B+e}, s{s_fw+4*br}, v{B+e}")
                else:
                    A(f"v_fmac_f32 v{B+e}, s{s_fw+4*br+w}, v{B+4*w+e}")
        for e in range(4):
            A(f"v_add_u32 v{B+e}, 0x10000, v{B+e}")
        o = 2 - 2 * br
        for k in range(2):
            A(f"v_perm_b32 v{v_pub+o+k}, v{B+2*k+1}, v{B+2*k}, s{s_perm}")
        for k in range(2):
            A(f"v_and_or_b32 v{v_pub+o+k}, v{v_pub+o+k}, s{s_m15}, v{v_pat+o+k}")

    def h2loads(off, flags="sc1", track=False):
        for j in range(4):
            s = f"buffer_load_dwordx4 {vr(B+4*j,4)}, v{a_l16}, {srd(sWS)}, s{off} offen offset:{j*1024} {flags}"
            g.vmem(s, optional=True) if track else A(s)

    def warm2():
        C("bring the lines of the final reduction into this die's cache")
        A(f"s_cmp_ge_u32 s{s_f}, 32")
        A("s_cbranch_scc1 L_nowarm")
        A("s_mov_b32 exec_lo, 0x01010101")
        A("s_mov_b32 exec_hi, 0x01010101")
        for j in range(4):
            g.vmem(f"buffer_load_dword v{v_tw}, v{a_l16}, {srd(sWS)}, s{s_h2get} offen offset:{j*1024} {WARM2 if isinstance(WARM2, str) else 'sc1'}", optional=True)
        A("s_mov_b64 exec, -1")
        L("L_nowarm")

    def epoch_up():
        C("advance the epoch word; the old value goes to d_debug first for workgroups that have not read it yet")
        A(f"s_cmp_lg_u32 s{s_f}, 0")
        A("s_cbranch_scc1 L_noeup")
        A("s_load_dwordx2 s[82:83], s[0:1], 96")
        A("s_mov_b64 exec, 1")
        A(f"v_mov_b32 v{v_gs}, s{s_tag32}")
        A(f"v_mov_b32 v{v_gs+1}, 1")
        A(f"v_mov_b32 v{v_gs+2}, 0")
        A("s_waitcnt lgkmcnt(0)")
        g.vmem(f"global_store_dwordx2 v{v_gs+2}, {vr(v_gs,2)}, s[82:83] sc1", optional=True)
        A("s_waitcnt vmcnt(0)")
        g.vmem(f"buffer_store_dword v{v_gs}, v{v_gs+2}, {srd(sWS)}, 0 offen offset:{WS_E} sc1", optional=True)
        A("s_mov_b64 exec, -1")
        L("L_noeup")

    def code_pre():
        C("pull the rest of this straight-line code towards the cache: four lines per wave")
        A("s_getpc_b64 s[82:83]")
        L("L_cp")
        if CPM == 1:
            A(f"s_lshr_b32 s{s_u}, s2, 3")
            A(f"s_lshl2_add_u32 s{s_u}, s{s_u}, s{s_w}")
            A(f"s_lshl_b32 s{s_u}, s{s_u}, 9")
            A(f"v_lshl_add_u32 v{v_tw+1}, v{v_c}, 7, s{s_u}")
            A(f"v_min_u32 v{v_tw+1}, L_end-L_cp, v{v_tw+1}")
            A("s_mov_b64 exec, 15")
        else:
            A(f"s_lshl2_add_u32 s{s_u}, s2, s{s_w}")
            A(f"s_lshl_b32 s{s_u}, s{s_u}, 6")
            A(f"s_min_u32 s{s_u}, s{s_u}, L_end-L_cp")
            A(f"v_mov_b32 v{v_tw+1}, s{s_u}")
            A("s_mov_b64 exec, 1")
        g.vmem(f"global_load_dword v{v_tw}, v{v_tw+1}, s[82:83]")
        A("s_mov_b64 exec, -1")

    def touch(k):
        def f():
            C("touch the next buffer's pages")
            A("s_mov_b64 exec, 3")
            A(f"v_lshlrev_b32 v{v_tw+1}, 22, v1")
            if k < 4:
                A(f"s_andn2_b32 s{s_u}, s{s_kvb}, 0x400000")
                g.vmem(f"buffer_load_dword v{v_tw}, v{v_tw+1}, {srd(sKV[k])}, s{s_u} offen nt")
            else:
                A("s_mov_b64 exec, 1")
                g.vmem(f"buffer_load_dword v{v_tw}, v{v_tw+1}, {srd(sWO)}, s{s_wooff} offen nt")
            A("s_mov_b64 exec, -1")
        return f

    BIAS_, GAIN_ = BIAS, GAIN
    def ctl_load():
        st["ctl"] = g.vmem(f"buffer_load_dword v{v_ct}, v{a_pr}, {srd(sWS)}, 0 offen sc1", hint=True)
        pending.append((st["ctl"], ctl_use))
        st["ctl_t"] = cur_t() + (Z[st["p"]][2] if Z[st["p"]][0] == "kv" else 3) / 4.0
        if "geval" in st and st["p"] >= st["geval"][1] + GPICK:
            st["pick"] = st.pop("geval")[0]
            log.append((st["p"], "pick", st["pick"]))

    def ctl_use():
        g.wait_vm(st["ctl"])
        t0 = st["ctl_t"]
        BIAS, GAIN = (END[2], END[3]) if END and t0 >= END[0] - 3 else (BIAS_, GAIN_)
        tn = cur_t() + 1
        x, y = v_ct, v_ct + 1
        A(f"v_xor_b32 v{x}, s{s_tagp}, v{x}")
        A(f"v_lshrrev_b32 v{y}, 8, v{x}")
        pick = st.pop("pick", None)
        if pick is not None and GACT:
            st["picked"] = True
            A(f"v_readlane_b32 s{s_c0}, v{x}, {32 + pick}")
            A(f"s_cmp_lt_u32 s{s_c0}, 256")
            A(f"s_cselect_b32 s{s_c0}, s{s_c0}, 128")
            A(f"s_add_i32 s{s_gb}, s{s_c0}, {tn - 128}")
            if GBRK:
                A(f"s_sub_i32 s{s_gk}, {tn + 128 - round(GBRK)}, s{s_c0}")
            if B4:
                d = s_gk if LB else s_brk
                A(f"s_sub_i32 s{d}, {128 - B4[0]}, s{s_c0}")
                A(f"s_ashr_i32 s{d}, s{d}, {B4[1]}")
                A(f"s_add_i32 s{d}, s{d}, {tn}")
        A(f"v_cmp_eq_u32 s[82:83], 0, v{y}")
        A(f"v_mov_b32 v{y}, {max(0, int(t0) - round(BIAS))}")
        A("s_nop 0")
        A(f"v_cndmask_b32 v{x}, v{y}, v{x}, s[82:83]")
        for d in (1, 2, 4, 8):
            A("s_nop 1")
            A(f"v_add_u32_dpp v{x}, v{x}, v{x} row_ror:{d} row_mask:0xf bank_mask:0xf")
        A("s_nop 0")
        A(f"v_readlane_b32 s{s_c0}, v{x}, 0")
        A(f"v_readlane_b32 s{s_c1}, v{x}, 16")
        A(f"s_add_u32 s{s_c0}, s{s_c0}, s{s_c1}")
        A(f"s_sub_i32 s{s_c0}, s{s_c0}, {round(32 * (t0 - BIAS))}")
        if GR:
            A(f"s_ashr_i32 s{s_dev}, s{s_c0}, 1")
            if GEST == 3 and int(t0) in GR:
                A(f"s_add_i32 s{s_own}, s{s_dev}, 128")
        if LB:
            st["picked"] = True
            A(f"s_add_i32 s{s_c1}, s{s_c0}, {round(32 * LB[0])}")
            A(f"s_mul_i32 s{s_c1}, s{s_c1}, {-round(LB[1] * 8)}")
            A(f"s_ashr_i32 s{s_c1}, s{s_c1}, 8")
            A(f"s_min_i32 s{s_c1}, s{s_c1}, {CK}")
            A(f"s_add_i32 s{s_brk}, s{s_c1}, {tn}")
            A(f"s_max_i32 s{s_brk}, s{s_brk}, s{s_gk}")
        if NLO:
            A(f"s_add_i32 s{s_c1}, s{s_c0}, {round(32 * BRK)}")
            A(f"s_mul_i32 s{s_c1}, s{s_c1}, {-round(BGAIN * 8)}")
            A(f"s_ashr_i32 s{s_c1}, s{s_c1}, 8")
            A(f"s_min_i32 s{s_c1}, s{s_c1}, {NMAXB}")
            A(f"s_add_i32 s{s_brk}, s{s_c1}, {tn}")
            if GBRK:
                A(f"s_max_i32 s{s_brk}, s{s_brk}, s{s_gk}")
        A(f"s_mul_i32 s{s_c0}, s{s_c0}, {round(GAIN * 8)}")
        A(f"s_ashr_i32 s{s_c0}, s{s_c0}, 8")
        A(f"s_min_i32 s{s_c0}, s{s_c0}, {NMAXB}")
        A(f"s_add_i32 s{s_boost}, s{s_c0}, {tn}")
        if GR and not G6:
            A(f"s_max_i32 s{s_boost}, s{s_boost}, s{s_gb}")

    def g_sample(r, k):
        def f():
            A(f"s_mov_b32 s{s_u}, {r * 8 * 4224}")
            st["gs"] = g.vmem(f"buffer_load_dword v{v_gs+k}, v{a_gs}, {srd(sWS)}, s{s_u} offen sc1", hint=True)
            if k == GWIN[0] + GWIN[1] - 1:
                pending.append((st["gs"], g_eval(r)))
        return f

    def g_publish(r):
        def f():
            assert GEST == 1 or st.get("rest")
            A(f"s_bitcmp1_b32 s{s_gpo}, 30")
            A(f"s_cbranch_scc1 L_gp{r}")
            A(f"s_add_i32 s{s_c0}, s{s_dev}, 128")
            A(f"s_max_i32 s{s_c0}, s{s_c0}, 0")
            A(f"s_min_i32 s{s_c0}, s{s_c0}, 255")
            if GEST > 1:
                A(f"s_mov_b32 s{s_own}, s{s_c0}")
            A(f"v_or_b32 v{v_tw}, s{s_c0}, v{v_pl}")
            A(f"s_add_u32 s{s_u}, s{s_gpo}, {r * 8 * 4224}")
            g.vmem(f"buffer_store_dword v{v_tw}, v{a_pw}, {srd(sWS)}, s{s_u} offen sc1", optional=True)
            L(f"L_gp{r}")
        return f

    def g_eval(r):
        def f():
            W = GWIN[0] + GWIN[1]
            g.wait_vm(st["gs"])
            A(f"s_bitcmp1_b32 s{s_gpo}, 30")
            A(f"s_cbranch_scc1 L_ge{r}")
            for k in range(W):
                A(f"v_xor_b32 v{v_gs+k}, s{s_tagp}, v{v_gs+k}")
            A(f"v_min_u32 v{v_tw}, 0x100, v{v_gs+W-1}")
            A(f"v_lshrrev_b32 v{v_tw+1}, 1, v{v_tw}")
            A(f"v_and_b32 v{v_tw+1}, 0x80, v{v_tw+1}")
            A(f"v_and_b32 v{v_tw}, 0xff, v{v_tw}")
            A(f"v_add_u32 v{v_tw}, v{v_tw}, v{v_tw+1}")
            for k in range(W):
                A(f"v_lshrrev_b32 v{v_gs+k}, 8, v{v_gs+k}")
                A(f"v_min_u32 v{v_gs+k}, 1, v{v_gs+k}")
                A(f"v_lshlrev_b32 v{v_gs+k}, {3 if GS2 else 4}, v{v_gs+k}")
                A(f"v_sub_u32 v{v_tw}, v{v_tw}, v{v_gs+k}")
            A(f"s_and_b32 s{s_c1}, s2, 7")
            if GEST >= 2:
                C("own group: exact position instead of the sampled arrival")
                A(f"s_sub_i32 s{s_c0}, s{s_own}, {(8 if GS2 else 16) * GWIN[0]}")
                A(f"s_mov_b32 m0, s{s_c1}")
                A(f"v_writelane_b32 v{v_tw}, s{s_c0}, m0")
                A(f"s_add_u32 m0, s{s_wb}, {slot_of(cur_t())*4096}")
            else:
                A(f"v_readlane_b32 s{s_c0}, v{v_tw}, s{s_c1}")
            for d in ("quad_perm:[1,0,3,2]", "quad_perm:[2,3,0,1]", "row_half_mirror"):
                A("s_nop 1")
                A(f"v_add_u32_dpp v{v_tw}, v{v_tw}, v{v_tw} {d} row_mask:0xf bank_mask:0xf")
            A("s_nop 0")
            A(f"v_readlane_b32 s{s_c1}, v{v_tw}, 0")
            A(f"s_lshl_b32 s{s_c0}, s{s_c0}, 3")
            A(f"s_sub_i32 s{s_c0}, s{s_c1}, s{s_c0}")
            A(f"s_add_i32 s{s_c0}, s{s_c0}, {round(128 * GOFF)}")
            A(f"s_mul_i32 s{s_c0}, s{s_c0}, {round(GK * 8)}")
            A(f"s_add_i32 s{s_c0}, s{s_c0}, 512")
            A(f"s_ashr_i32 s{s_c0}, s{s_c0}, 10")
            A(f"s_max_i32 s{s_c0}, s{s_c0}, {-GMAX - round(GBRK)}")
            A(f"s_min_i32 s{s_c0}, s{s_c0}, {GMAX}")
            A(f"s_add_i32 s{s_c0}, s{s_c0}, 128")
            A(f"v_or_b32 v{v_tw}, s{s_c0}, v{v_pl}")
            g.vmem(f"buffer_store_dword v{v_tw}, v{a_pw}, {srd(sWS)}, s{s_bc} offen offset:{4*r}", optional=True)
            L(f"L_ge{r}")
            st["geval"] = (r, st["p"])
        return f

    kf = lambda t: a_kf + 16 * (t % R)
    def KR(t):
        for j in range(4):
            A(f"ds_read_b128 {ar(kf(t)+4*j,4)}, v{v_rk+j} offset:{slot_of(t)*4096}")
    def LW(t):
        A("s_waitcnt lgkmcnt(0)")
    def QK(t):
        A("s_waitcnt lgkmcnt(0)")
        q = a_qop + 16 * (t // 64)
        for j in range(4):
            A(f"v_mfma_f32_16x16x32_bf16 {vr(v_s,4)}, {ar(kf(t)+4*j,4)}, {ar(q+4*j,4)}, " + ("0" if j == 0 else vr(v_s, 4)))
    def SC(t):
        k = t % 32
        A("s_nop 7")
        for r in range(4):
            A(f"v_cvt_pk_bf16_f32 v{v_s+r}, 0, v{v_s+r}")
        for r in range(4):
            A(f"v_mul_f32 v{v_s+r}, " + (f"{f2u(128 ** -0.5):#x}" if UNT else f"s{s_rs}") + f", v{v_s+r}")
        if k == 0:
            A(f"v_max_f32 v{v_mx}, v{v_s}, v{v_s+1}")
        else:
            A(f"v_max3_f32 v{v_mx}, v{v_mx}, v{v_s}, v{v_s+1}")
        A(f"v_cvt_pk_bf16_f32 v{v_sc+2*k}, v{v_s}, v{v_s+1}")
        A(f"v_max3_f32 v{v_mx}, v{v_mx}, v{v_s+2}, v{v_s+3}")
        A(f"v_cvt_pk_bf16_f32 v{v_sc+2*k+1}, v{v_s+2}, v{v_s+3}")
    def MX(t):
        C("true maximum of this wave's scores per head")
        assert t < 64 or st["dumpA"]
        A(f"v_mov_b32 v{v_mt}, v{v_mx}")
        A("s_nop 1")
        A(f"v_permlane32_swap_b32 v{v_mx}, v{v_mt}")
        A(f"v_max_f32 v{v_mx}, v{v_mx}, v{v_mt}")
        A(f"v_mov_b32 v{v_mt}, v{v_mx}")
        A("s_nop 1")
        A(f"v_permlane16_swap_b32 v{v_mx}, v{v_mt}")
        A(f"v_max_f32 v{v_mx}, v{v_mx}, v{v_mt}")
        A(f"v_cvt_pk_bf16_f32 v{v_m}, 0, v{v_mx}")
        A(f"v_mul_f32 v{v_nmc}, {f2u(-LOG2E):#x}, v{v_m}")
        stamp("endKA" if t < 64 else "endKB")
    def PP(t):
        k = t % 32
        A(f"v_lshlrev_b32 v{v_s}, 16, v{v_sc+2*k}")
        A(f"v_and_b32 v{v_s+1}, 0xffff0000, v{v_sc+2*k}")
        A(f"v_lshlrev_b32 v{v_s+2}, 16, v{v_sc+2*k+1}")
        A(f"v_and_b32 v{v_s+3}, 0xffff0000, v{v_sc+2*k+1}")
        for r in range(4):
            A(f"v_fma_f32 v{v_s+r}, v{v_s+r}, s{s_c}, v{v_nmc}")
        for r in range(4):
            A(f"v_exp_f32 v{v_s+r}, v{v_s+r}")
        A(f"v_cvt_pk_bf16_f32 v{v_sc+2*k}, v{v_s}, v{v_s+1}")
        A(f"v_cvt_pk_bf16_f32 v{v_sc+2*k+1}, v{v_s+2}, v{v_s+3}")
        if k & 1:
            A("s_nop 1")
            A(f"v_mfma_f32_16x16x32_bf16 {ar(a_l,4)}, {vr(v_one,4)}, {vr(v_sc+2*k-2,4)}, " + ("0" if k == 1 else ar(a_l, 4)))
    def VR(t):
        assert st["rest"]
        for cb in range(8):
            A(f"ds_read_b64_tr_b16 {ar(a_vf+4*cb+2*(t&1),2)}, v{v_rv+cb} offset:{slot_of(t)*4096}")
    def pv(t, cb):
        k = t % 32 - 1
        assert ("PP", t) in done
        A(f"v_mfma_f32_16x16x32_bf16 {ar(a_o+4*cb,4)}, {ar(a_vf+4*cb,4)}, {vr(v_sc+2*k,4)}, " + ("0" if k == 0 else ar(a_o + 4 * cb, 4)))
    def PVa(t):
        A("s_waitcnt lgkmcnt(0)")
        for cb in range(4):
            pv(t, cb)
    def PVb(t):
        for cb in range(4, 8):
            pv(t, cb)
        if t == 63:
            stamp("endVA")

    main = []
    for t in range(R):
        main += [(KR, t, pos_of(t, 3), False), (LW, t, None, False)]
    for t in range(NT):
        if isK(t):
            if t >= R:
                main.append((KR, t, pos_of(t, 3), True))
            main += [(QK, t, None, True), (SC, t, None, True)]
            if t % 32 == 31:
                main.append((MX, t, None, True))
        elif t % 2 == 0:
            main.append((VR, t, pos_of(t, 3), True))
        else:
            main += [(VR, t, pos_of(t, 3), True), (PVa, t, None, True), (PVb, t, None, True)]
    is_in = lambda pl: pl in ids and g.done(ids[pl])
    done = set()
    ppq = [t for t in range(NT) if not isK(t)]

    mark = lambda k: (lambda: st.__setitem__(k, True))
    side = []
    side.append((P0, gate_loads, False))
    for f in g.split(setup_head, CH):
        side.append((P0, f, False))
    side.append((P0, mark("setup"), True))
    side.append((lambda p: g.done(st["gate"]), mark("gate_in"), True))
    for f in g.split(setup_gate, CH):
        side.append((P0, f, False))
    side.append((PQ, lambda: qloads(True), True))
    side.append((lambda p: g.done(st["q"]), lambda: (q_validate(), st.__setitem__("pV", st["p"])), True))
    side.append((lambda p: p >= st["pV"] + QLAG, q_fetch, True))
    side.append((0, q_fetch_b, False))
    for f in g.split(setup_rest, CH):
        side.append((0, f, False))
    side.append((0, mark("rest"), True))
    def dumpA():
        A("s_nop 5")
        lanes_h()
        dump_ml(0)
        dump_o(0)
        A("s_mov_b64 exec, -1")
        st["dumpA"] = True
    side.append((lambda p: ("PVb", 63) in done, dumpA, False))
    def dumpB():
        A("s_nop 5")
        lanes_h()
        dump_ml(1)
        A("s_mov_b64 exec, -1")
        A("s_waitcnt lgkmcnt(0)")
        A(f"ds_write_b32 v{a_fw}, v{v_one} offset:16")
        st["pB"] = st["p"]
    side.append((lambda p: ("PP", NT - 1) in done, dumpB, False))
    def lam_read():
        flag_wait("L_lflag", 16)
        A(f"ds_read_b128 {vr(B,4)}, v{a_mlr}")
        A(f"ds_read_b128 {vr(B+4,4)}, v{a_mlr} offset:128")
    side.append((lambda p: p >= st["pB"] + LLAG, lam_read, False))
    for f in g.split(lam_math, CH):
        side.append((0, f, False))
    side.append((0, lam_store, True))
    side.append((PWG, lambda: lamloads(True), True))
    side.append((lambda p: g.done(st["lam"]), lam_validate, True))
    for f in g.split(wgt_math, 24):
        side.append((0, f, False))
    side.append((0, lambda: comb_read(0), True))
    side.append((0, lambda: comb_math(0, False), False))

    extra = []
    for t in range(C0 - 2, NT - CEND, CK):
        extra.append((pos_of(t, 2), ctl_load))
    for r, tr in enumerate(GR):
        assert GWIN[0] + GWIN[1] <= 12
        for k in range(GWIN[0] + GWIN[1]):
            if GS2:
                extra.append((pos_of(tr, 3) + 4 + 2 * (k - GWIN[0]), g_sample(r, k)))
            else:
                extra.append((pos_of(tr - GWIN[0] + k + 1, 3), g_sample(r, k)))
        extra.append((pos_of(tr, 2), g_publish(r)))
    if EUP == 2:
        extra.append((pos_of(33, 0), epoch_up))
    if CP:
        extra.append((CP, code_pre))
    if TW:
        for k in TWK:
            extra.append((OFF + 128 * k - TW, touch(k)))
    if WARM2 and W2P >= 0:
        extra.append((pos_of(NT - 1, 3) - W2P, warm2))
    extra.sort(key=lambda x: x[0])

    mi = si = ci = 0
    for p in range(P0 + PX, len(Z) - WOL - WOA):
        z = Z[p]
        st["p"] = p
        if z[0] == "kv" and z[2] == 0 and z[1] >= NSLOT:
            prev = z[1] - NSLOT
            assert (("QK", prev) in done or ("LW", prev) in done) if isK(prev) else ("PVa", prev | 1) in done, (p, z)
        issue(p)
        while ci < len(extra) and extra[ci][0] <= p:
            extra[ci][1]()
            ci += 1
        for x in [x for x in pending if g.done(x[0])]:
            pending.remove(x)
            x[1]()
        used = 0
        if ppq and ("MX", ppq[0] // 32 * 32 - 1) in done:
            t = ppq.pop(0)
            PP(t)
            done.add(("PP", t)); log.append((p, "PP", t))
        while mi < len(main):
            f, t, ld, nq = main[mi]
            if (ld is not None and not is_in(ld)) or (nq and not st.get("qready")) or (f is PVa and ("PP", t) not in done):
                break
            behind = t + 1 < NT and is_in(pos_of(t + 1, 3)) and nq
            if used >= (CATCH if behind else 1):
                break
            f(t)
            done.add((f.__name__, t)); log.append((p, f.__name__, t))
            used += f is not LW
            mi += 1
        while si < len(side) and (used == 0 or side[si][2]):
            e, f, forced = side[si]
            if not (e(p) if callable(e) else e <= p):
                break
            f()
            log.append((p, "side", si))
            si += 1
            if not forced:
                used += 1
    assert si == len(side) and not ppq and ci == len(extra) and not pending, (si, len(side))
    C("---- drain ----")
    while mi < len(main):
        f, t, ld, nq = main[mi]
        if ld is not None:
            g.wait_vm(ids[ld])
            if t == NT - 1:
                stamp("vlast")
        if t == NT - 1 and f is PVa:
            for p in range(len(Z) - WOL - WOA, len(Z) - WOA):
                issue(p, throttle=False)
        if t == NT - 1 and f is PVa and FD:
            wr = lambda cb: A(f"ds_write_b128 v{a_cwb}, {ar(a_o+4*cb,4)} offset:{FSLOT*4096+cb*64}")
            lanes_h()
            for cb in range(8):
                A(f"s_waitcnt lgkmcnt({7 - cb + max(0, cb - 4)})")
                pv(t, cb)
                if cb >= 4:
                    wr(cb - 4)
            wr(4); wr(5)
            A("s_nop 1")
            wr(6)
            A("s_nop 1")
            wr(7)
        elif t == NT - 1 and f is PVa:
            for cb in range(8):
                A(f"s_waitcnt lgkmcnt({7-cb})")
                pv(t, cb)
        elif not (t == NT - 1 and f is PVb):
            f(t)
        mi += 1
    stamp("drained")

    C("---- combine the four waves, publish both branches ----")
    if not FD:
        lanes_h()
        dump_o(1)
    A("s_mov_b32 exec_lo, -1")
    A("s_mov_b32 exec_hi, 0")
    A("s_waitcnt lgkmcnt(0)")
    A("s_barrier")
    stamp("bar")
    comb_read(1)
    if GATE or TRK:
        C("report the end of this workgroup's stream and look at the group's")
        A(f"s_cmp_eq_u32 s{s_w}, 0")
        A(f"s_cselect_b32 s{s_u}, s{s_pro}, {WS_SIZE:#x}")
        A(f"v_or_b32 v{v_pd}, 0x80, v{v_pl}")
        A(f"buffer_load_dword v{v_ct}, v{a_pr}, {srd(sWS)}, 0 offen sc1")
        A(f"buffer_store_dword v{v_pd}, v{a_pw}, {srd(sWS)}, s{s_u} offen")
    comb_math(1, True)
    def gate(k):
        C("nothing below is urgent while much of the group still streams values: let those go first (bounded)")
        A(f"s_mov_b32 s{s_cnt}, {GATE[1]}")
        A(f"s_waitcnt vmcnt({k})")
        L("L_gate")
        A(f"v_cmp_eq_u32 vcc, v{v_pd}, v{v_ct}")
        A(f"s_bcnt1_i32_b32 s{s_c0}, vcc_lo")
        A(f"s_cmp_ge_u32 s{s_c0}, {GATE[0]}")
        A("s_cbranch_scc1 L_gate_ok")
        A(f"s_sub_u32 s{s_cnt}, s{s_cnt}, 1")
        A("s_cbranch_scc1 L_gate_ok")
        A(f"buffer_load_dword v{v_ct}, v{a_pr}, {srd(sWS)}, 0 offen sc1")
        A("s_waitcnt vmcnt(0)")
        A("s_branch L_gate")
        L("L_gate_ok")
    if GATE and GATE[2] == 2:
        gate(1)
    A(f"buffer_store_dwordx4 {vr(v_pub,4)}, v{a_l16}, {srd(sWS)}, s{s_h1pub} offen sc1")
    A("s_mov_b64 exec, -1")
    stamp("pub1")
    if GATE and GATE[2] == 1:
        gate(2)
    if TRK:
        C("while much of the group still streams values the weights trickle in behind them")
        A("s_waitcnt vmcnt(2)")
        p0 = len(Z) - WOA
        for i in range(0, WOA, TRK[1]):
            A(f"v_cmp_eq_u32 vcc, v{v_pd}, v{v_ct}")
            A(f"s_bcnt1_i32_b32 s{s_c0}, vcc_lo")
            A(f"s_cmp_ge_u32 s{s_c0}, {TRK[0]}")
            A(f"s_cbranch_scc1 L_burst{i}")
            for p in range(p0 + i, min(p0 + i + TRK[1], len(Z))):
                issue(p, throttle=False)
            if i + TRK[1] < WOA:
                A(f"s_waitcnt vmcnt({TRK[2]})")
                A(f"buffer_load_dword v{v_ct}, v{a_pr}, {srd(sWS)}, 0 offen sc1")
                A("s_waitcnt vmcnt(0)")
        A("s_branch L_burst_end")
        for i in range(WOA):
            if i % TRK[1] == 0:
                L(f"L_burst{i}")
            issue(p0 + i, throttle=False)
        L("L_burst_end")
    if WARM2 and W2P < 0:
        warm2()
    for p in range(len(Z) - WOA, len(Z)):
        if not TRK:
            issue(p, throttle=False)
    C("the output-projection weights were the last loads of the stream")
    A(f"s_waitcnt vmcnt({WOK})")
    def h1loads():
        for i in range(4):
            A(f"buffer_load_dwordx4 {vr(B+4*i,4)}, v{a_g1}, {srd(sWS)}, s{s_h1get} offen offset:{i*512} sc1")
    h1loads()
    if WOK:
        A("s_waitcnt vmcnt(4)")
    stamp("wo")
    A("s_barrier")
    for k in range(8):
        for hf in range(2):
            A(f"ds_read_b64_tr_b16 {ar(a_wop+k*4+hf*2,2)}, v{a_wor} offset:{k*4096+hf*2048}")
    A("s_branch L_h1wait")
    C("---- sum the 16 partials of (dims half, batch) with a selector product ----")
    L("L_h1poll")
    if SL1:
        A(f"s_sleep {SL1}")
    h1loads()
    spin_guard()
    L("L_h1wait")
    for i in range(4):
        A(f"s_waitcnt vmcnt({3-i})")
        for e in range(4):
            A(f"v_xor_b32 v{B+4*i+e}, v{v_pat+e}, v{B+4*i+e}")
        if i == 0:
            A(f"v_or_b32 v{T}, v{B}, v{B+1}")
        else:
            A(f"v_or3_b32 v{T}, v{T}, v{B+4*i}, v{B+4*i+1}")
        A(f"v_or3_b32 v{T}, v{T}, v{B+4*i+2}, v{B+4*i+3}")
        A(f"v_mfma_f32_16x16x32_bf16 {vr(v_d,4)}, {vr(v_sel,4)}, {vr(B+4*i,4)}, " + ("0" if i == 0 else vr(v_d, 4)))
    A(f"v_and_b32 v{T}, 0x00010001, v{T}")
    A(f"v_cmp_ne_u32 vcc, 0, v{T}")
    A("s_cbranch_vccnz L_h1poll")
    stamp("h1ok")
    A("s_mov_b32 exec_hi, 0")
    A("s_nop 3")
    A(f"v_cvt_pk_bf16_f32 v{T}, v{v_d}, v{v_d+1}")
    A(f"v_cvt_pk_bf16_f32 v{T+1}, v{v_d+2}, v{v_d+3}")
    A(f"ds_write_b64 v{a_ow}, {vr(T,2)}")
    A("s_mov_b64 exec, -1")
    A("s_waitcnt lgkmcnt(0)")
    A("s_barrier")
    stamp("bar2")
    OPD = v_sc
    for k in range(8):
        A(f"ds_read_b128 {vr(OPD+4*k,4)}, v{a_or} offset:{(k>>2)*512+(k&3)*64}")
    A(f"v_mov_b32 v{T+2}, s{s_tag12}")
    A(f"s_add_u32 s{s_t2}, s{s_h2pub}, {WS_P2-WS_P1}")
    for k in range(8):
        A(f"s_waitcnt lgkmcnt({7-k})")
        A(f"v_mfma_f32_16x16x32_bf16 {vr(v_d+4,4)}, {ar(a_wop+4*k,4)}, {vr(OPD+4*k,4)}, " + ("0" if k == 0 else vr(v_d + 4, 4)))
    A("s_mov_b32 exec_lo, 0x00030003")
    A("s_mov_b32 exec_hi, 0x00030003")
    A(f"s_cmp_ge_u32 s{s_f}, 32")
    A("s_nop 4")
    for r in range(4):
        A(f"v_add_u32 v{v_d+4+r}, 0x800, v{v_d+4+r}")
    for r in range(4):
        A(f"v_and_or_b32 v{v_d+4+r}, v{v_d+4+r}, s{s_m12}, v{T+2}")
    C("once for a reader behind the same L2, once written through for any other placement")
    A(f"buffer_store_dwordx4 {vr(v_d+4,4)}, v{a_p2}, {srd(sWS)}, s{s_h2pub} offen {P1SC}")
    stamp("pub2")
    A("s_cbranch_scc0 L_final")
    if not NOP2:
        A(f"buffer_store_dwordx4 {vr(v_d+4,4)}, v{a_p2}, {srd(sWS)}, s{s_t2} offen sc1")
    A("s_branch L_fin" if diag or pad else "s_endpgm")
    L("L_final")
    A("s_mov_b64 exec, -1")

    C("---- final reduction over the 32 heads ----")
    F = B
    A(f"s_lshl_b32 s{s_t0}, s{s_f}, 5")
    A(f"s_mov_b32 s{s_cnt}, {P2AFTER}")
    L("L_h2poll")
    if SL2:
        A(f"s_sleep {SL2}")
    h2loads(s_h2get)
    spin_guard()
    A(f"s_sub_u32 s{s_cnt}, s{s_cnt}, 1")
    A("s_cbranch_scc1 L_h2switch")
    L("L_h2wait")
    for j in range(4):
        A(f"s_waitcnt vmcnt({3-j})")
        for e in range(4):
            A(f"v_xor_b32 v{F+4*j+e}, s{s_tag12}, v{F+4*j+e}")
        if j == 0:
            A(f"v_or_b32 v{T}, v{F}, v{F+1}")
            A(f"v_or3_b32 v{T}, v{T}, v{F+2}, v{F+3}")
        else:
            A(f"v_or3_b32 v{T}, v{T}, v{F+4*j}, v{F+4*j+1}")
            A(f"v_or3_b32 v{T}, v{T}, v{F+4*j+2}, v{F+4*j+3}")
            for e in range(4):
                A(f"v_add_f32 v{F+e}, v{F+e}, v{F+4*j+e}")
    A(f"v_and_b32 v{T}, 0xfff, v{T}")
    A(f"v_cmp_ne_u32 vcc, 0, v{T}")
    A("s_cbranch_vccnz L_h2poll")
    A(f"v_permlane32_swap_b32 v{F}, v{F+1}")
    A(f"v_permlane32_swap_b32 v{F+2}, v{F+3}")
    A(f"v_add_f32 v{F}, v{F}, v{F+1}")
    A(f"v_add_f32 v{F+2}, v{F+2}, v{F+3}")
    A("s_nop 1")
    A(f"v_permlane16_swap_b32 v{F}, v{F+2}")
    A(f"v_add_f32 v{F}, v{F}, v{F+2}")
    A("s_nop 1")
    A(f"v_add_f32_dpp v{F}, v{F}, v{F} row_ror:8 row_mask:0xf bank_mask:0xf")
    A(f"v_cvt_pk_bf16_f32 v{F}, v{F}, v{F}")
    A("s_mov_b32 exec_lo, 0x00ff00ff")
    A("s_mov_b32 exec_hi, 0x00ff00ff")
    A(f"buffer_store_short v{F}, v{a_out}, {srd(sO)}, s{s_t0} offen {OSC}")
    if EUP in (0, 1):
        A(f"s_cmp_lg_u32 s{s_f}, 0")
        A("s_cbranch_scc1 L_fin")
        C("every workgroup has published, hence read, the epoch word: advance it")
        A("s_mov_b64 exec, 1")
        A(f"v_mov_b32 v{T}, s{s_tag32}")
        A(f"v_mov_b32 v{T+1}, 0")
        A(f"buffer_store_dword v{T}, v{T+1}, {srd(sWS)}, 0 offen offset:{WS_E}" + (" sc1" if EUP == 0 else ""))
    L("L_fin")
    stamp("end")
    if diag:
        A("s_mov_b64 exec, 1")
        A("s_waitcnt lgkmcnt(0)")
        if diag == 2:
            A("s_sleep 100")
        A(f"s_lshl2_add_u32 s{s_t0}, s2, s{s_w}")
        A(f"s_lshl_b32 s{s_t0}, s{s_t0}, 5")
        A(f"s_add_u32 s{s_t0}, s{s_t0}, {WS_DIAG}")
        for i in range(8):
            A(f"v_mov_b32 v{v_sc+40+i}, s{s_st+2*i}")
        A(f"v_mov_b32 v{T+3}, 0")
        A(f"buffer_store_dwordx4 {vr(v_sc+40,4)}, v{T+3}, {srd(sWS)}, s{s_t0} offen")
        A(f"buffer_store_dwordx4 {vr(v_sc+44,4)}, v{T+3}, {srd(sWS)}, s{s_t0} offen offset:16")
    L("L_end")
    A("s_endpgm")

    L("L_h2switch")
    C("not complete behind this L2: add this wave's own line to the written-through copy and read that from now on")
    A("s_waitcnt vmcnt(0)")
    A("s_mov_b32 exec_lo, 0x00030003")
    A("s_mov_b32 exec_hi, 0x00030003")
    A(f"buffer_store_dwordx4 {vr(v_d+4,4)}, v{a_p2}, {srd(sWS)}, s{s_t2} offen sc1")
    A("s_mov_b64 exec, -1")
    A(f"s_add_u32 s{s_h2get}, s{s_h2get}, {WS_P2-WS_P1}")
    A("s_waitcnt vmcnt(0)")
    A("s_branch L_h2poll")
    for label, back, loads in (("L_lretry", "L_lcheck", lambda: lamloads(False)), ("L_qretry", "L_qcheck", lambda: qloads(False))):
        L(label)
        spin_guard()
        loads()
        A("s_waitcnt vmcnt(0)")
        A(f"s_branch {back}")

    acc = (NV + 3) // 4 * 4
    g.o.append('.section .rodata,"a"')
    g.o.append(".p2align 6")
    g.o.append(f".amdhsa_kernel {KNAME}")
    g.o.append(f"  .amdhsa_next_free_vgpr {acc+NA}")
    g.o.append("  .amdhsa_next_free_sgpr 102")
    g.o.append(f"  .amdhsa_accum_offset {acc}")
    g.o.append("  .amdhsa_group_segment_fixed_size 0")
    g.o.append("  .amdhsa_kernarg_size 112")
    g.o.append("  .amdhsa_user_sgpr_count 2")
    g.o.append("  .amdhsa_user_sgpr_kernarg_segment_ptr 1")
    g.o.append("  .amdhsa_system_sgpr_workgroup_id_x 1")
    g.o.append("  .amdhsa_float_denorm_mode_32 3")
    g.o.append(".end_amdhsa_kernel")
    gen.log = log
    return "\n".join(g.o) + "\n"


if __name__ == "__main__":
    kw = {}
    for a in sys.argv[2:]:
        k, v = a.split("=")
        kw[k] = eval(v)
    src = gen(**kw)
    open(sys.argv[1], "w").write(src)
```
